```python
import torch

def _softmax(x, axis=-1):
    return torch.softmax(x, dim=axis)
def _gelu(x):
    return torch.nn.functional.gelu(x, approximate="tanh")
def _silu(x):
    return torch.nn.functional.silu(x)
def _sigmoid(x):
    return torch.sigmoid(x)
def _layernorm(x, axis=-1, eps=1e-5):
    m = x.mean(dim=axis, keepdim=True)
    v = x.var(dim=axis, keepdim=True, unbiased=False)
    return (x - m) / torch.sqrt(v + eps)
def _scatter_add(tgt, idx, src, axis=0):
    return tgt.clone().index_add_(axis, idx, src)
def _segment_sum(src, seg, n):
    out = torch.zeros((n,) + src.shape[1:], dtype=src.dtype)
    return out.index_add_(0, seg, src)
def _pad(x, pw):
    flat = tuple(v for pair in reversed(pw) for v in pair)
    return torch.nn.functional.pad(x, flat)

kernel_name = 'recurrent_scan__compressed_kv_cla__dense_activation_gelu__decode'

def setup_inputs():

    _w = (lambda a: (lambda t: t.to(torch.bfloat16) if t.is_floating_point() else t)(torch.as_tensor(a)))
    def _A_setup():
        B, H, Sq, Sk, D, M = 1, 32, 1, 8192, 192, 640
        Dc = 4 * D
        return {
            "x": _w((lambda *s: torch.randn(*s, dtype=torch.bfloat16) * 0.1)(B, Sq, M)),
            "c_kv": _w((lambda *s: torch.randn(*s, dtype=torch.bfloat16) * 3.2)(B, Sk, Dc)),
            "w_q": _w((lambda *s: torch.randn(*s, dtype=torch.bfloat16) * 0.8)(M, H, D) * (M ** -0.5)),
            "w_uk": _w((lambda *s: torch.randn(*s, dtype=torch.bfloat16) * 0.8)(Dc, H, D) * (Dc ** -0.5)),
            "w_uv": _w((lambda *s: torch.randn(*s, dtype=torch.bfloat16) * 3.2)(Dc, H, D) * (Dc ** -0.5)),
            "w_o": _w((lambda *s: torch.randn(*s, dtype=torch.bfloat16) * 3.2)(H, D, M) * ((H * D) ** -0.5)),
        }
    _A_in = _A_setup()

    def _B_setup():
        B, S, D, F = 1, 1, 640, 1536
        return {
            "x": _w((lambda *s: torch.randn(*s, dtype=torch.bfloat16) * 0.1)(B, S, D)),
            "w1": _w((lambda *s: torch.randn(*s, dtype=torch.bfloat16) * 3.2)(D, F) * (D ** -0.5)),
            "b1": _w((lambda *s: torch.randn(*s, dtype=torch.bfloat16) * 3.2)(F) * 0.01),
            "w2": _w((lambda *s: torch.randn(*s, dtype=torch.bfloat16) * 3.2)(F, D) * (F ** -0.5)),
            "b2": _w((lambda *s: torch.randn(*s, dtype=torch.bfloat16) * 3.2)(D) * 0.01),
        }
    _B_in = _B_setup()

    return {
        "A_x": _A_in["x"],
        "A_c_kv": _A_in["c_kv"],
        "A_w_q": _A_in["w_q"],
        "A_w_uk": _A_in["w_uk"],
        "A_w_uv": _A_in["w_uv"],
        "A_w_o": _A_in["w_o"],
        "B_x": _B_in["x"],
        "B_w1": _B_in["w1"],
        "B_b1": _B_in["b1"],
        "B_w2": _B_in["w2"],
        "B_b2": _B_in["b2"],
    }

def reference(A_x, A_c_kv, A_w_q, A_w_uk, A_w_uv, A_w_o, B_x, B_w1, B_b1, B_w2, B_b2):
    def _A_ref(x, c_kv, w_q, w_uk, w_uv, w_o):
        B, Sq, M = x.shape[0], x.shape[1], x.shape[2]
        Sk = c_kv.shape[1]
        H, D = w_q.shape[1], w_q.shape[2]
        q = torch.einsum("bqm,mhd->bhqd", x, w_q)
        k = torch.einsum("bkc,chd->bhkd", c_kv, w_uk)
        v = torch.einsum("bkc,chd->bhkd", c_kv, w_uv)
        scores = torch.einsum("bhqd,bhkd->bhqk", q, k) * (D ** -0.5)
        off = Sk - Sq
        qi = torch.arange(Sq)[:, None]
        kj = torch.arange(Sk)[None, :]
        cmask = kj <= (qi + off)
        scores = torch.where(cmask[None, None], scores, -1e9)
        p = _softmax(scores, axis=-1)
        ctx = torch.einsum("bhqk,bhkd->bhqd", p, v)
        return torch.einsum("bhqd,hdm->bqm", ctx, w_o)

    def _B_ref(x, w1, b1, w2, b2):
        h = torch.einsum("bsd,df->bsf", x, w1) + b1
        h = _gelu(h)
        return torch.einsum("bsf,fd->bsd", h, w2) + b2

    x = A_x
    xn = _layernorm(x, axis=-1)
    s = _A_ref(xn, A_c_kv, A_w_q, A_w_uk, A_w_uv, A_w_o)
    g = _silu(_B_ref(xn, B_w1, B_b1, B_w2, B_b2))
    return x + s * g
```

```python
import re
TRANS = ("v_exp_f32","v_log_f32","v_rcp_f32","v_rsq_f32","v_sqrt_f32","v_sin_f32","v_cos_f32")
def regs_of(op):
    op = op.strip()
    op = op.lstrip("-")
    if op.startswith("abs(") : op = op[4:-1]
    if op.startswith("|"): op = op.strip("|")
    m = re.fullmatch(r"([vsa])\[(\d+):(\d+)\]", op)
    if m: return {f"{m.group(1)}{i}" for i in range(int(m.group(2)), int(m.group(3))+1)}
    m = re.fullmatch(r"([vsa])(\d+)", op)
    if m: return {op}
    if op in ("vcc","vcc_lo","vcc_hi"): return {"vcc"}
    if op in ("exec","exec_lo","exec_hi"): return {"exec"}
    if op == "m0": return {"m0"}
    return set()
class I:
    def __init__(s, text):
        s.text = text
        t = text.split(";")[0].strip()
        s.label = t[:-1] if t.endswith(":") else None
        s.dir = t.startswith(".") or t == ""
        s.mn = ""; s.w=set(); s.r=set(); s.kind=None; s.dpp=False; s.ops=[]
        if s.label or s.dir: return
        p = t.split(None,1); s.mn = p[0]
        rest = p[1] if len(p)>1 else ""
        ops=[]; cur=""; d=0
        for ch in rest:
            if ch in "[(" : d+=1
            if ch in "])" : d-=1
            if ch=="," and d==0: ops.append(cur); cur=""
            else: cur+=ch
        if cur.strip(): ops.append(cur)
        mods=""
        if ops:
            last = ops[-1].strip().split(None,1)
            ops[-1]=last[0]; mods = last[1] if len(last)>1 else ""
        ops=[o.strip() for o in ops]; s.ops=ops; s.mods=mods
        R=[regs_of(o) for o in ops]
        mn=s.mn
        u=lambda l: set().union(*l) if l else set()
        if mn.startswith("v_mfma"):
            s.kind="mfma"; s.w=R[0]; s.ab=R[1]|R[2]; s.c=R[3]; s.r=s.ab|s.c
            s.passes = 8 if "32x32" in mn else 4
        elif mn.startswith("v_"):
            s.kind="valu"; s.dpp = "_dpp" in mn
            if "permlane" in mn: s.w=R[0]|R[1]; s.r=R[0]|R[1]
            elif mn.startswith("v_cmp"):
                s.w=set(R[0]); s.r=u(R[1:])
                if mn.startswith("v_cmpx"): s.w|={"exec"}
            elif mn.startswith(("v_add_co","v_sub_co","v_addc_co")): s.w=R[0]|R[1]; s.r=u(R[2:])
            else:
                s.w=R[0]; s.r=u(R[1:])
                if mn.startswith(("v_fmac","v_dot2c","v_writelane")): s.r|=R[0]
            s.trans = mn.split("_e32")[0].split("_e64")[0] in TRANS
        elif mn.startswith(("buffer_","global_")):
            s.kind="vmem"; s.lds = (" lds" in " "+mods) or "_lds_" in mn
            if "load" in mn and not s.lds: s.w=R[0]; s.r=u(R[1:]); s.data=set()
            elif "load" in mn: s.r=u(R)|{"m0"}; s.data=set()
            elif "wbl2" in mn: s.data=set()
            else:
                s.r=u(R); s.data = R[0] if mn.startswith("buffer_") else R[1]
            s.wide = mn.endswith(("x3","x4")) and "store" in mn
        elif mn.startswith("ds_"):
            s.kind="ds"
            if "read" in mn or "permute" in mn or "swizzle" in mn or "_rtn" in mn: s.w=R[0]; s.r=u(R[1:])
            else: s.r=u(R)
        elif mn.startswith("s_"):
            s.kind="salu"
            if mn.startswith(("s_cmp","s_bitcmp","s_cbranch","s_branch","s_waitcnt","s_nop","s_barrier","s_endpgm","s_sleep","s_setprio","s_setpc")): s.r=u(R)
            else: s.w=R[0] if R else set(); s.r=u(R[1:])
            if "saveexec" in mn: s.w|={"exec"}
    def states(s):
        if s.label or s.dir: return 0
        if s.mn=="s_nop": return int(s.ops[0],0)+1
        return 1
def need(p, c):
    n=0
    isv=lambda S:{x for x in S if x[0] in "va" and x!="vcc"}
    iss=lambda S:{x for x in S if x[0]=="s" or x=="vcc"}
    if p.kind=="valu":
        wv=isv(p.w); ws=iss(p.w)
        if c.kind=="mfma" and wv & c.r: n=max(n,2)
        if c.kind=="valu":
            if "permlane" in c.mn and wv & c.r: n=max(n,2)
            if c.dpp and wv & c.r: n=max(n,2)
            if c.mn.startswith(("v_readlane","v_readfirstlane")) and wv & c.r: n=max(n,1)
            if p.trans and not c.trans and wv & c.r: n=max(n,1)
            if p.trans and c.trans and wv & c.r: n=max(n,1)
            if ws & c.r: n=max(n,2)
            if c.mn.startswith(("v_readlane","v_writelane")) and ws & c.r: n=max(n,4)
        if c.kind=="vmem" and ws & c.r: n=max(n,5)
        if "exec" in p.w:
            if c.kind=="mfma" or (c.kind=="valu" and ("permlane" in c.mn or "lane" in c.mn)): n=max(n,4)
            if c.kind=="valu" and c.dpp: n=max(n,5)
    if p.kind=="mfma":
        P=p.passes
        big={4:8,8:12}[P]; ovl={4:6,8:10}[P]; war={4:3,8:7}[P]
        if c.kind=="mfma":
            if p.w & c.ab: n=max(n,big)
            if p.w & c.c and not (p.w==c.c and c.mn==p.mn): n=max(n,ovl)
            if p.w & c.w and not (p.w==c.c): n=max(n,ovl)
        elif c.kind in("valu","vmem","ds"):
            if p.w & (c.r|c.w): n=max(n,big)
            if c.kind=="valu" and isv(p.c) & c.w: n=max(n,war)
    if p.kind=="salu" and "m0" in p.w and c.kind=="vmem" and c.lds: n=max(n,1)
    if p.kind=="vmem" and getattr(p,"wide",False):
        if c.kind=="valu" and p.data & c.w: n=max(n,2)
        elif c.kind in("ds","vmem","mfma") and p.data & c.w: n=max(n,1)
    return n
class Asm:
    def __init__(s): s.L=[]; s.n=0
    def __call__(s, text):
        for ln in text.split("\n"):
            ln=ln.strip()
            if ln: s.L.append(ln)
    def lab(s, base="L"):
        s.n+=1; return f"{base}_{s.n}"
    def finish(s, verbose=False):
        ins=[I(t) for t in s.L]
        out=[]; added=0
        for c in ins:
            if c.kind:
                d=0; req=0
                for p in reversed(out):
                    if p.kind:
                        if p.mn in("s_branch","s_endpgm","s_setpc_b64"): break
                        r=need(p,c)-d
                        if r>req: req=r
                    d+=p.states()
                    if d>=24: break
                if req>0:
                    out.append(I(f"s_nop {req-1}")); added+=1
            out.append(c)
        pos={x.label:i for i,x in enumerate(out) if x.label}
        for i,b in enumerate(out):
            if b.mn.startswith(("s_cbranch","s_branch")) and b.ops[0] in pos:
                t=pos[b.ops[0]]
                d0=0
                for c in out[t:t+30]:
                    if c.kind:
                        d=d0
                        for p in reversed(out[max(0,i-30):i+1]):
                            if p.kind and p is not b:
                                if p.mn in("s_branch","s_endpgm","s_setpc_b64"): break
                                if need(p,c)>d: raise SystemExit(f"hazard across branch {b.text}: {p.text} -> {c.text}")
                            d+=p.states()
                            if d>=24: break
                        if c.mn in("s_branch","s_endpgm","s_setpc_b64"): break
                    d0+=c.states()
                    if d0>=24: break
        if verbose: print("nops added", added, "instrs", sum(1 for x in out if x.kind))
        return "\n".join(("" if (x.label or x.dir) else "    ")+x.text for x in out)
```

```python
import sys, math, struct
from asmlib import Asm
NAME = "recurrent_scan__compressed_kv_cla__dense_activation_gelu__decode"
def f2u(x): return struct.unpack("<I", struct.pack("<f", x))[0]

EPOCH=0; FLG=0x1000; QP=0x10000; EP=0x40000; HP=0x70000
G=0x90000; QA=G; ST=G+0xC000; OP=G+0x1C000; YP=G+0x30000
REC=0xD0000; RS=8448; DBG=0x300000; WSSIZE=0x400000
R1=0; R2=49152; R3=R2+49152+128; SCR=R3+36864
XB=SCR; VEC1A=XB+4096; VEC1F=VEC1A+192; VEC1B=VEC1F+128; VEC2A=VEC1B+192; VEC2B=VEC2A+384
FLAGS=(VEC2B+384+255)//256*256
FN = ["CNT","B","V1A","V2A","CLR","X0","X1","V1B","V2B","RDWQ","RDUK","RDA","PUBA","PUBC","PUBD","PUBE"]
F = {n:256*i for i,n in enumerate(FN)}
LDS_BYTES = FLAGS+256*len(FN)

DEF = dict(T=18, TL=18, nt="nt", diag=False, wsb=0, thrB1=90, thrB2=114, thrF=24, pref=True, budget=400000, safe=False)

def gen(**kw):
    P = dict(DEF); P.update(kw)
    T=P["T"]; TL=P["TL"]; NT=P["nt"]; diag=P["diag"]
    a = Asm()
    far=[]
    sW,sX,sY,sG,sJ,sB,sV = "s34","s35","s36","s37","s38","s39","s41"
    sBud="s42"; WS="s[28:31]"; SA="s[44:47]"; SB="s[48:51]"
    nst=[0]
    def stamp(i):
        if diag: a(f"s_memrealtime s[{64+2*i}:{65+2*i}]")
    def srd(base, ptr, size):
        a(f"s_mov_b32 s{base}, s{ptr}\ns_mov_b32 s{base+1}, s{ptr+1}\ns_mov_b32 s{base+2}, {size}\ns_mov_b32 s{base+3}, 0x20000")
    vLane="v0"; vL4="v1"; vOne="v2"; vTmp="v3"; vN="v4"; vGl="v5"
    def spin(l):
        a(f"{l}:")
        if P["safe"]: a("s_sub_u32 s99, s99, 1\ns_cbranch_scc1 L_fin")
    def wait_flag(name, thr):
        l=a.lab("WF")
        spin(l)
        a(f"ds_read_b32 {vTmp}, {vL4} offset:{F[name]}\ns_waitcnt lgkmcnt(0)\nv_cmp_gt_u32 vcc, {thr}, {vTmp}\ns_cbranch_vccnz {l}")
    def sig(name, v=vOne):
        a(f"ds_add_u32 {vL4}, {v} offset:{F[name]}")
    def loop_head(base):
        l=a.lab(base); g=a.lab("GU"); ok=a.lab("OK")
        a(f"{l}:\ns_sub_u32 {sBud}, {sBud}, 1\ns_cbranch_scc1 {g}")
        far.append(f"{g}:\ns_mov_b32 {sBud}, 0\ns_mov_b64 exec, -1\ns_nop 7\ns_branch {ok}")
        return l, ok
    def vr(b,n): return f"v[{b}:{b+n-1}]"
    def tag_finish():
        a("s_waitcnt lgkmcnt(0)\ns_add_u32 s32, s32, 0x7f4a7c15\ns_addc_u32 s33, s33, 0x9e3779b9")
    def xreduce(op, v, t):
        a(f"v_mov_b32 {t}, {v}\nv_permlane16_swap_b32 {v}, {t}\n{op} {v}, {v}, {t}")
        a(f"v_mov_b32 {t}, {v}\nv_permlane32_swap_b32 {v}, {t}\n{op} {v}, {v}, {t}")
    DP="row_mask:0xf bank_mask:0xf"
    def rowreduce(op, v, steps=("quad_perm:[1,0,3,2]","quad_perm:[2,3,0,1]","row_half_mirror","row_mirror")):
        for s in steps: a(f"{op}_dpp {v}, {v}, {v} {s} {DP}")

    a(f"s_cmp_ge_u32 s2, 256\ns_cbranch_scc1 L_end")
    if diag:
        for i in range(1,16): a(f"s_mov_b32 s{64+2*i}, 0")
    stamp(0)
    if P["safe"]: a("s_mov_b32 s99, 2000000")
    a("s_load_dwordx16 s[4:19], s[0:1], 0\ns_load_dwordx8 s[20:27], s[0:1], 64\ns_load_dwordx2 s[28:29], s[0:1], 104")
    a(f"v_lshrrev_b32 v1, 6, v0\nv_and_b32 v0, 63, v0")
    a(f"s_and_b32 {sX}, s2, 7\nv_readfirstlane_b32 {sW}, v1\ns_lshr_b32 {sY}, s2, 3\ns_lshl_b32 {sB}, {sX}, 5\ns_or_b32 {sB}, {sB}, {sY}")
    a(f"s_lshr_b32 {sG}, {sB}, 3\ns_and_b32 {sJ}, {sY}, 7")
    a(f"s_and_b32 {sV}, {sG}, 3\ns_lshl2_add_u32 {sV}, {sJ}, {sV}\ns_sub_u32 {sV}, {sV}, 20")
    a(f"v_lshlrev_b32 {vL4}, 2, {vLane}\nv_add_u32 {vL4}, {FLAGS}, {vL4}")
    a(f"s_cmp_eq_u32 {sW}, 4\ns_cbranch_scc0 L_notloader")

    vW,vK,vF,vO,vC,vT,vA0,vA1,vA2,vP,vTR = "v6","v7","v8","v9","v10","v11","v12","v13","v14","v15","v16"
    a("s_setprio 3")
    a(f"v_lshrrev_b32 {vP}, 3, {vLane}\nv_and_b32 {vT}, 6, {vP}\nv_xor_b32 {vTR}, {vT}, {vLane}\nv_and_b32 {vTR}, 7, {vTR}\nv_lshlrev_b32 {vTR}, 4, {vTR}")
    a(f"v_mul_u32_u24 {vK}, 12288, {vP}\nv_add_u32 {vW}, {vK}, {vTR}")
    a(f"s_mul_i32 s52, {sJ}, {80*12288}\ns_mul_i32 s53, {sG}, 384\ns_add_u32 s52, s52, s53")
    a(f"s_mov_b32 m0, {R2}\ns_mov_b32 s46, {640*12288}\ns_mov_b32 s47, 0x20000\ns_mov_b32 s51, 0x20000")
    a(f"s_movk_i32 s56, 896\ns_movk_i32 s57, 1280")
    a("s_waitcnt lgkmcnt(0)\ns_mov_b32 s44, s8\ns_mov_b32 s45, s9")
    def seg384(srdq, vaddr, soff, step, m0end, thr, xor=False, d1="s56", d2="s57"):
        l=a.lab("SG")
        a(f"{l}:")
        v=vaddr
        if xor:
            a(f"v_xor_b32 {vT}, s55, {vaddr}\ns_add_u32 s55, s55, 32\ns_and_b32 s55, s55, 0x60"); v=vT
        if thr:
            a(f"s_waitcnt vmcnt({thr-3})\nds_write_b32 {vL4}, {vC} offset:{F['CNT']}")
        a(f"buffer_load_dwordx4 {v}, {srdq}, {soff} offen {NT} lds\ns_add_u32 m0, m0, {d1}")
        if thr: a(f"v_add_u32 {vC}, 3, {vC}")
        a(f"buffer_load_dwordx4 {v}, {srdq}, {soff} offen offset:128 {NT} lds\ns_add_u32 m0, m0, {d1}")
        a(f"buffer_load_dwordx4 {v}, {srdq}, {soff} offen offset:256 {NT} lds\ns_add_u32 m0, m0, {d2}")
        a(f"s_add_u32 {soff}, {soff}, {step}\ns_cmp_lg_u32 m0, {m0end}\ns_cbranch_scc1 {l}")
    seg384(SA, vW, "s52", 98304, R2+30720, None)
    stamp(1)
    a(f"v_bfe_u32 {vT}, {vLane}, 4, 1\nv_xor_b32 {vT}, {vT}, {vLane}\nv_and_b32 {vT}, 7, {vT}\nv_lshl_add_u32 {vK}, {vT}, 4, {vK}")
    a(f"s_mul_i32 s52, {sJ}, {96*12288}\ns_add_u32 s52, s52, s53\ns_mov_b32 s54, s52\ns_mov_b32 s55, 0")
    a(f"s_mov_b32 s44, s10\ns_mov_b32 s45, s11\ns_mov_b32 s46, {768*12288}\ns_mov_b32 m0, {R3}")
    a(f"v_mov_b32 {vC}, {30-(T-3)}")
    a("s_barrier")
    seg384(SA, vK, "s52", 98304, R3+36864, T, xor=True)
    stamp(2)
    a(f"v_lshlrev_b32 {vA0}, 4, {vLane}\nv_lshrrev_b32 {vT}, 5, {vLane}\nv_lshlrev_b32 {vT}, 4, {vT}\nv_xor_b32 {vA1}, {vA0}, {vT}\nv_xor_b32 {vA2}, 16, {vA0}")
    a(f"s_mul_i32 s52, {sB}, 49152\ns_mov_b32 s55, 0\ns_mov_b32 s48, s6\ns_mov_b32 s49, s7\ns_mov_b32 s50, {8192*1536}\ns_mov_b32 m0, {R1}")
    l=a.lab("SA")
    a(f"{l}:\nv_xor_b32 v17, s55, {vA0}\nv_xor_b32 v18, s55, {vA1}\nv_xor_b32 v19, s55, {vA2}")
    a(f"s_waitcnt vmcnt({T-3})\nds_write_b32 {vL4}, {vC} offset:{F['CNT']}")
    a(f"buffer_load_dwordx4 v17, {SB}, s52 offen {NT} lds\nbuffer_load_dwordx4 v18, {SB}, s52 offen offset:1024 {NT} lds\nbuffer_load_dwordx4 v19, {SB}, s52 offen offset:2048 {NT} lds")
    a(f"v_add_u32 {vC}, 3, {vC}\ns_add_u32 s55, s55, 32\ns_and_b32 s55, s55, 0xe0\ns_add_u32 s52, s52, 3072\ns_add_u32 m0, m0, 3072")
    a(f"s_cmp_lg_u32 m0, {R1+49152}\ns_cbranch_scc1 {l}")
    stamp(3)
    a(f"s_mov_b32 s44, s12\ns_mov_b32 s45, s13\ns_mov_b32 m0, {R3}")
    if TL!=T: a(f"v_add_u32 {vC}, {T-TL}, {vC}")
    wait_flag("RDUK",3)
    seg384(SA, vW, "s54", 98304, R3+24576, TL)
    stamp(4)
    a(f"v_mul_u32_u24 {vO}, 1280, {vP}\nv_add_u32 {vO}, {vO}, {vTR}")
    a(f"s_cmp_lt_u32 {sV}, 10\ns_cbranch_scc0 L_now1")
    a(f"v_mul_u32_u24 {vF}, 3072, {vP}\nv_add_u32 {vF}, {vF}, {vTR}")
    a(f"s_mul_i32 s52, {sV}, {64*3072}\ns_mul_i32 s53, {sX}, 384\ns_add_u32 s52, s52, s53")
    a(f"s_mov_b32 s48, s18\ns_mov_b32 s49, s19\ns_mov_b32 s50, {640*3072}\ns_mov_b32 m0, {R1+1024}")
    wait_flag("RDA",4)
    seg384(SB, vF, "s52", 24576, R1+1024+49152, TL, d1="1920", d2="2304")
    a(f"s_mov_b32 m0, {R3+24576}")
    a("L_now1:")
    seg384(SA, vW, "s54", 98304, R3+36864, TL)
    stamp(5)
    a(f"s_mov_b32 m0, {R1}\ns_cmp_lt_u32 {sJ}, 5\ns_cbranch_scc0 L_nowo")
    a(f"s_mul_i32 s52, {sG}, 245760\ns_lshl_b32 s53, {sJ}, 8\ns_add_u32 s52, s52, s53")
    a(f"s_mov_b32 s48, s14\ns_mov_b32 s49, s15\ns_mov_b32 s50, {6144*1280}")
    wait_flag("RDA",4)
    l=a.lab("SO")
    a(f"{l}:")
    for k in range(6):
        if k%3==0: a(f"s_waitcnt vmcnt({TL-3})\nds_write_b32 {vL4}, {vC} offset:{F['CNT']}")
        if k%2==0:
            a(f"buffer_load_dwordx4 {vO}, {SB}, s52 offen {NT} lds\ns_add_u32 m0, m0, s56")
        else:
            a(f"buffer_load_dwordx4 {vO}, {SB}, s52 offen offset:128 {NT} lds\ns_add_u32 m0, m0, 1152\ns_add_u32 s52, s52, 10240")
        if k%3==0: a(f"v_add_u32 {vC}, 3, {vC}")
    a(f"s_cmp_lg_u32 m0, {R1+49152}\ns_cbranch_scc1 {l}\ns_branch L_drain")
    a("L_nowo:")
    a(f"s_cmp_lt_u32 {sV}, 10\ns_cbranch_scc0 L_drain")
    a(f"s_mul_i32 s52, {sX}, 245760\ns_lshl_b32 s53, {sV}, 7\ns_add_u32 s52, s52, s53")
    a(f"s_mov_b32 s48, s22\ns_mov_b32 s49, s23\ns_mov_b32 s50, {1536*1280}")
    l=a.lab("S2")
    a(f"{l}:\ns_waitcnt vmcnt({TL-3})\nds_write_b32 {vL4}, {vC} offset:{F['CNT']}")
    for k in range(3):
        a(f"buffer_load_dwordx4 {vO}, {SB}, s52 offen {NT} lds\ns_add_u32 m0, m0, 2048\ns_add_u32 s52, s52, 10240")
    a(f"v_add_u32 {vC}, 3, {vC}\ns_cmp_lg_u32 m0, {R1+49152}\ns_cbranch_scc1 {l}")
    a("L_drain:")
    stamp(6)
    a(f"v_mov_b32 {vC}, 0xff\ns_waitcnt vmcnt(0)\nds_write_b32 {vL4}, {vC} offset:{F['CNT']}")
    stamp(7)
    a("s_branch L_fin")

    a("L_notloader:")
    a(f"v_and_b32 {vN}, 15, {vLane}\nv_lshrrev_b32 {vGl}, 4, {vLane}\nv_mov_b32 {vOne}, 1\ns_mov_b32 {sBud}, {P['budget']}")
    a(f"s_mov_b32 s30, {WSSIZE}\ns_mov_b32 s31, 0x20000\ns_waitcnt lgkmcnt(0)")
    if P["wsb"]: a(f"s_add_u32 s28, s28, {P['wsb']}\ns_addc_u32 s29, s29, 0")
    a(f"s_load_dwordx2 s[32:33], s[28:29], {EPOCH}")
    a(f"s_cmp_eq_u32 {sW}, 5\ns_cbranch_scc1 L_w5\ns_cmp_eq_u32 {sW}, 6\ns_cbranch_scc1 L_w6\ns_cmp_eq_u32 {sW}, 7\ns_cbranch_scc1 L_w7")

    def trcore(dst, t):
        a(f"v_bfe_u32 {t}, {vLane}, 2, 3\nv_lshlrev_b32 {dst}, 7, {t}\nv_lshrrev_b32 {t}, 1, {t}\nv_lshl_add_u32 {dst}, {t}, 5, {dst}\nv_and_b32 {t}, 3, {vLane}\nv_lshl_add_u32 {dst}, {t}, 3, {dst}")
    MASKT=[f"s[{56+2*t}:{57+2*t}]" for t in range(4)]
    def masks():
        for t in range(4): a(f"s_mov_b32 s{56+2*t}, {0x00010001<<t}\ns_mov_b32 s{57+2*t}, {0x00010001<<t}")
    def publish4(acc, vS, vAddr, soff, imm=0):
        for t in range(4):
            a(f"s_mov_b64 exec, {MASKT[t]}\nv_cvt_pk_bf16_f32 v{vS}, v{acc+4*t}, v{acc+4*t+1}\nv_cvt_pk_bf16_f32 v{vS+1}, v{acc+4*t+2}, v{acc+4*t+3}")
        a(f"s_mov_b32 exec_lo, 0x000f000f\ns_mov_b32 exec_hi, 0x000f000f")
        a(f"buffer_store_dwordx4 {vr(vS,4)}, {vAddr}, {WS}, {soff} offen offset:{imm} sc1\ns_mov_b64 exec, -1")

    FR=64; QR=16; AC=160; vS=176
    vT1=[f"v{180+t}" for t in range(4)]; vVec="v184"; vPub="v185"; vU=["v186","v187"]; vA=[f"v{188+t}" for t in range(4)]
    vLin="v192"; vB=["v193","v194"]; vPl="v195"; vMl="v196"; vBp="v197"; vC4="v198"; vC2="v199"; vT6=["v200","v201"]; vCore="v202"; vSt="v203"; vXa="v204"
    sHH="s52"; sKH="s53"
    a(f"s_cmp_eq_u32 {sW}, 0\ns_cbranch_scc0 L_nz")
    a(f"v_lshlrev_b32 v6, 4, {vLane}\nv_add_u32 v6, {FLAGS}, v6\nv_mov_b32 v8, 0\nv_mov_b32 v9, 0\nv_mov_b32 v10, 0\nv_mov_b32 v11, 0")
    for i in range(len(FN)//4): a(f"ds_write_b128 v6, v[8:11] offset:{1024*i}")
    a("L_nz:")
    a(f"s_and_b32 {sHH}, {sW}, 1\ns_lshr_b32 {sKH}, {sW}, 1")
    masks()
    trcore(vCore, vTmp)
    a(f"v_lshrrev_b32 v6, 5, {vLane}")
    a(f"s_lshl_b32 s54, {sW}, 10\ns_add_u32 s54, s54, {R2}\nv_mul_u32_u24 v7, 3072, v6\nv_add3_u32 {vT1[0]}, {vCore}, v7, s54")
    for t in range(1,4): a(f"v_xor_b32 {vT1[t]}, {32*t}, {vT1[0]}")
    a(f"s_lshl_b32 s54, {sKH}, 10\ns_lshl_b32 s55, {sHH}, 6\nv_lshlrev_b32 v7, 11, v6\nv_add3_u32 {vT6[0]}, {vCore}, v7, s54\nv_xor_b32 {vT6[0]}, s55, {vT6[0]}\nv_xor_b32 {vT6[1]}, 32, {vT6[0]}")
    a(f"v_lshlrev_b32 {vVec}, 4, {vGl}\nv_add_u32 {vVec}, {VEC1A}, {vVec}")
    a(f"v_lshlrev_b32 {vPub}, 6, {vGl}\nv_lshl_add_u32 {vPub}, {vN}, 4, {vPub}")
    a(f"v_lshlrev_b32 {vLin}, 4, {vLane}")
    a(f"s_mul_i32 s54, {sW}, 12288\ns_add_u32 s54, s54, {R3}\nv_lshrrev_b32 v7, 2, {vN}\nv_mul_u32_u24 v7, 3072, v7\nv_and_b32 v8, 3, {vN}\nv_lshl_add_u32 v7, v8, 7, v7")
    a(f"v_lshrrev_b32 v8, 1, {vN}\nv_xor_b32 v8, v8, {vGl}\nv_lshlrev_b32 v8, 4, v8\nv_add3_u32 {vU[0]}, v7, v8, s54\nv_xor_b32 {vU[1]}, 64, {vU[0]}")
    a(f"s_mul_i32 s54, {sKH}, 768\nv_mul_u32_u24 v7, 1536, {vN}\nv_xor_b32 v8, {vN}, {vGl}\nv_lshlrev_b32 v8, 4, v8\nv_add3_u32 {vA[0]}, v7, v8, s54")
    for t in range(1,4): a(f"v_xor_b32 {vA[t]}, {64*t}, {vA[0]}")
    a(f"s_lshl_b32 s54, {sKH}, 6\ns_add_u32 s54, s54, {R2}\nv_mul_u32_u24 v7, {64*192+32}, {vGl}\nv_lshrrev_b32 v8, 2, {vN}\nv_mul_u32_u24 v8, 192, v8\nv_add3_u32 v7, v7, v8, s54\nv_and_b32 v8, 3, {vN}\nv_lshl_add_u32 {vB[0]}, v8, 3, v7")
    a(f"s_lshl_b32 s54, {sKH}, 5\ns_sub_u32 s54, 128, s54\nv_add_u32 {vB[1]}, s54, {vB[0]}")
    a(f"v_mul_u32_u24 v7, {2*RS}, {vGl}\nv_lshl_add_u32 {vPl}, {vN}, 4, v7")
    a(f"v_lshrrev_b32 v7, 2, {vN}\nv_lshlrev_b32 v7, 13, v7\nv_lshl_add_u32 {vSt}, v8, 3, v7\nv_lshl_add_u32 {vMl}, {vGl}, 6, {vSt}")
    a(f"v_lshrrev_b32 v7, 2, {vLane}\nv_lshl_add_u32 {vBp}, v8, 4, v7\nv_lshlrev_b32 {vBp}, 2, {vBp}")
    a(f"v_mul_u32_u24 v7, {8*RS}, v7\nv_lshl_add_u32 {vC4}, v8, 4, v7\nv_lshl_add_u32 {vC2}, v8, 3, v7")
    a(f"s_lshl_b32 s54, {sHH}, 11\ns_add_u32 s54, s54, {XB}\nv_add_u32 {vXa}, s54, {vLin}")
    tag_finish()
    a(f"v_mov_b32 v{vS+2}, s32\nv_mov_b32 v{vS+3}, s33")
    a("s_barrier")
    a(f"s_cmp_eq_u32 {sW}, 3\ns_cbranch_scc1 L_s3")
    a(f"s_mul_i32 s54, {sB}, 768\ns_lshl_b32 s55, {sW}, 8\ns_add_u32 s54, s54, s55\ns_add_u32 s54, s54, {QP}")
    wait_flag("V1A",1)
    for s in range(2): a(f"ds_read_b128 {vr(QR+4*s,4)}, {vVec} offset:{64*s}")
    a(f"ds_read_b64 {vr(QR+8,2)}, {vVec} offset:128\nv_mov_b64 {vr(QR+10,2)}, 0")
    for t in range(4): a(f"v_mov_b64 {vr(FR+12*t+10,2)}, 0")
    wait_flag("CNT",30)
    stamp(1)
    for t in range(4):
        for h in range(5): a(f"ds_read_b64_tr_b16 {vr(FR+12*t+2*h,2)}, {vT1[t]} offset:{2*h*3072}")
    sig("RDWQ")
    for t in range(4):
        a(f"s_waitcnt lgkmcnt({min(15,16-5*t)})" if t<3 else "s_waitcnt lgkmcnt(1)")
        a(f"v_mfma_f32_16x16x32_bf16 {vr(AC+4*t,4)}, {vr(FR+12*t,4)}, {vr(QR,4)}, 0")
        a(f"v_mfma_f32_16x16x32_bf16 {vr(AC+4*t,4)}, {vr(FR+12*t+4,4)}, {vr(QR+4,4)}, {vr(AC+4*t,4)}")
        a(f"v_mfma_f32_16x16x32_bf16 {vr(AC+4*t,4)}, {vr(FR+12*t+8,4)}, {vr(QR+8,4)}, {vr(AC+4*t,4)}")
    publish4(AC, vS, vPub, "s54")
    sig("PUBA")
    stamp(2)
    a(f"s_lshr_b32 s54, {sG}, 4\ns_mul_i32 s54, s54, 24576\ns_mul_i32 s55, {sJ}, 3\ns_add_u32 s55, s55, {sW}\ns_lshl_b32 s55, s55, 10\ns_add_u32 s54, s54, s55")
    a(f"s_and_b32 s55, {sG}, 15\ns_lshl_b32 s55, s55, 4\ns_add_u32 s54, s54, s55\ns_add_u32 s54, s54, {QA}")
    wait_flag("CNT",66)
    for s in range(6):
        for t in range(2): a(f"ds_read_b128 {vr(FR+8*s+4*t,4)}, {vU[s&1]} offset:{1024*(s>>1)+512*t}")
    sig("RDUK")
    wait_flag("CLR",1)
    def vec2_mfma(flag, thr, vec, wfirst):
        l=a.lab("V2")
        spin(l); a(f"ds_read_b32 {vTmp}, {vL4} offset:{F[flag]}")
        for s in range(6): a(f"ds_read_b128 {vr(QR+4*s,4)}, {vVec} offset:{vec-VEC1A+64*s}")
        a(f"s_waitcnt lgkmcnt(6)\nv_cmp_gt_u32 vcc, {thr}, {vTmp}\ns_cbranch_vccnz {l}")
        for s in range(6):
            a(f"s_waitcnt lgkmcnt({5-s})")
            for t in range(2):
                w_,q_=vr(FR+8*s+4*t,4),vr(QR+4*s,4)
                A_,B_=(w_,q_) if wfirst else (q_,w_)
                a(f"v_mfma_f32_16x16x32_bf16 {vr(AC+4*t,4)}, {A_}, {B_}, {vr(AC+4*t,4) if s else 0}")
    vec2_mfma("V2A",1,VEC2A,True)
    stamp(3)
    a(f"s_mov_b64 exec, {MASKT[0]}")
    for k in range(4): a(f"v_cvt_pk_bf16_f32 v{AC+8+k}, v{AC+2*k}, v{AC+2*k+1}")
    a(f"buffer_store_dwordx4 {vr(AC+8,4)}, {vLin}, {WS}, s54 offen sc1\ns_mov_b64 exec, -1")
    a("L_s3:")
    a(f"s_mul_i32 s43, {sHH}, 24576\ns_mul_i32 s55, {sKH}, 12288\ns_add_u32 s43, s43, s55\ns_add_u32 s43, s43, {QA}\ns_add_u32 s44, s43, 4096\ns_add_u32 s45, s43, 8192")
    wait_flag("CNT",90)
    for s in range(12): a(f"ds_read_b128 {vr(FR+4*s,4)}, {vA[s&3]} offset:{256*(s>>2)}")
    wait_flag("CLR",1)
    def qloads():
        for s in range(12): a(f"buffer_load_dwordx4 {vr(QR+4*s,4)}, {vLin}, {WS}, s{43+(s>>2)} offen offset:{1024*(s&3)} sc1")
    stamp(4)
    qloads()
    wait_flag("CNT",114)
    for s in range(12): a(f"ds_read_b128 {vr(FR+48+4*s,4)}, {vA[s&3]} offset:{24576+256*(s>>2)}")
    sig("RDA")
    a("s_waitcnt lgkmcnt(0)")
    stamp(5)
    a("s_branch L_s3m")
    l,ok=loop_head("S3")
    qloads()
    a("L_s3m:")
    for s in range(12):
        a(f"s_waitcnt vmcnt({11-s})")
        for kt in range(2):
            a(f"v_mfma_f32_16x16x32_bf16 {vr(AC+4*kt,4)}, {vr(FR+48*kt+4*s,4)}, {vr(QR+4*s,4)}, {vr(AC+4*kt,4) if s else 0}")
    a(f"s_mul_i32 s54, {sB}, {RS}\ns_lshl_b32 s55, {sHH}, 10\ns_add_u32 s54, s54, s55\ns_add_u32 s54, s54, {REC+6144}")
    a(f"s_lshl_b32 s46, {sB}, 5\ns_lshl_b32 s55, {sHH}, 15\ns_add_u32 s46, s46, s55\ns_add_u32 s46, s46, {ST}")
    a(f"v_cmp_u_f32 vcc, v{AC}, v{AC+4}\ns_cbranch_vccnz {l}\n{ok}:")
    stamp(6)
    a(f"s_cmp_eq_u32 {sKH}, 0\ns_cbranch_scc1 L_soft")
    a(f"s_lshl_b32 s55, {sHH}, 8\nv_add_u32 v6, s55, {vL4}")
    a(f"ds_write_b128 {vXa}, {vr(AC,4)}\nds_write_b128 {vXa}, {vr(AC+4,4)} offset:1024\nds_add_u32 v6, {vOne} offset:{F['X0']}\ns_branch L_s4")
    a("L_soft:")
    a(f"s_lshl_b32 s55, {sHH}, 8\nv_add_u32 v6, s55, {vL4}")
    l=a.lab("XW")
    spin(l); a(f"ds_read_b32 {vTmp}, v6 offset:{F['X0']}\nds_read_b128 {vr(AC+8,4)}, {vXa}\nds_read_b128 {vr(AC+12,4)}, {vXa} offset:1024")
    a(f"s_waitcnt lgkmcnt(0)\nv_cmp_gt_u32 vcc, 1, {vTmp}\ns_cbranch_vccnz {l}")
    for k in range(4): a(f"v_pk_add_f32 {vr(AC+2*k,2)}, {vr(AC+2*k,2)}, {vr(AC+8+2*k,2)}")
    a(f"v_max3_f32 v8, v{AC}, v{AC+1}, v{AC+2}\nv_max3_f32 v9, v{AC+3}, v{AC+4}, v{AC+5}\nv_max3_f32 v8, v8, v{AC+6}, v{AC+7}\nv_max_f32 v8, v8, v9")
    xreduce("v_max_f32","v8","v9")
    a("v_ceil_f32 v8, v8")
    for k in range(8): a(f"v_sub_f32 v{AC+k}, v{AC+k}, v8")
    for k in range(8): a(f"v_exp_f32 v{AC+k}, v{AC+k}")
    for k in range(4): a(f"v_cvt_pk_bf16_f32 v{AC+8+k}, v{AC+2*k}, v{AC+2*k+1}")
    a(f"buffer_store_dwordx4 {vr(AC+8,4)}, {vLin}, {WS}, s54 offen sc1")
    a(f"v_pk_add_f32 {vr(AC,2)}, {vr(AC,2)}, {vr(AC+2,2)}\nv_pk_add_f32 {vr(AC+4,2)}, {vr(AC+4,2)}, {vr(AC+6,2)}\nv_pk_add_f32 {vr(AC,2)}, {vr(AC,2)}, {vr(AC+4,2)}\nv_add_f32 v9, v{AC}, v{AC+1}")
    xreduce("v_add_f32","v9","v10")
    a(f"s_mov_b64 exec, 0xffff\nbuffer_store_dwordx2 v[8:9], {vSt}, {WS}, s46 offen sc1\ns_mov_b64 exec, -1")
    sig("PUBC")
    a("L_s4:")
    stamp(7)
    a(f"s_mul_i32 s43, {sG}, {8*RS}\ns_lshl_b32 s55, {sHH}, 10\ns_add_u32 s43, s43, s55\ns_add_u32 s43, s43, {REC+6144}\ns_add_u32 s44, s43, {RS}")
    a(f"s_lshl_b32 s45, {sG}, 8\ns_lshl_b32 s55, {sHH}, 15\ns_add_u32 s45, s45, s55\ns_add_u32 s45, s45, {ST}")
    a(f"s_lshl_b32 s46, {sHH}, 7\ns_add_u32 s46, s46, {sJ}\ns_mul_i32 s46, s46, {RS}\ns_mul_i32 s55, {sG}, 192\ns_add_u32 s46, s46, s55\ns_add_u32 s46, s46, {REC}")
    a(f"s_lshl_b32 s55, {sKH}, 5\ns_add_u32 s47, s46, s55\ns_add_u32 s46, s47, s55\ns_mov_b32 s48, 0x00800080\ns_mov_b32 s49, 0x437f0000")
    wait_flag("B",1)
    for s in range(8):
        for ct in range(3):
            for e2 in range(2):
                a(f"ds_read_b64_tr_b16 {vr(FR+12*s+4*ct+2*e2,2)}, {vB[ct>>1]} offset:{192*(32*(s>>2)+16*e2+4*(s&3))+32*(ct&1)}")
    wait_flag("PUBC",2)
    stamp(8)
    l,ok=loop_head("S4")
    a(f"buffer_load_dword v8, {vMl}, {WS}, s45 offen sc1\nbuffer_load_dword v9, {vMl}, {WS}, s45 offen offset:32 sc1")
    for s in range(8): a(f"buffer_load_dwordx4 {vr(QR+4*s,4)}, {vPl}, {WS}, s{43+(s>>2)} offen offset:{256*(s&3)} sc1")
    a(f"s_waitcnt vmcnt(8)\nv_cmp_u_f32 vcc, v8, v9\nv_max_f32 v10, v8, v9\ns_cbranch_vccnz {l}")
    xreduce("v_max_f32","v10","v11")
    a("v_sub_f32 v8, v10, v8\nv_sub_f32 v9, v10, v9\nv_min_f32 v8, s49, v8\nv_min_f32 v9, s49, v9\nv_cvt_u32_f32 v8, v8\nv_cvt_u32_f32 v9, v9\nv_mul_u32_u24 v8, s48, v8\nv_mul_u32_u24 v9, s48, v9")
    def pksub(s):
        a(f"s_waitcnt vmcnt({7-s})")
        for k in range(4): a(f"v_pk_sub_u16 v{QR+4*s+k}, v{QR+4*s+k}, v{8+(s>>2)} clamp")
    pksub(0)
    for s in range(8):
        mf=lambda ct: a(f"v_mfma_f32_16x16x32_bf16 {vr(AC+4*ct,4)}, {vr(FR+12*s+4*ct,4)}, {vr(QR+4*s,4)}, {vr(AC+4*ct,4) if s else 0}")
        q=QR+4*s
        if s==0: a(f"v_or3_b32 v12, v{q}, v{q+1}, v{q+2}\nv_or_b32 v12, v12, v{q+3}")
        mf(0)
        if s<7:
            a(f"s_waitcnt vmcnt({6-s})")
            a(f"v_pk_sub_u16 v{q+4}, v{q+4}, v{8+((s+1)>>2)} clamp\nv_pk_sub_u16 v{q+5}, v{q+5}, v{8+((s+1)>>2)} clamp")
        mf(1)
        if s<7: a(f"v_pk_sub_u16 v{q+6}, v{q+6}, v{8+((s+1)>>2)} clamp\nv_pk_sub_u16 v{q+7}, v{q+7}, v{8+((s+1)>>2)} clamp")
        mf(2)
        if s<7: a(f"v_or3_b32 v12, v12, v{q+4}, v{q+5}\nv_or3_b32 v12, v12, v{q+6}, v{q+7}")
    a(f"v_and_b32 v12, 0x80008000, v12\nv_cmp_ne_u32 vcc, 0, v12\ns_cbranch_vccnz {l}\n{ok}:")
    stamp(9)
    for k in range(6): a(f"v_cvt_pk_bf16_f32 v{QR+k}, v{AC+2*k}, v{AC+2*k+1}\nds_bpermute_b32 v{QR+8+k}, {vBp}, v{QR+k}")
    a(f"s_waitcnt lgkmcnt(2)\nbuffer_store_dwordx4 {vr(QR+8,4)}, {vC4}, {WS}, s46 offen sc1")
    a(f"s_waitcnt lgkmcnt(0)\nbuffer_store_dwordx2 {vr(QR+12,2)}, {vC2}, {WS}, s47 offen offset:128 sc1")
    sig("PUBD")
    stamp(10)
    a(f"s_cmp_eq_u32 {sW}, 3\ns_cbranch_scc1 L_s6")
    a(f"s_mul_i32 s54, {sB}, 768\ns_lshl_b32 s55, {sW}, 8\ns_add_u32 s54, s54, s55\ns_add_u32 s54, s54, {EP}")
    a(f"s_cmp_lt_u32 {sV}, 10\ns_cselect_b32 s55, 24, 0\ns_add_u32 s55, s55, 150")
    for t in range(4): a(f"v_add_u32 {vT1[t]}, {R3-R2}, {vT1[t]}")
    wait_flag("CNT","s55")
    for t in range(4):
        for h in range(6): a(f"ds_read_b64_tr_b16 {vr(FR+12*t+2*h,2)}, {vT1[t]} offset:{2*h*3072}")
    a("s_waitcnt lgkmcnt(0)")
    l=a.lab("V1")
    spin(l); a(f"ds_read_b32 {vTmp}, {vL4} offset:{F['V1B']}")
    for s in range(3): a(f"ds_read_b128 {vr(QR+4*s,4)}, {vVec} offset:{VEC1B-VEC1A+64*s}")
    a(f"s_waitcnt lgkmcnt(0)\nv_cmp_gt_u32 vcc, 1, {vTmp}\ns_cbranch_vccnz {l}")
    stamp(11)
    for t in range(4):
        for s in range(3):
            a(f"v_mfma_f32_16x16x32_bf16 {vr(AC+4*t,4)}, {vr(FR+12*t+4*s,4)}, {vr(QR+4*s,4)}, {vr(AC+4*t,4) if s else 0}")
    publish4(AC, vS, vPub, "s54")
    sig("PUBE")
    a("L_s6:")
    stamp(12)
    a(f"s_mul_i32 s54, {sG}, 2560\ns_lshl_b32 s55, {sJ}, 9\ns_add_u32 s54, s54, s55\ns_add_u32 s54, s54, {OP}")
    a(f"s_cmp_lt_u32 {sJ}, 5\ns_cbranch_scc1 L_s6go")
    a(f"s_cmp_lt_u32 {sV}, 10\ns_cbranch_scc0 L_fin\ns_cmp_lt_u32 {sW}, 2\ns_cbranch_scc0 L_fin")
    a(f"s_mul_i32 s54, {sX}, 2560\ns_lshl_b32 s55, {sV}, 8\ns_add_u32 s54, s54, s55\ns_add_u32 s54, s54, {YP}")
    a("L_s6go:")
    a(f"s_lshl_b32 s55, {sW}, 7\ns_add_u32 s54, s54, s55\nv_lshlrev_b32 v6, 2, {vLane}\ns_mov_b32 s56, 0xffff0000\ns_mov_b32 s57, 0")
    wait_flag("CNT",198)
    for s in range(6):
        for t in range(2):
            for e2 in range(2): a(f"ds_read_b64_tr_b16 {vr(FR+8*s+4*t+2*e2,2)}, {vT6[t]} offset:{(4*s+2*e2)*2048}")
    a("s_waitcnt lgkmcnt(0)")
    stamp(13)
    vec2_mfma("V2B",1,VEC2B,False)
    a(f"s_mov_b32 exec_hi, 0\nv_cndmask_b32 v7, v{AC}, v{AC+4}, s[56:57]\nbuffer_store_dword v7, v6, {WS}, s54 offen sc1")
    stamp(14)
    a("s_branch L_fin")

    GA=16; GD=32; GX=72
    def gather_setup(vOff):
        a(f"v_mul_u32_u24 {vOff}, 768, {vGl}\nv_lshl_add_u32 {vOff}, {vN}, 4, {vOff}")
        a(f"v_and_b32 v6, 1, {vN}\nv_lshlrev_b32 v6, 4, v6\nv_mov_b32 v7, 0x3f80\nv_lshlrev_b32 v6, v6, v7\nv_lshrrev_b32 v7, 1, {vN}")
        for k in range(6): a(f"v_cmp_eq_u32 vcc, {k}, v7\nv_cndmask_b32 v{GA+k}, 0, v6, vcc")
    def gather(nq, vOff, soffs, name):
        l,ok=loop_head(name)
        for q in range(nq):
            if q==2: a("s_mov_b32 exec_hi, 0")
            for u in range(3):
                a(f"buffer_load_dwordx4 {vr(GD+4*(3*q+u),4)}, {vOff}, {WS}, {soffs[q>>1]} offen offset:{3072*(q&1)+256*u} sc1")
        if nq==3: a("s_mov_b64 exec, -1")
        n=3*nq
        for k in range(n):
            a(f"s_waitcnt vmcnt({n-1-k})\nv_mfma_f32_16x16x16_bf16 {vr(GX,4)}, {vr(GA+2*(k%3),2)}, {vr(GD+4*k,2)}, {vr(GX,4) if k else 0}")
        for k in range(n): a(f"v_cmpx_eq_u64 vcc, s[32:33], {vr(GD+4*k+2,2)}")
        a(f"s_cmp_eq_u64 exec, -1\ns_mov_b64 exec, -1\ns_cbranch_scc0 {l}\n{ok}:")
    def vec2_write(vAddr, flag):
        a(f"s_mov_b32 exec_hi, 0xffff\nv_cvt_pk_bf16_f32 v{GX}, v{GX}, v{GX+1}\nv_cvt_pk_bf16_f32 v{GX+1}, v{GX+2}, v{GX+3}\nds_write_b64 {vAddr}, {vr(GX,2)}\ns_mov_b64 exec, -1")
        sig(flag)
    def vec2b_addr(dst):
        a(f"v_lshlrev_b32 {dst}, 7, {vGl}\nv_bfe_u32 v6, {vN}, 1, 1\nv_lshl_add_u32 {dst}, v6, 6, {dst}\nv_lshrrev_b32 v6, 2, {vN}\nv_lshl_add_u32 {dst}, v6, 4, {dst}\nv_and_b32 v6, 1, {vN}\nv_lshl_add_u32 {dst}, v6, 3, {dst}\nv_add_u32 {dst}, {VEC2B}, {dst}")

    a("L_w7:")
    if P["pref"]:
        a(f"s_getpc_b64 s[52:53]\nL_pc:\ns_sub_u32 s52, s52, L_pc-{NAME}_kernel\ns_subb_u32 s53, s53, 0\nv_lshlrev_b32 v6, 7, {vLane}")
        a("global_load_dword v8, v6, s[52:53]\nv_add_u32 v7, 8192, v6\nv_cmp_gt_u32 vcc, L_end-"+NAME+"_kernel, v7\ns_and_saveexec_b64 s[54:55], vcc\ns_cbranch_execz L_np\nglobal_load_dword v9, v7, s[52:53]\nL_np:\ns_mov_b64 exec, -1")
    a("s_setprio 2")
    gather_setup("v24")
    a(f"v_lshlrev_b32 v25, 7, {vGl}\nv_and_b32 v6, 3, {vN}\nv_lshl_add_u32 v25, v6, 5, v25\nv_lshrrev_b32 v6, 2, {vN}\nv_lshl_add_u32 v25, v6, 3, v25\nv_add_u32 v25, {VEC2A}, v25")
    vec2b_addr("v26")
    for t in range(3):
        a(f"v_add_u32 v6, {64*t}, {vLane}\nv_mul_u32_u24 v7, 0x5556, v6\nv_lshrrev_b32 v7, 18, v7\nv_mul_u32_u24 v7, {1536-192}, v7\nv_lshl_add_u32 v{28+t}, {vLane}, 4, v7")
    a(f"s_mul_i32 s54, {sG}, {8*768}\ns_add_u32 s55, s54, {EP}\ns_add_u32 s54, s54, {QP}")
    a(f"s_mov_b32 s56, {f2u(192**-0.5*math.log2(math.e))}\ns_mov_b32 s57, s56")
    srd(44, 6, 8192*1536)
    tag_finish()
    a("s_barrier")
    wait_flag("PUBA",3)
    stamp(1)
    gather(2,"v24",["s54"],"GA")
    stamp(2)
    a(f"v_pk_mul_f32 {vr(GX,2)}, {vr(GX,2)}, s[56:57]\nv_pk_mul_f32 {vr(GX+2,2)}, {vr(GX+2,2)}, s[56:57]")
    vec2_write("v25","V2A")
    for half in range(2):
        a(f"s_mul_i32 s52, {sG}, {256*1536}\ns_mul_i32 s53, {sJ}, 192\ns_add_u32 s52, s52, s53")
        if half: a(f"s_add_u32 s52, s52, {16*1536}")
        a(f"s_mov_b32 m0, {R2+half*3072}")
        wait_flag("CNT", P["thrB2"] if half else P["thrB1"])
        stamp(3+half)
        l=a.lab("SB")
        a(f"{l}:")
        for pp in range(2):
            for t in range(3): a(f"buffer_load_dwordx4 v{28+t}, {SA}, s52 offen offset:{1024*t} {NT} lds")
            a(f"s_add_u32 s52, s52, {32*1536}\ns_add_u32 m0, m0, {6144+32*pp}")
        a(f"s_cmp_lg_u32 m0, {R2+half*3072+49152+128}\ns_cbranch_scc1 {l}")
    a("s_waitcnt vmcnt(0)")
    sig("B")
    stamp(5)
    a(f"s_cmp_lt_u32 {sJ}, 5\ns_cbranch_scc1 L_w7e")
    a(f"s_cmp_lt_u32 {sV}, 10\ns_cbranch_scc1 L_fin\ns_cmp_lt_u32 {sX}, 2\ns_cbranch_scc0 L_fin\ns_movk_i32 s40, 16\ns_branch L_final")
    a("L_w7e:")
    wait_flag("PUBE",3)
    stamp(6)
    gather(2,"v24",["s55"],"GE")
    stamp(7)
    vec2_write("v26","V2B")
    a("s_branch L_fin")

    a("L_w5:")
    a(f"v_lshlrev_b32 v6, 4, {vLane}\nv_mov_b32 v8, -1\nv_mov_b32 v9, -1\nv_mov_b32 v10, -1\nv_mov_b32 v11, -1")
    a(f"s_mul_i32 s52, {sB}, {RS}\ns_add_u32 s52, s52, {REC}\ns_add_u32 s53, s52, 4096\ns_lshl_b32 s54, {sB}, 10\ns_add_u32 s54, s54, {G}")
    a(f"buffer_store_dwordx4 v[8:11], v6, {WS}, s54 offen sc1")
    for k in range(8): a(f"buffer_store_dwordx4 v[8:11], v6, {WS}, s{52+(k>>2)} offen offset:{1024*(k&3)} sc1")
    a("s_setprio 2")
    MK=12
    a(f"v_and_b32 v7, 1, {vN}\nv_lshlrev_b32 v7, 4, v7\nv_mov_b32 v16, 0xffff\nv_lshlrev_b32 v7, v7, v16\nv_lshrrev_b32 v16, 1, {vN}")
    for k in range(4): a(f"v_cmp_eq_u32 vcc, {k}, v16\nv_cndmask_b32 v{MK+k}, 0, v7, vcc")
    a(f"v_lshlrev_b32 v16, 5, {vLane}")
    a(f"v_mul_u32_u24 v17, 384, {vGl}\nv_lshl_add_u32 v17, {vN}, 4, v17")
    a(f"v_lshlrev_b32 v18, 4, {vN}\nv_lshl_add_u32 v18, {vGl}, 3, v18\nv_and_b32 v7, 1, {vN}\nv_lshl_add_u32 v7, v7, 1, {vGl}\nv_lshlrev_b32 v7, 4, v7\nv_bfe_u32 v19, {vN}, 1, 1\nv_lshl_add_u32 v7, v19, 3, v7\nv_add_u32 v7, 128, v7")
    a(f"v_cmp_gt_u32 vcc, 8, {vN}\nv_cndmask_b32 v18, v7, v18, vcc\nv_add_u32 v18, {VEC1B}, v18")
    a(f"s_lshl_b32 s54, {sB}, 4\ns_add_u32 s54, s54, {FLG}\ns_movk_i32 s55, {FLG}")
    tag_finish()
    a("v_mov_b32 v20, s32\nv_mov_b32 v21, s33\ns_barrier\ns_mov_b64 exec, 1\ns_waitcnt vmcnt(0)")
    a(f"buffer_store_dwordx2 v[20:21], v6, {WS}, s54 offen sc1\ns_mov_b64 exec, -1")
    stamp(1)
    wait_flag("CNT",P["thrF"])
    l,ok=loop_head("FL")
    for k in range(4): a(f"buffer_load_dwordx2 {vr(24+2*k,2)}, v6, {WS}, s55 offen offset:{1024*k} sc1")
    a("s_waitcnt vmcnt(0)")
    for k in range(4): a(f"v_cmpx_eq_u64 vcc, s[32:33], {vr(24+2*k,2)}")
    a(f"s_cmp_eq_u64 exec, -1\ns_mov_b64 exec, -1\ns_cbranch_scc0 {l}\n{ok}:")
    sig("CLR")
    stamp(2)
    a(f"s_lshl_b32 s54, {sX}, 13\ns_and_b32 s55, {sG}, 3\ns_lshl_b32 s55, s55, 3\ns_add_u32 s54, s54, s55\ns_add_u32 s54, s54, {ST}\ns_add_u32 s55, s54, 4096\ns_add_u32 s53, s52, 3072")
    wait_flag("PUBC",2)
    stamp(3)
    l,ok=loop_head("SS")
    for k in range(4): a(f"buffer_load_dwordx2 {vr(24+2*k,2)}, v16, {WS}, s{54+(k>>1)} offen offset:{2048*(k&1)} sc1")
    a("s_waitcnt vmcnt(0)")
    for k in range(4): a(f"v_cmpx_o_f32 vcc, v{24+2*k}, v{25+2*k}")
    a(f"s_cmp_eq_u64 exec, -1\ns_mov_b64 exec, -1\ns_cbranch_scc0 {l}\n{ok}:")
    stamp(4)
    a("s_nop 1")
    st3=("quad_perm:[1,0,3,2]","quad_perm:[2,3,0,1]","row_half_mirror")
    for i,s in enumerate(st3):
        for k in range(4):
            src = f"v{24+2*k}" if i==0 else f"v{32+k}"
            a(f"v_max_f32_dpp v{32+k}, {src}, {src} {s} {DP}")
    a("v_max3_f32 v36, v32, v33, v34\nv_max_f32 v36, v36, v35")
    rowreduce("v_max_f32","v36",("row_mirror",))
    xreduce("v_max_f32","v36","v37")
    for k in range(4): a(f"v_sub_f32 v{24+2*k}, v{24+2*k}, v36\nv_sub_f32 v{32+k}, v{32+k}, v36")
    for k in range(4): a(f"v_exp_f32 v{24+2*k}, v{24+2*k}\nv_exp_f32 v{32+k}, v{32+k}")
    a("v_mul_f32 v38, v24, v25\nv_fmac_f32 v38, v26, v27\nv_fmac_f32 v38, v28, v29\nv_fmac_f32 v38, v30, v31")
    for k in range(4): a(f"v_cvt_pk_bf16_f32 v{32+k}, v{32+k}, v{32+k}")
    rowreduce("v_add_f32","v38")
    xreduce("v_add_f32","v38","v37")
    a("v_rcp_f32 v38, v38")
    SAa=40; SD=72; SX=104
    for s in range(8):
        for r in range(4): a(f"v_and_b32_dpp v{SAa+4*s+r}, v{32+(s>>1)}, v{MK+r} row_newbcast:{8*(s&1)} {DP}")
    a("v_mov_b32 v39, v38\ns_mov_b32 s56, 0x0fff0fff\ns_mov_b32 s57, 0x0fff0fff")
    wait_flag("PUBD",4)
    stamp(5)
    l,ok=loop_head("CD")
    a("s_mov_b64 exec, s[56:57]")
    for s in range(8): a(f"buffer_load_dwordx4 {vr(SD+4*s,4)}, v17, {WS}, s{52+(s>>2)} offen offset:{1536*((s>>1)&1)+192*(s&1)} sc1")
    a("s_mov_b64 exec, -1")
    for s in range(8):
        a(f"s_waitcnt vmcnt({7-s})\nv_mfma_f32_16x16x32_bf16 {vr(SX,4)}, {vr(SAa+4*s,4)}, {vr(SD+4*s,4)}, {vr(SX,4) if s else 0}")
    a(f"s_mov_b32 exec_lo, s56\ns_mov_b32 exec_hi, 0\nv_cmp_u_f32 vcc, v{SX}, v{SX}\ns_cbranch_vccnz {l}\n{ok}:")
    stamp(6)
    a(f"s_mov_b32 exec_lo, s56\ns_mov_b32 exec_hi, 0")
    a(f"v_pk_mul_f32 {vr(SX,2)}, {vr(SX,2)}, v[38:39]\nv_pk_mul_f32 {vr(SX+2,2)}, {vr(SX+2,2)}, v[38:39]\nv_cvt_pk_bf16_f32 v{SX}, v{SX}, v{SX+1}\nv_cvt_pk_bf16_f32 v{SX+1}, v{SX+2}, v{SX+3}")
    a(f"ds_write_b64 v18, {vr(SX,2)}\ns_mov_b64 exec, -1")
    sig("V1B")
    a("s_branch L_fin")

    a("L_w6:")
    srd(44, 4, 1280)
    a(f"v_lshlrev_b32 v6, 2, {vLane}")
    for k in range(5): a(f"buffer_load_dword v{8+k}, v6, {SA}, 0 offen offset:{256*k}")
    a(f"s_mul_i32 s52, {sJ}, 160\ns_lshl_b32 s53, {sV}, 7\ns_sub_u32 s53, s53, 256\nv_mov_b32 v7, s52\nv_mov_b32 v13, s53\nv_cmp_gt_u32 vcc, 32, {vLane}\nv_cndmask_b32 v7, v13, v7, vcc\nv_lshl_add_u32 v7, {vLane}, 3, v7")
    a(f"buffer_load_dwordx2 v[14:15], v7, {SA}, 0 offen")
    a(f"v_bfe_u32 v7, {vLane}, 3, 2\nv_lshlrev_b32 v27, 6, v7\nv_and_b32 v7, 3, {vLane}\nv_lshl_add_u32 v27, v7, 4, v27\nv_bfe_u32 v7, {vLane}, 2, 1\nv_lshl_add_u32 v27, v7, 3, v27\nv_lshrrev_b32 v7, 5, {vLane}\nv_mul_u32_u24 v7, {VEC1F-VEC1A}, v7\nv_add_u32 v27, v27, v7\nv_add_u32 v27, {VEC1A}, v27")
    a("s_barrier\ns_mov_b32 s54, 0xffff0000\ns_waitcnt vmcnt(1)")
    stamp(1)
    for k in range(5): a(f"v_lshlrev_b32 v{32+2*k}, 16, v{8+k}\nv_and_b32 v{33+2*k}, s54, v{8+k}")
    a("v_pk_add_f32 v[44:45], v[32:33], v[34:35]\nv_pk_add_f32 v[46:47], v[36:37], v[38:39]\nv_pk_add_f32 v[44:45], v[44:45], v[40:41]\nv_pk_add_f32 v[44:45], v[44:45], v[46:47]\nv_add_f32 v44, v44, v45")
    rowreduce("v_add_f32","v44"); xreduce("v_add_f32","v44","v45")
    a(f"v_mul_f32 v44, {hex(f2u(1/640))}, v44")
    for k in range(10): a(f"v_sub_f32 v{32+k}, v{32+k}, v44")
    a("v_mul_f32 v46, v32, v32")
    for k in range(1,10): a(f"v_fmac_f32 v46, v{32+k}, v{32+k}")
    rowreduce("v_add_f32","v46"); xreduce("v_add_f32","v46","v45")
    def rbf(v): a(f"v_cvt_pk_bf16_f32 {v}, {v}, {v}\nv_and_b32 {v}, s54, {v}")
    a(f"v_mul_f32 v46, {hex(f2u(1/640))}, v46"); rbf("v46"); rbf("v44")
    a(f"v_add_f32 v46, {hex(f2u(1e-5))}, v46"); rbf("v46")
    a("v_sqrt_f32 v46, v46"); rbf("v46")
    a("v_rcp_f32 v46, v46\ns_waitcnt vmcnt(0)")
    a("v_lshlrev_b32 v32, 16, v14\nv_and_b32 v33, s54, v14\nv_lshlrev_b32 v34, 16, v15\nv_and_b32 v35, s54, v15")
    for k in range(4): a(f"v_sub_f32 v{32+k}, v{32+k}, v44")
    a("v_cvt_pk_bf16_f32 v14, v32, v33\nv_cvt_pk_bf16_f32 v15, v34, v35")
    a("v_lshlrev_b32 v32, 16, v14\nv_and_b32 v33, s54, v14\nv_lshlrev_b32 v34, 16, v15\nv_and_b32 v35, s54, v15")
    for k in range(4): a(f"v_mul_f32 v{32+k}, v{32+k}, v46")
    a("v_cvt_pk_bf16_f32 v14, v32, v33\nv_cvt_pk_bf16_f32 v15, v34, v35")
    a("s_mov_b32 exec_lo, 0x000fffff\ns_mov_b32 exec_hi, 0xffff\nds_write_b64 v27, v[14:15]\ns_mov_b64 exec, -1")
    sig("V1A")
    stamp(2)
    tag_finish()
    a(f"s_cmp_lt_u32 {sJ}, 5\ns_cbranch_scc1 L_fin\ns_mov_b32 s40, 0\ns_cmp_lt_u32 {sV}, 10\ns_cbranch_scc0 L_final")
    masks()
    srd(44, 20, 3072)
    a(f"v_lshlrev_b32 v8, 7, {vGl}\nv_and_b32 v6, 3, {vN}\nv_lshl_add_u32 v8, v6, 5, v8\nv_lshrrev_b32 v6, 2, {vN}\nv_lshl_add_u32 v8, v6, 3, v8\ns_mul_i32 s52, {sX}, 384")
    a(f"buffer_load_dwordx2 v[22:23], v8, {SA}, s52 offen")
    gather_setup("v24"); vec2b_addr("v26")
    trcore("v80", vTmp)
    a(f"v_lshrrev_b32 v6, 5, {vLane}\nv_mul_u32_u24 v6, 6144, v6\nv_add_u32 v80, v80, v6\nv_add_u32 v80, {R1+1024}, v80")
    for t in range(1,4): a(f"v_xor_b32 v{80+t}, {32*t}, v80")
    a(f"v_lshlrev_b32 v84, 6, {vGl}\nv_lshl_add_u32 v84, {vN}, 4, v84\nv_lshlrev_b32 v85, 4, {vGl}\nv_add_u32 v85, {VEC1F}, v85")
    a(f"ds_read_b128 v[88:91], v85\nds_read_b128 v[92:95], v85 offset:64\nv_mov_b32 v78, s32\nv_mov_b32 v79, s33")
    for u in range(3): a(f"v_mov_b32 v{GD+24+4*u}, 0\nv_mov_b32 v{GD+25+4*u}, 0\nv_mov_b32 v{GD+26+4*u}, s32\nv_mov_b32 v{GD+27+4*u}, s33")
    a(f"s_mul_i32 s52, {sX}, {12*768}\ns_add_u32 s52, s52, {HP}\ns_add_u32 s53, s52, 6144\ns_mul_i32 s55, {sV}, 768\ns_add_u32 s55, s55, s52\ns_mov_b32 s43, 0")
    wait_flag("CNT",138+24)
    stamp(3)
    l=a.lab("F1")
    a(f"{l}:")
    for t in range(4):
        for h in range(4): a(f"ds_read_b64_tr_b16 {vr(96+8*t+2*h,2)}, v{80+t} offset:{2*h*6144}")
    for t in range(4):
        a(f"s_waitcnt lgkmcnt({12-4*t})")
        a(f"v_mfma_f32_16x16x32_bf16 {vr(128+4*t,4)}, {vr(96+8*t,4)}, v[88:91], 0\nv_mfma_f32_16x16x32_bf16 {vr(128+4*t,4)}, {vr(100+8*t,4)}, v[92:95], {vr(128+4*t,4)}")
    for t in range(4): a(f"v_add_u32 v{80+t}, 2048, v{80+t}")
    publish4(128, 76, "v84", "s55")
    a(f"s_add_u32 s55, s55, 256\ns_add_u32 s43, s43, 1\ns_cmp_lt_u32 s43, 3\ns_cbranch_scc1 {l}")
    stamp(4)
    gather(3,"v24",["s52","s53"],"GH")
    stamp(5)
    a("v_lshlrev_b32 v8, 16, v22\nv_and_b32 v9, s54, v22\nv_lshlrev_b32 v10, 16, v23\nv_and_b32 v11, s54, v23")
    c1 = -2*math.sqrt(2/math.pi)*math.log2(math.e)
    a(f"s_mov_b32 s56, {f2u(c1*0.044715)}\nv_mov_b32 v7, {hex(f2u(c1))}")
    for k in range(4): a(f"v_add_f32 v{GX+k}, v{GX+k}, v{8+k}")
    for k in range(4): a(f"v_mul_f32 v{8+k}, v{GX+k}, v{GX+k}")
    for k in range(4): a(f"v_fma_f32 v{8+k}, v{8+k}, s56, v7")
    for k in range(4): a(f"v_mul_f32 v{8+k}, v{8+k}, v{GX+k}")
    for k in range(4): a(f"v_exp_f32 v{8+k}, v{8+k}")
    for k in range(4): a(f"v_add_f32 v{8+k}, 1.0, v{8+k}")
    for k in range(4): a(f"v_rcp_f32 v{8+k}, v{8+k}")
    for k in range(4): a(f"v_mul_f32 v{GX+k}, v{GX+k}, v{8+k}")
    vec2_write("v26","V2B")
    a("s_branch L_fin")

    a("L_final:")
    a(f"s_and_b32 s52, {sG}, 1\ns_lshl1_add_u32 s52, {sX}, s52\ns_add_u32 s40, s40, s52")
    a(f"v_and_b32 v6, 7, {vLane}\nv_lshlrev_b32 v8, 3, v6\nv_bfe_u32 v7, {vLane}, 4, 1\nv_lshl_add_u32 v8, v7, 2, v8\nv_lshrrev_b32 v7, 5, {vLane}\nv_lshl_add_u32 v8, v7, 1, v8")
    a(f"s_lshl_b32 s52, s40, 6")
    srd(44,4,1280); srd(48,24,1280)
    a(f"buffer_load_ushort v10, v8, {SA}, s52 offen\nbuffer_load_ushort v11, v8, {SB}, s52 offen")
    a(f"v_lshrrev_b32 v7, 3, {vLane}\nv_mul_u32_u24 v7, 2560, v7\nv_lshl_add_u32 v9, v6, 4, v7")
    a(f"s_lshl_b32 s53, s40, 7\ns_add_u32 s56, s53, {OP}\ns_add_u32 s57, s56, 20480\ns_add_u32 s58, s57, 20480\ns_add_u32 s59, s58, 20480\ns_add_u32 s53, s53, {YP}")
    a("s_waitcnt vmcnt(0)\nv_lshlrev_b32 v10, 16, v10\nv_lshlrev_b32 v11, 16, v11")
    srd(44,26,1280)
    def red4(b):
        a(f"v_permlane32_swap_b32 v{b}, v{b+1}\nv_permlane32_swap_b32 v{b+2}, v{b+3}\nv_add_f32 v{b}, v{b}, v{b+1}\nv_add_f32 v{b+2}, v{b+2}, v{b+3}")
        a(f"v_permlane16_swap_b32 v{b}, v{b+2}\nv_add_f32 v{b}, v{b}, v{b+2}\nv_add_f32_dpp v{b}, v{b}, v{b} row_ror:8 {DP}")
    wait_flag("V1B",1)
    stamp(8)
    l,ok=loop_head("FY")
    a(f"buffer_load_dwordx4 v[12:15], v9, {WS}, s53 offen sc1\ns_waitcnt vmcnt(0)")
    red4(12)
    a(f"v_cmp_u_f32 vcc, v12, v12\ns_cbranch_vccnz {l}\n{ok}:")
    stamp(9)
    a(f"v_add_f32 v11, v11, v12\nv_mul_f32 v12, {hex(f2u(-math.log2(math.e)))}, v11\nv_exp_f32 v12, v12\nv_add_f32 v12, 1.0, v12\nv_rcp_f32 v12, v12\nv_mul_f32 v11, v11, v12")
    l,ok=loop_head("FS")
    for k in range(4): a(f"buffer_load_dwordx4 {vr(12+4*k,4)}, v9, {WS}, s{56+k} offen sc1")
    a("s_waitcnt vmcnt(2)\nv_pk_add_f32 v[12:13], v[12:13], v[16:17]\nv_pk_add_f32 v[14:15], v[14:15], v[18:19]")
    a("s_waitcnt vmcnt(0)\nv_pk_add_f32 v[20:21], v[20:21], v[24:25]\nv_pk_add_f32 v[22:23], v[22:23], v[26:27]\nv_pk_add_f32 v[12:13], v[12:13], v[20:21]\nv_pk_add_f32 v[14:15], v[14:15], v[22:23]")
    red4(12)
    a(f"v_cmp_u_f32 vcc, v12, v12\nv_fma_f32 v13, v12, v11, v10\ns_cbranch_vccnz {l}\n{ok}:")
    a(f"v_cvt_pk_bf16_f32 v13, v13, v13\ns_mov_b32 exec_lo, 0x00ff00ff\ns_mov_b32 exec_hi, 0x00ff00ff\nbuffer_store_short v13, v8, {SA}, s52 offen sc1")
    stamp(10)
    a(f"s_cmp_eq_u32 s40, 0\ns_cbranch_scc0 L_fin\ns_mov_b64 exec, 1\nv_mov_b32 v14, s32\nv_mov_b32 v15, s33\nv_mov_b32 v6, {EPOCH}\nbuffer_store_dwordx2 v[14:15], v6, {WS}, 0 offen sc1")
    a("L_fin:")
    if diag:
        stamp(15)
        a("s_load_dwordx2 s[28:29], s[0:1], 104")
        a(f"s_waitcnt lgkmcnt(0) vmcnt(0)\ns_mov_b32 s30, {WSSIZE}\ns_mov_b32 s31, 0x20000\ns_mov_b64 exec, 1")
        if P["wsb"]: a(f"s_add_u32 s28, s28, {P['wsb']}\ns_addc_u32 s29, s29, 0")
        for i in range(16): a(f"v_mov_b32 v{8+i}, s{64+2*i}")
        a(f"v_mov_b32 v24, {sBud}\nv_mov_b32 v6, 0\ns_lshl_b32 s52, {sB}, 3\ns_add_u32 s52, s52, {sW}\ns_lshl_b32 s52, s52, 7\ns_add_u32 s52, s52, {DBG}")
        for i in range(4): a(f"buffer_store_dwordx4 {vr(8+4*i,4)}, v6, {WS}, s52 offen offset:{16*i}")
        a(f"buffer_store_dword v24, v6, {WS}, s52 offen offset:64")
    a("s_endpgm")
    for f_ in far: a(f_)
    a("L_end:\ns_endpgm")
    body = a.finish(verbose=P.get("verbose",False))
    hdr = open("cdna_kernels/"+NAME+".s.ref").read().split("; Override launch")[0] if P.get("hdr",True) else ""
    return hdr + f"""; Single persistent launch: 256 workgroups (one per CU) x 8 waves; generated by my own script (gen/gen.py).
; @launch grid=(256,1,1) block=(512,1,1) lds={LDS_BYTES}
.amdgcn_target "amdgcn-amd-amdhsa--gfx950"
.text
.globl {NAME}_kernel
.p2align 8
.type {NAME}_kernel,@function
{NAME}_kernel:
{body}
.section .rodata,"a"
.p2align 6
.amdhsa_kernel {NAME}_kernel
  .amdhsa_next_free_vgpr 208
  .amdhsa_next_free_sgpr 100
  .amdhsa_accum_offset 208
  .amdhsa_group_segment_fixed_size 0
  .amdhsa_kernarg_size 112
  .amdhsa_user_sgpr_count 2
  .amdhsa_user_sgpr_kernarg_segment_ptr 1
  .amdhsa_system_sgpr_workgroup_id_x 1
.end_amdhsa_kernel
"""
if __name__=="__main__":
    kw={}
    out="cdna_kernels/"+NAME+".s"
    for arg in sys.argv[1:]:
        k,v=arg.split("=",1)
        if k=="out": out=v
        else:
            try: kw[k]=eval(v)
            except Exception: kw[k]=v
    open(out,"w").write(gen(verbose=True, **kw))
    print("wrote",out,"LDS",LDS_BYTES)
```

```python
import gen as G, sys
N=G.NAME+"_kernel"
def extra_kernel(name, body, vgpr=16, sgpr=32):
    return f"""
.text
.globl {name}
.p2align 8
.type {name},@function
{name}:
{body}
s_endpgm
.section .rodata,"a"
.p2align 6
.amdhsa_kernel {name}
  .amdhsa_next_free_vgpr {vgpr}
  .amdhsa_next_free_sgpr {sgpr}
  .amdhsa_accum_offset {vgpr}
  .amdhsa_group_segment_fixed_size 0
  .amdhsa_kernarg_size 112
  .amdhsa_user_sgpr_count 2
  .amdhsa_user_sgpr_kernarg_segment_ptr 1
  .amdhsa_system_sgpr_workgroup_id_x 1
.end_amdhsa_kernel
"""
def stream_body(fl):
    L=["s_cmp_ge_u32 s2, 256","s_cbranch_scc1 L_se","s_load_dwordx16 s[4:19], s[0:1], 0","s_load_dwordx8 s[20:27], s[0:1], 64",
       "v_lshlrev_b32 v1, 4, v0","s_mov_b32 s31, 0x20000","s_waitcnt lgkmcnt(0)"]
    r=4
    for p,sz in ((8,7864320),(10,9437184),(6,12582912),(12,9437184),(14,7864320),(18,1966080),(22,1966080)):
        per=sz//256
        L+=[f"s_mov_b32 s28, s{p}",f"s_mov_b32 s29, s{p+1}",f"s_mul_i32 s3, s2, {per}",f"s_add_u32 s30, s3, {per}"]
        for i in range((per+4095)//4096):
            L+=[f"buffer_load_dwordx4 v[{r}:{r+3}], v1, s[28:31], s3 offen {fl}","s_add_u32 s3, s3, 4096"]; r+=4
    L+=["s_waitcnt vmcnt(0)","L_se:"]
    return "\n".join(L), r
def mk(fn, seq, **kw):
    t=G.gen(**kw)
    old=[l for l in t.split("\n") if l.startswith("; @launch")][0]
    lines=[]; extra=""; seen=set()
    for s in seq:
        if s=="main": lines.append(f"; @launch kernel={N} grid=(256,1,1) block=(512,1,1) lds={G.LDS_BYTES}")
        elif s=="e1":
            lines.append("; @launch kernel=e1_kernel grid=(1,1,1) block=(64,1,1) lds=0")
            if s not in seen: extra+=extra_kernel("e1_kernel","")
        elif s=="ebig":
            lines.append(f"; @launch kernel=ebig_kernel grid=(256,1,1) block=(512,1,1) lds={G.LDS_BYTES}")
            if s not in seen: extra+=extra_kernel("ebig_kernel","",208,100)
        elif s in("snt","spl"):
            b,r=stream_body("nt" if s=="snt" else "")
            lines.append(f"; @launch kernel={s}_kernel grid=(256,1,1) block=(256,1,1) lds=0")
            if s not in seen: extra+=extra_kernel(s+"_kernel",b.replace("L_se","L_se"+s),(r+3)//4*4,40)
        seen.add(s)
    open(fn,"w").write(t.replace(old,"\n".join(lines))+extra)
if __name__=="__main__":
    mk("../var/l1.s",["main"]); mk("../var/l2.s",["main","e1"]); mk("../var/l3.s",["main","ebig"])
    mk("../var/l4.s",["e1","main"]); mk("../var/l5.s",["main","main"]); mk("../var/l6.s",["snt","main"])
    mk("../var/l7.s",["spl","main"]); mk("../var/l8.s",["spl","spl","main"]); mk("../var/l9.s",["snt","snt","main"]); mk("../var/l10.s",["main","main","main"])
    mk("../var/l11.s",["main","e1","e1","e1","e1"]); mk("../var/l12.s",["spl","main","main"])
```

```python
import gen as G, sys
from mklist import extra_kernel, N
def probe_body(w,i,mode,K=4,wsb=0):
    L=["s_cmp_ge_u32 s2, 1","s_cbranch_scc1 L_pe","s_load_dwordx2 s[28:29], s[0:1], 104","v_lshlrev_b32 v1, 10, v0",f"s_mov_b32 s30, {G.WSSIZE}","s_mov_b32 s31, 0x20000","s_waitcnt lgkmcnt(0)"]
    for k in range(4):
        L+=[f"s_mov_b32 s3, {G.DBG+k*65536}", f"buffer_load_dword v{4+k}, v1, s[28:31], s3 offen", f"buffer_load_dword v{8+k}, v1, s[28:31], s3 offen offset:{w*128+i*4}"]
    L+=["s_waitcnt vmcnt(0)","v_min_u32 v4, v4, v5","v_min3_u32 v4, v4, v6, v7","s_mov_b32 s4, -1","s_nop 1"]
    for l in range(64): L+=[f"v_readlane_b32 s5, v4, {l}","s_nop 0","s_min_u32 s4, s4, s5"]
    for k in range(4): L+=[f"v_cmp_ne_u32 vcc, 0, v{8+k}",f"v_subrev_u32 v{8+k}, s4, v{8+k}","s_nop 1",f"v_cndmask_b32 v{8+k}, 0, v{8+k}, vcc"]
    if mode=="max":
        L+=["v_max_u32 v8, v8, v9","v_max3_u32 v8, v8, v10, v11","s_mov_b32 s6, 0","s_nop 1"]
        for l in range(64): L+=[f"v_readlane_b32 s5, v8, {l}","s_nop 0","s_max_u32 s6, s6, s5"]
        L+=[f"s_lshl_b32 s6, s6, {K}"]
    elif mode=="mean":
        L+=["v_add_u32 v8, v8, v9","v_add3_u32 v8, v8, v10, v11","s_mov_b32 s6, 0","s_nop 1"]
        for l in range(64): L+=[f"v_readlane_b32 s5, v8, {l}","s_nop 0","s_add_u32 s6, s6, s5"]
        L+=[f"s_lshr_b32 s6, s6, {8-K}"]
    else:
        L+=["s_mov_b32 s6, 0"]
        for l in range(64): L+=[f"v_readlane_b32 s5, v8, {l}","s_nop 0","s_add_u32 s7, s6, s5"]
    L+=["s_min_u32 s6, s6, 200000","s_memrealtime s[8:9]","s_waitcnt lgkmcnt(0)","L_ps:","s_memrealtime s[10:11]","s_waitcnt lgkmcnt(0)","s_sub_u32 s10, s10, s8","s_cmp_lt_u32 s10, s6","s_cbranch_scc1 L_ps","L_pe:"]
    return "\n".join(L)
def mk(fn,w,i,mode,**kw):
    t=G.gen(diag=True,**kw)
    old=[l for l in t.split("\n") if l.startswith("; @launch")][0]
    new=f"; @launch kernel={N} grid=(256,1,1) block=(512,1,1) lds={G.LDS_BYTES}\n; @launch kernel=pr_kernel grid=(1,1,1) block=(64,1,1) lds=0"
    open(fn,"w").write(t.replace(old,new)+extra_kernel("pr_kernel",probe_body(w,i,mode),16,40))
if __name__=="__main__":
    kw={}
    specs=[]
    for arg in sys.argv[1:]:
        if "=" in arg:
            k,v=arg.split("=",1); kw[k]=eval(v)
        else: specs.append(arg)
    for n,sp in enumerate(specs):
        w,i,mode=sp.split(",")
        mk(f"../var/p{n}.s",int(w),int(i),mode,**kw)
```

```python
import gen as G, sys
from mklist import extra_kernel, N
from mkprobe import probe_body
def stream_body(fl, thr=None, which=None):
    L=["s_cmp_ge_u32 s2, 256","s_cbranch_scc1 L_se","s_memrealtime s[40:41]","s_load_dwordx16 s[4:19], s[0:1], 0","s_load_dwordx8 s[20:27], s[0:1], 64","s_load_dwordx2 s[36:37], s[0:1], 104",
       "v_lshlrev_b32 v1, 4, v0","s_mov_b32 s31, 0x20000","s_waitcnt lgkmcnt(0)"]
    r=4; first=True
    for p,sz in ((8,7864320),(10,9437184),(6,12582912),(12,9437184),(14,7864320),(18,1966080),(22,1966080)):
        per=sz//256
        L+=[f"s_mov_b32 s28, s{p}",f"s_mov_b32 s29, s{p+1}",f"s_mul_i32 s3, s2, {per}",f"s_add_u32 s30, s3, {per}"]
        for i in range((per+4095)//4096):
            if thr: L+=[f"s_waitcnt vmcnt({thr-1})"]
            L+=[f"buffer_load_dwordx4 v[{r}:{r+3}], v1, s[28:31], s3 offen {fl}","s_add_u32 s3, s3, 4096"]; r+=4
            if first and which=="first":
                L+=["s_waitcnt vmcnt(0)","s_memrealtime s[44:45]"]
            first=False
    L+=["s_waitcnt vmcnt(0)","s_barrier","s_memrealtime s[42:43]","s_waitcnt lgkmcnt(0)",f"s_mov_b32 s38, {G.WSSIZE}","s_mov_b32 s39, 0x20000","v_cmp_eq_u32 vcc, 0, v0","s_and_saveexec_b64 s[46:47], vcc","s_cbranch_execz L_se",
        "v_mov_b32 v4, s40","v_mov_b32 v5, s44" if which=="first" else "v_mov_b32 v5, s42","s_lshl_b32 s3, s2, 10",f"s_add_u32 s3, s3, {G.DBG}","buffer_store_dwordx2 v[4:5], v1, s[36:39], s3 offen","L_se:"]
    return "\n".join(L), r
def mk(fn, fl, mode, thr=None, which=None, twice=False):
    t=G.gen()
    old=[l for l in t.split("\n") if l.startswith("; @launch")][0]
    st="; @launch kernel=st_kernel grid=(256,1,1) block=(256,1,1) lds=0\n"
    new=st*(2 if twice else 1)+f"; @launch kernel={N} grid=(256,1,1) block=(512,1,1) lds={G.LDS_BYTES}\n; @launch kernel=pr_kernel grid=(1,1,1) block=(64,1,1) lds=0"
    b,r=stream_body(fl,thr,which)
    open(fn,"w").write(t.replace(old,new)+extra_kernel("pr_kernel",probe_body(0,1,mode),16,40)+extra_kernel("st_kernel",b,(r+3)//4*4,60))
mk("../var/q0.s","nt","none"); mk("../var/q1.s","nt","max"); mk("../var/q2.s","","max"); mk("../var/q3.s","nt","mean",which="first")
mk("../var/q4.s","","max",twice=True); mk("../var/q5.s","nt","max",twice=True)
```

```python
import sys, math, struct
from asmlib import Asm
NAME = "recurrent_scan__compressed_kv_cla__dense_activation_gelu__decode"
def f2u(x): return struct.unpack("<I", struct.pack("<f", x))[0]

EPOCH=0; FLG=0x1000; QA=0x4000; HP=0x10000; G=0x24000; OP=G; YP=G+81920; ST=0x40000
REC=0x60000; RP=8192; RM=RP+2048; RE=RM+256; RQ=RE+768; RS=RQ+768; DBG=0x380000; WSSIZE=0x400000
assert REC+256*RS<=DBG
R1=0; R2=49152; R3=R2+51200; SCR=R3+36864
XB=SCR; VEC1A=XB+4096; VEC1F=VEC1A+192; VEC1B=VEC1F+128; VEC2A=VEC1B+192; VEC2B=VEC2A+384
FLAGS=(VEC2B+384+255)//256*256
FN = ["CNT","RDB","V1A","V2A","CLR","X0","X1","V1B","V2B","S4M","RDUK","RDA","PUBA","PUBC","PUBD","PUBE","PUBF","PUBB","QISS","DST","CDI","p1","p2","p3"]
F = {n:256*i for i,n in enumerate(FN)}
LDS_BYTES = FLAGS+256*len(FN)

DEF = dict(T=18, TA=36, TL=24, thrG=48, pauseQ=True, ntA='', ntB='', nt="nt", diag=False, wsb=0, thrF=30, clrstep=8, gate=True, thrQ=162, adual=True,  local=True, stattrig="DST", pref=True, budget=400000, safe=False)

def gen(**kw):
    P = dict(DEF); P.update(kw)
    T=P["T"]; TL=P["TL"]; NT=P["nt"]; diag=P["diag"]
    a = Asm()
    far=[]
    sW,sX,sY,sG,sJ,sB,sV = "s34","s35","s36","s37","s38","s39","s41"
    sBud="s42"; WS="s[28:31]"; SA="s[44:47]"; SB="s[48:51]"
    nst=[0]
    def stamp(i):
        if diag: a(f"s_memrealtime s[{64+2*i}:{65+2*i}]")
    def srd(base, ptr, size):
        a(f"s_mov_b32 s{base}, s{ptr}\ns_mov_b32 s{base+1}, s{ptr+1}\ns_mov_b32 s{base+2}, {size}\ns_mov_b32 s{base+3}, 0x20000")
    vLane="v0"; vL4="v1"; vOne="v2"; vTmp="v3"; vN="v4"; vGl="v5"
    CB=64
    def spin(l):
        a(f"{l}:")
        if P["safe"]: a("s_sub_u32 s99, s99, 1\ns_cbranch_scc1 L_fin")
    def wait_flag(name, thr):
        if name=="CNT" and isinstance(thr,int): thr+=CB
        l=a.lab("WF")
        spin(l)
        a(f"ds_read_b32 {vTmp}, {vL4} offset:{F[name]}\ns_waitcnt lgkmcnt(0)\nv_cmp_gt_u32 vcc, {thr}, {vTmp}\ns_cbranch_vccnz {l}")
    def sig(name, v=vOne):
        a(f"ds_add_u32 {vL4}, {v} offset:{F[name]}")
    def loop_head(base, sigs=()):
        l=a.lab(base); g=a.lab("GU"); ok=a.lab("OK")
        a(f"{l}:\ns_sub_u32 {sBud}, {sBud}, 1\ns_cbranch_scc1 {g}")
        far.append(f"{g}:\ns_mov_b32 {sBud}, 0\ns_mov_b64 exec, -1\n"+"".join(f"ds_add_u32 {vL4}, {vOne} offset:{F[n]}\n" for n in sigs)+f"s_nop 7\ns_branch {ok}")
        return l, ok
    def vr(b,n): return f"v[{b}:{b+n-1}]"
    def tag_finish():
        a("s_waitcnt lgkmcnt(0)\ns_add_u32 s32, s32, 0x7f4a7c10\ns_addc_u32 s33, s33, 0x9e3779b9\ns_or_b32 s32, s32, 15")
    def xreduce(op, v, t):
        a(f"v_mov_b32 {t}, {v}\nv_permlane16_swap_b32 {v}, {t}\n{op} {v}, {v}, {t}")
        a(f"v_mov_b32 {t}, {v}\nv_permlane32_swap_b32 {v}, {t}\n{op} {v}, {v}, {t}")
    DP="row_mask:0xf bank_mask:0xf"
    def rowreduce(op, v, steps=("quad_perm:[1,0,3,2]","quad_perm:[2,3,0,1]","row_half_mirror","row_mirror")):
        for s in steps: a(f"{op}_dpp {v}, {v}, {v} {s} {DP}")

    a(f"s_cmp_ge_u32 s2, 256\ns_cbranch_scc1 L_end")
    if P["pref"]:
        a(f"s_getpc_b64 s[52:53]\nL_pc:\nv_lshlrev_b32 v1, 7, v0\nv_cmp_gt_u32 vcc, L_end-L_pc, v1\ns_and_saveexec_b64 s[54:55], vcc\ns_cbranch_execz L_np\nglobal_load_dword v207, v1, s[52:53]\nL_np:\ns_mov_b64 exec, -1")
    if diag:
        for i in range(1,16): a(f"s_mov_b32 s{64+2*i}, 0")
    stamp(0)
    if P["safe"]: a("s_mov_b32 s99, 2000000")
    a("s_load_dwordx16 s[4:19], s[0:1], 0\ns_load_dwordx8 s[20:27], s[0:1], 64\ns_load_dwordx2 s[28:29], s[0:1], 104")
    a(f"v_lshrrev_b32 v1, 6, v0\nv_and_b32 v0, 63, v0")
    a(f"s_and_b32 {sX}, s2, 7\nv_readfirstlane_b32 {sW}, v1\ns_lshr_b32 {sY}, s2, 3\ns_lshl_b32 {sB}, {sX}, 5\ns_or_b32 {sB}, {sB}, {sY}")
    a(f"s_lshr_b32 {sG}, {sB}, 3\ns_and_b32 {sJ}, {sY}, 7")
    a(f"s_and_b32 {sV}, {sG}, 3\ns_lshl2_add_u32 {sV}, {sJ}, {sV}\ns_sub_u32 {sV}, {sV}, 20")
    a(f"v_lshlrev_b32 {vL4}, 2, {vLane}\nv_add_u32 {vL4}, {FLAGS}, {vL4}")
    a(f"s_cmp_eq_u32 {sW}, 4\ns_cbranch_scc0 L_notloader")

    vW,vK,vF,vO,vC,vT,vA0,vA1,vA2,vP,vTR = "v6","v7","v8","v9","v10","v11","v12","v13","v14","v15","v16"
    a("s_setprio 3")
    a(f"v_lshrrev_b32 {vP}, 3, {vLane}\nv_and_b32 {vT}, 6, {vP}\nv_xor_b32 {vTR}, {vT}, {vLane}\nv_and_b32 {vTR}, 7, {vTR}\nv_lshlrev_b32 {vTR}, 4, {vTR}")
    a(f"v_mul_u32_u24 {vK}, 12288, {vP}\nv_add_u32 {vW}, {vK}, {vTR}")
    a(f"s_mul_i32 s52, {sJ}, {80*12288}\ns_mul_i32 s53, {sG}, 384\ns_add_u32 s52, s52, s53")
    a(f"s_mov_b32 m0, {XB}\ns_mov_b32 s46, {640*12288}\ns_mov_b32 s47, 0x20000\ns_mov_b32 s51, 0x20000\ns_movk_i32 s50, 1280\nv_lshlrev_b32 {vA0}, 4, {vLane}")
    a(f"s_movk_i32 s56, 896\ns_movk_i32 s57, 1280")
    a("s_waitcnt lgkmcnt(0)\ns_mov_b32 s48, s4\ns_mov_b32 s49, s5\ns_mov_b32 s44, s8\ns_mov_b32 s45, s9")
    CS=P["clrstep"]
    a(f"s_and_b32 s62, s2, {(~(7*CS))&0xff}\ns_cbranch_scc1 L_nqa")
    a(f"s_mov_b32 s30, {WSSIZE}\ns_mov_b32 s31, 0x20000")
    if P["wsb"]: a(f"s_add_u32 s28, s28, {P['wsb']}\ns_addc_u32 s29, s29, 0")
    a(f"s_load_dwordx2 s[32:33], s[28:29], {EPOCH}\nv_mov_b32 v24, -1\nv_mov_b32 v25, -1\nv_mov_b32 v26, -1\nv_mov_b32 v27, -1")
    a(f"s_mul_i32 s54, s2, {6144//CS}\ns_add_u32 s54, s54, {QA}\ns_add_u32 s55, s54, 4096")
    for k in range(6): a(f"buffer_store_dwordx4 v[24:27], {vA0}, {WS}, s{54+(k>>2)} offen offset:{1024*(k&3)} sc1")
    a("L_nqa:")
    a(f"buffer_load_dwordx4 {vA0}, {SB}, 0 offen lds\nbuffer_load_dwordx4 {vA0}, {SB}, 0 offen offset:1024 lds\ns_mov_b32 m0, {R2}")
    def seg384(srdq, vaddr, soff, step, m0end, thr, xor=False, d1="s56", d2="s57"):
        l=a.lab("SG")
        a(f"{l}:")
        v=vaddr
        if xor:
            a(f"v_xor_b32 {vT}, s55, {vaddr}\ns_add_u32 s55, s55, 32\ns_and_b32 s55, s55, 0x60"); v=vT
        if thr:
            a(f"s_waitcnt vmcnt({thr-3})\nds_max_u32 {vL4}, {vC} offset:{F['CNT']}")
        a(f"buffer_load_dwordx4 {v}, {srdq}, {soff} offen {NT} lds\ns_add_u32 m0, m0, {d1}")
        if thr: a(f"v_add_u32 {vC}, 3, {vC}")
        a(f"buffer_load_dwordx4 {v}, {srdq}, {soff} offen offset:128 {NT} lds\ns_add_u32 m0, m0, {d1}")
        a(f"buffer_load_dwordx4 {v}, {srdq}, {soff} offen offset:256 {NT} lds\ns_add_u32 m0, m0, {d2}")
        a(f"s_add_u32 {soff}, {soff}, {step}\ns_cmp_lg_u32 m0, {m0end}\ns_cbranch_scc1 {l}")
    seg384(SA, vW, "s52", 98304, R2+30720, None)
    stamp(1)
    a(f"v_bfe_u32 {vT}, {vLane}, 4, 1\nv_xor_b32 {vT}, {vT}, {vLane}\nv_and_b32 {vT}, 7, {vT}\nv_lshl_add_u32 {vK}, {vT}, 4, {vK}")
    a(f"s_mul_i32 s52, {sJ}, {96*12288}\ns_add_u32 s52, s52, s53\ns_mov_b32 s54, s52\ns_mov_b32 s55, 0")
    a(f"s_mov_b32 s44, s10\ns_mov_b32 s45, s11\ns_mov_b32 s46, {768*12288}\ns_mov_b32 m0, {R3}")
    a(f"v_mov_b32 {vC}, {CB+30-(T-3)}")
    a("s_waitcnt vmcnt(30)\ns_barrier")
    a(f"s_cmp_eq_u32 s62, 0\ns_cbranch_scc0 L_nfl")
    tag_finish()
    a(f"s_mov_b32 s30, {WSSIZE}\ns_mov_b32 s31, 0x20000\nv_mov_b32 v24, s32\nv_mov_b32 v25, s33\ns_mul_i32 s63, s2, {128//CS}\ns_add_u32 s63, s63, {FLG}\ns_mov_b64 exec, 15")
    a(f"buffer_store_dwordx4 v[24:27], {vA0}, {WS}, s63 offen sc1\ns_mov_b64 exec, -1\nL_nfl:")
    a(f"v_lshrrev_b32 {vT}, 5, {vLane}\nv_lshlrev_b32 {vT}, 4, {vT}\nv_xor_b32 {vA1}, {vA0}, {vT}\nv_xor_b32 {vA2}, 16, {vA0}")
    for t in range(3):
        a(f"v_add_u32 v17, {64*t}, {vLane}\nv_mul_u32_u24 v18, 0x5556, v17\nv_lshrrev_b32 v18, 18, v18\nv_mul_u32_u24 v19, 12, v18\nv_sub_u32 v17, v17, v19")
        a(f"v_lshrrev_b32 v19, 1, v18\nv_and_b32 v18, 1, v18\nv_lshl_add_u32 v18, v19, 5, v18\nv_and_b32 v19, 2, v19\nv_xor_b32 v17, v17, v19\nv_mul_u32_u24 v18, 1536, v18\nv_lshl_add_u32 v{20+t}, v17, 4, v18")
        if t: a(f"v_subrev_u32 v{20+t}, {1024*t}, v{20+t}")
    a(f"v_mul_u32_u24 {vO}, 1280, {vP}\nv_add_u32 {vO}, {vO}, {vTR}\nv_mul_u32_u24 {vF}, 3072, {vP}\nv_add_u32 {vF}, {vF}, {vTR}")
    a(f"s_mov_b32 s48, s6\ns_mov_b32 s49, s7\ns_mov_b32 s50, {8192*1536}")
    a(f"s_mul_i32 s58, {sG}, {256*1536}\ns_mul_i32 s53, {sJ}, 192\ns_add_u32 s58, s58, s53\ns_mov_b32 s59, {R1}\ns_mov_b32 s60, {R2}")
    seg384(SA, vK, "s52", 98304, R3+36864, T, xor=True)
    stamp(2)
    TA=P["TA"]; NA=P["ntA"]; NB=P["ntB"]
    def drain(issued, cur, tgt):
        k=cur
        while k>tgt:
            k=max(tgt,k-6)
            a(f"v_mov_b32 {vC}, {CB+issued-k}\ns_waitcnt vmcnt({k})\nds_write_b32 {vL4}, {vC} offset:{F['CNT']}")
    if T>36: drain(66, T, 36)
    elif T==36: a(f"v_mov_b32 {vC}, {CB+30}\nds_write_b32 {vL4}, {vC} offset:{F['CNT']}")
    a(f"s_mul_i32 s52, {sB}, 49152")
    drain(66, min(T,36), P.get("holdA",18))
    wait_flag("PUBA",3)
    a(f"v_mov_b32 {vC}, {CB+66-(TA-6)}")
    l=a.lab("SA")
    a(f"{l}:\nv_xor_b32 v17, s55, {vA0}\nv_xor_b32 v18, s55, {vA1}\nv_xor_b32 v19, s55, {vA2}\ns_mov_b32 m0, s59")
    a(f"s_waitcnt vmcnt({TA-6})\nds_max_u32 {vL4}, {vC} offset:{F['CNT']}")
    a(f"buffer_load_dwordx4 v17, {SB}, s52 offen {NA} lds\nbuffer_load_dwordx4 v18, {SB}, s52 offen offset:1024 {NA} lds\nbuffer_load_dwordx4 v19, {SB}, s52 offen offset:2048 {NA} lds")
    a(f"s_mov_b32 m0, s60\nv_add_u32 {vC}, 6, {vC}")
    for t in range(3): a(f"buffer_load_dwordx4 v{20+t}, {SB}, s58 offen offset:{1024*t} {NB} lds")
    a(f"s_add_u32 s55, s55, 32\ns_and_b32 s55, s55, 0xe0\ns_add_u32 s52, s52, 3072\ns_add_u32 s58, s58, 3072\ns_add_u32 s60, s60, 3200\ns_add_u32 s59, s59, 3072")
    a(f"s_cmp_lg_u32 s59, {R1+49152}\ns_cbranch_scc1 {l}")
    stamp(3)
    a(f"s_mov_b32 s44, s12\ns_mov_b32 s45, s13\ns_mov_b32 m0, {R3}")
    if P["pauseQ"]:
        drain(162, TA, max(0,162-P["thrQ"]))
        wait_flag("QISS",4)
        if P.get("lateAfter"):
            drain(162, 162-P["thrQ"], 0)
            wait_flag(*P["lateAfter"])
        if 162-P["thrQ"]>TL-3: drain(162, 162-P["thrQ"], TL-3)
    else:
        drain(162, TA, TL-3)
        wait_flag("RDUK",3)
    a(f"v_mov_b32 {vC}, {CB+162-(TL-3)}")
    stamp(4)
    def gate(issued, flag):
        if not P["gate"] or not flag: return
        a(f"v_mov_b32 {vC}, {CB+issued}\ns_waitcnt vmcnt(0)\nds_write_b32 {vL4}, {vC} offset:{F['CNT']}")
        wait_flag(*flag)
        a(f"v_mov_b32 {vC}, {CB+issued-(TL-3)}")
    g2=P.get("g2",("S4M",4)); g3=P.get("g3",("CDI",1))
    a(f"s_cmp_lt_u32 {sV}, 10\ns_cbranch_scc1 L_ffnld")
    seg384(SA, vW, "s54", 98304, R3+36864, TL)
    stamp(5)
    a(f"s_mov_b32 m0, {R1}\ns_cmp_lt_u32 {sJ}, 5\ns_cbranch_scc0 L_drain")
    a(f"s_mul_i32 s52, {sG}, 245760\ns_lshl_b32 s53, {sJ}, 8\ns_add_u32 s52, s52, s53")
    a(f"s_mov_b32 s48, s14\ns_mov_b32 s49, s15\ns_mov_b32 s50, {6144*1280}")
    def seg_wo(end):
        l=a.lab("SO")
        a(f"{l}:")
        for k in range(6):
            if k%3==0: a(f"s_waitcnt vmcnt({TL-3})\nds_max_u32 {vL4}, {vC} offset:{F['CNT']}")
            if k%2==0:
                a(f"buffer_load_dwordx4 {vO}, {SB}, s52 offen {NT} lds\ns_add_u32 m0, m0, s56")
            else:
                a(f"buffer_load_dwordx4 {vO}, {SB}, s52 offen offset:128 {NT} lds\ns_add_u32 m0, m0, 1152\ns_add_u32 s52, s52, 10240")
            if k%3==0: a(f"v_add_u32 {vC}, 3, {vC}")
        a(f"s_cmp_lg_u32 m0, {end}\ns_cbranch_scc1 {l}")
    gate(198,g2)
    wait_flag("RDA",4)
    n2=P.get("n2",24)
    if P["gate"] and g3 and n2<48:
        seg_wo(R1+1024*n2); gate(198+n2,g3)
    seg_wo(R1+49152)
    a("s_branch L_drain")
    a("L_ffnld:")
    a(f"s_mul_i32 s52, {sV}, {64*3072}\ns_mul_i32 s53, {sX}, 384\ns_add_u32 s52, s52, s53")
    a(f"s_mov_b32 s48, s18\ns_mov_b32 s49, s19\ns_mov_b32 s50, {640*3072}")
    seg384(SB, vF, "s52", 24576, R3+24576, TL)
    a(f"s_mov_b32 m0, {R1}")
    wait_flag("RDA",4)
    if P["gate"] and g2:
        seg384(SA, vW, "s54", 98304, R1+12288, TL); gate(198,g2)
    seg384(SA, vW, "s54", 98304, R1+36864, TL)
    stamp(5)
    a(f"s_mul_i32 s52, {sX}, 245760\ns_lshl_b32 s53, {sV}, 7\ns_add_u32 s52, s52, s53")
    a(f"s_mov_b32 s48, s22\ns_mov_b32 s49, s23\ns_mov_b32 s50, {1536*1280}\ns_mov_b32 m0, {R2}")
    if n2<48: gate(222,g3)
    wait_flag("RDB",4)
    l=a.lab("S2")
    a(f"{l}:\ns_waitcnt vmcnt({TL-3})\nds_max_u32 {vL4}, {vC} offset:{F['CNT']}")
    for k in range(3):
        a(f"buffer_load_dwordx4 {vO}, {SB}, s52 offen {NT} lds\ns_add_u32 m0, m0, 2048\ns_add_u32 s52, s52, 10240")
    a(f"v_add_u32 {vC}, 3, {vC}\ns_cmp_lg_u32 m0, {R2+49152}\ns_cbranch_scc1 {l}")
    a("L_drain:")
    stamp(6)
    a(f"v_mov_b32 {vC}, 0xfff\ns_waitcnt vmcnt(0)\nds_write_b32 {vL4}, {vC} offset:{F['CNT']}")
    stamp(7)
    a("s_branch L_fin")

    a("L_notloader:")
    a(f"v_and_b32 {vN}, 15, {vLane}\nv_lshrrev_b32 {vGl}, 4, {vLane}\nv_mov_b32 {vOne}, 1\ns_mov_b32 {sBud}, {P['budget']}")
    a(f"s_mov_b32 s30, {WSSIZE}\ns_mov_b32 s31, 0x20000\ns_waitcnt lgkmcnt(0)")
    if P["wsb"]: a(f"s_add_u32 s28, s28, {P['wsb']}\ns_addc_u32 s29, s29, 0")
    a(f"s_load_dwordx2 s[32:33], s[28:29], {EPOCH}")
    a(f"s_cmp_eq_u32 {sW}, 5\ns_cbranch_scc1 L_w5\ns_cmp_eq_u32 {sW}, 6\ns_cbranch_scc1 L_w6\ns_cmp_eq_u32 {sW}, 7\ns_cbranch_scc1 L_w7")

    def trcore(dst, t):
        a(f"v_bfe_u32 {t}, {vLane}, 2, 3\nv_lshlrev_b32 {dst}, 7, {t}\nv_lshrrev_b32 {t}, 1, {t}\nv_lshl_add_u32 {dst}, {t}, 5, {dst}\nv_and_b32 {t}, 3, {vLane}\nv_lshl_add_u32 {dst}, {t}, 3, {dst}")
    MASKT=[f"s[{56+2*t}:{57+2*t}]" for t in range(4)]
    def masks():
        for t in range(4): a(f"s_mov_b32 s{56+2*t}, {0x00010001<<t}\ns_mov_b32 s{57+2*t}, {0x00010001<<t}")
    def mstore(txt):
        if not P["local"]:
            a(txt+" sc1"); return
        r=a.lab("RM"); bk=a.lab("BK")
        a(f"s_cmp_eq_u32 s50, 0\ns_cbranch_scc0 {r}\n{txt}\n{bk}:")
        far.append(f"{r}:\ns_nop 7\n{txt} sc1\ns_nop 1\ns_branch {bk}")
    def publish4(acc, vS, vAddr, soff, imm=0, mode=False):
        for t in range(4):
            a(f"s_mov_b64 exec, {MASKT[t]}\nv_cvt_pk_bf16_f32 v{vS}, v{acc+4*t}, v{acc+4*t+1}\nv_cvt_pk_bf16_f32 v{vS+1}, v{acc+4*t+2}, v{acc+4*t+3}")
        a(f"s_mov_b32 exec_lo, 0x000f000f\ns_mov_b32 exec_hi, 0x000f000f")
        txt=f"buffer_store_dwordx4 {vr(vS,4)}, {vAddr}, {WS}, {soff} offen offset:{imm}"
        if mode=="plain": a(txt)
        elif mode: mstore(txt)
        else: a(txt+" sc1")
        a("s_mov_b64 exec, -1")

    FR=64; QR=16; AC=160; vS=176
    vT1=[f"v{180+t}" for t in range(4)]; vVec="v184"; vPub="v185"; vU=["v186","v187"]; vA=[f"v{188+t}" for t in range(4)]
    vLin="v192"; vB=["v193","v194","v199"]; vPl="v195"; vMl="v196"; vBp="v197"; vC4="v198"; vT6=["v200","v201"]; vCore="v202"; vSt="v203"; vXa="v204"; vM0="v205"; vQa="v208"
    sHH="s52"; sKH="s53"
    a(f"s_cmp_eq_u32 {sW}, 0\ns_cbranch_scc0 L_nz")
    a(f"v_lshlrev_b32 v6, 4, {vLane}\nv_add_u32 v6, {FLAGS}, v6\nv_mov_b32 v8, 0\nv_mov_b32 v9, 0\nv_mov_b32 v10, 0\nv_mov_b32 v11, 0")
    for i in range(len(FN)//4): a(f"ds_write_b128 v6, v[8:11] offset:{1024*i}")
    a("L_nz:")
    a(f"s_and_b32 {sHH}, {sW}, 1\ns_lshr_b32 {sKH}, {sW}, 1")
    masks()
    trcore(vCore, vTmp)
    a(f"v_lshrrev_b32 v6, 5, {vLane}")
    a(f"s_lshl_b32 s54, {sW}, 10\ns_add_u32 s54, s54, {R2}\nv_mul_u32_u24 v7, 3072, v6\nv_add3_u32 {vT1[0]}, {vCore}, v7, s54")
    for t in range(1,4): a(f"v_xor_b32 {vT1[t]}, {32*t}, {vT1[0]}")
    a(f"s_lshl_b32 s54, {sKH}, 10\ns_lshl_b32 s55, {sHH}, 6\nv_lshlrev_b32 v7, 11, v6\nv_add3_u32 {vT6[0]}, {vCore}, v7, s54\nv_xor_b32 {vT6[0]}, s55, {vT6[0]}\nv_xor_b32 {vT6[1]}, 32, {vT6[0]}")
    a(f"v_lshlrev_b32 {vVec}, 4, {vGl}\nv_add_u32 {vVec}, {VEC1A}, {vVec}")
    a(f"v_lshlrev_b32 {vPub}, 6, {vGl}\nv_lshl_add_u32 {vPub}, {vN}, 4, {vPub}")
    a(f"v_lshlrev_b32 {vLin}, 4, {vLane}")
    a(f"v_lshlrev_b32 {vQa}, 6, {vN}\nv_lshl_add_u32 {vQa}, {vGl}, 4, {vQa}")
    a(f"s_mul_i32 s54, {sW}, 12288\ns_add_u32 s54, s54, {R3}\nv_lshrrev_b32 v7, 2, {vN}\nv_mul_u32_u24 v7, 3072, v7\nv_and_b32 v8, 3, {vN}\nv_lshl_add_u32 v7, v8, 7, v7")
    a(f"v_lshrrev_b32 v8, 1, {vN}\nv_xor_b32 v8, v8, {vGl}\nv_lshlrev_b32 v8, 4, v8\nv_add3_u32 {vU[0]}, v7, v8, s54\nv_xor_b32 {vU[1]}, 64, {vU[0]}")
    a(f"s_mul_i32 s54, {sKH}, 768\nv_mul_u32_u24 v7, 1536, {vN}\nv_xor_b32 v8, {vN}, {vGl}\nv_lshlrev_b32 v8, 4, v8\nv_add3_u32 {vA[0]}, v7, v8, s54")
    for t in range(1,4): a(f"v_xor_b32 {vA[t]}, {64*t}, {vA[0]}")
    a(f"v_bfe_u32 v7, {vN}, 3, 1\nv_mul_u32_u24 v7, 3200, v7\nv_bfe_u32 v8, {vN}, 2, 1\nv_mul_u32_u24 v8, 192, v8\nv_mul_u32_u24 v9, 768, {vGl}\nv_add3_u32 v7, v7, v8, v9")
    a(f"v_and_b32 v8, 3, {vN}\nv_lshl_add_u32 v7, v8, 3, v7\nv_add_u32 v7, {R2}, v7\nv_and_b32 v9, 1, {vGl}\nv_lshlrev_b32 v9, 5, v9")
    a(f"s_lshl_b32 s54, {sKH}, 6\nv_add3_u32 {vB[0]}, v7, v9, s54\nv_xor_b32 v10, 32, v9\nv_add3_u32 {vB[1]}, v7, v10, s54")
    a(f"s_lshl_b32 s54, {sKH}, 5\nv_xor_b32 v10, s54, v9\nv_add_u32 v10, 128, v10\nv_add_u32 {vB[2]}, v7, v10")
    a(f"v_mul_u32_u24 v7, {2*RS}, {vGl}\nv_lshl_add_u32 {vPl}, {vN}, 4, v7\nv_lshlrev_b32 {vM0}, 2, {vN}\nv_add_u32 {vMl}, {vM0}, v7")
    a(f"v_lshrrev_b32 v7, 2, {vN}\nv_lshlrev_b32 v7, 14, v7\nv_lshl_add_u32 {vSt}, v8, 4, v7")
    a(f"v_lshrrev_b32 v7, 2, {vLane}\nv_lshl_add_u32 {vBp}, v8, 4, v7\nv_lshlrev_b32 {vBp}, 2, {vBp}")
    a(f"v_mul_u32_u24 v7, {8*RS}, v7\nv_lshl_add_u32 {vC4}, v8, 4, v7")
    a(f"s_lshl_b32 s54, {sHH}, 11\ns_add_u32 s54, s54, {XB}\nv_add_u32 {vXa}, s54, {vLin}")
    tag_finish()
    a(f"s_getreg_b32 s54, hwreg(HW_REG_XCC_ID, 0, 4)\ns_xor_b32 s54, s54, s32\nv_mov_b32 v{vS+2}, s54\nv_mov_b32 v{vS+3}, s33")
    a("s_barrier")
    a(f"s_cmp_eq_u32 {sW}, 3\ns_cbranch_scc1 L_s3")
    a(f"s_mul_i32 s54, {sB}, {RS}\ns_lshl_b32 s55, {sW}, 8\ns_add_u32 s54, s54, s55\ns_add_u32 s54, s54, {REC+RQ}")
    wait_flag("V1A",1)
    for s in range(2): a(f"ds_read_b128 {vr(QR+4*s,4)}, {vVec} offset:{64*s}")
    a(f"ds_read_b64 {vr(QR+8,2)}, {vVec} offset:128\nv_mov_b64 {vr(QR+10,2)}, 0")
    for t in range(4): a(f"v_mov_b64 {vr(FR+12*t+10,2)}, 0")
    wait_flag("CNT",30)
    stamp(1)
    for t in range(4):
        for h in range(5): a(f"ds_read_b64_tr_b16 {vr(FR+12*t+2*h,2)}, {vT1[t]} offset:{2*h*3072}")
    for t in range(4):
        a(f"s_waitcnt lgkmcnt({15-5*t})")
        a(f"v_mfma_f32_16x16x32_bf16 {vr(AC+4*t,4)}, {vr(FR+12*t,4)}, {vr(QR,4)}, 0")
        a(f"v_mfma_f32_16x16x32_bf16 {vr(AC+4*t,4)}, {vr(FR+12*t+4,4)}, {vr(QR+4,4)}, {vr(AC+4*t,4)}")
        a(f"v_mfma_f32_16x16x32_bf16 {vr(AC+4*t,4)}, {vr(FR+12*t+8,4)}, {vr(QR+8,4)}, {vr(AC+4*t,4)}")
    publish4(AC, vS, vPub, "s54", mode="plain")
    sig("PUBA")
    stamp(2)
    a(f"s_lshr_b32 s54, {sG}, 4\ns_mul_i32 s54, s54, 24\ns_mul_i32 s55, {sJ}, 3\ns_add_u32 s55, s55, {sW}\ns_add_u32 s54, s54, s55\ns_lshl_b32 s54, s54, 10")
    a(f"s_and_b32 s55, {sG}, 15\ns_lshl_b32 s55, s55, 6\ns_add_u32 s54, s54, s55\ns_add_u32 s54, s54, {QA}")
    wait_flag("CNT",66)
    for s in range(6):
        for t in range(2): a(f"ds_read_b128 {vr(FR+8*s+4*t,4)}, {vU[s&1]} offset:{1024*(s>>1)+512*t}")
    sig("RDUK")
    wait_flag("CLR",1)
    def vec2_mfma(flag, thr, vec, wfirst):
        l=a.lab("V2")
        spin(l); a(f"ds_read_b32 {vTmp}, {vL4} offset:{F[flag]}")
        for s in range(6): a(f"ds_read_b128 {vr(QR+4*s,4)}, {vVec} offset:{vec-VEC1A+64*s}")
        a(f"s_waitcnt lgkmcnt(6)\nv_cmp_gt_u32 vcc, {thr}, {vTmp}\ns_cbranch_vccnz {l}")
        for s in range(6):
            a(f"s_waitcnt lgkmcnt({5-s})")
            for t in range(2):
                w_,q_=vr(FR+8*s+4*t,4),vr(QR+4*s,4)
                A_,B_=(w_,q_) if wfirst else (q_,w_)
                a(f"v_mfma_f32_16x16x32_bf16 {vr(AC+4*t,4)}, {A_}, {B_}, {vr(AC+4*t,4) if s else 0}")
    vec2_mfma("V2A",1,VEC2A,True)
    a(f"v_readfirstlane_b32 s50, {vTmp}\nv_mov_b32 v{vS+2}, s32\ns_lshr_b32 s50, s50, 1")
    stamp(3)
    for k in range(4): a(f"v_cvt_pk_bf16_f32 v{AC+8+k}, v{AC+2*k}, v{AC+2*k+1}\nds_bpermute_b32 v{AC+12+k}, {vBp}, v{AC+8+k}")
    a(f"s_mov_b64 exec, 15\ns_waitcnt lgkmcnt(0)\nbuffer_store_dwordx4 {vr(AC+12,4)}, {vLin}, {WS}, s54 offen sc1\ns_mov_b64 exec, -1\ns_waitcnt vmcnt(0)")
    sig("PUBB")
    a("L_s3:")
    a(f"s_mul_i32 s43, {sHH}, 24576\ns_mul_i32 s55, {sKH}, 12288\ns_add_u32 s43, s43, s55\ns_add_u32 s43, s43, {QA}\ns_add_u32 s44, s43, 4096\ns_add_u32 s45, s43, 8192")
    a(f"s_mul_i32 s47, {sB}, {RS}\ns_lshl_b32 s55, {sHH}, 10\ns_add_u32 s54, s47, s55\ns_add_u32 s54, s54, {REC+RP}")
    a(f"s_lshl_b32 s55, {sHH}, 7\ns_add_u32 s47, s47, s55\ns_add_u32 s47, s47, {REC+RM}")
    a(f"s_lshl_b32 s46, {sB}, 6\ns_lshl_b32 s55, {sHH}, 16\ns_add_u32 s46, s46, s55\ns_add_u32 s46, s46, {ST}")
    a(f"s_lshl_b32 s55, {sHH}, 8\nv_add_u32 v6, s55, {vL4}")
    wait_flag("CNT",114)
    for s in range(12): a(f"ds_read_b128 {vr(FR+4*s,4)}, {vA[s&3]} offset:{256*(s>>2)}")
    wait_flag("PUBB",3)
    def qloads():
        if P.get("skipq"): return
        for s in range(12): a(f"buffer_load_dwordx4 {vr(QR+4*s,4)}, {vQa}, {WS}, s{43+(s>>2)} offen offset:{1024*(s&3)} sc1")
    if P["thrQ"]>114: wait_flag("CNT",P["thrQ"])
    stamp(4); qloads(); sig("QISS")
    if P["thrQ"]<162: wait_flag("CNT",162)
    for s in range(12): a(f"ds_read_b128 {vr(FR+48+4*s,4)}, {vA[s&3]} offset:{24576+256*(s>>2)}")
    sig("RDA")
    a("s_waitcnt lgkmcnt(0)")
    stamp(5)
    a("s_branch L_s3m")
    l,ok=loop_head("S3")
    qloads()
    a("L_s3m:")
    for s in range(12):
        a(f"s_waitcnt vmcnt({11-s})")
        for kt in range(2):
            a(f"v_mfma_f32_16x16x32_bf16 {vr(AC+4*kt,4)}, {vr(FR+48*kt+4*s,4)}, {vr(QR+4*s,4)}, {vr(AC+4*kt,4) if s else 0}")
    a(f"v_cmp_u_f32 vcc, v{AC}, v{AC+4}\ns_cbranch_vccnz {l}\n{ok}:")
    stamp(6)
    a(f"s_cmp_eq_u32 {sKH}, 0\ns_cbranch_scc1 L_soft")
    a(f"ds_write_b128 {vXa}, {vr(AC,4)}\nds_write_b128 {vXa}, {vr(AC+4,4)} offset:1024\nds_add_u32 v6, {vOne} offset:{F['X0']}\ns_branch L_s4")
    a("L_soft:")
    l=a.lab("XW")
    spin(l); a(f"ds_read_b32 {vTmp}, v6 offset:{F['X0']}\nds_read_b128 {vr(AC+8,4)}, {vXa}\nds_read_b128 {vr(AC+12,4)}, {vXa} offset:1024")
    a(f"s_waitcnt lgkmcnt(0)\nv_cmp_gt_u32 vcc, 1, {vTmp}\ns_cbranch_vccnz {l}")
    for k in range(4): a(f"v_pk_add_f32 {vr(AC+2*k,2)}, {vr(AC+2*k,2)}, {vr(AC+8+2*k,2)}")
    a(f"v_max3_f32 v8, v{AC}, v{AC+1}, v{AC+2}\nv_max3_f32 v9, v{AC+3}, v{AC+4}, v{AC+5}\nv_max3_f32 v8, v8, v{AC+6}, v{AC+7}\nv_max_f32 v8, v8, v9")
    xreduce("v_max_f32","v8","v9")
    a("v_ceil_f32 v8, v8")
    for k in range(8): a(f"v_sub_f32 v{AC+k}, v{AC+k}, v8")
    for k in range(8): a(f"v_exp_f32 v{AC+k}, v{AC+k}")
    for k in range(4): a(f"v_cvt_pk_bf16_f32 v{AC+8+k}, v{AC+2*k}, v{AC+2*k+1}")
    mstore(f"buffer_store_dwordx4 {vr(AC+8,4)}, {vLin}, {WS}, s54 offen")
    a(f"s_mov_b64 exec, 0xffff")
    mstore(f"buffer_store_dword v8, {vM0}, {WS}, s47 offen")
    a(f"s_mov_b64 exec, -1")
    sig("PUBC")
    a(f"v_pk_add_f32 {vr(AC,2)}, {vr(AC,2)}, {vr(AC+2,2)}\nv_pk_add_f32 {vr(AC+4,2)}, {vr(AC+4,2)}, {vr(AC+6,2)}\nv_pk_add_f32 {vr(AC,2)}, {vr(AC,2)}, {vr(AC+4,2)}\nv_add_f32 v9, v{AC}, v{AC+1}")
    xreduce("v_add_f32","v9","v10")
    a(f"v_mov_b32 v10, s32\nv_mov_b32 v11, s33\ns_mov_b64 exec, 0xffff\nbuffer_store_dwordx4 v[8:11], {vSt}, {WS}, s46 offen sc1\ns_mov_b64 exec, -1")
    a("L_s4:")
    stamp(7)
    a(f"s_mul_i32 s43, {sG}, {8*RS}\ns_lshl_b32 s55, {sHH}, 10\ns_add_u32 s43, s43, s55\ns_add_u32 s43, s43, {REC+RP}\ns_add_u32 s44, s43, {RS}")
    a(f"s_mul_i32 s45, {sG}, {8*RS}\ns_lshl_b32 s55, {sHH}, 7\ns_add_u32 s45, s45, s55\ns_add_u32 s45, s45, {REC+RM}\ns_add_u32 s51, s45, {RS}")
    a(f"s_lshl_b32 s46, {sHH}, 7\ns_add_u32 s46, s46, {sJ}\ns_mul_i32 s46, s46, {RS}\ns_lshl_b32 s55, {sKH}, 7\ns_add_u32 s46, s46, s55\ns_add_u32 s46, s46, {REC}")
    a(f"s_and_b32 s55, {sG}, 24\ns_bfe_u32 s47, {sG}, 0x20001\ns_or_b32 s55, s55, s47\ns_and_b32 s47, {sG}, 1\ns_lshl2_add_u32 s55, s47, s55\ns_lshl_b32 s55, s55, 8\ns_add_u32 s46, s46, s55")
    a(f"s_mov_b32 s48, 0x00800080\ns_mov_b32 s49, 0x437f0000\ns_and_b32 s55, s32, 0xbfffbfff\nv_mov_b32 v{QR+35}, s55\nv_mov_b32 v{QR+39}, s55")
    for s in range(8):
        for ct in range(3):
            for e2 in range(2):
                a(f"ds_read_b64_tr_b16 {vr(FR+12*s+4*ct+2*e2,2)}, {vB[ct]} offset:{3200*(8*e2+2*(s&3))+384*(s>>2)}")
    sig("RDB")
    wait_flag("PUBC",2)
    stamp(8)
    l,ok=loop_head("S4",("S4M",))
    a(f"buffer_load_dword v8, {vMl}, {WS}, s45 offen sc1\nbuffer_load_dword v9, {vMl}, {WS}, s51 offen sc1")
    for s in range(8): a(f"buffer_load_dwordx4 {vr(QR+4*s,4)}, {vPl}, {WS}, s{43+(s>>2)} offen offset:{256*(s&3)} sc1")
    a(f"s_waitcnt vmcnt(8)\nv_cmp_u_f32 vcc, v8, v9\nv_max_f32 v10, v8, v9\ns_cbranch_vccnz {l}")
    sig("S4M")
    xreduce("v_max_f32","v10","v11")
    a("v_sub_f32 v8, v10, v8\nv_sub_f32 v9, v10, v9\nv_min_f32 v8, s49, v8\nv_min_f32 v9, s49, v9\nv_cvt_u32_f32 v8, v8\nv_cvt_u32_f32 v9, v9\nv_mul_u32_u24 v8, s48, v8\nv_mul_u32_u24 v9, s48, v9")
    def pksub(s):
        a(f"s_waitcnt vmcnt({7-s})")
        for k in range(4): a(f"v_pk_sub_u16 v{QR+4*s+k}, v{QR+4*s+k}, v{8+(s>>2)} clamp")
    pksub(0)
    for s in range(8):
        mf=lambda ct: a(f"v_mfma_f32_16x16x32_bf16 {vr(AC+4*ct,4)}, {vr(FR+12*s+4*ct,4)}, {vr(QR+4*s,4)}, {vr(AC+4*ct,4) if s else 0}")
        q=QR+4*s
        if s==0: a(f"v_or3_b32 v12, v{q}, v{q+1}, v{q+2}\nv_or_b32 v12, v12, v{q+3}")
        mf(0)
        if s<7:
            a(f"s_waitcnt vmcnt({6-s})")
            a(f"v_pk_sub_u16 v{q+4}, v{q+4}, v{8+((s+1)>>2)} clamp\nv_pk_sub_u16 v{q+5}, v{q+5}, v{8+((s+1)>>2)} clamp")
        mf(1)
        if s<7: a(f"v_pk_sub_u16 v{q+6}, v{q+6}, v{8+((s+1)>>2)} clamp\nv_pk_sub_u16 v{q+7}, v{q+7}, v{8+((s+1)>>2)} clamp")
        mf(2)
        if s<7: a(f"v_or3_b32 v12, v12, v{q+4}, v{q+5}\nv_or3_b32 v12, v12, v{q+6}, v{q+7}")
    a(f"v_and_b32 v12, 0x80008000, v12\nv_cmp_ne_u32 vcc, 0, v12\ns_cbranch_vccnz {l}\n{ok}:")
    stamp(9)
    for k in range(6): a(f"v_cvt_pk_bf16_f32 v{QR+k}, v{AC+2*k}, v{AC+2*k+1}\nds_bpermute_b32 v{QR+32+k+k//3}, {vBp}, v{QR+k}")
    a(f"s_waitcnt lgkmcnt(3)\nbuffer_store_dwordx4 {vr(QR+32,4)}, {vC4}, {WS}, s46 offen sc1")
    a(f"s_waitcnt lgkmcnt(0)\nbuffer_store_dwordx4 {vr(QR+36,4)}, {vC4}, {WS}, s46 offen offset:64 sc1")
    sig("DST")
    stamp(10)
    a("s_waitcnt vmcnt(0)")
    sig("PUBD")
    a(f"s_cmp_eq_u32 {sW}, 3\ns_cbranch_scc1 L_s6")
    a(f"s_mul_i32 s54, {sB}, {RS}\ns_lshl_b32 s55, {sW}, 8\ns_add_u32 s54, s54, s55\ns_add_u32 s54, s54, {REC+RE}")
    a(f"s_mov_b32 s43, {R3-R2}\ns_cmp_lt_u32 {sV}, 10\ns_cselect_b32 s55, 24, 0\ns_cselect_b32 s43, {R1-R2}, s43\ns_add_u32 s55, s55, {198+CB}")
    for t in range(4): a(f"v_add_u32 {vT1[t]}, s43, {vT1[t]}")
    wait_flag("CNT","s55")
    for t in range(4):
        for h in range(6): a(f"ds_read_b64_tr_b16 {vr(FR+12*t+2*h,2)}, {vT1[t]} offset:{2*h*3072}")
    a("s_waitcnt lgkmcnt(0)")
    l=a.lab("V1")
    spin(l); a(f"ds_read_b32 {vTmp}, {vL4} offset:{F['V1B']}")
    for s in range(3): a(f"ds_read_b128 {vr(QR+4*s,4)}, {vVec} offset:{VEC1B-VEC1A+64*s}")
    a(f"s_waitcnt lgkmcnt(0)\nv_cmp_gt_u32 vcc, 1, {vTmp}\ns_cbranch_vccnz {l}")
    stamp(11)
    for t in range(4):
        for s in range(3):
            a(f"v_mfma_f32_16x16x32_bf16 {vr(AC+4*t,4)}, {vr(FR+12*t+4*s,4)}, {vr(QR+4*s,4)}, {vr(AC+4*t,4) if s else 0}")
    publish4(AC, vS, vPub, "s54", mode=True)
    sig("PUBE")
    a("L_s6:")
    stamp(12)
    a(f"s_mul_i32 s54, {sG}, 2560\ns_lshl_b32 s55, {sJ}, 9\ns_add_u32 s54, s54, s55\ns_add_u32 s54, s54, {OP}")
    a(f"s_lshl_b32 s55, {sW}, 7\ns_add_u32 s54, s54, s55\ns_cmp_lt_u32 {sJ}, 5\ns_cbranch_scc0 L_fin")
    a("L_s6go:")
    a(f"v_lshlrev_b32 v6, 2, {vLane}\ns_mov_b32 s56, 0xffff0000\ns_mov_b32 s57, 0")
    wait_flag("CNT",246)
    for s in range(6):
        for t in range(2):
            for e2 in range(2): a(f"ds_read_b64_tr_b16 {vr(FR+8*s+4*t+2*e2,2)}, {vT6[t]} offset:{(4*s+2*e2)*2048}")
    a("s_waitcnt lgkmcnt(0)")
    stamp(13)
    vec2_mfma("V2B",1,VEC2B,False)
    a(f"s_mov_b32 exec_hi, 0\nv_cndmask_b32 v7, v{AC}, v{AC+4}, s[56:57]\nbuffer_store_dword v7, v6, {WS}, s54 offen sc1")
    stamp(14)
    a("s_mov_b64 exec, -1\ns_waitcnt vmcnt(0)")
    sig("PUBF")
    a("s_branch L_fin")

    GA=16; GD=32; GX=72
    def gather_setup(vOff, stride):
        a(f"v_mul_u32_u24 {vOff}, {stride}, {vGl}\nv_lshl_add_u32 {vOff}, {vN}, 4, {vOff}")
        a(f"v_and_b32 v6, 1, {vN}\nv_lshlrev_b32 v6, 4, v6\nv_mov_b32 v7, 0x3f80\nv_lshlrev_b32 v6, v6, v7\nv_lshrrev_b32 v7, 1, {vN}")
        for k in range(6): a(f"v_cmp_eq_u32 vcc, {k}, v7\nv_cndmask_b32 v{GA+k}, 0, v6, vcc")
    def gather(nq, vOff, soffs, name, xcc=False):
        l,ok=loop_head(name)
        for q in range(nq):
            if q==2: a("s_mov_b32 exec_hi, 0")
            for u in range(3):
                a(f"buffer_load_dwordx4 {vr(GD+4*(3*q+u),4)}, {vOff}, {WS}, {soffs[q]} offen offset:{256*u} sc1")
        if nq==3: a("s_mov_b64 exec, -1")
        n=3*nq
        for k in range(n):
            a(f"s_waitcnt vmcnt({n-1-k})\nv_mfma_f32_16x16x16_bf16 {vr(GX,4)}, {vr(GA+2*(k%3),2)}, {vr(GD+4*k,2)}, {vr(GX,4) if k else 0}")
        if not xcc:
            for k in range(n): a(f"v_cmpx_eq_u64 vcc, s[32:33], {vr(GD+4*k+2,2)}")
            a(f"s_cmp_eq_u64 exec, -1\ns_mov_b64 exec, -1\ns_cbranch_scc0 {l}\n{ok}:")
        else:
            sl=a.lab("SL")
            for k in range(n): a(f"v_cmpx_eq_u64 vcc, s[58:59], {vr(GD+4*k+2,2)}")
            a(f"s_cmp_eq_u64 exec, -1\ns_mov_b64 exec, -1\ns_cbranch_scc1 {ok}")
            for k in range(n): a(f"v_or_b32 v{GD+4*k+2}, 15, v{GD+4*k+2}\nv_cmpx_eq_u64 vcc, s[32:33], {vr(GD+4*k+2,2)}")
            a(f"s_cmp_eq_u64 exec, -1\ns_mov_b64 exec, -1\ns_cselect_b32 s60, 0, {sBud}\ns_cselect_b32 s63, 1, 0\ns_and_b32 s60, s60, 7\ns_cbranch_scc1 {l}\ns_branch {sl}\n{ok}:")
            far.append(f"""{sl}:
s_mov_b32 exec_hi, 0xffff
buffer_load_dwordx4 v[76:79], v28, {WS}, s61 offen offset:{RQ-RP} sc1
s_waitcnt vmcnt(0)
buffer_store_dwordx4 v[76:79], v28, {WS}, s61 offen offset:{RQ-RP} sc1
s_mov_b64 exec, -1
s_waitcnt vmcnt(0)
s_cmp_eq_u32 s63, 0
s_cbranch_scc1 {l}
v_mov_b32 v76, -1
v_mov_b32 v77, -1
v_mov_b32 v78, -1
v_mov_b32 v79, -1
v_mov_b32 v27, 3
buffer_store_dwordx4 v[76:79], v28, {WS}, s61 offen sc1
buffer_store_dwordx4 v[76:79], v28, {WS}, s61 offen offset:1024 sc1
s_mov_b64 exec, 0xffff
buffer_store_dwordx4 v[76:79], v28, {WS}, s61 offen offset:2048 sc1
s_mov_b64 exec, -1
s_waitcnt vmcnt(0)
s_branch {ok}""")
    def vec2_write(vAddr, flag, v=vOne):
        a(f"s_mov_b32 exec_hi, 0xffff\nv_cvt_pk_bf16_f32 v{GX}, v{GX}, v{GX+1}\nv_cvt_pk_bf16_f32 v{GX+1}, v{GX+2}, v{GX+3}\nds_write_b64 {vAddr}, {vr(GX,2)}\ns_mov_b64 exec, -1")
        sig(flag, v)
    def vec2b_addr(dst):
        a(f"v_lshlrev_b32 {dst}, 7, {vGl}\nv_bfe_u32 v6, {vN}, 1, 1\nv_lshl_add_u32 {dst}, v6, 6, {dst}\nv_lshrrev_b32 v6, 2, {vN}\nv_lshl_add_u32 {dst}, v6, 4, {dst}\nv_and_b32 v6, 1, {vN}\nv_lshl_add_u32 {dst}, v6, 3, {dst}\nv_add_u32 {dst}, {VEC2B}, {dst}")

    a("L_w7:")
    a("s_setprio 2")
    gather_setup("v24", RS)
    a(f"v_lshlrev_b32 v28, 4, {vLane}\ns_mul_i32 s61, {sB}, {RS}\ns_add_u32 s61, s61, {REC+RP}")
    a(f"v_lshlrev_b32 v25, 7, {vGl}\nv_and_b32 v6, 3, {vN}\nv_lshl_add_u32 v25, v6, 5, v25\nv_lshrrev_b32 v6, 2, {vN}\nv_lshl_add_u32 v25, v6, 3, v25\nv_add_u32 v25, {VEC2A}, v25")
    vec2b_addr("v26")
    a(f"s_mul_i32 s54, {sG}, {8*RS}\ns_add_u32 s52, s54, {REC+RE}\ns_add_u32 s53, s52, {4*RS}\ns_add_u32 s54, s54, {REC+RQ}\ns_add_u32 s55, s54, {4*RS}")
    a(f"s_mov_b32 s56, {f2u(192**-0.5*math.log2(math.e))}\ns_mov_b32 s57, s56")
    tag_finish()
    a("s_getreg_b32 s58, hwreg(HW_REG_XCC_ID, 0, 4)\ns_xor_b32 s58, s58, s32\ns_mov_b32 s59, s33\nv_mov_b32 v27, 1")
    a("s_barrier")
    wait_flag("PUBA",3)
    wait_flag("CNT",P["thrG"])
    stamp(1)
    gather(2,"v24",["s54","s55"],"GA", xcc=True)
    stamp(2)
    a(f"v_pk_mul_f32 {vr(GX,2)}, {vr(GX,2)}, s[56:57]\nv_pk_mul_f32 {vr(GX+2,2)}, {vr(GX+2,2)}, s[56:57]")
    vec2_write("v25","V2A","v27")
    a(f"s_cmp_lt_u32 {sJ}, 5\ns_cbranch_scc1 L_w7e\ns_cmp_lt_u32 {sV}, 10\ns_cbranch_scc0 L_fin")
    a("L_ffn2:")
    trcore("v8", vTmp)
    a(f"s_and_b32 s52, {sW}, 1\ns_lshl_b32 s55, s52, 6\nv_lshrrev_b32 v6, 5, {vLane}\nv_lshl_add_u32 v8, v6, 11, v8\nv_xor_b32 v8, s55, v8\nv_add_u32 {vT6[0]}, {R2}, v8\nv_xor_b32 {vT6[1]}, 32, {vT6[0]}")
    a(f"v_lshlrev_b32 {vVec}, 4, {vGl}\nv_add_u32 {vVec}, {VEC1A}, {vVec}")
    a(f"s_mul_i32 s54, {sX}, 2560\ns_lshl_b32 s55, {sV}, 8\ns_add_u32 s54, s54, s55\ns_lshl_b32 s55, s52, 7\ns_add_u32 s54, s54, s55\ns_add_u32 s54, s54, {YP}")
    wait_flag("PUBC",2)
    a("s_branch L_s6go")
    a("L_w7e:")
    wait_flag("PUBE",3)
    stamp(6)
    gather(2,"v24",["s52","s53"],"GE")
    stamp(7)
    vec2_write("v26","V2B")
    a("s_branch L_fin")

    a("L_w5:")
    a(f"v_lshlrev_b32 v6, 4, {vLane}\nv_mov_b32 v8, -1\nv_mov_b32 v9, -1\nv_mov_b32 v10, -1\nv_mov_b32 v11, -1")
    a(f"s_mul_i32 s52, {sB}, {RS}\ns_add_u32 s52, s52, {REC}\ns_add_u32 s53, s52, {RP}")
    a(f"v_lshlrev_b32 v22, 6, {vLane}\ns_mov_b32 exec_hi, 0x0fffffff\nbuffer_load_dword v23, v22, {WS}, s53 offen sc1\ns_mov_b64 exec, -1")
    a(f"s_cmp_lt_u32 s2, 100\ns_cbranch_scc0 L_ng\ns_lshl_b32 s54, s2, 10\ns_add_u32 s54, s54, {G}\nbuffer_store_dwordx4 v[8:11], v6, {WS}, s54 offen sc1\nL_ng:")
    a("s_setprio 2")
    MK=12
    a(f"v_and_b32 v7, 1, {vN}\nv_lshlrev_b32 v7, 4, v7\nv_mov_b32 v16, 0xffff\nv_lshlrev_b32 v7, v7, v16\nv_lshrrev_b32 v16, 1, {vN}")
    for k in range(3): a(f"v_cmp_eq_u32 vcc, {2*k}, v16\nv_cndmask_b32 v{MK+k}, 0, v7, vcc")
    for k in range(8): a(f"v_mov_b32 v{43+4*k}, 0")
    a(f"v_bfe_u32 v7, {vN}, 2, 1\nv_mad_u32_u24 v7, v7, 3, {vGl}\nv_lshrrev_b32 v17, 3, {vN}\nv_lshlrev_b32 v18, 6, v17\nv_lshl_add_u32 v18, v7, 2, v18")
    a(f"v_lshlrev_b32 v19, 3, v17\nv_lshl_add_u32 v19, v7, 2, v19\nv_add_u32 v19, 112, v19\nv_cmp_gt_u32 vcc, 4, v7\nv_cndmask_b32 v18, v19, v18, vcc")
    a(f"v_and_b32 v7, 3, {vN}\nv_lshl_add_u32 v18, v7, 4, v18\nv_add_u32 v18, {VEC1B}, v18")
    a(f"s_movk_i32 s55, {FLG}\nv_lshlrev_b32 v16, 7, {vLane}")
    tag_finish()
    a("s_barrier\ns_waitcnt vmcnt(0)")
    a(f"buffer_store_dwordx4 v[8:11], v6, {WS}, s53 offen\nbuffer_store_dwordx4 v[8:11], v6, {WS}, s53 offen offset:1024\ns_mov_b64 exec, 0xffff\nbuffer_store_dwordx4 v[8:11], v6, {WS}, s53 offen offset:2048\ns_mov_b64 exec, -1")
    stamp(1)
    wait_flag("CNT",P["thrF"])
    l,ok=loop_head("FL")
    a(f"s_mov_b64 exec, 0xff\nbuffer_load_dwordx2 v[24:25], v16, {WS}, s55 offen sc1\ns_waitcnt vmcnt(0)\nv_cmp_ne_u64 vcc, s[32:33], v[24:25]\ns_mov_b64 exec, -1\ns_cbranch_vccnz {l}\n{ok}:")
    sig("CLR")
    stamp(2)
    a(f"s_lshl_b32 s54, {sX}, 14\ns_and_b32 s55, {sG}, 3\ns_lshl_b32 s55, s55, 4\ns_add_u32 s54, s54, s55\ns_add_u32 s44, s54, {ST}\ns_add_u32 s45, s44, 4096\ns_add_u32 s46, s44, 8192\ns_add_u32 s47, s44, 12288\ns_add_u32 s53, s52, 4096")
    wait_flag(*{"DST":("DST",4),"S4M":("S4M",1),"PUBC":("PUBC",2),"PUBD":("PUBD",4)}[P["stattrig"]])
    stamp(3)
    l,ok=loop_head("SS")
    SM=108
    for k in range(4): a(f"buffer_load_dwordx4 {vr(SM+4*k,4)}, v22, {WS}, s{44+k} offen sc1")
    a("s_waitcnt vmcnt(0)")
    for k in range(4): a(f"v_cmpx_eq_u64 vcc, s[32:33], {vr(SM+4*k+2,2)}")
    a(f"s_cmp_eq_u64 exec, -1\ns_mov_b64 exec, -1\ns_cbranch_scc0 {l}\n{ok}:")
    stamp(4)
    st3=("quad_perm:[1,0,3,2]","quad_perm:[2,3,0,1]","row_half_mirror")
    for i,s in enumerate(st3):
        for k in range(4):
            src = f"v{SM+4*k}" if i==0 else f"v{32+k}"
            a(f"v_max_f32_dpp v{32+k}, {src}, {src} {s} {DP}")
    a("v_max3_f32 v36, v32, v33, v34\nv_max_f32 v36, v36, v35")
    rowreduce("v_max_f32","v36",("row_mirror",))
    xreduce("v_max_f32","v36","v37")
    for k in range(4): a(f"v_sub_f32 v{SM+4*k}, v{SM+4*k}, v36\nv_sub_f32 v{32+k}, v{32+k}, v36")
    for k in range(4): a(f"v_exp_f32 v{SM+4*k}, v{SM+4*k}\nv_exp_f32 v{32+k}, v{32+k}")
    a(f"v_mul_f32 v38, v{SM}, v{SM+1}\nv_fmac_f32 v38, v{SM+4}, v{SM+5}\nv_fmac_f32 v38, v{SM+8}, v{SM+9}\nv_fmac_f32 v38, v{SM+12}, v{SM+13}")
    for k in range(4): a(f"v_cvt_pk_bf16_f32 v{32+k}, v{32+k}, v{32+k}")
    rowreduce("v_add_f32","v38")
    xreduce("v_add_f32","v38","v37")
    a("v_rcp_f32 v38, v38")
    SAa=40; SD=72; SX=104
    for s in range(8):
        for r in range(3): a(f"v_and_b32_dpp v{SAa+4*s+r}, v{32+(s>>1)}, v{MK+r} row_newbcast:{8*(s&1)} {DP}")
    a("v_mov_b32 v39, v38\ns_and_b32 s56, s32, 0xbfffbfff")
    wait_flag("PUBD",4)
    stamp(5)
    l,ok=loop_head("CD",("CDI",))
    for s in range(8): a(f"buffer_load_dwordx4 {vr(SD+4*s,4)}, v6, {WS}, s{52+(s>>2)} offen offset:{1024*(s&3)} sc1")
    sig("CDI")
    for s in range(8):
        a(f"s_waitcnt vmcnt({7-s})\nv_mfma_f32_16x16x32_bf16 {vr(SX,4)}, {vr(SAa+4*s,4)}, {vr(SD+4*s,4)}, {vr(SX,4) if s else 0}")
    for s in range(8): a(f"v_cmpx_eq_u32 vcc, s56, v{SD+4*s+3}")
    a(f"s_cmp_eq_u64 exec, -1\ns_mov_b64 exec, -1\ns_cbranch_scc0 {l}\n{ok}:")
    stamp(6)
    a(f"s_mov_b32 exec_hi, 0xffff\nv_pk_mul_f32 {vr(SX,2)}, {vr(SX,2)}, v[38:39]\nv_cvt_pk_bf16_f32 v{SX}, v{SX}, v{SX+1}")
    a(f"ds_write_b32 v18, v{SX}\ns_mov_b64 exec, -1")
    sig("V1B")
    a("s_branch L_fin")

    a("L_w6:")
    a(f"v_lshlrev_b32 v6, 2, {vLane}\nv_add_u32 v6, {XB}, v6")
    a(f"s_mul_i32 s52, {sJ}, 160\ns_min_u32 s53, {sV}, 9\ns_lshl_b32 s53, s53, 7\ns_sub_u32 s53, s53, 256\nv_mov_b32 v16, s52\nv_mov_b32 v13, s53\nv_cmp_gt_u32 vcc, 32, {vLane}\nv_cndmask_b32 v16, v13, v16, vcc\nv_lshl_add_u32 v16, {vLane}, 3, v16\nv_add_u32 v16, {XB}, v16")
    a(f"v_bfe_u32 v7, {vLane}, 3, 2\nv_lshlrev_b32 v27, 6, v7\nv_and_b32 v7, 3, {vLane}\nv_lshl_add_u32 v27, v7, 4, v27\nv_bfe_u32 v7, {vLane}, 2, 1\nv_lshl_add_u32 v27, v7, 3, v27\nv_lshrrev_b32 v7, 5, {vLane}\nv_mul_u32_u24 v7, {VEC1F-VEC1A}, v7\nv_add_u32 v27, v27, v7\nv_add_u32 v27, {VEC1A}, v27")
    a("s_mov_b32 s54, 0xffff0000\ns_barrier")
    for k in range(5): a(f"ds_read_b32 v{8+k}, v6 offset:{256*k}")
    a("ds_read_b64 v[14:15], v16\ns_waitcnt lgkmcnt(0)")
    stamp(1)
    for k in range(5): a(f"v_lshlrev_b32 v{32+2*k}, 16, v{8+k}\nv_and_b32 v{33+2*k}, s54, v{8+k}")
    a("v_pk_add_f32 v[44:45], v[32:33], v[34:35]\nv_pk_add_f32 v[46:47], v[36:37], v[38:39]\nv_pk_add_f32 v[44:45], v[44:45], v[40:41]\nv_pk_add_f32 v[44:45], v[44:45], v[46:47]\nv_add_f32 v44, v44, v45")
    rowreduce("v_add_f32","v44"); xreduce("v_add_f32","v44","v45")
    a(f"v_mul_f32 v44, {hex(f2u(1/640))}, v44")
    for k in range(10): a(f"v_sub_f32 v{32+k}, v{32+k}, v44")
    a("v_mul_f32 v46, v32, v32")
    for k in range(1,10): a(f"v_fmac_f32 v46, v{32+k}, v{32+k}")
    rowreduce("v_add_f32","v46"); xreduce("v_add_f32","v46","v45")
    def rbf(v): a(f"v_cvt_pk_bf16_f32 {v}, {v}, {v}\nv_and_b32 {v}, s54, {v}")
    a(f"v_mul_f32 v46, {hex(f2u(1/640))}, v46"); rbf("v46"); rbf("v44")
    a(f"v_add_f32 v46, {hex(f2u(1e-5))}, v46"); rbf("v46")
    a("v_sqrt_f32 v46, v46"); rbf("v46")
    a("v_rcp_f32 v46, v46")
    a("v_lshlrev_b32 v32, 16, v14\nv_and_b32 v33, s54, v14\nv_lshlrev_b32 v34, 16, v15\nv_and_b32 v35, s54, v15")
    for k in range(4): a(f"v_sub_f32 v{32+k}, v{32+k}, v44")
    a("v_cvt_pk_bf16_f32 v14, v32, v33\nv_cvt_pk_bf16_f32 v15, v34, v35")
    a("v_lshlrev_b32 v32, 16, v14\nv_and_b32 v33, s54, v14\nv_lshlrev_b32 v34, 16, v15\nv_and_b32 v35, s54, v15")
    for k in range(4): a(f"v_mul_f32 v{32+k}, v{32+k}, v46")
    a("v_cvt_pk_bf16_f32 v14, v32, v33\nv_cvt_pk_bf16_f32 v15, v34, v35")
    a("s_mov_b32 exec_lo, 0x000fffff\ns_mov_b32 exec_hi, 0xffff\nds_write_b64 v27, v[14:15]\ns_mov_b64 exec, -1")
    sig("V1A")
    stamp(2)
    tag_finish()
    a(f"s_cmp_lt_u32 s2, 20\ns_cbranch_scc1 L_final\ns_cmp_lt_u32 {sV}, 10\ns_cbranch_scc0 L_fin")
    masks()
    srd(44, 20, 3072)
    a(f"v_lshlrev_b32 v8, 7, {vGl}\nv_and_b32 v6, 3, {vN}\nv_lshl_add_u32 v8, v6, 5, v8\nv_lshrrev_b32 v6, 2, {vN}\nv_lshl_add_u32 v8, v6, 3, v8\ns_mul_i32 s52, {sX}, 384")
    a(f"buffer_load_dwordx2 v[22:23], v8, {SA}, s52 offen")
    gather_setup("v24",768); vec2b_addr("v26")
    trcore("v80", vTmp)
    a(f"v_lshrrev_b32 v6, 5, {vLane}\nv_mul_u32_u24 v6, 3072, v6\nv_add_u32 v80, v80, v6\nv_add_u32 v80, {R3}, v80")
    for t in range(1,4): a(f"v_xor_b32 v{80+t}, {32*t}, v80")
    a(f"v_lshlrev_b32 v84, 6, {vGl}\nv_lshl_add_u32 v84, {vN}, 4, v84\nv_lshlrev_b32 v85, 4, {vGl}\nv_add_u32 v85, {VEC1F}, v85")
    a(f"ds_read_b128 v[88:91], v85\nds_read_b128 v[92:95], v85 offset:64\nv_mov_b32 v78, s32\nv_mov_b32 v79, s33")
    for u in range(3): a(f"v_mov_b32 v{GD+24+4*u}, 0\nv_mov_b32 v{GD+25+4*u}, 0\nv_mov_b32 v{GD+26+4*u}, s32\nv_mov_b32 v{GD+27+4*u}, s33")
    a(f"s_mul_i32 s52, {sX}, {12*768}\ns_add_u32 s52, s52, {HP}\ns_add_u32 s53, s52, 3072\ns_add_u32 s51, s52, 6144\ns_mul_i32 s55, {sV}, 768\ns_add_u32 s55, s55, s52\ns_mov_b32 s43, 0")
    wait_flag("CNT",186)
    stamp(3)
    l=a.lab("F1")
    a(f"{l}:")
    for t in range(4):
        for h in range(4): a(f"ds_read_b64_tr_b16 {vr(96+8*t+2*h,2)}, v{80+t} offset:{2*h*3072}")
    for t in range(4):
        a(f"s_waitcnt lgkmcnt({12-4*t})")
        a(f"v_mfma_f32_16x16x32_bf16 {vr(128+4*t,4)}, {vr(96+8*t,4)}, v[88:91], 0\nv_mfma_f32_16x16x32_bf16 {vr(128+4*t,4)}, {vr(100+8*t,4)}, v[92:95], {vr(128+4*t,4)}")
    for t in range(4): a(f"v_add_u32 v{80+t}, 1024, v{80+t}")
    publish4(128, 76, "v84", "s55")
    a(f"s_add_u32 s55, s55, 256\ns_add_u32 s43, s43, 1\ns_cmp_lt_u32 s43, 3\ns_cbranch_scc1 {l}")
    stamp(4)
    a("s_waitcnt vmcnt(0)")
    gather(3,"v24",["s52","s53","s51"],"GH")
    stamp(5)
    a("v_lshlrev_b32 v8, 16, v22\nv_and_b32 v9, s54, v22\nv_lshlrev_b32 v10, 16, v23\nv_and_b32 v11, s54, v23")
    c1 = -2*math.sqrt(2/math.pi)*math.log2(math.e)
    a(f"s_mov_b32 s56, {f2u(c1*0.044715)}\nv_mov_b32 v7, {hex(f2u(c1))}")
    for k in range(4): a(f"v_add_f32 v{GX+k}, v{GX+k}, v{8+k}")
    for k in range(4): a(f"v_mul_f32 v{8+k}, v{GX+k}, v{GX+k}")
    for k in range(4): a(f"v_fma_f32 v{8+k}, v{8+k}, s56, v7")
    for k in range(4): a(f"v_mul_f32 v{8+k}, v{8+k}, v{GX+k}")
    for k in range(4): a(f"v_exp_f32 v{8+k}, v{8+k}")
    for k in range(4): a(f"v_add_f32 v{8+k}, 1.0, v{8+k}")
    for k in range(4): a(f"v_rcp_f32 v{8+k}, v{8+k}")
    for k in range(4): a(f"v_mul_f32 v{GX+k}, v{GX+k}, v{8+k}")
    vec2_write("v26","V2B")
    a("s_branch L_ffn2")

    a("L_final:")
    a(f"s_mov_b32 s40, s2")
    a(f"v_and_b32 v6, 7, {vLane}\nv_lshlrev_b32 v8, 3, v6\nv_bfe_u32 v7, {vLane}, 4, 1\nv_lshl_add_u32 v8, v7, 2, v8\nv_lshrrev_b32 v7, 5, {vLane}\nv_lshl_add_u32 v8, v7, 1, v8")
    a(f"s_lshl_b32 s52, s40, 6")
    srd(44,4,1280); srd(48,24,1280)
    a(f"buffer_load_ushort v10, v8, {SA}, s52 offen\nbuffer_load_ushort v11, v8, {SB}, s52 offen")
    a(f"v_lshrrev_b32 v7, 3, {vLane}\nv_mul_u32_u24 v7, 2560, v7\nv_lshl_add_u32 v9, v6, 4, v7")
    a(f"s_lshl_b32 s53, s40, 7\ns_add_u32 s56, s53, {OP}\ns_add_u32 s57, s56, 20480\ns_add_u32 s58, s57, 20480\ns_add_u32 s59, s58, 20480\ns_add_u32 s53, s53, {YP}")
    a("s_waitcnt vmcnt(0)\nv_lshlrev_b32 v10, 16, v10\nv_lshlrev_b32 v11, 16, v11")
    srd(44,26,1280)
    def red4(b):
        a(f"v_permlane32_swap_b32 v{b}, v{b+1}\nv_permlane32_swap_b32 v{b+2}, v{b+3}\nv_add_f32 v{b}, v{b}, v{b+1}\nv_add_f32 v{b+2}, v{b+2}, v{b+3}")
        a(f"v_permlane16_swap_b32 v{b}, v{b+2}\nv_add_f32 v{b}, v{b}, v{b+2}\nv_add_f32_dpp v{b}, v{b}, v{b} row_ror:8 {DP}")
    wait_flag(*P.get("ytrig",("V2B",1)))
    stamp(8)
    l,ok=loop_head("FY")
    a(f"buffer_load_dwordx4 v[12:15], v9, {WS}, s53 offen sc1\ns_waitcnt vmcnt(0)")
    red4(12)
    a(f"v_cmp_u_f32 vcc, v12, v12\ns_cbranch_vccnz {l}\n{ok}:")
    stamp(9)
    a(f"v_add_f32 v11, v11, v12\nv_mul_f32 v12, {hex(f2u(-math.log2(math.e)))}, v11\nv_exp_f32 v12, v12\nv_add_f32 v12, 1.0, v12\nv_rcp_f32 v12, v12\nv_mul_f32 v11, v11, v12")
    wait_flag("PUBF",4)
    stamp(11)
    l,ok=loop_head("FS")
    for k in range(4): a(f"buffer_load_dwordx4 {vr(12+4*k,4)}, v9, {WS}, s{56+k} offen sc1")
    a("s_waitcnt vmcnt(2)\nv_pk_add_f32 v[12:13], v[12:13], v[16:17]\nv_pk_add_f32 v[14:15], v[14:15], v[18:19]")
    a("s_waitcnt vmcnt(0)\nv_pk_add_f32 v[20:21], v[20:21], v[24:25]\nv_pk_add_f32 v[22:23], v[22:23], v[26:27]\nv_pk_add_f32 v[12:13], v[12:13], v[20:21]\nv_pk_add_f32 v[14:15], v[14:15], v[22:23]")
    red4(12)
    a(f"v_cmp_u_f32 vcc, v12, v12\nv_fma_f32 v13, v12, v11, v10\ns_cbranch_vccnz {l}\n{ok}:")
    a(f"v_cvt_pk_bf16_f32 v13, v13, v13\ns_mov_b32 exec_lo, 0x00ff00ff\ns_mov_b32 exec_hi, 0x00ff00ff\nbuffer_store_short v13, v8, {SA}, s52 offen sc1")
    stamp(10)
    a(f"s_cmp_eq_u32 s40, 0\ns_cbranch_scc0 L_fin\ns_mov_b64 exec, 1\nv_mov_b32 v14, s32\nv_mov_b32 v15, s33\nv_mov_b32 v6, {EPOCH}\nbuffer_store_dwordx2 v[14:15], v6, {WS}, 0 offen sc1")
    if P.get("trace"):
        L2=[]
        for x in a.L:
            L2.append(x)
            if x.startswith(("ds_max_u32","ds_write_b32")) and x.endswith(f"v10 offset:{F['CNT']}"):
                L2+=["s_memrealtime s[62:63]","v_readfirstlane_b32 s97, v10","s_waitcnt lgkmcnt(0)","s_lshl_b32 s62, s62, 12","s_or_b32 s62, s62, s97","s_and_b32 s98, s96, 63","s_cmp_lt_u32 s96, 64","s_cselect_b64 vcc, -1, 0","v_mov_b32 v32, s62","v_cmp_eq_u32 s[62:63], s98, v0","s_add_u32 s96, s96, 1","s_and_b64 vcc, vcc, s[62:63]","v_cndmask_b32 v30, v30, v32, vcc","v_cndmask_b32 v31, v31, v32, s[62:63]"]
            if x=="s_setprio 3": L2+=["s_mov_b32 s96, 0","v_mov_b32 v30, 0","v_mov_b32 v31, 0"]
        a.L=L2
    if P.get("nostores"):
        L2=[]; n_=0
        for x in a.L:
            if x.startswith("buffer_store") and WS in x:
                if n_ in P.get("keep",()): L2.append(x)
                n_+=1
            else: L2.append(x)
        a.L=L2
    a("L_fin:")
    if diag:
        stamp(15)
        a("s_load_dwordx2 s[28:29], s[0:1], 104")
        a(f"s_waitcnt lgkmcnt(0) vmcnt(0)\ns_mov_b32 s30, {WSSIZE}\ns_mov_b32 s31, 0x20000\ns_mov_b64 exec, 1")
        if P["wsb"]: a(f"s_add_u32 s28, s28, {P['wsb']}\ns_addc_u32 s29, s29, 0")
        for i in range(16): a(f"v_mov_b32 v{8+i}, s{64+2*i}")
        a(f"v_mov_b32 v24, {sBud}\nv_mov_b32 v6, 0\ns_lshl_b32 s52, {sB}, 3\ns_add_u32 s52, s52, {sW}\ns_lshl_b32 s52, s52, 7\ns_add_u32 s52, s52, {DBG}")
        for i in range(4): a(f"buffer_store_dwordx4 {vr(8+4*i,4)}, v6, {WS}, s52 offen offset:{16*i}")
        a(f"buffer_store_dword v24, v6, {WS}, s52 offen offset:64")
        if P.get("trace"):
            a(f"s_cmp_eq_u32 {sW}, 4\ns_cbranch_scc0 L_ntr\ns_mov_b64 exec, -1\nv_lshlrev_b32 v6, 2, v0\ns_lshl_b32 s52, {sB}, 9\ns_add_u32 s52, s52, {DBG+0x40000}\nbuffer_store_dword v30, v6, {WS}, s52 offen\nbuffer_store_dword v31, v6, {WS}, s52 offen offset:256\nL_ntr:")
    a("s_endpgm")
    for f_ in far: a(f_)
    a("L_end:\ns_endpgm")
    body = a.finish(verbose=P.get("verbose",False))
    hdr = open("cdna_kernels/"+NAME+".s.ref").read().split("; Override launch")[0] if P.get("hdr",True) else ""
    return hdr + f"""; Single persistent launch: 256 workgroups (one per CU) x 8 waves; generated by my own script (gen/gen.py).
; @launch grid=(256,1,1) block=(512,1,1) lds={LDS_BYTES}
.amdgcn_target "amdgcn-amd-amdhsa--gfx950"
.text
.globl {NAME}_kernel
.p2align 8
.type {NAME}_kernel,@function
{NAME}_kernel:
{body}
.section .rodata,"a"
.p2align 6
.amdhsa_kernel {NAME}_kernel
  .amdhsa_next_free_vgpr 212
  .amdhsa_next_free_sgpr 100
  .amdhsa_accum_offset 212
  .amdhsa_group_segment_fixed_size 0
  .amdhsa_kernarg_size 112
  .amdhsa_user_sgpr_count 2
  .amdhsa_user_sgpr_kernarg_segment_ptr 1
  .amdhsa_system_sgpr_workgroup_id_x 1
.end_amdhsa_kernel
"""
if __name__=="__main__":
    kw={}
    out="cdna_kernels/"+NAME+".s"
    for arg in sys.argv[1:]:
        k,v=arg.split("=",1)
        if k=="out": out=v
        else:
            try: kw[k]=eval(v)
            except Exception: kw[k]=v
    open(out,"w").write(gen(verbose=True, **kw))
    print("wrote",out,"LDS",LDS_BYTES)
```

```python
import sys, math, struct
from asmlib import Asm
NAME = "recurrent_scan__compressed_kv_cla__dense_activation_gelu__decode"
def f2u(x): return struct.unpack("<I", struct.pack("<f", x))[0]

EPOCH=0; FLG=0x1000; QA=0x4000; HP=0x10000; G=0x24000; OP=G; YP=G+81920; ST=0x40000
REC=0x60000; RP=8192; RM=RP+2048; RE=RM+256; RQ=RE+768; RS=RQ+768; DBG=0x380000; WSSIZE=0x400000
assert REC+256*RS<=DBG
R1=0; R2=49152; R3=R2+51200; SCR=R3+36864
XB=SCR; VEC1A=XB+4096; VEC1F=VEC1A+192; VEC1B=VEC1F+128; VEC2A=VEC1B+192; VEC2B=VEC2A+384
FLAGS=(VEC2B+384+255)//256*256
FN = ["CNT","RDB","V1A","V2A","CLR","X0","X1","V1B","V2B","S4M","RDUK","RDA","PUBA","PUBC","PUBD","PUBE","PUBF","PUBB","QISS","DST","CDI","p1","p2","p3"]
F = {n:256*i for i,n in enumerate(FN)}
LDS_BYTES = FLAGS+256*len(FN)

DEF = dict(T=18, TA=36, TL=24, thrG=48, pauseQ=True, ntA='', ntB='', nt="nt", diag=False, wsb=0, thrF=30, clrstep=8, gate=True, thrQ=162, adual=True,  local=True, stattrig="DST", pref=True, budget=400000, safe=False)

def gen(**kw):
    P = dict(DEF); P.update(kw)
    T=P["T"]; TL=P["TL"]; NT=P["nt"]; diag=P["diag"]
    a = Asm()
    far=[]
    sW,sX,sY,sG,sJ,sB,sV = "s34","s35","s36","s37","s38","s39","s41"
    sBud="s42"; WS="s[28:31]"; SA="s[44:47]"; SB="s[48:51]"
    nst=[0]
    def stamp(i):
        if diag: a(f"s_memrealtime s[{64+2*i}:{65+2*i}]")
    def srd(base, ptr, size):
        a(f"s_mov_b32 s{base}, s{ptr}\ns_mov_b32 s{base+1}, s{ptr+1}\ns_mov_b32 s{base+2}, {size}\ns_mov_b32 s{base+3}, 0x20000")
    vLane="v0"; vL4="v1"; vOne="v2"; vTmp="v3"; vN="v4"; vGl="v5"
    CB=64
    def spin(l):
        a(f"{l}:")
        if P["safe"]: a("s_sub_u32 s99, s99, 1\ns_cbranch_scc1 L_fin")
    def wait_flag(name, thr):
        if name=="CNT" and isinstance(thr,int): thr+=CB
        l=a.lab("WF")
        spin(l)
        a(f"ds_read_b32 {vTmp}, {vL4} offset:{F[name]}\ns_waitcnt lgkmcnt(0)\nv_cmp_gt_u32 vcc, {thr}, {vTmp}\ns_cbranch_vccnz {l}")
    def sig(name, v=vOne):
        a(f"ds_add_u32 {vL4}, {v} offset:{F[name]}")
    def loop_head(base, sigs=()):
        l=a.lab(base); g=a.lab("GU"); ok=a.lab("OK")
        a(f"{l}:\ns_sub_u32 {sBud}, {sBud}, 1\ns_cbranch_scc1 {g}")
        far.append(f"{g}:\ns_mov_b32 {sBud}, 0\ns_mov_b64 exec, -1\n"+"".join(f"ds_add_u32 {vL4}, {vOne} offset:{F[n]}\n" for n in sigs)+f"s_nop 7\ns_branch {ok}")
        return l, ok
    def vr(b,n): return f"v[{b}:{b+n-1}]"
    def tag_finish():
        a("s_waitcnt lgkmcnt(0)\ns_add_u32 s32, s32, 0x7f4a7c10\ns_addc_u32 s33, s33, 0x9e3779b9\ns_or_b32 s32, s32, 15")
    def xreduce(op, v, t):
        a(f"v_mov_b32 {t}, {v}\nv_permlane16_swap_b32 {v}, {t}\n{op} {v}, {v}, {t}")
        a(f"v_mov_b32 {t}, {v}\nv_permlane32_swap_b32 {v}, {t}\n{op} {v}, {v}, {t}")
    DP="row_mask:0xf bank_mask:0xf"
    def rowreduce(op, v, steps=("quad_perm:[1,0,3,2]","quad_perm:[2,3,0,1]","row_half_mirror","row_mirror")):
        for s in steps: a(f"{op}_dpp {v}, {v}, {v} {s} {DP}")

    a(f"s_cmp_ge_u32 s2, 256\ns_cbranch_scc1 L_end")
    if P["pref"]:
        a(f"s_getpc_b64 s[52:53]\nL_pc:\nv_lshlrev_b32 v1, 7, v0\nv_cmp_gt_u32 vcc, L_end-L_pc, v1\ns_and_saveexec_b64 s[54:55], vcc\ns_cbranch_execz L_np\nglobal_load_dword v207, v1, s[52:53]\nL_np:\ns_mov_b64 exec, -1")
    if diag:
        for i in range(1,16): a(f"s_mov_b32 s{64+2*i}, 0")
    stamp(0)
    if P["safe"]: a("s_mov_b32 s99, 2000000")
    a("s_load_dwordx16 s[4:19], s[0:1], 0\ns_load_dwordx8 s[20:27], s[0:1], 64\ns_load_dwordx2 s[28:29], s[0:1], 104")
    a(f"v_lshrrev_b32 v1, 6, v0\nv_and_b32 v0, 63, v0")
    a(f"s_and_b32 {sX}, s2, 7\nv_readfirstlane_b32 {sW}, v1\ns_lshr_b32 {sY}, s2, 3\ns_lshl_b32 {sB}, {sX}, 5\ns_or_b32 {sB}, {sB}, {sY}")
    a(f"s_lshr_b32 {sG}, {sB}, 3\ns_and_b32 {sJ}, {sY}, 7")
    a(f"s_and_b32 {sV}, {sG}, 3\ns_lshl2_add_u32 {sV}, {sJ}, {sV}\ns_sub_u32 {sV}, {sV}, 20")
    a(f"v_lshlrev_b32 {vL4}, 2, {vLane}\nv_add_u32 {vL4}, {FLAGS}, {vL4}")
    a(f"s_cmp_eq_u32 {sW}, 4\ns_cbranch_scc0 L_notloader")

    vW,vK,vF,vO,vC,vT,vA0,vA1,vA2,vP,vTR = "v6","v7","v8","v9","v10","v11","v12","v13","v14","v15","v16"
    a("s_setprio 3")
    a(f"v_lshrrev_b32 {vP}, 3, {vLane}\nv_and_b32 {vT}, 6, {vP}\nv_xor_b32 {vTR}, {vT}, {vLane}\nv_and_b32 {vTR}, 7, {vTR}\nv_lshlrev_b32 {vTR}, 4, {vTR}")
    a(f"v_mul_u32_u24 {vK}, 12288, {vP}\nv_add_u32 {vW}, {vK}, {vTR}")
    a(f"s_mul_i32 s52, {sJ}, {80*12288}\ns_mul_i32 s53, {sG}, 384\ns_add_u32 s52, s52, s53")
    a(f"s_mov_b32 m0, {XB}\ns_mov_b32 s46, {640*12288}\ns_mov_b32 s47, 0x20000\ns_mov_b32 s51, 0x20000\ns_movk_i32 s50, 1280\nv_lshlrev_b32 {vA0}, 4, {vLane}")
    a(f"s_movk_i32 s56, 896\ns_movk_i32 s57, 1280")
    a("s_waitcnt lgkmcnt(0)\ns_mov_b32 s48, s4\ns_mov_b32 s49, s5\ns_mov_b32 s44, s8\ns_mov_b32 s45, s9")
    CS=P["clrstep"]
    a(f"s_and_b32 s62, s2, {(~(7*CS))&0xff}\ns_cbranch_scc1 L_nqa")
    a(f"s_mov_b32 s30, {WSSIZE}\ns_mov_b32 s31, 0x20000")
    if P["wsb"]: a(f"s_add_u32 s28, s28, {P['wsb']}\ns_addc_u32 s29, s29, 0")
    a(f"s_load_dwordx2 s[32:33], s[28:29], {EPOCH}\nv_mov_b32 v24, -1\nv_mov_b32 v25, -1\nv_mov_b32 v26, -1\nv_mov_b32 v27, -1")
    a(f"s_mul_i32 s54, s2, {6144//CS}\ns_add_u32 s54, s54, {QA}\ns_add_u32 s55, s54, 4096")
    for k in range(6): a(f"buffer_store_dwordx4 v[24:27], {vA0}, {WS}, s{54+(k>>2)} offen offset:{1024*(k&3)} sc1")
    a("L_nqa:")
    a(f"buffer_load_dwordx4 {vA0}, {SB}, 0 offen lds\nbuffer_load_dwordx4 {vA0}, {SB}, 0 offen offset:1024 lds\ns_mov_b32 m0, {R2}")
    def seg384(srdq, vaddr, soff, step, m0end, thr, xor=False, d1="s56", d2="s57"):
        l=a.lab("SG")
        a(f"{l}:")
        v=vaddr
        if xor:
            a(f"v_xor_b32 {vT}, s55, {vaddr}\ns_add_u32 s55, s55, 32\ns_and_b32 s55, s55, 0x60"); v=vT
        if thr:
            a(f"s_waitcnt vmcnt({thr-3})\nds_max_u32 {vL4}, {vC} offset:{F['CNT']}")
        a(f"buffer_load_dwordx4 {v}, {srdq}, {soff} offen {NT} lds\ns_add_u32 m0, m0, {d1}")
        if thr: a(f"v_add_u32 {vC}, 3, {vC}")
        a(f"buffer_load_dwordx4 {v}, {srdq}, {soff} offen offset:128 {NT} lds\ns_add_u32 m0, m0, {d1}")
        a(f"buffer_load_dwordx4 {v}, {srdq}, {soff} offen offset:256 {NT} lds\ns_add_u32 m0, m0, {d2}")
        a(f"s_add_u32 {soff}, {soff}, {step}\ns_cmp_lg_u32 m0, {m0end}\ns_cbranch_scc1 {l}")
    seg384(SA, vW, "s52", 98304, R2+30720, None)
    stamp(1)
    a(f"v_bfe_u32 {vT}, {vLane}, 4, 1\nv_xor_b32 {vT}, {vT}, {vLane}\nv_and_b32 {vT}, 7, {vT}\nv_lshl_add_u32 {vK}, {vT}, 4, {vK}")
    a(f"s_mul_i32 s52, {sJ}, {96*12288}\ns_add_u32 s52, s52, s53\ns_mov_b32 s54, s52\ns_mov_b32 s55, 0")
    a(f"s_mov_b32 s44, s10\ns_mov_b32 s45, s11\ns_mov_b32 s46, {768*12288}\ns_mov_b32 m0, {R3}")
    a(f"v_mov_b32 {vC}, {CB+30-(T-3)}")
    a("s_waitcnt vmcnt(30)\ns_barrier")
    a(f"s_cmp_eq_u32 s62, 0\ns_cbranch_scc0 L_nfl")
    tag_finish()
    a(f"s_mov_b32 s30, {WSSIZE}\ns_mov_b32 s31, 0x20000\nv_mov_b32 v24, s32\nv_mov_b32 v25, s33\ns_mul_i32 s63, s2, {128//CS}\ns_add_u32 s63, s63, {FLG}\ns_mov_b64 exec, 15")
    a(f"buffer_store_dwordx4 v[24:27], {vA0}, {WS}, s63 offen sc1\ns_mov_b64 exec, -1\nL_nfl:")
    a(f"v_lshrrev_b32 {vT}, 5, {vLane}\nv_lshlrev_b32 {vT}, 4, {vT}\nv_xor_b32 {vA1}, {vA0}, {vT}\nv_xor_b32 {vA2}, 16, {vA0}")
    for t in range(3):
        a(f"v_add_u32 v17, {64*t}, {vLane}\nv_mul_u32_u24 v18, 0x5556, v17\nv_lshrrev_b32 v18, 18, v18\nv_mul_u32_u24 v19, 12, v18\nv_sub_u32 v17, v17, v19")
        a(f"v_lshrrev_b32 v19, 1, v18\nv_and_b32 v18, 1, v18\nv_lshl_add_u32 v18, v19, 5, v18\nv_and_b32 v19, 2, v19\nv_xor_b32 v17, v17, v19\nv_mul_u32_u24 v18, 1536, v18\nv_lshl_add_u32 v{20+t}, v17, 4, v18")
        if t: a(f"v_subrev_u32 v{20+t}, {1024*t}, v{20+t}")
    a(f"v_mul_u32_u24 {vO}, 1280, {vP}\nv_add_u32 {vO}, {vO}, {vTR}\nv_mul_u32_u24 {vF}, 3072, {vP}\nv_add_u32 {vF}, {vF}, {vTR}")
    a(f"s_mov_b32 s48, s6\ns_mov_b32 s49, s7\ns_mov_b32 s50, {8192*1536}")
    a(f"s_mul_i32 s58, {sG}, {256*1536}\ns_mul_i32 s53, {sJ}, 192\ns_add_u32 s58, s58, s53\ns_mov_b32 s59, {R1}\ns_mov_b32 s60, {R2}")
    seg384(SA, vK, "s52", 98304, R3+36864, T, xor=True)
    stamp(2)
    TA=P["TA"]; NA=P["ntA"]; NB=P["ntB"]
    def drain(issued, cur, tgt):
        k=cur
        while k>tgt:
            k=max(tgt,k-6)
            a(f"v_mov_b32 {vC}, {CB+issued-k}\ns_waitcnt vmcnt({k})\nds_write_b32 {vL4}, {vC} offset:{F['CNT']}")
    if T>36: drain(66, T, 36)
    elif T==36: a(f"v_mov_b32 {vC}, {CB+30}\nds_write_b32 {vL4}, {vC} offset:{F['CNT']}")
    a(f"s_mul_i32 s52, {sB}, 49152")
    drain(66, min(T,36), P.get("holdA",18))
    wait_flag("PUBA",3)
    a(f"v_mov_b32 {vC}, {CB+66-(TA-6)}")
    l=a.lab("SA")
    a(f"{l}:\nv_xor_b32 v17, s55, {vA0}\nv_xor_b32 v18, s55, {vA1}\nv_xor_b32 v19, s55, {vA2}\ns_mov_b32 m0, s59")
    a(f"s_waitcnt vmcnt({TA-6})\nds_max_u32 {vL4}, {vC} offset:{F['CNT']}")
    a(f"buffer_load_dwordx4 v17, {SB}, s52 offen {NA} lds\nbuffer_load_dwordx4 v18, {SB}, s52 offen offset:1024 {NA} lds\nbuffer_load_dwordx4 v19, {SB}, s52 offen offset:2048 {NA} lds")
    a(f"s_mov_b32 m0, s60\nv_add_u32 {vC}, 6, {vC}")
    for t in range(3): a(f"buffer_load_dwordx4 v{20+t}, {SB}, s58 offen offset:{1024*t} {NB} lds")
    a(f"s_add_u32 s55, s55, 32\ns_and_b32 s55, s55, 0xe0\ns_add_u32 s52, s52, 3072\ns_add_u32 s58, s58, 3072\ns_add_u32 s60, s60, 3200\ns_add_u32 s59, s59, 3072")
    a(f"s_cmp_lg_u32 s59, {R1+49152}\ns_cbranch_scc1 {l}")
    stamp(3)
    a(f"s_mov_b32 s44, s12\ns_mov_b32 s45, s13\ns_mov_b32 m0, {R3}")
    if P["pauseQ"]:
        drain(162, TA, max(0,162-P["thrQ"]))
        wait_flag("QISS",4)
        if P.get("lateAfter"):
            drain(162, 162-P["thrQ"], 0)
            wait_flag(*P["lateAfter"])
        if 162-P["thrQ"]>TL-3: drain(162, 162-P["thrQ"], TL-3)
    else:
        drain(162, TA, TL-3)
        wait_flag("RDUK",3)
    a(f"v_mov_b32 {vC}, {CB+162-(TL-3)}")
    stamp(4)
    def gate(issued, flag):
        if not P["gate"] or not flag: return
        a(f"v_mov_b32 {vC}, {CB+issued}\ns_waitcnt vmcnt(0)\nds_write_b32 {vL4}, {vC} offset:{F['CNT']}")
        wait_flag(*flag)
        a(f"v_mov_b32 {vC}, {CB+issued-(TL-3)}")
    g2=P.get("g2",("S4M",4)); g3=P.get("g3",("CDI",1))
    a(f"s_cmp_lt_u32 {sV}, 10\ns_cbranch_scc1 L_ffnld")
    seg384(SA, vW, "s54", 98304, R3+36864, TL)
    stamp(5)
    a(f"s_mov_b32 m0, {R1}\ns_cmp_lt_u32 {sJ}, 5\ns_cbranch_scc0 L_drain")
    a(f"s_mul_i32 s52, {sG}, 245760\ns_lshl_b32 s53, {sJ}, 8\ns_add_u32 s52, s52, s53")
    a(f"s_mov_b32 s48, s14\ns_mov_b32 s49, s15\ns_mov_b32 s50, {6144*1280}")
    def seg_wo(end):
        l=a.lab("SO")
        a(f"{l}:")
        for k in range(6):
            if k%3==0: a(f"s_waitcnt vmcnt({TL-3})\nds_max_u32 {vL4}, {vC} offset:{F['CNT']}")
            if k%2==0:
                a(f"buffer_load_dwordx4 {vO}, {SB}, s52 offen {NT} lds\ns_add_u32 m0, m0, s56")
            else:
                a(f"buffer_load_dwordx4 {vO}, {SB}, s52 offen offset:128 {NT} lds\ns_add_u32 m0, m0, 1152\ns_add_u32 s52, s52, 10240")
            if k%3==0: a(f"v_add_u32 {vC}, 3, {vC}")
        a(f"s_cmp_lg_u32 m0, {end}\ns_cbranch_scc1 {l}")
    gate(198,g2)
    wait_flag("RDA",4)
    n2=P.get("n2",24)
    if P["gate"] and g3 and n2<48:
        seg_wo(R1+1024*n2); gate(198+n2,g3)
    seg_wo(R1+49152)
    a("s_branch L_drain")
    a("L_ffnld:")
    a(f"s_mul_i32 s52, {sV}, {64*3072}\ns_mul_i32 s53, {sX}, 384\ns_add_u32 s52, s52, s53")
    a(f"s_mov_b32 s48, s18\ns_mov_b32 s49, s19\ns_mov_b32 s50, {640*3072}")
    seg384(SB, vF, "s52", 24576, R3+24576, TL)
    a(f"s_mov_b32 m0, {R1}")
    wait_flag("RDA",4)
    if P["gate"] and g2:
        seg384(SA, vW, "s54", 98304, R1+12288, TL); gate(198,g2)
    seg384(SA, vW, "s54", 98304, R1+36864, TL)
    stamp(5)
    a(f"s_mul_i32 s52, {sX}, 245760\ns_lshl_b32 s53, {sV}, 7\ns_add_u32 s52, s52, s53")
    a(f"s_mov_b32 s48, s22\ns_mov_b32 s49, s23\ns_mov_b32 s50, {1536*1280}\ns_mov_b32 m0, {R2}")
    if n2<48: gate(222,g3)
    wait_flag("RDB",4)
    l=a.lab("S2")
    a(f"{l}:\ns_waitcnt vmcnt({TL-3})\nds_max_u32 {vL4}, {vC} offset:{F['CNT']}")
    for k in range(3):
        a(f"buffer_load_dwordx4 {vO}, {SB}, s52 offen {NT} lds\ns_add_u32 m0, m0, 2048\ns_add_u32 s52, s52, 10240")
    a(f"v_add_u32 {vC}, 3, {vC}\ns_cmp_lg_u32 m0, {R2+49152}\ns_cbranch_scc1 {l}")
    a("L_drain:")
    stamp(6)
    a(f"v_mov_b32 {vC}, 0xfff\ns_waitcnt vmcnt(0)\nds_write_b32 {vL4}, {vC} offset:{F['CNT']}")
    stamp(7)
    a("s_branch L_fin")

    a("L_notloader:")
    a(f"v_and_b32 {vN}, 15, {vLane}\nv_lshrrev_b32 {vGl}, 4, {vLane}\nv_mov_b32 {vOne}, 1\ns_mov_b32 {sBud}, {P['budget']}")
    a(f"s_mov_b32 s30, {WSSIZE}\ns_mov_b32 s31, 0x20000\ns_waitcnt lgkmcnt(0)")
    if P["wsb"]: a(f"s_add_u32 s28, s28, {P['wsb']}\ns_addc_u32 s29, s29, 0")
    a(f"s_load_dwordx2 s[32:33], s[28:29], {EPOCH}")
    a(f"s_cmp_eq_u32 {sW}, 5\ns_cbranch_scc1 L_w5\ns_cmp_eq_u32 {sW}, 6\ns_cbranch_scc1 L_w6\ns_cmp_eq_u32 {sW}, 7\ns_cbranch_scc1 L_w7")

    def trcore(dst, t):
        a(f"v_bfe_u32 {t}, {vLane}, 2, 3\nv_lshlrev_b32 {dst}, 7, {t}\nv_lshrrev_b32 {t}, 1, {t}\nv_lshl_add_u32 {dst}, {t}, 5, {dst}\nv_and_b32 {t}, 3, {vLane}\nv_lshl_add_u32 {dst}, {t}, 3, {dst}")
    MASKT=[f"s[{56+2*t}:{57+2*t}]" for t in range(4)]
    def masks():
        for t in range(4): a(f"s_mov_b32 s{56+2*t}, {0x00010001<<t}\ns_mov_b32 s{57+2*t}, {0x00010001<<t}")
    def mstore(txt):
        if not P["local"]:
            a(txt+" sc1"); return
        r=a.lab("RM"); bk=a.lab("BK")
        a(f"s_cmp_eq_u32 s50, 0\ns_cbranch_scc0 {r}\n{txt}\n{bk}:")
        far.append(f"{r}:\ns_nop 7\n{txt} sc1\ns_nop 1\ns_branch {bk}")
    def publish4(acc, vS, vAddr, soff, imm=0, mode=False):
        for t in range(4):
            a(f"s_mov_b64 exec, {MASKT[t]}\nv_cvt_pk_bf16_f32 v{vS}, v{acc+4*t}, v{acc+4*t+1}\nv_cvt_pk_bf16_f32 v{vS+1}, v{acc+4*t+2}, v{acc+4*t+3}")
        a(f"s_mov_b32 exec_lo, 0x000f000f\ns_mov_b32 exec_hi, 0x000f000f")
        txt=f"buffer_store_dwordx4 {vr(vS,4)}, {vAddr}, {WS}, {soff} offen offset:{imm}"
        if mode=="plain": a(txt)
        elif mode: mstore(txt)
        else: a(txt+" sc1")
        a("s_mov_b64 exec, -1")

    FR=64; QR=16; AC=160; vS=176
    vT1=[f"v{180+t}" for t in range(4)]; vVec="v184"; vPub="v185"; vU=["v186","v187"]; vA=[f"v{188+t}" for t in range(4)]
    vLin="v192"; vB=["v193","v194","v199"]; vPl="v195"; vMl="v196"; vBp="v197"; vC4="v198"; vT6=["v200","v201"]; vCore="v202"; vSt="v203"; vXa="v204"; vM0="v205"; vQa="v208"
    sHH="s52"; sKH="s53"
    a(f"s_cmp_eq_u32 {sW}, 0\ns_cbranch_scc0 L_nz")
    a(f"v_lshlrev_b32 v6, 4, {vLane}\nv_add_u32 v6, {FLAGS}, v6\nv_mov_b32 v8, 0\nv_mov_b32 v9, 0\nv_mov_b32 v10, 0\nv_mov_b32 v11, 0")
    for i in range(len(FN)//4): a(f"ds_write_b128 v6, v[8:11] offset:{1024*i}")
    a("L_nz:")
    a(f"s_and_b32 {sHH}, {sW}, 1\ns_lshr_b32 {sKH}, {sW}, 1")
    masks()
    trcore(vCore, vTmp)
    a(f"v_lshrrev_b32 v6, 5, {vLane}")
    a(f"s_lshl_b32 s54, {sW}, 10\ns_add_u32 s54, s54, {R2}\nv_mul_u32_u24 v7, 3072, v6\nv_add3_u32 {vT1[0]}, {vCore}, v7, s54")
    for t in range(1,4): a(f"v_xor_b32 {vT1[t]}, {32*t}, {vT1[0]}")
    a(f"s_lshl_b32 s54, {sKH}, 10\ns_lshl_b32 s55, {sHH}, 6\nv_lshlrev_b32 v7, 11, v6\nv_add3_u32 {vT6[0]}, {vCore}, v7, s54\nv_xor_b32 {vT6[0]}, s55, {vT6[0]}\nv_xor_b32 {vT6[1]}, 32, {vT6[0]}")
    a(f"v_lshlrev_b32 {vVec}, 4, {vGl}\nv_add_u32 {vVec}, {VEC1A}, {vVec}")
    a(f"v_lshlrev_b32 {vPub}, 6, {vGl}\nv_lshl_add_u32 {vPub}, {vN}, 4, {vPub}")
    a(f"v_lshlrev_b32 {vLin}, 4, {vLane}")
    a(f"v_lshlrev_b32 {vQa}, 6, {vN}\nv_lshl_add_u32 {vQa}, {vGl}, 4, {vQa}")
    a(f"s_mul_i32 s54, {sW}, 12288\ns_add_u32 s54, s54, {R3}\nv_lshrrev_b32 v7, 2, {vN}\nv_mul_u32_u24 v7, 3072, v7\nv_and_b32 v8, 3, {vN}\nv_lshl_add_u32 v7, v8, 7, v7")
    a(f"v_lshrrev_b32 v8, 1, {vN}\nv_xor_b32 v8, v8, {vGl}\nv_lshlrev_b32 v8, 4, v8\nv_add3_u32 {vU[0]}, v7, v8, s54\nv_xor_b32 {vU[1]}, 64, {vU[0]}")
    a(f"s_mul_i32 s54, {sKH}, 768\nv_mul_u32_u24 v7, 1536, {vN}\nv_xor_b32 v8, {vN}, {vGl}\nv_lshlrev_b32 v8, 4, v8\nv_add3_u32 {vA[0]}, v7, v8, s54")
    for t in range(1,4): a(f"v_xor_b32 {vA[t]}, {64*t}, {vA[0]}")
    a(f"v_bfe_u32 v7, {vN}, 3, 1\nv_mul_u32_u24 v7, 3200, v7\nv_bfe_u32 v8, {vN}, 2, 1\nv_mul_u32_u24 v8, 192, v8\nv_mul_u32_u24 v9, 768, {vGl}\nv_add3_u32 v7, v7, v8, v9")
    a(f"v_and_b32 v8, 3, {vN}\nv_lshl_add_u32 v7, v8, 3, v7\nv_add_u32 v7, {R2}, v7\nv_and_b32 v9, 1, {vGl}\nv_lshlrev_b32 v9, 5, v9")
    a(f"s_lshl_b32 s54, {sKH}, 6\nv_add3_u32 {vB[0]}, v7, v9, s54\nv_xor_b32 v10, 32, v9\nv_add3_u32 {vB[1]}, v7, v10, s54")
    a(f"s_lshl_b32 s54, {sKH}, 5\nv_xor_b32 v10, s54, v9\nv_add_u32 v10, 128, v10\nv_add_u32 {vB[2]}, v7, v10")
    a(f"v_mul_u32_u24 v7, {2*RS}, {vGl}\nv_lshl_add_u32 {vPl}, {vN}, 4, v7\nv_lshlrev_b32 {vM0}, 2, {vN}\nv_add_u32 {vMl}, {vM0}, v7")
    a(f"v_lshrrev_b32 v7, 2, {vN}\nv_lshlrev_b32 v7, 14, v7\nv_lshl_add_u32 {vSt}, v8, 4, v7")
    a(f"v_lshrrev_b32 v7, 2, {vLane}\nv_lshl_add_u32 {vBp}, v8, 4, v7\nv_lshlrev_b32 {vBp}, 2, {vBp}")
    a(f"v_mul_u32_u24 v7, {8*RS}, v7\nv_lshl_add_u32 {vC4}, v8, 4, v7")
    a(f"s_lshl_b32 s54, {sHH}, 11\ns_add_u32 s54, s54, {XB}\nv_add_u32 {vXa}, s54, {vLin}")
    tag_finish()
    a(f"s_getreg_b32 s54, hwreg(HW_REG_XCC_ID, 0, 4)\ns_xor_b32 s54, s54, s32\nv_mov_b32 v{vS+2}, s54\nv_mov_b32 v{vS+3}, s33")
    a("s_barrier")
    a(f"s_cmp_eq_u32 {sW}, 3\ns_cbranch_scc1 L_s3")
    a(f"s_mul_i32 s54, {sB}, {RS}\ns_lshl_b32 s55, {sW}, 8\ns_add_u32 s54, s54, s55\ns_add_u32 s54, s54, {REC+RQ}")
    wait_flag("V1A",1)
    for s in range(2): a(f"ds_read_b128 {vr(QR+4*s,4)}, {vVec} offset:{64*s}")
    a(f"ds_read_b64 {vr(QR+8,2)}, {vVec} offset:128\nv_mov_b64 {vr(QR+10,2)}, 0")
    for t in range(4): a(f"v_mov_b64 {vr(FR+12*t+10,2)}, 0")
    wait_flag("CNT",30)
    stamp(1)
    for t in range(4):
        for h in range(5): a(f"ds_read_b64_tr_b16 {vr(FR+12*t+2*h,2)}, {vT1[t]} offset:{2*h*3072}")
    for t in range(4):
        a(f"s_waitcnt lgkmcnt({15-5*t})")
        a(f"v_mfma_f32_16x16x32_bf16 {vr(AC+4*t,4)}, {vr(FR+12*t,4)}, {vr(QR,4)}, 0")
        a(f"v_mfma_f32_16x16x32_bf16 {vr(AC+4*t,4)}, {vr(FR+12*t+4,4)}, {vr(QR+4,4)}, {vr(AC+4*t,4)}")
        a(f"v_mfma_f32_16x16x32_bf16 {vr(AC+4*t,4)}, {vr(FR+12*t+8,4)}, {vr(QR+8,4)}, {vr(AC+4*t,4)}")
    publish4(AC, vS, vPub, "s54", mode="plain")
    sig("PUBA")
    stamp(2)
    a(f"s_lshr_b32 s54, {sG}, 4\ns_mul_i32 s54, s54, 24\ns_mul_i32 s55, {sJ}, 3\ns_add_u32 s55, s55, {sW}\ns_add_u32 s54, s54, s55\ns_lshl_b32 s54, s54, 10")
    a(f"s_and_b32 s55, {sG}, 15\ns_lshl_b32 s55, s55, 6\ns_add_u32 s54, s54, s55\ns_add_u32 s54, s54, {QA}")
    wait_flag("CNT",66)
    for s in range(6):
        for t in range(2): a(f"ds_read_b128 {vr(FR+8*s+4*t,4)}, {vU[s&1]} offset:{1024*(s>>1)+512*t}")
    sig("RDUK")
    wait_flag("CLR",1)
    def vec2_mfma(flag, thr, vec, wfirst):
        l=a.lab("V2")
        spin(l); a(f"ds_read_b32 {vTmp}, {vL4} offset:{F[flag]}")
        for s in range(6): a(f"ds_read_b128 {vr(QR+4*s,4)}, {vVec} offset:{vec-VEC1A+64*s}")
        a(f"s_waitcnt lgkmcnt(6)\nv_cmp_gt_u32 vcc, {thr}, {vTmp}\ns_cbranch_vccnz {l}")
        for s in range(6):
            a(f"s_waitcnt lgkmcnt({5-s})")
            for t in range(2):
                w_,q_=vr(FR+8*s+4*t,4),vr(QR+4*s,4)
                A_,B_=(w_,q_) if wfirst else (q_,w_)
                a(f"v_mfma_f32_16x16x32_bf16 {vr(AC+4*t,4)}, {A_}, {B_}, {vr(AC+4*t,4) if s else 0}")
    vec2_mfma("V2A",1,VEC2A,True)
    a(f"v_readfirstlane_b32 s50, {vTmp}\nv_mov_b32 v{vS+2}, s32\ns_lshr_b32 s50, s50, 1")
    stamp(3)
    for k in range(4): a(f"v_cvt_pk_bf16_f32 v{AC+8+k}, v{AC+2*k}, v{AC+2*k+1}\nds_bpermute_b32 v{AC+12+k}, {vBp}, v{AC+8+k}")
    a(f"s_mov_b64 exec, 15\ns_waitcnt lgkmcnt(0)\nbuffer_store_dwordx4 {vr(AC+12,4)}, {vLin}, {WS}, s54 offen sc1\ns_mov_b64 exec, -1\ns_waitcnt vmcnt(0)")
    sig("PUBB")
    a("L_s3:")
    a(f"s_mul_i32 s43, {sHH}, 24576\ns_mul_i32 s55, {sKH}, 12288\ns_add_u32 s43, s43, s55\ns_add_u32 s43, s43, {QA}\ns_add_u32 s44, s43, 4096\ns_add_u32 s45, s43, 8192")
    a(f"s_mul_i32 s47, {sB}, {RS}\ns_lshl_b32 s55, {sHH}, 10\ns_add_u32 s54, s47, s55\ns_add_u32 s54, s54, {REC+RP}")
    a(f"s_lshl_b32 s55, {sHH}, 7\ns_add_u32 s47, s47, s55\ns_add_u32 s47, s47, {REC+RM}")
    a(f"s_lshl_b32 s46, {sB}, 6\ns_lshl_b32 s55, {sHH}, 16\ns_add_u32 s46, s46, s55\ns_add_u32 s46, s46, {ST}")
    a(f"s_lshl_b32 s55, {sHH}, 8\nv_add_u32 v6, s55, {vL4}")
    wait_flag("CNT",114)
    for s in range(12): a(f"ds_read_b128 {vr(FR+4*s,4)}, {vA[s&3]} offset:{256*(s>>2)}")
    wait_flag("PUBB",3)
    def qloads():
        if P.get("skipq"): return
        for s in range(12): a(f"buffer_load_dwordx4 {vr(QR+4*s,4)}, {vQa}, {WS}, s{43+(s>>2)} offen offset:{1024*(s&3)} sc1")
    if P["thrQ"]>114: wait_flag("CNT",P["thrQ"])
    stamp(4); qloads(); sig("QISS")
    if P["thrQ"]<162: wait_flag("CNT",162)
    for s in range(12): a(f"ds_read_b128 {vr(FR+48+4*s,4)}, {vA[s&3]} offset:{24576+256*(s>>2)}")
    sig("RDA")
    a("s_waitcnt lgkmcnt(0)")
    stamp(5)
    a("s_branch L_s3m")
    l,ok=loop_head("S3")
    qloads()
    a("L_s3m:")
    for s in range(12):
        a(f"s_waitcnt vmcnt({11-s})")
        for kt in range(2):
            a(f"v_mfma_f32_16x16x32_bf16 {vr(AC+4*kt,4)}, {vr(FR+48*kt+4*s,4)}, {vr(QR+4*s,4)}, {vr(AC+4*kt,4) if s else 0}")
    a(f"v_cmp_u_f32 vcc, v{AC}, v{AC+4}\ns_cbranch_vccnz {l}\n{ok}:")
    stamp(6)
    a(f"s_cmp_eq_u32 {sKH}, 0\ns_cbranch_scc1 L_soft")
    a(f"ds_write_b128 {vXa}, {vr(AC,4)}\nds_write_b128 {vXa}, {vr(AC+4,4)} offset:1024\nds_add_u32 v6, {vOne} offset:{F['X0']}\ns_branch L_s4")
    a("L_soft:")
    l=a.lab("XW")
    spin(l); a(f"ds_read_b32 {vTmp}, v6 offset:{F['X0']}\nds_read_b128 {vr(AC+8,4)}, {vXa}\nds_read_b128 {vr(AC+12,4)}, {vXa} offset:1024")
    a(f"s_waitcnt lgkmcnt(0)\nv_cmp_gt_u32 vcc, 1, {vTmp}\ns_cbranch_vccnz {l}")
    for k in range(4): a(f"v_pk_add_f32 {vr(AC+2*k,2)}, {vr(AC+2*k,2)}, {vr(AC+8+2*k,2)}")
    a(f"v_max3_f32 v8, v{AC}, v{AC+1}, v{AC+2}\nv_max3_f32 v9, v{AC+3}, v{AC+4}, v{AC+5}\nv_max3_f32 v8, v8, v{AC+6}, v{AC+7}\nv_max_f32 v8, v8, v9")
    xreduce("v_max_f32","v8","v9")
    a("v_ceil_f32 v8, v8")
    for k in range(8): a(f"v_sub_f32 v{AC+k}, v{AC+k}, v8")
    for k in range(8): a(f"v_exp_f32 v{AC+k}, v{AC+k}")
    for k in range(4): a(f"v_cvt_pk_bf16_f32 v{AC+8+k}, v{AC+2*k}, v{AC+2*k+1}")
    mstore(f"buffer_store_dwordx4 {vr(AC+8,4)}, {vLin}, {WS}, s54 offen")
    a(f"s_mov_b64 exec, 0xffff")
    mstore(f"buffer_store_dword v8, {vM0}, {WS}, s47 offen")
    a(f"s_mov_b64 exec, -1")
    sig("PUBC")
    a(f"v_pk_add_f32 {vr(AC,2)}, {vr(AC,2)}, {vr(AC+2,2)}\nv_pk_add_f32 {vr(AC+4,2)}, {vr(AC+4,2)}, {vr(AC+6,2)}\nv_pk_add_f32 {vr(AC,2)}, {vr(AC,2)}, {vr(AC+4,2)}\nv_add_f32 v9, v{AC}, v{AC+1}")
    xreduce("v_add_f32","v9","v10")
    a(f"v_mov_b32 v10, s32\nv_mov_b32 v11, s33\ns_mov_b64 exec, 0xffff\nbuffer_store_dwordx4 v[8:11], {vSt}, {WS}, s46 offen sc1\ns_mov_b64 exec, -1")
    a("L_s4:")
    stamp(7)
    a(f"s_mul_i32 s43, {sG}, {8*RS}\ns_lshl_b32 s55, {sHH}, 10\ns_add_u32 s43, s43, s55\ns_add_u32 s43, s43, {REC+RP}\ns_add_u32 s44, s43, {RS}")
    a(f"s_mul_i32 s45, {sG}, {8*RS}\ns_lshl_b32 s55, {sHH}, 7\ns_add_u32 s45, s45, s55\ns_add_u32 s45, s45, {REC+RM}\ns_add_u32 s51, s45, {RS}")
    a(f"s_lshl_b32 s46, {sHH}, 7\ns_add_u32 s46, s46, {sJ}\ns_mul_i32 s46, s46, {RS}\ns_lshl_b32 s55, {sKH}, 7\ns_add_u32 s46, s46, s55\ns_add_u32 s46, s46, {REC}")
    a(f"s_and_b32 s55, {sG}, 24\ns_bfe_u32 s47, {sG}, 0x20001\ns_or_b32 s55, s55, s47\ns_and_b32 s47, {sG}, 1\ns_lshl2_add_u32 s55, s47, s55\ns_lshl_b32 s55, s55, 8\ns_add_u32 s46, s46, s55")
    a(f"s_mov_b32 s48, 0x00800080\ns_mov_b32 s49, 0x437f0000\ns_and_b32 s55, s32, 0xbfffbfff\nv_mov_b32 v{QR+35}, s55\nv_mov_b32 v{QR+39}, s55")
    for s in range(8):
        for ct in range(3):
            for e2 in range(2):
                a(f"ds_read_b64_tr_b16 {vr(FR+12*s+4*ct+2*e2,2)}, {vB[ct]} offset:{3200*(8*e2+2*(s&3))+384*(s>>2)}")
    sig("RDB")
    wait_flag("PUBC",2)
    stamp(8)
    l,ok=loop_head("S4",("S4M",))
    a(f"buffer_load_dword v8, {vMl}, {WS}, s45 offen sc1\nbuffer_load_dword v9, {vMl}, {WS}, s51 offen sc1")
    for s in range(8): a(f"buffer_load_dwordx4 {vr(QR+4*s,4)}, {vPl}, {WS}, s{43+(s>>2)} offen offset:{256*(s&3)} sc1")
    a(f"s_waitcnt vmcnt(8)\nv_cmp_u_f32 vcc, v8, v9\nv_max_f32 v10, v8, v9\ns_cbranch_vccnz {l}")
    sig("S4M")
    xreduce("v_max_f32","v10","v11")
    a("v_sub_f32 v8, v10, v8\nv_sub_f32 v9, v10, v9\nv_min_f32 v8, s49, v8\nv_min_f32 v9, s49, v9\nv_cvt_u32_f32 v8, v8\nv_cvt_u32_f32 v9, v9\nv_mul_u32_u24 v8, s48, v8\nv_mul_u32_u24 v9, s48, v9")
    def pksub(s):
        a(f"s_waitcnt vmcnt({7-s})")
        for k in range(4): a(f"v_pk_sub_u16 v{QR+4*s+k}, v{QR+4*s+k}, v{8+(s>>2)} clamp")
    pksub(0)
    for s in range(8):
        mf=lambda ct: a(f"v_mfma_f32_16x16x32_bf16 {vr(AC+4*ct,4)}, {vr(FR+12*s+4*ct,4)}, {vr(QR+4*s,4)}, {vr(AC+4*ct,4) if s else 0}")
        q=QR+4*s
        if s==0: a(f"v_or3_b32 v12, v{q}, v{q+1}, v{q+2}\nv_or_b32 v12, v12, v{q+3}")
        mf(0)
        if s<7:
            a(f"s_waitcnt vmcnt({6-s})")
            a(f"v_pk_sub_u16 v{q+4}, v{q+4}, v{8+((s+1)>>2)} clamp\nv_pk_sub_u16 v{q+5}, v{q+5}, v{8+((s+1)>>2)} clamp")
        mf(1)
        if s<7: a(f"v_pk_sub_u16 v{q+6}, v{q+6}, v{8+((s+1)>>2)} clamp\nv_pk_sub_u16 v{q+7}, v{q+7}, v{8+((s+1)>>2)} clamp")
        mf(2)
        if s<7: a(f"v_or3_b32 v12, v12, v{q+4}, v{q+5}\nv_or3_b32 v12, v12, v{q+6}, v{q+7}")
    a(f"v_and_b32 v12, 0x80008000, v12\nv_cmp_ne_u32 vcc, 0, v12\ns_cbranch_vccnz {l}\n{ok}:")
    stamp(9)
    for k in range(6): a(f"v_cvt_pk_bf16_f32 v{QR+k}, v{AC+2*k}, v{AC+2*k+1}\nds_bpermute_b32 v{QR+32+k+k//3}, {vBp}, v{QR+k}")
    a(f"s_waitcnt lgkmcnt(3)\nbuffer_store_dwordx4 {vr(QR+32,4)}, {vC4}, {WS}, s46 offen sc1")
    a(f"s_waitcnt lgkmcnt(0)\nbuffer_store_dwordx4 {vr(QR+36,4)}, {vC4}, {WS}, s46 offen offset:64 sc1")
    sig("DST")
    stamp(10)
    a("s_waitcnt vmcnt(0)")
    sig("PUBD")
    a(f"s_cmp_eq_u32 {sW}, 3\ns_cbranch_scc1 L_s6")
    a(f"s_mul_i32 s54, {sB}, {RS}\ns_lshl_b32 s55, {sW}, 8\ns_add_u32 s54, s54, s55\ns_add_u32 s54, s54, {REC+RE}")
    a(f"s_mov_b32 s43, {R3-R2}\ns_cmp_lt_u32 {sV}, 10\ns_cselect_b32 s55, 24, 0\ns_cselect_b32 s43, {R1-R2}, s43\ns_add_u32 s55, s55, {198+CB}")
    for t in range(4): a(f"v_add_u32 {vT1[t]}, s43, {vT1[t]}")
    wait_flag("CNT","s55")
    for t in range(4):
        for h in range(6): a(f"ds_read_b64_tr_b16 {vr(FR+12*t+2*h,2)}, {vT1[t]} offset:{2*h*3072}")
    a("s_waitcnt lgkmcnt(0)")
    l=a.lab("V1")
    spin(l); a(f"ds_read_b32 {vTmp}, {vL4} offset:{F['V1B']}")
    for s in range(3): a(f"ds_read_b128 {vr(QR+4*s,4)}, {vVec} offset:{VEC1B-VEC1A+64*s}")
    a(f"s_waitcnt lgkmcnt(0)\nv_cmp_gt_u32 vcc, 1, {vTmp}\ns_cbranch_vccnz {l}")
    stamp(11)
    for t in range(4):
        for s in range(3):
            a(f"v_mfma_f32_16x16x32_bf16 {vr(AC+4*t,4)}, {vr(FR+12*t+4*s,4)}, {vr(QR+4*s,4)}, {vr(AC+4*t,4) if s else 0}")
    publish4(AC, vS, vPub, "s54", mode=True)
    sig("PUBE")
    a("L_s6:")
    stamp(12)
    a(f"s_mul_i32 s54, {sG}, 2560\ns_lshl_b32 s55, {sJ}, 9\ns_add_u32 s54, s54, s55\ns_add_u32 s54, s54, {OP}")
    a(f"s_lshl_b32 s55, {sW}, 7\ns_add_u32 s54, s54, s55\ns_cmp_lt_u32 {sJ}, 5\ns_cbranch_scc0 L_fin")
    a("L_s6go:")
    a(f"v_lshlrev_b32 v6, 2, {vLane}\ns_mov_b32 s56, 0xffff0000\ns_mov_b32 s57, 0")
    wait_flag("CNT",246)
    for s in range(6):
        for t in range(2):
            for e2 in range(2): a(f"ds_read_b64_tr_b16 {vr(FR+8*s+4*t+2*e2,2)}, {vT6[t]} offset:{(4*s+2*e2)*2048}")
    a("s_waitcnt lgkmcnt(0)")
    stamp(13)
    vec2_mfma("V2B",1,VEC2B,False)
    a(f"s_mov_b32 exec_hi, 0\nv_cndmask_b32 v7, v{AC}, v{AC+4}, s[56:57]\nbuffer_store_dword v7, v6, {WS}, s54 offen sc1")
    stamp(14)
    a("s_mov_b64 exec, -1\ns_waitcnt vmcnt(0)")
    sig("PUBF")
    a("s_branch L_fin")

    GA=16; GD=32; GX=72
    def gather_setup(vOff, stride):
        a(f"v_mul_u32_u24 {vOff}, {stride}, {vGl}\nv_lshl_add_u32 {vOff}, {vN}, 4, {vOff}")
        a(f"v_and_b32 v6, 1, {vN}\nv_lshlrev_b32 v6, 4, v6\nv_mov_b32 v7, 0x3f80\nv_lshlrev_b32 v6, v6, v7\nv_lshrrev_b32 v7, 1, {vN}")
        for k in range(6): a(f"v_cmp_eq_u32 vcc, {k}, v7\nv_cndmask_b32 v{GA+k}, 0, v6, vcc")
    def gather(nq, vOff, soffs, name, xcc=False):
        l,ok=loop_head(name)
        for q in range(nq):
            if q==2: a("s_mov_b32 exec_hi, 0")
            for u in range(3):
                a(f"buffer_load_dwordx4 {vr(GD+4*(3*q+u),4)}, {vOff}, {WS}, {soffs[q]} offen offset:{256*u} sc1")
        if nq==3: a("s_mov_b64 exec, -1")
        n=3*nq
        for k in range(n):
            a(f"s_waitcnt vmcnt({n-1-k})\nv_mfma_f32_16x16x16_bf16 {vr(GX,4)}, {vr(GA+2*(k%3),2)}, {vr(GD+4*k,2)}, {vr(GX,4) if k else 0}")
        if not xcc:
            for k in range(n): a(f"v_cmpx_eq_u64 vcc, s[32:33], {vr(GD+4*k+2,2)}")
            a(f"s_cmp_eq_u64 exec, -1\ns_mov_b64 exec, -1\ns_cbranch_scc0 {l}\n{ok}:")
        else:
            sl=a.lab("SL")
            for k in range(n): a(f"v_cmpx_eq_u64 vcc, s[58:59], {vr(GD+4*k+2,2)}")
            a(f"s_cmp_eq_u64 exec, -1\ns_mov_b64 exec, -1\ns_cbranch_scc1 {ok}")
            for k in range(n): a(f"v_or_b32 v{GD+4*k+2}, 15, v{GD+4*k+2}\nv_cmpx_eq_u64 vcc, s[32:33], {vr(GD+4*k+2,2)}")
            a(f"s_cmp_eq_u64 exec, -1\ns_mov_b64 exec, -1\ns_cselect_b32 s60, 0, {sBud}\ns_cselect_b32 s63, 1, 0\ns_and_b32 s60, s60, 7\ns_cbranch_scc1 {l}\ns_branch {sl}\n{ok}:")
            far.append(f"""{sl}:
s_mov_b32 exec_hi, 0xffff
buffer_load_dwordx4 v[76:79], v28, {WS}, s61 offen offset:{RQ-RP} sc1
s_waitcnt vmcnt(0)
buffer_store_dwordx4 v[76:79], v28, {WS}, s61 offen offset:{RQ-RP} sc1
s_mov_b64 exec, -1
s_waitcnt vmcnt(0)
s_cmp_eq_u32 s63, 0
s_cbranch_scc1 {l}
v_mov_b32 v76, -1
v_mov_b32 v77, -1
v_mov_b32 v78, -1
v_mov_b32 v79, -1
v_mov_b32 v27, 3
buffer_store_dwordx4 v[76:79], v28, {WS}, s61 offen sc1
buffer_store_dwordx4 v[76:79], v28, {WS}, s61 offen offset:1024 sc1
s_mov_b64 exec, 0xffff
buffer_store_dwordx4 v[76:79], v28, {WS}, s61 offen offset:2048 sc1
s_mov_b64 exec, -1
s_waitcnt vmcnt(0)
s_branch {ok}""")
    def vec2_write(vAddr, flag, v=vOne):
        a(f"s_mov_b32 exec_hi, 0xffff\nv_cvt_pk_bf16_f32 v{GX}, v{GX}, v{GX+1}\nv_cvt_pk_bf16_f32 v{GX+1}, v{GX+2}, v{GX+3}\nds_write_b64 {vAddr}, {vr(GX,2)}\ns_mov_b64 exec, -1")
        sig(flag, v)
    def vec2b_addr(dst):
        a(f"v_lshlrev_b32 {dst}, 7, {vGl}\nv_bfe_u32 v6, {vN}, 1, 1\nv_lshl_add_u32 {dst}, v6, 6, {dst}\nv_lshrrev_b32 v6, 2, {vN}\nv_lshl_add_u32 {dst}, v6, 4, {dst}\nv_and_b32 v6, 1, {vN}\nv_lshl_add_u32 {dst}, v6, 3, {dst}\nv_add_u32 {dst}, {VEC2B}, {dst}")

    a("L_w7:")
    a("s_setprio 2")
    gather_setup("v24", RS)
    a(f"v_lshlrev_b32 v28, 4, {vLane}\ns_mul_i32 s61, {sB}, {RS}\ns_add_u32 s61, s61, {REC+RP}")
    a(f"v_lshlrev_b32 v25, 7, {vGl}\nv_and_b32 v6, 3, {vN}\nv_lshl_add_u32 v25, v6, 5, v25\nv_lshrrev_b32 v6, 2, {vN}\nv_lshl_add_u32 v25, v6, 3, v25\nv_add_u32 v25, {VEC2A}, v25")
    vec2b_addr("v26")
    a(f"s_mul_i32 s54, {sG}, {8*RS}\ns_add_u32 s52, s54, {REC+RE}\ns_add_u32 s53, s52, {4*RS}\ns_add_u32 s54, s54, {REC+RQ}\ns_add_u32 s55, s54, {4*RS}")
    a(f"s_mov_b32 s56, {f2u(192**-0.5*math.log2(math.e))}\ns_mov_b32 s57, s56")
    tag_finish()
    a("s_getreg_b32 s58, hwreg(HW_REG_XCC_ID, 0, 4)\ns_xor_b32 s58, s58, s32\ns_mov_b32 s59, s33\nv_mov_b32 v27, 1")
    a("s_barrier")
    wait_flag("PUBA",3)
    wait_flag("CNT",P["thrG"])
    stamp(1)
    gather(2,"v24",["s54","s55"],"GA", xcc=True)
    stamp(2)
    a(f"v_pk_mul_f32 {vr(GX,2)}, {vr(GX,2)}, s[56:57]\nv_pk_mul_f32 {vr(GX+2,2)}, {vr(GX+2,2)}, s[56:57]")
    vec2_write("v25","V2A","v27")
    a(f"s_cmp_lt_u32 {sJ}, 5\ns_cbranch_scc1 L_w7e\ns_cmp_lt_u32 {sV}, 10\ns_cbranch_scc0 L_fin")
    a("L_ffn2:")
    trcore("v8", vTmp)
    a(f"s_and_b32 s52, {sW}, 1\ns_lshl_b32 s55, s52, 6\nv_lshrrev_b32 v6, 5, {vLane}\nv_lshl_add_u32 v8, v6, 11, v8\nv_xor_b32 v8, s55, v8\nv_add_u32 {vT6[0]}, {R2}, v8\nv_xor_b32 {vT6[1]}, 32, {vT6[0]}")
    a(f"v_lshlrev_b32 {vVec}, 4, {vGl}\nv_add_u32 {vVec}, {VEC1A}, {vVec}")
    a(f"s_mul_i32 s54, {sX}, 2560\ns_lshl_b32 s55, {sV}, 8\ns_add_u32 s54, s54, s55\ns_lshl_b32 s55, s52, 7\ns_add_u32 s54, s54, s55\ns_add_u32 s54, s54, {YP}")
    wait_flag("PUBC",2)
    a("s_branch L_s6go")
    a("L_w7e:")
    wait_flag("PUBE",3)
    stamp(6)
    gather(2,"v24",["s52","s53"],"GE")
    stamp(7)
    vec2_write("v26","V2B")
    a("s_branch L_fin")

    a("L_w5:")
    a(f"v_lshlrev_b32 v6, 4, {vLane}\nv_mov_b32 v8, -1\nv_mov_b32 v9, -1\nv_mov_b32 v10, -1\nv_mov_b32 v11, -1")
    a(f"s_mul_i32 s52, {sB}, {RS}\ns_add_u32 s52, s52, {REC}\ns_add_u32 s53, s52, {RP}")
    a(f"v_lshlrev_b32 v22, 6, {vLane}\ns_mov_b32 exec_hi, 0x0fffffff\nbuffer_load_dword v23, v22, {WS}, s53 offen sc1\ns_mov_b64 exec, -1")
    a(f"s_cmp_lt_u32 s2, 100\ns_cbranch_scc0 L_ng\ns_lshl_b32 s54, s2, 10\ns_add_u32 s54, s54, {G}\nbuffer_store_dwordx4 v[8:11], v6, {WS}, s54 offen sc1\nL_ng:")
    a("s_setprio 2")
    MK=12
    a(f"v_and_b32 v7, 1, {vN}\nv_lshlrev_b32 v7, 4, v7\nv_mov_b32 v16, 0xffff\nv_lshlrev_b32 v7, v7, v16\nv_lshrrev_b32 v16, 1, {vN}")
    for k in range(3): a(f"v_cmp_eq_u32 vcc, {2*k}, v16\nv_cndmask_b32 v{MK+k}, 0, v7, vcc")
    for k in range(8): a(f"v_mov_b32 v{43+4*k}, 0")
    a(f"v_bfe_u32 v7, {vN}, 2, 1\nv_mad_u32_u24 v7, v7, 3, {vGl}\nv_lshrrev_b32 v17, 3, {vN}\nv_lshlrev_b32 v18, 6, v17\nv_lshl_add_u32 v18, v7, 2, v18")
    a(f"v_lshlrev_b32 v19, 3, v17\nv_lshl_add_u32 v19, v7, 2, v19\nv_add_u32 v19, 112, v19\nv_cmp_gt_u32 vcc, 4, v7\nv_cndmask_b32 v18, v19, v18, vcc")
    a(f"v_and_b32 v7, 3, {vN}\nv_lshl_add_u32 v18, v7, 4, v18\nv_add_u32 v18, {VEC1B}, v18")
    a(f"s_movk_i32 s55, {FLG}\nv_lshlrev_b32 v16, 7, {vLane}")
    tag_finish()
    a("s_barrier\ns_waitcnt vmcnt(0)")
    a(f"buffer_store_dwordx4 v[8:11], v6, {WS}, s53 offen\nbuffer_store_dwordx4 v[8:11], v6, {WS}, s53 offen offset:1024\ns_mov_b64 exec, 0xffff\nbuffer_store_dwordx4 v[8:11], v6, {WS}, s53 offen offset:2048\ns_mov_b64 exec, -1")
    stamp(1)
    wait_flag("CNT",P["thrF"])
    l,ok=loop_head("FL")
    a(f"s_mov_b64 exec, 0xff\nbuffer_load_dwordx2 v[24:25], v16, {WS}, s55 offen sc1\ns_waitcnt vmcnt(0)\nv_cmp_ne_u64 vcc, s[32:33], v[24:25]\ns_mov_b64 exec, -1\ns_cbranch_vccnz {l}\n{ok}:")
    sig("CLR")
    stamp(2)
    a(f"s_lshl_b32 s54, {sX}, 14\ns_and_b32 s55, {sG}, 3\ns_lshl_b32 s55, s55, 4\ns_add_u32 s54, s54, s55\ns_add_u32 s44, s54, {ST}\ns_add_u32 s45, s44, 4096\ns_add_u32 s46, s44, 8192\ns_add_u32 s47, s44, 12288\ns_add_u32 s53, s52, 4096")
    wait_flag(*{"DST":("DST",4),"S4M":("S4M",1),"PUBC":("PUBC",2),"PUBD":("PUBD",4)}[P["stattrig"]])
    stamp(3)
    l,ok=loop_head("SS")
    SM=108
    for k in range(4): a(f"buffer_load_dwordx4 {vr(SM+4*k,4)}, v22, {WS}, s{44+k} offen sc1")
    a("s_waitcnt vmcnt(0)")
    for k in range(4): a(f"v_cmpx_eq_u64 vcc, s[32:33], {vr(SM+4*k+2,2)}")
    a(f"s_cmp_eq_u64 exec, -1\ns_mov_b64 exec, -1\ns_cbranch_scc0 {l}\n{ok}:")
    stamp(4)
    st3=("quad_perm:[1,0,3,2]","quad_perm:[2,3,0,1]","row_half_mirror")
    for i,s in enumerate(st3):
        for k in range(4):
            src = f"v{SM+4*k}" if i==0 else f"v{32+k}"
            a(f"v_max_f32_dpp v{32+k}, {src}, {src} {s} {DP}")
    a("v_max3_f32 v36, v32, v33, v34\nv_max_f32 v36, v36, v35")
    rowreduce("v_max_f32","v36",("row_mirror",))
    xreduce("v_max_f32","v36","v37")
    for k in range(4): a(f"v_sub_f32 v{SM+4*k}, v{SM+4*k}, v36\nv_sub_f32 v{32+k}, v{32+k}, v36")
    for k in range(4): a(f"v_exp_f32 v{SM+4*k}, v{SM+4*k}\nv_exp_f32 v{32+k}, v{32+k}")
    a(f"v_mul_f32 v38, v{SM}, v{SM+1}\nv_fmac_f32 v38, v{SM+4}, v{SM+5}\nv_fmac_f32 v38, v{SM+8}, v{SM+9}\nv_fmac_f32 v38, v{SM+12}, v{SM+13}")
    for k in range(4): a(f"v_cvt_pk_bf16_f32 v{32+k}, v{32+k}, v{32+k}")
    rowreduce("v_add_f32","v38")
    xreduce("v_add_f32","v38","v37")
    a("v_rcp_f32 v38, v38")
    SAa=40; SD=72; SX=104
    for s in range(8):
        for r in range(3): a(f"v_and_b32_dpp v{SAa+4*s+r}, v{32+(s>>1)}, v{MK+r} row_newbcast:{8*(s&1)} {DP}")
    a("v_mov_b32 v39, v38\ns_and_b32 s56, s32, 0xbfffbfff")
    wait_flag("PUBD",4)
    stamp(5)
    l,ok=loop_head("CD",("CDI",))
    for s in range(8): a(f"buffer_load_dwordx4 {vr(SD+4*s,4)}, v6, {WS}, s{52+(s>>2)} offen offset:{1024*(s&3)} sc1")
    sig("CDI")
    for s in range(8):
        a(f"s_waitcnt vmcnt({7-s})\nv_mfma_f32_16x16x32_bf16 {vr(SX,4)}, {vr(SAa+4*s,4)}, {vr(SD+4*s,4)}, {vr(SX,4) if s else 0}")
    for s in range(8): a(f"v_cmpx_eq_u32 vcc, s56, v{SD+4*s+3}")
    a(f"s_cmp_eq_u64 exec, -1\ns_mov_b64 exec, -1\ns_cbranch_scc0 {l}\n{ok}:")
    stamp(6)
    a(f"s_mov_b32 exec_hi, 0xffff\nv_pk_mul_f32 {vr(SX,2)}, {vr(SX,2)}, v[38:39]\nv_cvt_pk_bf16_f32 v{SX}, v{SX}, v{SX+1}")
    a(f"ds_write_b32 v18, v{SX}\ns_mov_b64 exec, -1")
    sig("V1B")
    a("s_branch L_fin")

    a("L_w6:")
    a(f"v_lshlrev_b32 v6, 2, {vLane}\nv_add_u32 v6, {XB}, v6")
    a(f"s_mul_i32 s52, {sJ}, 160\ns_min_u32 s53, {sV}, 9\ns_lshl_b32 s53, s53, 7\ns_sub_u32 s53, s53, 256\nv_mov_b32 v16, s52\nv_mov_b32 v13, s53\nv_cmp_gt_u32 vcc, 32, {vLane}\nv_cndmask_b32 v16, v13, v16, vcc\nv_lshl_add_u32 v16, {vLane}, 3, v16\nv_add_u32 v16, {XB}, v16")
    a(f"v_bfe_u32 v7, {vLane}, 3, 2\nv_lshlrev_b32 v27, 6, v7\nv_and_b32 v7, 3, {vLane}\nv_lshl_add_u32 v27, v7, 4, v27\nv_bfe_u32 v7, {vLane}, 2, 1\nv_lshl_add_u32 v27, v7, 3, v27\nv_lshrrev_b32 v7, 5, {vLane}\nv_mul_u32_u24 v7, {VEC1F-VEC1A}, v7\nv_add_u32 v27, v27, v7\nv_add_u32 v27, {VEC1A}, v27")
    a("s_mov_b32 s54, 0xffff0000\ns_barrier")
    for k in range(5): a(f"ds_read_b32 v{8+k}, v6 offset:{256*k}")
    a("ds_read_b64 v[14:15], v16\ns_waitcnt lgkmcnt(0)")
    stamp(1)
    for k in range(5): a(f"v_lshlrev_b32 v{32+2*k}, 16, v{8+k}\nv_and_b32 v{33+2*k}, s54, v{8+k}")
    a("v_pk_add_f32 v[44:45], v[32:33], v[34:35]\nv_pk_add_f32 v[46:47], v[36:37], v[38:39]\nv_pk_add_f32 v[44:45], v[44:45], v[40:41]\nv_pk_add_f32 v[44:45], v[44:45], v[46:47]\nv_add_f32 v44, v44, v45")
    rowreduce("v_add_f32","v44"); xreduce("v_add_f32","v44","v45")
    a(f"v_mul_f32 v44, {hex(f2u(1/640))}, v44")
    for k in range(10): a(f"v_sub_f32 v{32+k}, v{32+k}, v44")
    a("v_mul_f32 v46, v32, v32")
    for k in range(1,10): a(f"v_fmac_f32 v46, v{32+k}, v{32+k}")
    rowreduce("v_add_f32","v46"); xreduce("v_add_f32","v46","v45")
    def rbf(v): a(f"v_cvt_pk_bf16_f32 {v}, {v}, {v}\nv_and_b32 {v}, s54, {v}")
    a(f"v_mul_f32 v46, {hex(f2u(1/640))}, v46"); rbf("v46"); rbf("v44")
    a(f"v_add_f32 v46, {hex(f2u(1e-5))}, v46"); rbf("v46")
    a("v_sqrt_f32 v46, v46"); rbf("v46")
    a("v_rcp_f32 v46, v46")
    a("v_lshlrev_b32 v32, 16, v14\nv_and_b32 v33, s54, v14\nv_lshlrev_b32 v34, 16, v15\nv_and_b32 v35, s54, v15")
    for k in range(4): a(f"v_sub_f32 v{32+k}, v{32+k}, v44")
    a("v_cvt_pk_bf16_f32 v14, v32, v33\nv_cvt_pk_bf16_f32 v15, v34, v35")
    a("v_lshlrev_b32 v32, 16, v14\nv_and_b32 v33, s54, v14\nv_lshlrev_b32 v34, 16, v15\nv_and_b32 v35, s54, v15")
    for k in range(4): a(f"v_mul_f32 v{32+k}, v{32+k}, v46")
    a("v_cvt_pk_bf16_f32 v14, v32, v33\nv_cvt_pk_bf16_f32 v15, v34, v35")
    a("s_mov_b32 exec_lo, 0x000fffff\ns_mov_b32 exec_hi, 0xffff\nds_write_b64 v27, v[14:15]\ns_mov_b64 exec, -1")
    sig("V1A")
    stamp(2)
    tag_finish()
    a(f"s_cmp_lt_u32 s2, 20\ns_cbranch_scc1 L_final\ns_cmp_lt_u32 {sV}, 10\ns_cbranch_scc0 L_fin")
    masks()
    srd(44, 20, 3072)
    a(f"v_lshlrev_b32 v8, 7, {vGl}\nv_and_b32 v6, 3, {vN}\nv_lshl_add_u32 v8, v6, 5, v8\nv_lshrrev_b32 v6, 2, {vN}\nv_lshl_add_u32 v8, v6, 3, v8\ns_mul_i32 s52, {sX}, 384")
    a(f"buffer_load_dwordx2 v[22:23], v8, {SA}, s52 offen")
    gather_setup("v24",768); vec2b_addr("v26")
    trcore("v80", vTmp)
    a(f"v_lshrrev_b32 v6, 5, {vLane}\nv_mul_u32_u24 v6, 3072, v6\nv_add_u32 v80, v80, v6\nv_add_u32 v80, {R3}, v80")
    for t in range(1,4): a(f"v_xor_b32 v{80+t}, {32*t}, v80")
    a(f"v_lshlrev_b32 v84, 6, {vGl}\nv_lshl_add_u32 v84, {vN}, 4, v84\nv_lshlrev_b32 v85, 4, {vGl}\nv_add_u32 v85, {VEC1F}, v85")
    a(f"ds_read_b128 v[88:91], v85\nds_read_b128 v[92:95], v85 offset:64\nv_mov_b32 v78, s32\nv_mov_b32 v79, s33")
    for u in range(3): a(f"v_mov_b32 v{GD+24+4*u}, 0\nv_mov_b32 v{GD+25+4*u}, 0\nv_mov_b32 v{GD+26+4*u}, s32\nv_mov_b32 v{GD+27+4*u}, s33")
    a(f"s_mul_i32 s52, {sX}, {12*768}\ns_add_u32 s52, s52, {HP}\ns_add_u32 s53, s52, 3072\ns_add_u32 s51, s52, 6144\ns_mul_i32 s55, {sV}, 768\ns_add_u32 s55, s55, s52\ns_mov_b32 s43, 0")
    wait_flag("CNT",186)
    stamp(3)
    l=a.lab("F1")
    a(f"{l}:")
    for t in range(4):
        for h in range(4): a(f"ds_read_b64_tr_b16 {vr(96+8*t+2*h,2)}, v{80+t} offset:{2*h*3072}")
    for t in range(4):
        a(f"s_waitcnt lgkmcnt({12-4*t})")
        a(f"v_mfma_f32_16x16x32_bf16 {vr(128+4*t,4)}, {vr(96+8*t,4)}, v[88:91], 0\nv_mfma_f32_16x16x32_bf16 {vr(128+4*t,4)}, {vr(100+8*t,4)}, v[92:95], {vr(128+4*t,4)}")
    for t in range(4): a(f"v_add_u32 v{80+t}, 1024, v{80+t}")
    publish4(128, 76, "v84", "s55")
    a(f"s_add_u32 s55, s55, 256\ns_add_u32 s43, s43, 1\ns_cmp_lt_u32 s43, 3\ns_cbranch_scc1 {l}")
    stamp(4)
    a("s_waitcnt vmcnt(0)")
    gather(3,"v24",["s52","s53","s51"],"GH")
    stamp(5)
    a("v_lshlrev_b32 v8, 16, v22\nv_and_b32 v9, s54, v22\nv_lshlrev_b32 v10, 16, v23\nv_and_b32 v11, s54, v23")
    c1 = -2*math.sqrt(2/math.pi)*math.log2(math.e)
    a(f"s_mov_b32 s56, {f2u(c1*0.044715)}\nv_mov_b32 v7, {hex(f2u(c1))}")
    for k in range(4): a(f"v_add_f32 v{GX+k}, v{GX+k}, v{8+k}")
    for k in range(4): a(f"v_mul_f32 v{8+k}, v{GX+k}, v{GX+k}")
    for k in range(4): a(f"v_fma_f32 v{8+k}, v{8+k}, s56, v7")
    for k in range(4): a(f"v_mul_f32 v{8+k}, v{8+k}, v{GX+k}")
    for k in range(4): a(f"v_exp_f32 v{8+k}, v{8+k}")
    for k in range(4): a(f"v_add_f32 v{8+k}, 1.0, v{8+k}")
    for k in range(4): a(f"v_rcp_f32 v{8+k}, v{8+k}")
    for k in range(4): a(f"v_mul_f32 v{GX+k}, v{GX+k}, v{8+k}")
    vec2_write("v26","V2B")
    a("s_branch L_ffn2")

    a("L_final:")
    a(f"s_mov_b32 s40, s2")
    a(f"v_and_b32 v6, 7, {vLane}\nv_lshlrev_b32 v8, 3, v6\nv_bfe_u32 v7, {vLane}, 4, 1\nv_lshl_add_u32 v8, v7, 2, v8\nv_lshrrev_b32 v7, 5, {vLane}\nv_lshl_add_u32 v8, v7, 1, v8")
    a(f"s_lshl_b32 s52, s40, 6")
    srd(44,4,1280); srd(48,24,1280)
    a(f"buffer_load_ushort v10, v8, {SA}, s52 offen\nbuffer_load_ushort v11, v8, {SB}, s52 offen")
    a(f"v_lshrrev_b32 v7, 3, {vLane}\nv_mul_u32_u24 v7, 2560, v7\nv_lshl_add_u32 v9, v6, 4, v7")
    a(f"s_lshl_b32 s53, s40, 7\ns_add_u32 s56, s53, {OP}\ns_add_u32 s57, s56, 20480\ns_add_u32 s58, s57, 20480\ns_add_u32 s59, s58, 20480\ns_add_u32 s53, s53, {YP}")
    a("s_waitcnt vmcnt(0)\nv_lshlrev_b32 v10, 16, v10\nv_lshlrev_b32 v11, 16, v11")
    srd(44,26,1280)
    def red4(b):
        a(f"v_permlane32_swap_b32 v{b}, v{b+1}\nv_permlane32_swap_b32 v{b+2}, v{b+3}\nv_add_f32 v{b}, v{b}, v{b+1}\nv_add_f32 v{b+2}, v{b+2}, v{b+3}")
        a(f"v_permlane16_swap_b32 v{b}, v{b+2}\nv_add_f32 v{b}, v{b}, v{b+2}\nv_add_f32_dpp v{b}, v{b}, v{b} row_ror:8 {DP}")
    wait_flag(*P.get("ytrig",("V2B",1)))
    stamp(8)
    l,ok=loop_head("FY")
    a(f"buffer_load_dwordx4 v[12:15], v9, {WS}, s53 offen sc1\ns_waitcnt vmcnt(0)")
    red4(12)
    a(f"v_cmp_u_f32 vcc, v12, v12\ns_cbranch_vccnz {l}\n{ok}:")
    stamp(9)
    a(f"v_add_f32 v11, v11, v12\nv_mul_f32 v12, {hex(f2u(-math.log2(math.e)))}, v11\nv_exp_f32 v12, v12\nv_add_f32 v12, 1.0, v12\nv_rcp_f32 v12, v12\nv_mul_f32 v11, v11, v12")
    wait_flag("PUBF",4)
    stamp(11)
    l,ok=loop_head("FS")
    for k in range(4): a(f"buffer_load_dwordx4 {vr(12+4*k,4)}, v9, {WS}, s{56+k} offen sc1")
    a("s_waitcnt vmcnt(2)\nv_pk_add_f32 v[12:13], v[12:13], v[16:17]\nv_pk_add_f32 v[14:15], v[14:15], v[18:19]")
    a("s_waitcnt vmcnt(0)\nv_pk_add_f32 v[20:21], v[20:21], v[24:25]\nv_pk_add_f32 v[22:23], v[22:23], v[26:27]\nv_pk_add_f32 v[12:13], v[12:13], v[20:21]\nv_pk_add_f32 v[14:15], v[14:15], v[22:23]")
    red4(12)
    a(f"v_cmp_u_f32 vcc, v12, v12\nv_fma_f32 v13, v12, v11, v10\ns_cbranch_vccnz {l}\n{ok}:")
    a(f"v_cvt_pk_bf16_f32 v13, v13, v13\ns_mov_b32 exec_lo, 0x00ff00ff\ns_mov_b32 exec_hi, 0x00ff00ff\nbuffer_store_short v13, v8, {SA}, s52 offen sc1")
    stamp(10)
    a(f"s_cmp_eq_u32 s40, 0\ns_cbranch_scc0 L_fin\ns_mov_b64 exec, 1\nv_mov_b32 v14, s32\nv_mov_b32 v15, s33\nv_mov_b32 v6, {EPOCH}\nbuffer_store_dwordx2 v[14:15], v6, {WS}, 0 offen sc1")
    if P.get("dbgdelay"):
        a(f"s_memrealtime s[8:9]\ns_waitcnt lgkmcnt(0)\nL_dd:\ns_memrealtime s[10:11]\ns_waitcnt lgkmcnt(0)\ns_sub_u32 s10, s10, s8\ns_cmp_lt_u32 s10, {P['dbgdelay']}\ns_cbranch_scc1 L_dd")
    if P.get("trace"):
        L2=[]
        for x in a.L:
            L2.append(x)
            if x.startswith(("ds_max_u32","ds_write_b32")) and x.endswith(f"v10 offset:{F['CNT']}"):
                L2+=["s_memrealtime s[62:63]","v_readfirstlane_b32 s97, v10","s_waitcnt lgkmcnt(0)","s_lshl_b32 s62, s62, 12","s_or_b32 s62, s62, s97","s_and_b32 s98, s96, 63","s_cmp_lt_u32 s96, 64","s_cselect_b64 vcc, -1, 0","v_mov_b32 v32, s62","v_cmp_eq_u32 s[62:63], s98, v0","s_add_u32 s96, s96, 1","s_and_b64 vcc, vcc, s[62:63]","v_cndmask_b32 v30, v30, v32, vcc","v_cndmask_b32 v31, v31, v32, s[62:63]"]
            if x=="s_setprio 3": L2+=["s_mov_b32 s96, 0","v_mov_b32 v30, 0","v_mov_b32 v31, 0"]
        a.L=L2
    if P.get("allsc1"): a.L=[(x+" sc1" if (x.startswith("buffer_store") and "sc1" not in x) else x) for x in a.L]
    if P.get("nostores"):
        L2=[]; n_=0
        for x in a.L:
            if x.startswith("buffer_store") and WS in x:
                if n_ in P.get("keep",()): L2.append(x)
                n_+=1
            else: L2.append(x)
        a.L=L2
    a("L_fin:")
    if diag:
        stamp(15)
        a("s_load_dwordx2 s[28:29], s[0:1], 104")
        a(f"s_waitcnt lgkmcnt(0) vmcnt(0)\ns_mov_b32 s30, {WSSIZE}\ns_mov_b32 s31, 0x20000\ns_mov_b64 exec, 1")
        if P["wsb"]: a(f"s_add_u32 s28, s28, {P['wsb']}\ns_addc_u32 s29, s29, 0")
        for i in range(16): a(f"v_mov_b32 v{8+i}, s{64+2*i}")
        a(f"v_mov_b32 v24, {sBud}\nv_mov_b32 v6, 0\ns_lshl_b32 s52, {sB}, 3\ns_add_u32 s52, s52, {sW}\ns_lshl_b32 s52, s52, 7\ns_add_u32 s52, s52, {DBG}")
        dfl=P.get("dfl","")
        for i in range(4): a(f"buffer_store_dwordx4 {vr(8+4*i,4)}, v6, {WS}, s52 offen offset:{16*i} {dfl}")
        a(f"buffer_store_dword v24, v6, {WS}, s52 offen offset:64 {dfl}")
        if P.get("trace"):
            a(f"s_cmp_eq_u32 {sW}, 4\ns_cbranch_scc0 L_ntr\ns_mov_b64 exec, -1\nv_lshlrev_b32 v6, 2, v0\ns_lshl_b32 s52, {sB}, 9\ns_add_u32 s52, s52, {DBG+0x40000}\nbuffer_store_dword v30, v6, {WS}, s52 offen\nbuffer_store_dword v31, v6, {WS}, s52 offen offset:256\nL_ntr:")
    a("s_endpgm")
    for f_ in far: a(f_)
    a("L_end:\ns_endpgm")
    body = a.finish(verbose=P.get("verbose",False))
    hdr = open("cdna_kernels/"+NAME+".s.ref").read().split("; Override launch")[0] if P.get("hdr",True) else ""
    return hdr + f"""; Single persistent launch: 256 workgroups (one per CU) x 8 waves; generated by my own script (gen/gen.py).
; @launch grid=(256,1,1) block=(512,1,1) lds={LDS_BYTES}
.amdgcn_target "amdgcn-amd-amdhsa--gfx950"
.text
.globl {NAME}_kernel
.p2align 8
.type {NAME}_kernel,@function
{NAME}_kernel:
{body}
.section .rodata,"a"
.p2align 6
.amdhsa_kernel {NAME}_kernel
  .amdhsa_next_free_vgpr 212
  .amdhsa_next_free_sgpr 100
  .amdhsa_accum_offset 212
  .amdhsa_group_segment_fixed_size 0
  .amdhsa_kernarg_size 112
  .amdhsa_user_sgpr_count 2
  .amdhsa_user_sgpr_kernarg_segment_ptr 1
  .amdhsa_system_sgpr_workgroup_id_x 1
.end_amdhsa_kernel
"""
if __name__=="__main__":
    kw={}
    out="cdna_kernels/"+NAME+".s"
    for arg in sys.argv[1:]:
        k,v=arg.split("=",1)
        if k=="out": out=v
        else:
            try: kw[k]=eval(v)
            except Exception: kw[k]=v
    open(out,"w").write(gen(verbose=True, **kw))
    print("wrote",out,"LDS",LDS_BYTES)
```

```python
import gen as G, sys
from mklist import extra_kernel, N
def probe_body(w,i,mode,K=4,wsb=0):
    L=["s_cmp_ge_u32 s2, 1","s_cbranch_scc1 L_pe","s_memrealtime s[12:13]","s_load_dwordx2 s[28:29], s[0:1], 104","v_lshlrev_b32 v1, 10, v0",f"s_mov_b32 s30, {G.WSSIZE}","s_mov_b32 s31, 0x20000","s_waitcnt lgkmcnt(0)"]
    for k in range(4):
        L+=[f"s_mov_b32 s3, {G.DBG+k*65536}", f"buffer_load_dword v{4+k}, v1, s[28:31], s3 offen", f"buffer_load_dword v{8+k}, v1, s[28:31], s3 offen offset:{w*128+i*4}"]
    L+=["s_waitcnt vmcnt(0)","v_min_u32 v4, v4, v5","v_min3_u32 v4, v4, v6, v7","s_mov_b32 s4, -1","s_nop 1"]
    for l in range(64): L+=[f"v_readlane_b32 s5, v4, {l}","s_nop 0","s_min_u32 s4, s4, s5"]
    for k in range(4): L+=[f"v_cmp_ne_u32 vcc, 0, v{8+k}",f"v_subrev_u32 v{8+k}, s4, v{8+k}","s_nop 1",f"v_cndmask_b32 v{8+k}, 0, v{8+k}, vcc"]
    if mode in("max","gap"):
        L+=["v_max_u32 v8, v8, v9","v_max3_u32 v8, v8, v10, v11","s_mov_b32 s6, 0","s_nop 1"]
        for l in range(64): L+=[f"v_readlane_b32 s5, v8, {l}","s_nop 0","s_max_u32 s6, s6, s5"]
        if mode=="gap": L+=["s_sub_u32 s12, s12, s4","s_sub_u32 s6, s12, s6"]
        L+=[f"s_lshl_b32 s6, s6, {K}"]
    elif mode=="mean":
        L+=["v_add_u32 v8, v8, v9","v_add3_u32 v8, v8, v10, v11","s_mov_b32 s6, 0","s_nop 1"]
        for l in range(64): L+=[f"v_readlane_b32 s5, v8, {l}","s_nop 0","s_add_u32 s6, s6, s5"]
        L+=[f"s_lshr_b32 s6, s6, {8-K}"]
    else:
        L+=["s_mov_b32 s6, 0"]
        for l in range(64): L+=[f"v_readlane_b32 s5, v8, {l}","s_nop 0","s_add_u32 s7, s6, s5"]
    L+=["s_min_u32 s6, s6, 200000","s_memrealtime s[8:9]","s_waitcnt lgkmcnt(0)","L_ps:","s_memrealtime s[10:11]","s_waitcnt lgkmcnt(0)","s_sub_u32 s10, s10, s8","s_cmp_lt_u32 s10, s6","s_cbranch_scc1 L_ps","L_pe:"]
    return "\n".join(L)
def mk(fn,w,i,mode,K=4,**kw):
    t=G.gen(diag=True,**kw)
    old=[l for l in t.split("\n") if l.startswith("; @launch")][0]
    new=f"; @launch kernel={N} grid=(256,1,1) block=(512,1,1) lds={G.LDS_BYTES}\n; @launch kernel=pr_kernel grid=(1,1,1) block=(64,1,1) lds=0"
    open(fn,"w").write(t.replace(old,new)+extra_kernel("pr_kernel",probe_body(w,i,mode,K),16,40))
if __name__=="__main__":
    kw={}
    specs=[]
    for arg in sys.argv[1:]:
        if "=" in arg:
            k,v=arg.split("=",1); kw[k]=eval(v)
        else: specs.append(arg)
    for n,sp in enumerate(specs):
        sp,_,ex=sp.partition(":")
        w,i,mode=sp.split(",")
        k2=dict(kw); k2.update(eval("dict(%s)"%ex.replace("~","=")))
        mk(f"../var/p{n}.s",int(w),int(i),mode,**k2)
```

```python
import gen as G, sys
from mklist import extra_kernel, N
from mkprobe import probe_body
def stamp_all(slot, nwg):
    return "\n".join(["s_cmp_ge_u32 s2, 1","s_cbranch_scc1 L_k1e","s_load_dwordx2 s[28:29], s[0:1], 104",f"s_mov_b32 s30, {G.WSSIZE}","s_mov_b32 s31, 0x20000","v_lshlrev_b32 v1, 10, v0",f"s_mov_b32 s3, {G.DBG}","s_waitcnt lgkmcnt(0)","s_memrealtime s[8:9]","s_waitcnt lgkmcnt(0)","v_mov_b32 v4, s8","v_mov_b32 v5, 0","buffer_store_dwordx2 v[4:5], v1, s[28:31], s3 offen sc1","L_k1e:"])
def dummy(nwg):
    return "\n".join(["s_memrealtime s[8:9]",f"s_cmp_ge_u32 s2, {nwg}","s_cbranch_scc1 L_k2e","s_load_dwordx2 s[28:29], s[0:1], 104",f"s_mov_b32 s30, {G.WSSIZE}","s_mov_b32 s31, 0x20000","s_lshl_b32 s3, s2, 10",f"s_add_u32 s3, s3, {G.DBG+4}","v_cmp_eq_u32 vcc, 0, v0","s_and_saveexec_b64 s[12:13], vcc","s_cbranch_execz L_k2e","s_waitcnt lgkmcnt(0)","v_mov_b32 v4, s8","buffer_store_dword v4, v0, s[28:31], s3 offen sc1","L_k2e:"])
def mk(fn, mode, nwg, thr, lds, vg):
    t=G.gen(gate=False,TL=18)
    old=[l for l in t.split("\n") if l.startswith("; @launch")][0]
    new=f"; @launch kernel=k1_kernel grid=(1,1,1) block=(256,1,1) lds=0\n; @launch kernel=k2_kernel grid=({nwg},1,1) block=({thr},1,1) lds={lds}\n; @launch kernel={N} grid=(256,1,1) block=(512,1,1) lds={G.LDS_BYTES}\n; @launch kernel=pr_kernel grid=(1,1,1) block=(64,1,1) lds=0"
    open(fn,"w").write(t.replace(old,new)+extra_kernel("pr_kernel",probe_body(0,1,mode),16,40)+extra_kernel("k1_kernel",stamp_all(0,256),16,40)+extra_kernel("k2_kernel",dummy(nwg),vg,100))
mk("../var/r0.s","none",256,512,148736,212)
mk("../var/r1.s","mean",256,512,148736,212)
mk("../var/r2.s","max",256,512,148736,212)
mk("../var/r3.s","max",256,64,0,16)
mk("../var/r4.s","max",1,64,0,16)
mk("../var/r5.s","max",256,256,148736,128)
```

```python
import sys, math, struct
from asmlib import Asm
NAME = "recurrent_scan__compressed_kv_cla__dense_activation_gelu__decode"
def f2u(x): return struct.unpack("<I", struct.pack("<f", x))[0]

EPOCH=0; FLG=0x1000; QA=0x4000; HT=0x10000; G=0x24000; OP=G; YP=G+81920; ST=0x40000
REC=0x60000; RP=8192; RM=RP+2048; RE=RM+256; RQ=RE+768; RS=RQ+768; DBG=0x380000; WSSIZE=0x400000
assert REC+256*RS<=DBG
R1=0; R2=49152; R3=R2+51200; SCR=R3+36864
XB=SCR; VEC1A=XB+4096; VEC1F=VEC1A+192; VEC1B=VEC1F+128; VEC2A=VEC1B+192; VEC2B=VEC2A+384; MLB=VEC2B+384
FLAGS=(MLB+1024+255)//256*256
FN = ["CNT","RDB","V1A","V2A","CLR","X0","X1","V1B","V2B","S4M","RDUK","RDA","PUBA","PUBC","PUBD","PUBE","PUBF","PUBB","QISS","DST","CDI","STOK","GISS","S4K","H0","H1","p4","p5"]
F = {n:256*i for i,n in enumerate(FN)}
LDS_BYTES = FLAGS+256*len(FN)

Q_=('QISS',4); M_=('S4M',4); K_=('S4K',4); D_=('DST',4); C_=('CDI',1); V_=('V1B',1)
DEF = dict(sched=[(0,Q_,24),(36,M_,6),(42,K_,24),(66,C_,24)], gA=False, latetouch=27, gC=False, fsched=None, T=24, TA=30, TL=24, thrG=54, pauseQ=True, ntA='nt', ntB='nt', nt="nt", diag=False, wsb=0, thrF=30, clrstep=8, gate=True, n1=18, n2=66, thrG2=0, incC=False, mfirst=True, hintA=False, hintC=False, holdG=False, n0=0, ackA=False, ackC=False, s4late=True, ffnfirst=True, fg=(24,84), dtrig=[('STOK',1)], thrQ=150, adual=True,  local=True, stattrig="DST", pref='s', budget=400000, safe=False)

def gen(**kw):
    P = dict(DEF); P.update(kw)
    T=P["T"]; TL=P["TL"]; NT=P["nt"]; diag=P["diag"]
    a = Asm()
    far=[]
    sW,sX,sY,sG,sJ,sB,sV = "s34","s35","s36","s37","s38","s39","s41"
    sBud="s42"; WS="s[28:31]"; SA="s[44:47]"; SB="s[48:51]"
    nst=[0]
    def stamp(i):
        if diag: a(f"s_memrealtime s[{64+2*i}:{65+2*i}]")
    def srd(base, ptr, size):
        a(f"s_mov_b32 s{base}, s{ptr}\ns_mov_b32 s{base+1}, s{ptr+1}\ns_mov_b32 s{base+2}, {size}\ns_mov_b32 s{base+3}, 0x20000")
    vLane="v0"; vL4="v1"; vOne="v2"; vTmp="v3"; vN="v4"; vGl="v5"
    CB=64
    def spin(l):
        a(f"{l}:")
        if P["safe"]: a("s_sub_u32 s99, s99, 1\ns_cbranch_scc1 L_fin")
    def wait_flag(name, thr):
        if name=="CNT" and isinstance(thr,int): thr+=CB
        l=a.lab("WF")
        spin(l)
        a(f"ds_read_b32 {vTmp}, {vL4} offset:{F[name]}\ns_waitcnt lgkmcnt(0)\nv_cmp_gt_u32 vcc, {thr}, {vTmp}\ns_cbranch_vccnz {l}")
    def sig(name, v=vOne):
        a(f"ds_add_u32 {vL4}, {v} offset:{F[name]}")
    def loop_head(base, sigs=()):
        l=a.lab(base); g=a.lab("GU"); ok=a.lab("OK")
        a(f"{l}:\ns_sub_u32 {sBud}, {sBud}, 1\ns_cbranch_scc1 {g}")
        far.append(f"{g}:\ns_mov_b32 {sBud}, 0\ns_mov_b64 exec, -1\n"+"".join(f"ds_add_u32 {vL4}, {vOne} offset:{F[n]}\n" for n in sigs)+f"s_nop 7\ns_branch {ok}")
        return l, ok
    def vr(b,n): return f"v[{b}:{b+n-1}]"
    def tag_finish():
        a("s_waitcnt lgkmcnt(0)\ns_add_u32 s32, s32, 0x7f4a7c10\ns_addc_u32 s33, s33, 0x9e3779b9\ns_or_b32 s32, s32, 15")
    def hint_wait(off, base, tp):
        l=a.lab("HW"); ok=a.lab("HK")
        r=lambda i: f"s[{base+2*i}:{base+2*i+1}]"
        a(f"{l}:\ns_load_dwordx8 s[{base}:{base+7}], s[28:29], {off}\ns_add_u32 {off}, {off}, 64\ns_waitcnt lgkmcnt(0)")
        a("\n".join(f"s_xor_b64 {r(i)}, {r(i)}, {tp}" for i in range(4)))
        a(f"s_or_b64 {r(0)}, {r(0)}, {r(1)}\ns_or_b64 {r(2)}, {r(2)}, {r(3)}\ns_or_b64 {r(0)}, {r(0)}, {r(2)}\ns_cbranch_scc0 {ok}")
        a(f"s_and_b32 s{base}, {off}, 0x3c0\ns_cbranch_scc1 {l}\n{ok}:")
    def ghint(pair, stride, base, test):
        l=a.lab("GW"); ok=a.lab("GK")
        r=lambda i: f"s[{base+2*i}:{base+2*i+1}]"
        a(f"s_movk_i32 s98, 200\n{l}:")
        for k in range(8): a(f"s_load_dword s{base+k}, {pair}, {k*stride} glc")
        a(f"s_sub_u32 s98, s98, 1\ns_cbranch_scc1 {ok}\ns_waitcnt lgkmcnt(0)")
        if test=="sentinel":
            a("\n".join(f"s_max_u32 s{base}, s{base}, s{base+k}" for k in range(1,8))+f"\ns_cmp_eq_u32 s{base}, -1\ns_cbranch_scc1 {l}")
        else:
            a("\n".join(f"s_xor_b64 {r(i)}, {r(i)}, {test}" for i in range(4)))
            a(f"s_or_b64 {r(0)}, {r(0)}, {r(1)}\ns_or_b64 {r(2)}, {r(2)}, {r(3)}\ns_or_b64 {r(0)}, {r(0)}, {r(2)}\ns_cbranch_scc1 {l}")
        a(f"{ok}:\ns_waitcnt lgkmcnt(0)")
    def xreduce(op, v, t):
        a(f"v_mov_b32 {t}, {v}\nv_permlane16_swap_b32 {v}, {t}\n{op} {v}, {v}, {t}")
        a(f"v_mov_b32 {t}, {v}\nv_permlane32_swap_b32 {v}, {t}\n{op} {v}, {v}, {t}")
    DP="row_mask:0xf bank_mask:0xf"
    def rowreduce(op, v, steps=("quad_perm:[1,0,3,2]","quad_perm:[2,3,0,1]","row_half_mirror","row_mirror")):
        for s in steps: a(f"{op}_dpp {v}, {v}, {v} {s} {DP}")

    vW,vK,vF,vO,vC,vT,vA0,vA1,vA2,vP,vTR = "v6","v7","v8","v9","v10","v11","v12","v13","v14","v15","v16"
    CS=P["clrstep"]
    def ids():
        a(f"s_and_b32 {sX}, s2, 7\ns_lshr_b32 {sY}, s2, 3\ns_lshl_b32 {sB}, {sX}, 5\ns_or_b32 {sB}, {sB}, {sY}\ns_lshr_b32 {sG}, {sB}, 3\ns_and_b32 {sJ}, {sY}, 7")
    def ids2():
        if diag:
            for i in range(1,16):
                if i not in (8,9) : a(f"s_mov_b32 s{64+2*i}, 0")
        if P["safe"]: a("s_mov_b32 s99, 2000000")
        a(f"s_and_b32 {sV}, {sG}, 3\ns_lshl2_add_u32 {sV}, {sJ}, {sV}\ns_sub_u32 {sV}, {sV}, 20")
        a(f"v_lshlrev_b32 {vL4}, 2, {vLane}\nv_add_u32 {vL4}, {FLAGS}, {vL4}")
    a("s_load_dwordx16 s[4:19], s[0:1], 0")
    stamp(0)
    a(f"v_readfirstlane_b32 {sW}, v0\ns_load_dwordx2 s[28:29], s[0:1], 104\ns_cmp_ge_u32 s2, 256\ns_cbranch_scc1 L_end")
    if P["pref"]=="v":
        a(f"s_getpc_b64 s[52:53]\nL_pc:\nv_lshlrev_b32 v1, 7, v0\nv_subrev_u32 v1, 8192, v1\nv_cmp_gt_u32 vcc, L_end-L_pc, v1\ns_and_saveexec_b64 s[54:55], vcc\ns_cbranch_execz L_np\nglobal_load_dword v207, v1, s[52:53]\nL_np:\ns_mov_b64 exec, -1")
    ids()
    if P["pref"]=="s":
        a(f"s_lshr_b32 {sW}, {sW}, 6\ns_cbranch_scc0 L_loader\ns_getpc_b64 s[52:53]\nL_pc:\ns_mul_i32 s54, {sY}, 7\ns_add_u32 s54, s54, {sW}\ns_lshl_b32 s54, s54, 7\ns_min_u32 s54, s54, L_end-L_pc-64")
        a("s_load_dword s56, s[52:53], s54\ns_add_u32 s54, s54, 64\ns_load_dword s57, s[52:53], s54\ns_branch L_notloader\nL_loader:")
    else: a(f"s_lshr_b32 {sW}, {sW}, 6\ns_cbranch_scc1 L_notloader")

    a(f"v_lshrrev_b32 {vP}, 3, {vLane}\nv_and_b32 {vT}, 6, {vP}\nv_xor_b32 {vTR}, {vT}, {vLane}\nv_and_b32 {vTR}, 7, {vTR}\nv_lshlrev_b32 {vTR}, 4, {vTR}")
    a(f"v_mul_u32_u24 {vK}, 12288, {vP}\nv_add_u32 {vW}, {vK}, {vTR}\nv_lshlrev_b32 {vA0}, 4, {vLane}")
    a(f"s_mul_i32 s52, {sJ}, {80*12288}\ns_mul_i32 s53, {sG}, 384\ns_add_u32 s52, s52, s53")
    a(f"s_mov_b32 m0, {XB}\ns_mov_b32 s46, {640*12288}\ns_mov_b32 s47, 0x20000\ns_mov_b32 s51, 0x20000\ns_movk_i32 s50, 1280")
    a(f"s_movk_i32 s56, 896\ns_movk_i32 s57, 1280\ns_and_b32 s62, s2, {(~(7*CS))&0xff}")
    a("s_waitcnt lgkmcnt(0)")
    stamp(8)
    a("s_mov_b64 s[48:49], s[4:5]\ns_mov_b64 s[44:45], s[8:9]\ns_cbranch_scc0 L_qa\nL_nqa:")
    a(f"buffer_load_dwordx4 {vA0}, {SB}, 0 offen lds\nbuffer_load_dwordx4 {vA0}, {SB}, 0 offen offset:1024 lds\ns_mov_b32 m0, {R2}")
    stamp(9)
    def pub(iss='s61'):
        a(f"s_getreg_b32 s63, hwreg(HW_REG_IB_STS)\ns_bfe_u32 s62, s63, 0x20016\ns_and_b32 s63, s63, 15\ns_lshl4_add_u32 s63, s62, s63\ns_sub_u32 s63, {iss}, s63\nv_mov_b32 v23, s63\nds_max_u32 {vL4}, v23 offset:{F['CNT']}")
    def cpub(k):
        if P.get("exact"): pub()
        else: a(f"s_sub_u32 s63, s61, {k}\nv_mov_b32 v23, s63\nds_max_u32 {vL4}, v23 offset:{F['CNT']}")
    def wait_pub(name, thr):
        l=a.lab("WP")
        spin(l); pub()
        a(f"ds_read_b32 {vTmp}, {vL4} offset:{F[name]}\ns_waitcnt lgkmcnt(0)\nv_cmp_gt_u32 vcc, {thr}, {vTmp}\ns_cbranch_vccnz {l}")
    def seg384(srdq, vaddr, soff, step, m0end, thr, xor=False, d1="s56", d2="s57"):
        l=a.lab("SG")
        a(f"{l}:")
        v=vaddr
        if xor:
            a(f"v_xor_b32 {vT}, s55, {vaddr}\ns_add_u32 s55, s55, 32\ns_and_b32 s55, s55, 0x60"); v=vT
        if thr:
            a(f"s_waitcnt vmcnt({thr-3})"); cpub(thr-3)
        a(f"buffer_load_dwordx4 {v}, {srdq}, {soff} offen {NT} lds\ns_add_u32 m0, m0, {d1}")
        if thr: a(f"s_add_u32 s61, s61, 3")
        a(f"buffer_load_dwordx4 {v}, {srdq}, {soff} offen offset:128 {NT} lds\ns_add_u32 m0, m0, {d1}")
        a(f"buffer_load_dwordx4 {v}, {srdq}, {soff} offen offset:256 {NT} lds\ns_add_u32 m0, m0, {d2}")
        a(f"s_add_u32 {soff}, {soff}, {step}\ns_cmp_lg_u32 m0, {m0end}\ns_cbranch_scc1 {l}")
    if P.get("unrollq",True):
        a("s_mov_b32 s55, 98304")
        for r_ in range(10):
            a(f"buffer_load_dwordx4 {vW}, {SA}, s52 offen {NT} lds\ns_add_u32 m0, m0, s56\ns_nop 0\nbuffer_load_dwordx4 {vW}, {SA}, s52 offen offset:128 {NT} lds\ns_add_u32 m0, m0, s56\ns_nop 0\nbuffer_load_dwordx4 {vW}, {SA}, s52 offen offset:256 {NT} lds")
            if r_<9: a("s_add_u32 m0, m0, s57\ns_add_u32 s52, s52, s55")
    else: seg384(SA, vW, "s52", 98304, R2+30720, None)
    a("s_branch L_ld2")
    a(f"L_qa:\ns_mov_b32 s30, {WSSIZE}\ns_mov_b32 s31, 0x20000")
    if P["wsb"]: a(f"s_add_u32 s28, s28, {P['wsb']}\ns_addc_u32 s29, s29, 0")
    a(f"s_load_dwordx2 s[32:33], s[28:29], {EPOCH}\nv_mov_b64 v[24:25], -1\nv_mov_b64 v[26:27], -1")
    a(f"s_mul_i32 s54, s2, {6144//CS}\ns_add_u32 s54, s54, {QA}\ns_add_u32 s55, s54, 4096")
    for k in range(6): a(f"buffer_store_dwordx4 v[24:27], {vA0}, {WS}, s{54+(k>>2)} offen offset:{1024*(k&3)} sc1")
    a("s_branch L_nqa")
    a("L_notloader:")
    a(f"s_load_dwordx8 s[20:27], s[0:1], 64\ns_xor_b32 {sW}, {sW}, 4\nv_and_b32 v0, 63, v0")
    if diag: a("s_mov_b32 s80, 0\ns_mov_b32 s82, 0")
    ids2()
    a("s_branch L_others")
    a(f"L_ld2:\ns_setprio 3\ns_load_dwordx8 s[20:27], s[0:1], 64\ns_mov_b32 {sW}, 4")
    ids2()
    stamp(1)
    a("s_waitcnt lgkmcnt(0)")
    a(f"v_bfe_u32 {vT}, {vLane}, 4, 1\nv_xor_b32 {vT}, {vT}, {vLane}\nv_and_b32 {vT}, 7, {vT}\nv_lshl_add_u32 {vK}, {vT}, 4, {vK}")
    a(f"s_mul_i32 s52, {sJ}, {96*12288}\ns_add_u32 s52, s52, s53\ns_mov_b32 s54, s52\ns_mov_b32 s55, 0")
    a(f"s_mov_b32 s44, s10\ns_mov_b32 s45, s11\ns_mov_b32 s46, {768*12288}\ns_mov_b32 m0, {R3}")
    a(f"s_movk_i32 s61, {CB+30}")
    a("s_waitcnt vmcnt(30)\ns_barrier")
    a(f"s_cmp_eq_u32 s62, 0\ns_cbranch_scc0 L_nfl")
    tag_finish()
    a(f"s_mov_b32 s30, {WSSIZE}\ns_mov_b32 s31, 0x20000\nv_mov_b32 v24, s32\nv_mov_b32 v25, s33\ns_mul_i32 s63, s2, {128//CS}\ns_add_u32 s63, s63, {FLG}\ns_mov_b64 exec, 15")
    a(f"buffer_store_dwordx4 v[24:27], {vA0}, {WS}, s63 offen sc1\ns_mov_b64 exec, -1\nL_nfl:")
    a(f"v_lshrrev_b32 {vT}, 5, {vLane}\nv_lshlrev_b32 {vT}, 4, {vT}\nv_xor_b32 {vA1}, {vA0}, {vT}\nv_xor_b32 {vA2}, 16, {vA0}")
    for t in range(3):
        a(f"v_add_u32 v17, {64*t}, {vLane}\nv_mul_u32_u24 v18, 0x5556, v17\nv_lshrrev_b32 v18, 18, v18\nv_mul_u32_u24 v19, 12, v18\nv_sub_u32 v17, v17, v19")
        a(f"v_lshrrev_b32 v19, 1, v18\nv_and_b32 v18, 1, v18\nv_lshl_add_u32 v18, v19, 5, v18\nv_and_b32 v19, 2, v19\nv_xor_b32 v17, v17, v19\nv_mul_u32_u24 v18, 1536, v18\nv_lshl_add_u32 v{20+t}, v17, 4, v18")
        if t: a(f"v_subrev_u32 v{20+t}, {1024*t}, v{20+t}")
    a(f"v_mul_u32_u24 {vO}, 1280, {vP}\nv_add_u32 {vO}, {vO}, {vTR}\nv_mul_u32_u24 {vF}, 3072, {vP}\nv_add_u32 {vF}, {vF}, {vTR}")
    a(f"s_mov_b32 s48, s6\ns_mov_b32 s49, s7\ns_mov_b32 s50, {8192*1536}")
    a(f"s_mul_i32 s58, {sG}, {256*1536}\ns_mul_i32 s53, {sJ}, 192\ns_add_u32 s58, s58, s53\ns_mov_b32 s59, {R1}\ns_mov_b32 s60, {R2}")
    seg384(SA, vK, "s52", 98304, R3+36864, T, xor=True)
    stamp(2)
    TA=P["TA"]; NA=P["ntA"]; NB=P["ntB"]
    def drain(tgt):
        l=a.lab("DR")
        spin(l); pub(); a(f"s_sub_u32 s63, s61, s63\ns_cmp_gt_u32 s63, {tgt}\ns_cbranch_scc1 {l}")
    a(f"s_mul_i32 s52, {sB}, 49152")
    if T>P.get("holdA",18): drain(P.get("holdA",18))
    wait_pub(*(("GISS",1) if P["holdG"] else ("PUBA",3)))
    l=a.lab("SA")
    a(f"{l}:\nv_xor_b32 v17, s55, {vA0}\nv_xor_b32 v18, s55, {vA1}\nv_xor_b32 v19, s55, {vA2}\ns_mov_b32 m0, s59")
    a(f"s_waitcnt vmcnt({TA-6})")
    if P["holdG"]: pub()
    else: cpub(TA-6)
    a(f"buffer_load_dwordx4 v17, {SB}, s52 offen {NA} lds\nbuffer_load_dwordx4 v18, {SB}, s52 offen offset:1024 {NA} lds\nbuffer_load_dwordx4 v19, {SB}, s52 offen offset:2048 {NA} lds")
    a(f"s_mov_b32 m0, s60\ns_add_u32 s61, s61, 6")
    for t in range(3): a(f"buffer_load_dwordx4 v{20+t}, {SB}, s58 offen offset:{1024*t} {NB} lds")
    a(f"s_add_u32 s55, s55, 32\ns_and_b32 s55, s55, 0xe0\ns_add_u32 s52, s52, 3072\ns_add_u32 s58, s58, 3072\ns_add_u32 s60, s60, 3200\ns_add_u32 s59, s59, 3072")
    a(f"s_cmp_lg_u32 s59, {R1+49152}\ns_cbranch_scc1 {l}")
    stamp(3)
    a(f"s_mov_b32 s44, s12\ns_mov_b32 s45, s13\ns_mov_b32 m0, {R3}")
    FF=True
    def check(sc):
        at=[x[0] for x in sc]
        assert at[0]==0 and at==sorted(set(at)) and all(x%3==0 for x in at) and all(3<x[2]<=60 and x[2]%3==0 for x in sc)
        return sc
    sched=check(P["sched"]); fsched=check(P.get("fsched") or P["sched"])
    if sched[0][1]!=("QISS",4):
        drain(sched[0][2]-3); wait_pub("RDUK",3)
    stamp(4)
    def late(sc, done, n, emit):
        tl=[x[2] for x in sc if x[0]<=done][-1]
        for at,fl,t_ in sc:
            if done<at<done+n: emit(at-done, tl)
            if done<=at<done+n:
                if fl: wait_pub(*fl)
                tl=t_
        emit(n, tl)
    def seg_wo(k, TL):
        assert k%6==0
        l=a.lab("SO")
        a(f"{l}:")
        for i in range(6):
            if i%3==0: a(f"s_waitcnt vmcnt({TL-3})"); cpub(TL-3)
            if i%2==0:
                a(f"buffer_load_dwordx4 {vO}, {SB}, s52 offen {NT} lds\ns_add_u32 m0, m0, s56")
            else:
                a(f"buffer_load_dwordx4 {vO}, {SB}, s52 offen offset:128 {NT} lds\ns_add_u32 m0, m0, 1152\ns_add_u32 s52, s52, 10240")
            if i%3==0: a(f"s_add_u32 s61, s61, 3")
        a(f"s_cmp_lg_u32 m0, {R1+1024*k}\ns_cbranch_scc1 {l}")
    def seg_w2(k, TL):
        l=a.lab("S2")
        a(f"{l}:\ns_waitcnt vmcnt({TL-3})"); cpub(TL-3)
        for i in range(3):
            a(f"buffer_load_dwordx4 {vO}, {SB}, s52 offen {NT} lds\ns_add_u32 m0, m0, 2048\ns_add_u32 s52, s52, 10240")
        a(f"s_add_u32 s61, s61, 3\ns_cmp_lg_u32 m0, {R2+2048*k}\ns_cbranch_scc1 {l}")
    a(f"s_cmp_lt_u32 {sV}, 10\ns_cbranch_scc0 L_noff")
    a(f"s_mul_i32 s52, {sV}, {64*3072}\ns_mul_i32 s53, {sX}, 384\ns_add_u32 s52, s52, s53")
    a(f"s_mov_b32 s48, s18\ns_mov_b32 s49, s19\ns_mov_b32 s50, {640*3072}")
    late(fsched, 0, 24, lambda k,t_: seg384(SB, vF, "s52", 24576, R3+1024*k, t_))
    a(f"s_mul_i32 s52, {sX}, 245760\ns_lshl_b32 s53, {sV}, 7\ns_add_u32 s52, s52, s53")
    a(f"s_mov_b32 s48, s22\ns_mov_b32 s49, s23\ns_mov_b32 s50, {1536*1280}\ns_mov_b32 m0, {R1}")
    wait_pub("RDA",4)
    late(fsched, 24, 36, lambda k,t_: seg384(SA, vW, "s54", 98304, R1+1024*k, t_))
    a(f"s_mov_b32 m0, {R2}")
    wait_pub("RDB",4)
    late(fsched, 60, 24, seg_w2)
    a("s_branch L_drain\nL_noff:")
    a(f"s_mul_i32 s52, {sG}, 245760\ns_lshl_b32 s53, {sJ}, 8\ns_add_u32 s52, s52, s53")
    a(f"s_mov_b32 s48, s14\ns_mov_b32 s49, s15\ns_mov_b32 s50, {6144*1280}")
    late(sched, 0, 36, lambda k,t_: seg384(SA, vW, "s54", 98304, R3+1024*k, t_))
    stamp(5)
    a(f"s_mov_b32 m0, {R1}\ns_cmp_lt_u32 {sJ}, 5\ns_cbranch_scc0 L_drain")
    wait_pub("RDA",4)
    late(sched, 36, 48, seg_wo)
    a("L_drain:")
    stamp(6)
    drain(6)
    a(f"v_mov_b32 {vC}, s61\ns_waitcnt vmcnt(0)\nds_write_b32 {vL4}, {vC} offset:{F['CNT']}")
    stamp(7)
    a("s_branch L_fin")

    a("L_others:")
    a(f"v_and_b32 {vN}, 15, {vLane}\nv_lshrrev_b32 {vGl}, 4, {vLane}\nv_mov_b32 {vOne}, 1\ns_mov_b32 {sBud}, {P['budget']}")
    a(f"s_mov_b32 s30, {WSSIZE}\ns_mov_b32 s31, 0x20000\ns_waitcnt lgkmcnt(0)")
    if P["wsb"]: a(f"s_add_u32 s28, s28, {P['wsb']}\ns_addc_u32 s29, s29, 0")
    a(f"s_load_dwordx2 s[32:33], s[28:29], {EPOCH}")
    a(f"s_cmp_eq_u32 {sW}, 5\ns_cbranch_scc1 L_w5\ns_cmp_eq_u32 {sW}, 6\ns_cbranch_scc1 L_w6\ns_cmp_eq_u32 {sW}, 7\ns_cbranch_scc1 L_w7")

    def trcore(dst, t):
        a(f"v_bfe_u32 {t}, {vLane}, 2, 3\nv_lshlrev_b32 {dst}, 7, {t}\nv_lshrrev_b32 {t}, 1, {t}\nv_lshl_add_u32 {dst}, {t}, 5, {dst}\nv_and_b32 {t}, 3, {vLane}\nv_lshl_add_u32 {dst}, {t}, 3, {dst}")
    MASKT=[f"s[{56+2*t}:{57+2*t}]" for t in range(4)]
    def masks():
        for t in range(4): a(f"s_mov_b32 s{56+2*t}, {0x00010001<<t}\ns_mov_b32 s{57+2*t}, {0x00010001<<t}")
    def mstore(txt):
        wt="\n".join(x+" sc1" if x.startswith("buffer_store") else x for x in txt.split("\n"))
        if not P["local"]:
            a(wt); return
        r=a.lab("RM"); bk=a.lab("BK")
        a(f"s_cbranch_scc0 {r}\n{txt}\n{bk}:")
        far.append(f"{r}:\ns_nop 7\n{wt}\ns_nop 1\ns_branch {bk}")
    def publish4(acc, vS, vAddr, soff, imm=0, mode=False):
        for t in range(4):
            a(f"s_mov_b64 exec, {MASKT[t]}\nv_cvt_pk_bf16_f32 v{vS}, v{acc+4*t}, v{acc+4*t+1}\nv_cvt_pk_bf16_f32 v{vS+1}, v{acc+4*t+2}, v{acc+4*t+3}")
        a(f"s_mov_b32 exec_lo, 0x000f000f\ns_mov_b32 exec_hi, 0x000f000f")
        txt=f"buffer_store_dwordx4 {vr(vS,4)}, {vAddr}, {WS}, {soff} offen offset:{imm}"
        if mode=="plain": a(txt)
        elif mode: mstore(txt)
        else: a(txt+" sc1")
        a("s_mov_b64 exec, -1")

    FR=64; QR=16; AC=160; vS=176
    vT1=[f"v{180+t}" for t in range(4)]; vVec="v184"; vPub="v185"; vU=["v186","v187"]; vA=[f"v{188+t}" for t in range(4)]
    vLin="v192"; vB=["v193","v194","v199"]; vPl="v195"; vMl="v196"; vBp="v197"; vC4="v198"; vT6=["v200","v201"]; vCore="v202"; vSt="v203"; vXa="v204"; vM0="v205"; vQa="v208"
    sHH="s52"; sKH="s53"
    a(f"s_cmp_eq_u32 {sW}, 0\ns_cbranch_scc0 L_nz")
    a(f"v_lshlrev_b32 v6, 4, {vLane}\nv_add_u32 v6, {FLAGS}, v6\nv_mov_b32 v8, 0\nv_mov_b32 v9, 0\nv_mov_b32 v10, 0\nv_mov_b32 v11, 0")
    for i in range(len(FN)//4): a(f"ds_write_b128 v6, v[8:11] offset:{1024*i}")
    a("L_nz:")
    a(f"s_and_b32 {sHH}, {sW}, 1\ns_lshr_b32 {sKH}, {sW}, 1")
    masks()
    trcore(vCore, vTmp)
    a(f"v_lshrrev_b32 v6, 5, {vLane}")
    a(f"s_lshl_b32 s54, {sW}, 10\ns_add_u32 s54, s54, {R2}\nv_mul_u32_u24 v7, 3072, v6\nv_add3_u32 {vT1[0]}, {vCore}, v7, s54")
    for t in range(1,4): a(f"v_xor_b32 {vT1[t]}, {32*t}, {vT1[0]}")
    a(f"s_lshl_b32 s54, {sKH}, 10\ns_lshl_b32 s55, {sHH}, 6\nv_lshlrev_b32 v7, 11, v6\nv_add3_u32 {vT6[0]}, {vCore}, v7, s54\nv_xor_b32 {vT6[0]}, s55, {vT6[0]}\nv_xor_b32 {vT6[1]}, 32, {vT6[0]}")
    a(f"v_lshlrev_b32 {vVec}, 4, {vGl}\nv_add_u32 {vVec}, {VEC1A}, {vVec}")
    a(f"v_lshlrev_b32 {vPub}, 6, {vGl}\nv_lshl_add_u32 {vPub}, {vN}, 4, {vPub}")
    a(f"v_lshlrev_b32 {vLin}, 4, {vLane}")
    a(f"v_lshrrev_b32 v7, 1, {vN}\nv_lshlrev_b32 {vQa}, 6, v7\nv_and_b32 v7, 1, {vN}\nv_lshl_add_u32 {vQa}, v7, 4, {vQa}\nv_and_b32 v7, 1, {vGl}\nv_lshl_add_u32 {vQa}, v7, 5, {vQa}\nv_lshl_add_u32 {vQa}, v6, 10, {vQa}")
    a(f"s_mul_i32 s54, {sW}, 12288\ns_add_u32 s54, s54, {R3}\nv_lshrrev_b32 v7, 2, {vN}\nv_mul_u32_u24 v7, 3072, v7\nv_and_b32 v8, 3, {vN}\nv_lshl_add_u32 v7, v8, 7, v7")
    a(f"v_lshrrev_b32 v8, 1, {vN}\nv_xor_b32 v8, v8, {vGl}\nv_lshlrev_b32 v8, 4, v8\nv_add3_u32 {vU[0]}, v7, v8, s54\nv_xor_b32 {vU[1]}, 64, {vU[0]}")
    a(f"s_mul_i32 s54, {sKH}, 768\nv_mul_u32_u24 v7, 1536, {vN}\nv_lshlrev_b32 v8, 1, {vGl}\nv_xor_b32 v8, {vN}, v8\nv_lshlrev_b32 v8, 4, v8\nv_add3_u32 {vA[0]}, v7, v8, s54")
    for t in range(1,4): a(f"v_xor_b32 {vA[t]}, {128*(t>>1)+16*(t&1)}, {vA[0]}")
    a(f"v_bfe_u32 v7, {vN}, 3, 1\nv_mul_u32_u24 v7, 3200, v7\nv_bfe_u32 v8, {vN}, 2, 1\nv_mul_u32_u24 v8, 192, v8\nv_mul_u32_u24 v9, 768, {vGl}\nv_add3_u32 v7, v7, v8, v9")
    a(f"v_and_b32 v8, 3, {vN}\nv_lshl_add_u32 v7, v8, 3, v7\nv_add_u32 v7, {R2}, v7\nv_and_b32 v9, 1, {vGl}\nv_lshlrev_b32 v9, 5, v9")
    a(f"s_lshl_b32 s54, {sKH}, 6\nv_add3_u32 {vB[0]}, v7, v9, s54\nv_xor_b32 v10, 32, v9\nv_add3_u32 {vB[1]}, v7, v10, s54")
    a(f"s_lshl_b32 s54, {sKH}, 5\nv_xor_b32 v10, s54, v9\nv_add_u32 v10, 128, v10\nv_add_u32 {vB[2]}, v7, v10")
    a(f"v_mul_u32_u24 v7, {2*RS}, {vGl}\nv_lshl_add_u32 {vPl}, {vN}, 4, v7\nv_lshlrev_b32 {vM0}, 2, {vN}\nv_add_u32 {vMl}, {vM0}, v7")
    a(f"v_lshrrev_b32 v7, 2, {vLane}\nv_lshl_add_u32 {vBp}, v8, 4, v7\nv_lshlrev_b32 {vBp}, 2, {vBp}")
    a(f"v_mul_u32_u24 v7, {8*RS}, v7\nv_lshl_add_u32 {vC4}, v8, 4, v7")
    a(f"s_lshl_b32 s54, {sHH}, 11\ns_add_u32 s54, s54, {XB}\nv_add_u32 {vXa}, s54, {vLin}")
    oQ,oQA,oQL,oP,oM,oPL,oML,oCL,oE,oUV,tUV,oF,t6 = "s4","s5",("s6","s7","s8"),"s9","s10",("s11","s12"),("s13","s14"),"s15","s16","s17","s18","s54","s19"
    a(f"s_mul_i32 s20, {sB}, {RS}\ns_add_u32 s20, s20, {REC}\ns_lshl_b32 s55, {sW}, 8\ns_add_u32 s21, s20, s55\ns_add_u32 {oQ}, s21, {RQ}\ns_add_u32 {oE}, s21, {RE}")
    a(f"s_lshl_b32 s22, {sHH}, 10\ns_add_u32 s22, s22, {RP}\ns_lshl_b32 s23, {sHH}, 7\ns_add_u32 s23, s23, {RM}\ns_add_u32 {oP}, s20, s22\ns_add_u32 {oM}, s20, s23")
    a(f"s_mul_i32 s20, {sG}, {8*RS}\ns_add_u32 s20, s20, {REC}\ns_add_u32 {oPL[0]}, s20, s22\ns_add_u32 {oPL[1]}, {oPL[0]}, {RS}\ns_add_u32 {oML[0]}, s20, s23\ns_add_u32 {oML[1]}, {oML[0]}, {RS}")
    a(f"s_lshr_b32 s20, {sG}, 4\ns_mul_i32 s20, s20, 24\ns_mul_i32 s55, {sJ}, 3\ns_add_u32 s55, s55, {sW}\ns_add_u32 s20, s20, s55\ns_lshl_b32 s20, s20, 10")
    a(f"s_bfe_u32 s55, {sG}, 0x30001\ns_and_b32 s21, {sG}, 1\ns_lshl3_add_u32 s55, s21, s55\ns_lshl_b32 s55, s55, 6\ns_add_u32 s20, s20, s55\ns_add_u32 {oQA}, s20, {QA}")
    a(f"s_lshl1_add_u32 s20, {sHH}, {sKH}\ns_mul_i32 s20, s20, 12288\ns_add_u32 {oQL[0]}, s20, {QA}\ns_add_u32 {oQL[1]}, {oQL[0]}, 4096\ns_add_u32 {oQL[2]}, {oQL[0]}, 8192")
    a(f"s_lshl_b32 s20, {sHH}, 7\ns_add_u32 s20, s20, {sJ}\ns_mul_i32 s20, s20, {RS}\ns_lshl_b32 s55, {sKH}, 7\ns_add_u32 s20, s20, s55\ns_add_u32 s20, s20, {REC}")
    a(f"s_and_b32 s55, {sG}, 24\ns_bfe_u32 s21, {sG}, 0x20001\ns_or_b32 s55, s55, s21\ns_and_b32 s21, {sG}, 1\ns_lshl2_add_u32 s55, s21, s55\ns_lshl_b32 s55, s55, 8\ns_add_u32 {oCL}, s20, s55")
    a(f"s_mul_i32 {oF}, {sG}, 2560\ns_lshl_b32 s55, {sJ}, 9\ns_add_u32 {oF}, {oF}, s55\ns_lshl_b32 s55, {sW}, 7\ns_add_u32 {oF}, {oF}, s55\ns_add_u32 {oF}, {oF}, {OP}\ns_movk_i32 {t6}, {222+CB}")
    a(f"s_mov_b32 s48, 0x00800080\ns_mov_b32 s49, 0x437f0000\ns_lshl_b32 s55, {sHH}, 8\nv_add_u32 v6, s55, {vL4}")
    a(f"s_lshl_b32 s55, {sHH}, 9\ns_add_u32 s55, s55, {MLB}\nv_lshl_add_u32 {vSt}, {vLane}, 3, s55")
    tag_finish()
    CT=212
    a(f"s_getreg_b32 s55, hwreg(HW_REG_XCC_ID, 0, 4)\ns_xor_b32 s55, s55, s32\nv_mov_b32 v{vS+2}, s55\nv_mov_b32 v{vS+3}, s33")
    a(f"s_and_b32 s55, s32, 0xbfffbfff\nv_mov_b32 v{CT+3}, s55\nv_mov_b32 v{CT+7}, s55")
    oH,oHW="s17","s18"
    a(f"s_lshl_b32 {oH}, {sG}, 11\ns_lshl_b32 s55, {sHH}, 5\ns_add_u32 {oH}, {oH}, s55\ns_add_u32 {oH}, {oH}, {HT+1024}\ns_lshl2_add_u32 {oHW}, {sJ}, {oH}\nv_lshlrev_b32 v209, 6, {vLane}\ns_mov_b32 s44, s32\ns_mov_b32 s45, s32")
    a("s_barrier")
    a(f"s_cmp_eq_u32 {sW}, 3\ns_cbranch_scc1 L_s3")
    wait_flag("V1A",1)
    for s in range(2): a(f"ds_read_b128 {vr(QR+4*s,4)}, {vVec} offset:{64*s}")
    a(f"ds_read_b64 {vr(QR+8,2)}, {vVec} offset:128\nv_mov_b64 {vr(QR+10,2)}, 0")
    for t in range(4): a(f"v_mov_b64 {vr(FR+12*t+10,2)}, 0")
    wait_flag("CNT",30)
    stamp(1)
    for t in range(4):
        for h in range(5): a(f"ds_read_b64_tr_b16 {vr(FR+12*t+2*h,2)}, {vT1[t]} offset:{2*h*3072}")
    for t in range(4):
        a(f"s_waitcnt lgkmcnt({15-5*t})")
        for s in range(3): a(f"v_mfma_f32_16x16x32_bf16 {vr(AC+4*t,4)}, {vr(FR+12*t+4*s,4)}, {vr(QR+4*s,4)}, {vr(AC+4*t,4) if s else 0}")
    publish4(AC, vS, vPub, oQ, mode=False if P["gA"] else "plain")
    if P["ackA"]: a("s_waitcnt vmcnt(0)")
    sig("PUBA")
    stamp(2)
    a(f"s_mov_b32 s46, {R3-R2}\ns_movk_i32 s47, {198+CB}")
    if FF: a(f"s_cmp_lt_u32 {sV}, 10\ns_cselect_b32 s46, {R1-R2}, s46\ns_cselect_b32 s47, {222+CB}, s47")
    for t in range(4): a(f"v_add_u32 {vT1[t]}, s46, {vT1[t]}")
    a(f"v_mov_b32 v{vS+2}, s32")
    wait_flag("CLR",1)
    wait_flag("CNT",66)
    for s in range(6):
        for t in range(2): a(f"ds_read_b128 {vr(FR+8*s+4*t,4)}, {vU[s&1]} offset:{1024*(s>>1)+512*t}")
    sig("RDUK")
    def vec2_mfma(flag, thr, vec, wfirst, fr):
        l=a.lab("V2")
        spin(l); a(f"ds_read_b32 {vTmp}, {vL4} offset:{F[flag]}")
        for s in range(6): a(f"ds_read_b128 {vr(QR+4*s,4)}, {vVec} offset:{vec-VEC1A+64*s}")
        a(f"s_waitcnt lgkmcnt(6)\nv_cmp_gt_u32 vcc, {thr}, {vTmp}\ns_cbranch_vccnz {l}")
        for s in range(6):
            a(f"s_waitcnt lgkmcnt({5-s})")
            for t in range(2):
                w_,q_=vr(fr+8*s+4*t,4),vr(QR+4*s,4)
                A_,B_=(w_,q_) if wfirst else (q_,w_)
                a(f"v_mfma_f32_16x16x32_bf16 {vr(AC+4*t,4)}, {A_}, {B_}, {vr(AC+4*t,4) if s else 0}")
    vec2_mfma("V2A",1,VEC2A,True,FR)
    a(f"v_readfirstlane_b32 s50, {vTmp}\ns_lshr_b32 s50, s50, 1")
    stamp(3)
    for k in range(4): a(f"v_cvt_pk_bf16_f32 v{AC+8+k}, v{AC+2*k}, v{AC+2*k+1}\nds_bpermute_b32 v{AC+12+k}, {vBp}, v{AC+8+k}")
    a(f"s_mov_b64 exec, 15\ns_waitcnt lgkmcnt(0)\nbuffer_store_dwordx4 {vr(AC+12,4)}, {vLin}, {WS}, {oQA} offen sc1\ns_mov_b64 exec, -1\ns_waitcnt vmcnt(0)")
    sig("PUBB")
    a("L_s3:")
    def areads(kt):
        for s in range(12): a(f"ds_read_b128 {vr(FR+48*kt+4*s,4)}, {vA[s&3]} offset:{24576*kt+256*(s>>2)}")
    def qloads():
        if P.get("skipq"): return
        for s in range(12): a(f"buffer_load_dwordx4 {vr(QR+4*s,4)}, {vQa}, {WS}, {oQL[s>>2]} offen offset:{2048*((s>>1)&1)+512*(s&1)} sc1")
    wait_flag("CNT",114)
    areads(0)
    wait_flag("PUBB",3)
    if P["thrQ"]>114: wait_flag("CNT",P["thrQ"])
    stamp(4); qloads(); sig("QISS")
    if P["thrQ"]<162: wait_flag("CNT",162)
    areads(1)
    sig("RDA")
    a("s_waitcnt lgkmcnt(0)\ns_branch L_s3m")
    l,ok=loop_head("S3")
    qloads()
    a("L_s3m:")
    BQ=lambda f: FR+4*f
    def breads():
        for f in range(24):
            s4,ct=divmod(f,3)
            for e2 in range(2): a(f"ds_read_b64_tr_b16 {vr(BQ(f)+2*e2,2)}, {vB[ct]} offset:{3200*(8*e2+2*(s4&3))+384*(s4>>2)}")
        sig("RDB")
    TQ=[8,12]
    def fix(sg):
        L0=QR+8*sg; L1=L0+4
        o=[f"s_waitcnt vmcnt({10-2*sg})"]
        o+=[f"v_cndmask_b32_dpp v{TQ[sg&1]+k}, v{L1+k}, v{L0+k}, vcc quad_perm:[0,0,2,2] {DP}" for k in range(4)]
        o+=["s_not_b64 vcc, vcc"]
        o+=[f"v_cndmask_b32_dpp v{L1+k}, v{L0+k}, v{L1+k}, vcc quad_perm:[1,1,3,3] {DP}" for k in range(4)]
        o+=["s_not_b64 vcc, vcc"]
        return o
    a("s_mov_b32 vcc_lo, 0x55555555\ns_mov_b32 vcc_hi, 0x55555555")
    a("\n".join(fix(0)))
    for sg in range(6):
        nx=fix(sg+1) if sg<5 else []
        cut=[3,6,8,11]; st_=0
        for i in range(4):
            pi,kt=i>>1,i&1
            qreg=TQ[sg&1] if pi==0 else QR+8*sg+4
            a(f"v_mfma_f32_16x16x32_bf16 {vr(AC+4*kt,4)}, {vr(FR+48*kt+4*(2*sg+pi),4)}, {vr(qreg,4)}, {vr(AC+4*kt,4) if 2*sg+pi else 0}")
            if nx: a("\n".join(nx[st_:cut[i]])); st_=cut[i]
    a(f"s_cmp_eq_u32 {sKH}, 0\nv_cmp_u_f32 vcc, v{AC}, v{AC+4}\ns_cbranch_vccnz {l}\n{ok}:")
    stamp(6)
    far[-1]=far[-1].replace("s_nop 7",f"s_cmp_eq_u32 {sKH}, 0\ns_nop 7")
    a(f"s_cbranch_scc1 L_nox")
    a(f"ds_write_b128 {vXa}, {vr(AC,4)}\nds_write_b128 {vXa}, {vr(AC+4,4)} offset:1024\nds_add_u32 v6, {vOne} offset:{F['X0']}")
    a("L_nox:")
    breads()
    a("s_cbranch_scc0 L_s4\nL_soft:")
    l=a.lab("XW")
    spin(l); a(f"ds_read_b32 {vTmp}, v6 offset:{F['X0']}\nds_read_b128 {vr(AC+8,4)}, {vXa}\nds_read_b128 {vr(AC+12,4)}, {vXa} offset:1024")
    a(f"s_waitcnt lgkmcnt(0)\nv_cmp_gt_u32 vcc, 1, {vTmp}\ns_cbranch_vccnz {l}")
    for k in range(4): a(f"v_pk_add_f32 {vr(AC+2*k,2)}, {vr(AC+2*k,2)}, {vr(AC+8+2*k,2)}")
    a(f"v_max3_f32 v8, v{AC}, v{AC+1}, v{AC+2}\nv_max3_f32 v9, v{AC+3}, v{AC+4}, v{AC+5}\nv_max3_f32 v8, v8, v{AC+6}, v{AC+7}\nv_max_f32 v8, v8, v9")
    xreduce("v_max_f32","v8","v9")
    a("v_ceil_f32 v8, v8\ns_cmp_eq_u32 s50, 0")
    for k in range(4): a(f"v_pk_add_f32 {vr(AC+2*k,2)}, {vr(AC+2*k,2)}, v[8:9] op_sel_hi:[1,0] neg_lo:[0,1] neg_hi:[0,1]")
    for k in range(8): a(f"v_exp_f32 v{AC+k}, v{AC+k}")
    for k in range(4): a(f"v_cvt_pk_bf16_f32 v{AC+8+k}, v{AC+2*k}, v{AC+2*k+1}")
    (lambda t: a(t.replace("offen","offen sc1")) if P["gC"] else mstore(t))(f"buffer_store_dwordx4 {vr(AC+8,4)}, {vLin}, {WS}, {oP} offen\ns_mov_b64 exec, 0xffff\nbuffer_store_dword v8, {vM0}, {WS}, {oM} offen")
    if P["hintC"] and not P["ackC"] and not P.get("verC"): a(f"buffer_store_dword v{vS+2}, v209, {WS}, {oHW} offen")
    a("s_mov_b64 exec, -1")
    a(f"v_pk_add_f32 {vr(AC,2)}, {vr(AC,2)}, {vr(AC+2,2)}\nv_pk_add_f32 {vr(AC+4,2)}, {vr(AC+4,2)}, {vr(AC+6,2)}\nv_pk_add_f32 {vr(AC,2)}, {vr(AC,2)}, {vr(AC+4,2)}\nv_add_f32 v9, v{AC}, v{AC+1}")
    a(f"ds_write_b64 {vSt}, v[8:9]")
    sig("PUBC")
    if P["hintC"] and P.get("verC"):
        vk=a.lab("VK")
        for tr_ in range(2):
            a(f"s_add_u32 s96, s28, {oP}\ns_addc_u32 s97, s29, 0" if tr_==0 else "")
            for k in range(8): a(f"s_load_dword s{20+k}, s[96:97], {128*k+64*(1-tr_)}")
            a("s_waitcnt lgkmcnt(0)\ns_or_b64 s[20:21], s[20:21], s[22:23]\ns_or_b64 s[24:25], s[24:25], s[26:27]\ns_or_b64 s[20:21], s[20:21], s[24:25]\ns_or_b32 s20, s20, s21\ns_bitcmp0_b32 s20, 31")
            a(f"s_cbranch_scc1 {vk}")
        a(f"s_waitcnt vmcnt(0)\n{vk}:\ns_mov_b64 exec, 0xffff\nbuffer_store_dword v{vS+2}, v209, {WS}, {oHW} offen\ns_mov_b64 exec, -1")
    elif P["hintC"] and P["ackC"]: a(f"s_mov_b64 exec, 0xffff\ns_waitcnt vmcnt(0)\nbuffer_store_dword v{vS+2}, v209, {WS}, {oHW} offen\ns_mov_b64 exec, -1")
    a("L_s4:")
    stamp(7)
    wait_flag("PUBC",2)
    stamp(8)
    a("v_mov_b32 v13, 1")
    if P["gC"]:
        hw=a.lab("HW")
        a(f"s_cmp_eq_u32 {sKH}, 0\ns_cbranch_scc1 {hw}\ns_add_u32 s96, s28, {oML[0]}\ns_addc_u32 s97, s29, 0")
        ghint("s[96:97]", RS, 20, "sentinel")
        a(f"ds_add_u32 v6, {vOne} offset:{F['H0']}\ns_branch L_s4h")
        spin(hw); a(f"ds_read_b32 {vTmp}, v6 offset:{F['H0']}\ns_waitcnt lgkmcnt(0)\nv_cmp_gt_u32 vcc, 1, {vTmp}\ns_cbranch_vccnz {hw}")
        a(f"L_s4h:\nbuffer_load_dword v8, {vMl}, {WS}, {oML[0]} offen sc1\nbuffer_load_dword v9, {vMl}, {WS}, {oML[1]} offen sc1\ns_branch L_s4p")
    elif P["hintC"]:
        hint_wait(oH, 20, "s[44:45]")
        for k in range(P.get("hdel",0)): a(f"s_load_dword s20, s[28:29], {oH}\ns_add_u32 {oH}, {oH}, 64\ns_waitcnt lgkmcnt(0)")
        a(f"buffer_load_dword v8, {vMl}, {WS}, {oML[0]} offen sc1\nbuffer_load_dword v9, {vMl}, {WS}, {oML[1]} offen sc1\ns_branch L_s4p")
    l,ok=loop_head("S4",("S4M",))
    a(f"buffer_load_dword v8, {vMl}, {WS}, {oML[0]} offen sc1\nbuffer_load_dword v9, {vMl}, {WS}, {oML[1]} offen sc1")
    if P["mfirst"]: a(f"s_waitcnt vmcnt(0)\nv_cmp_u_f32 vcc, v8, v9\nv_max_f32 v10, v8, v9\ns_cbranch_vccnz {l}")
    a("L_s4p:")
    for s in range(8):
        if P.get("prioC") and s%2==0: a(f"s_setprio {3-s//2}")
        a(f"buffer_load_dwordx4 {vr(QR+4*s,4)}, {vPl}, {WS}, {oPL[s>>2]} offen offset:{256*(s&3)} sc1")
    if P["hintC"] or P["gC"]:
        if not P["s4late"]: sig("S4M","v13"); a("v_mov_b32 v13, 0")
        a(f"s_waitcnt vmcnt(8)\nv_cmp_u_f32 vcc, v8, v9\nv_max_f32 v10, v8, v9\ns_cbranch_vccnz {l}")
    elif P["mfirst"]: pass
    elif P["incC"]:
        inc=a.lab("IC"); bk=a.lab("IB"); k0=a.lab("IS"); k1=a.lab("IS")
        a(f"s_waitcnt vmcnt(8)\n{bk}:\nv_cmp_u_f32 vcc, v8, v9\nv_max_f32 v10, v8, v9\ns_cbranch_vccnz {inc}")
        t=f"{inc}:\ns_sub_u32 {sBud}, {sBud}, 1\ns_cbranch_scc1 {far[-1].split(':')[0]}\nv_cmp_u_f32 s[20:21], v9, v9\nv_cmpx_u_f32 vcc, v8, v8\ns_cbranch_execz {k0}\n"
        t+=f"buffer_load_dword v8, {vMl}, {WS}, {oML[0]} offen sc1\n"+"".join(f"buffer_load_dwordx4 {vr(QR+4*s,4)}, {vPl}, {WS}, {oPL[0]} offen offset:{256*s} sc1\n" for s in range(4))
        t+=f"{k0}:\ns_mov_b64 exec, s[20:21]\ns_cbranch_execz {k1}\n"
        t+=f"buffer_load_dword v9, {vMl}, {WS}, {oML[1]} offen sc1\n"+"".join(f"buffer_load_dwordx4 {vr(QR+16+4*s,4)}, {vPl}, {WS}, {oPL[1]} offen offset:{256*s} sc1\n" for s in range(4))
        t+=f"{k1}:\ns_mov_b64 exec, -1\ns_waitcnt vmcnt(0)\ns_branch {bk}"
        incstub=t
    else:
        a(f"s_waitcnt vmcnt(8)\nv_cmp_u_f32 vcc, v8, v9\nv_max_f32 v10, v8, v9\ns_cbranch_vccnz {l}")
    if not (P["hintC"] or P["gC"]) or P["s4late"]: sig("S4M","v13"); a("v_mov_b32 v13, 0")
    stamp(5)
    xreduce("v_max_f32","v10","v11")
    a("v_sub_f32 v8, v10, v8\nv_sub_f32 v9, v10, v9\nv_min_f32 v8, s49, v8\nv_min_f32 v9, s49, v9\nv_cvt_u32_f32 v8, v8\nv_cvt_u32_f32 v9, v9\nv_mul_u32_u24 v8, s48, v8\nv_mul_u32_u24 v9, s48, v9")
    a(f"s_waitcnt vmcnt(7)")
    for k in range(4): a(f"v_pk_sub_u16 v{QR+k}, v{QR+k}, v8 clamp")
    for s in range(8):
        mf=lambda ct: a(f"v_mfma_f32_16x16x32_bf16 {vr(AC+4*ct,4)}, {vr(BQ(3*s+ct),4)}, {vr(QR+4*s,4)}, {vr(AC+4*ct,4) if s else 0}")
        q=QR+4*s
        if s==0: a(f"v_or3_b32 v12, v{q}, v{q+1}, v{q+2}\nv_or_b32 v12, v12, v{q+3}")
        mf(0)
        if s<7:
            a(f"s_waitcnt vmcnt({6-s})")
            a(f"v_pk_sub_u16 v{q+4}, v{q+4}, v{8+((s+1)>>2)} clamp\nv_pk_sub_u16 v{q+5}, v{q+5}, v{8+((s+1)>>2)} clamp")
        mf(1)
        if s<7: a(f"v_pk_sub_u16 v{q+6}, v{q+6}, v{8+((s+1)>>2)} clamp\nv_pk_sub_u16 v{q+7}, v{q+7}, v{8+((s+1)>>2)} clamp")
        mf(2)
        if s<7: a(f"v_or3_b32 v12, v12, v{q+4}, v{q+5}\nv_or3_b32 v12, v12, v{q+6}, v{q+7}")
    a(f"v_and_b32 v12, 0x80008000, v12\nv_cmp_ne_u32 vcc, 0, v12\ns_cbranch_vccnz {l}\n{ok}:")
    sig("S4K")
    stamp(9)
    for k in range(6): a(f"v_cvt_pk_bf16_f32 v{QR+k}, v{AC+2*k}, v{AC+2*k+1}\nds_bpermute_b32 v{CT+k+k//3}, {vBp}, v{QR+k}")
    a(f"s_waitcnt lgkmcnt(3)\nbuffer_store_dwordx4 {vr(CT,4)}, {vC4}, {WS}, {oCL} offen sc1")
    a(f"s_waitcnt lgkmcnt(0)\nbuffer_store_dwordx4 {vr(CT+4,4)}, {vC4}, {WS}, {oCL} offen offset:64 sc1")
    sig("DST")
    stamp(10)
    a(f"s_waitcnt vmcnt({P.get('dack',0)})")
    sig("PUBD")
    F6=FR+48
    def s6reads(half):
        for s in range(3*half,3*half+3):
            for t in range(2):
                for e2 in range(2): a(f"ds_read_b64_tr_b16 {vr(F6+8*s+4*t+2*e2,2)}, {vT6[t]} offset:{(4*s+2*e2)*2048}")
    a(f"s_cmp_eq_u32 {sW}, 3\ns_cbranch_scc1 L_s6")
    wait_flag("CNT","s47")
    for t in range(4):
        for h in range(6): a(f"ds_read_b64_tr_b16 {vr(FR+12*t+2*h,2)}, {vT1[t]} offset:{2*h*3072}")
    l=a.lab("V1")
    spin(l); a(f"ds_read_b32 {vTmp}, {vL4} offset:{F['V1B']}")
    for s in range(3): a(f"ds_read_b128 {vr(QR+4*s,4)}, {vVec} offset:{VEC1B-VEC1A+64*s}")
    a(f"s_waitcnt lgkmcnt(0)\nv_cmp_gt_u32 vcc, 1, {vTmp}\ns_cbranch_vccnz {l}")
    stamp(11)
    for t in range(4):
        for s in range(3):
            a(f"v_mfma_f32_16x16x32_bf16 {vr(AC+4*t,4)}, {vr(FR+12*t+4*s,4)}, {vr(QR+4*s,4)}, {vr(AC+4*t,4) if s else 0}")
    a("s_cmp_eq_u32 s50, 0")
    publish4(AC, vS, vPub, oE, mode=True)
    sig("PUBE")
    a("L_s6:")
    stamp(12)
    a(f"s_cmp_lt_u32 {sJ}, 5\ns_cbranch_scc0 L_fin")
    a("L_s6go:")
    a(f"v_lshlrev_b32 v6, 2, {vLane}\ns_mov_b32 s56, 0xffff0000\ns_mov_b32 s57, 0")
    wait_flag("CNT",t6)
    s6reads(0)
    wait_flag("CNT",246)
    s6reads(1)
    stamp(13)
    vec2_mfma("V2B",1,VEC2B,False,F6)
    a(f"s_mov_b32 exec_hi, 0\nv_cndmask_b32 v7, v{AC}, v{AC+4}, s[56:57]\nbuffer_store_dword v7, v6, {WS}, {oF} offen sc1")
    stamp(14)
    a("s_mov_b64 exec, -1\ns_waitcnt vmcnt(0)")
    sig("PUBF")
    a("s_branch L_fin")
    if P["incC"]:
        i_=a.L.index("L_soft:"); a.L[i_:i_]=incstub.split("\n")

    GA=16; GD=32; GX=72
    def gather_setup(vOff, stride):
        a(f"v_mul_u32_u24 {vOff}, {stride}, {vGl}\nv_lshl_add_u32 {vOff}, {vN}, 4, {vOff}")
        a(f"v_and_b32 v6, 1, {vN}\nv_lshlrev_b32 v6, 4, v6\nv_mov_b32 v7, 0x3f80\nv_lshlrev_b32 v6, v6, v7\nv_lshrrev_b32 v7, 1, {vN}")
        for k in range(6): a(f"v_cmp_eq_u32 vcc, {k}, v7\nv_cndmask_b32 v{GA+k}, 0, v6, vcc")
    def gather(nq, vOff, soffs, name, xcc=False, tag="s[32:33]"):
        if xcc: a(f"s_andn2_b32 {sBud}, {sBud}, 15")
        l,ok=loop_head(name, ("GISS",) if xcc=="q" else ())
        if nq==3:
            for u in range(3): a(f"v_mov_b32 v{GD+26+4*u}, s58")
        for q in range(nq):
            if q==2: a("s_mov_b32 exec_hi, 0")
            for u in range(3):
                a(f"buffer_load_dwordx4 {vr(GD+4*(3*q+u),4)}, {vOff}, {WS}, {soffs[q]} offen offset:{256*u} sc1")
        if nq==3: a("s_mov_b64 exec, -1")
        if xcc=="q": sig("GISS")
        n=3*nq
        for k in range(n):
            a(f"s_waitcnt vmcnt({n-1-k})\nv_mfma_f32_16x16x16_bf16 {vr(GX,4)}, {vr(GA+2*(k%3),2)}, {vr(GD+4*k,2)}, {vr(GX,4) if k else 0}")
        if not xcc:
            for k in range(n): a(f"v_cmpx_eq_u64 vcc, s[32:33], {vr(GD+4*k+2,2)}")
            a(f"s_cmp_eq_u64 exec, -1\ns_mov_b64 exec, -1\ns_cbranch_scc0 {l}\n{ok}:")
        else:
            sl=a.lab("SL")
            for k in range(n): a(f"v_cmpx_eq_u64 vcc, s[58:59], {vr(GD+4*k+2,2)}")
            a(f"s_cmp_eq_u64 exec, -1\ns_mov_b64 exec, -1\ns_cbranch_scc1 {ok}")
            if xcc=="q": a(f"ds_read_b32 {vTmp}, {vL4} offset:{F['V2A']}\ns_waitcnt lgkmcnt(0)\nv_cmp_lt_u32 vcc, 0, {vTmp}\ns_cbranch_vccnz L_gadone\ns_cmp_eq_u32 {sW}, 6\ns_cbranch_scc1 {l}")
            for k in range(n): a(f"v_or_b32 v{GD+4*k+2}, 15, v{GD+4*k+2}\nv_cmpx_eq_u64 vcc, {tag}, {vr(GD+4*k+2,2)}")
            a(f"s_cmp_eq_u64 exec, -1\ns_mov_b64 exec, -1\ns_cselect_b32 s60, 0, {sBud}\ns_cselect_b32 s63, 1, 0\ns_and_b32 s60, s60, 15\ns_cbranch_scc1 {l}\ns_branch {sl}\n{ok}:")
            far.append(f"""{sl}:
s_mov_b32 exec_hi, 0xffff
buffer_load_dwordx4 v[76:79], v28, {WS}, s61 offen offset:{RQ-RP} sc1
s_waitcnt vmcnt(0)
buffer_store_dwordx4 v[76:79], v28, {WS}, s61 offen offset:{RQ-RP} sc1
s_mov_b64 exec, -1
s_waitcnt vmcnt(0)
s_cmp_eq_u32 s63, 0
s_cbranch_scc1 {l}
"""+(f"s_branch {ok}" if xcc!="q" else f"""v_mov_b32 v76, -1
v_mov_b32 v77, -1
v_mov_b32 v78, -1
v_mov_b32 v79, -1
v_mov_b32 v27, 3
buffer_store_dwordx4 v[76:79], v28, {WS}, s61 offen sc1
buffer_store_dwordx4 v[76:79], v28, {WS}, s61 offen offset:1024 sc1
s_mov_b64 exec, 0xffff
buffer_store_dwordx4 v[76:79], v28, {WS}, s61 offen offset:2048 sc1
s_mov_b64 exec, -1
s_waitcnt vmcnt(0)
s_branch {ok}"""))
    def vec2_write(vAddr, flag, v=vOne, op="ds_add_u32"):
        a(f"s_mov_b32 exec_hi, 0xffff\nv_cvt_pk_bf16_f32 v{GX}, v{GX}, v{GX+1}\nv_cvt_pk_bf16_f32 v{GX+1}, v{GX+2}, v{GX+3}\nds_write_b64 {vAddr}, {vr(GX,2)}\ns_mov_b64 exec, -1")
        a(f"{op} {vL4}, {v} offset:{F[flag]}")
    def vec2b_addr(dst):
        a(f"v_lshlrev_b32 {dst}, 7, {vGl}\nv_bfe_u32 v6, {vN}, 1, 1\nv_lshl_add_u32 {dst}, v6, 6, {dst}\nv_lshrrev_b32 v6, 2, {vN}\nv_lshl_add_u32 {dst}, v6, 4, {dst}\nv_and_b32 v6, 1, {vN}\nv_lshl_add_u32 {dst}, v6, 3, {dst}\nv_add_u32 {dst}, {VEC2B}, {dst}")

    a("L_w7:")
    a(f"s_movk_i32 s43, {P['thrG']+CB}")
    tag_finish()
    a("s_barrier\nL_ga:\ns_setprio 2")
    gather_setup("v24", RS)
    a(f"v_lshlrev_b32 v28, 4, {vLane}\ns_mul_i32 s61, {sB}, {RS}\ns_add_u32 s61, s61, {REC+RP}")
    a(f"v_lshlrev_b32 v25, 7, {vGl}\nv_and_b32 v6, 3, {vN}\nv_lshl_add_u32 v25, v6, 5, v25\nv_lshrrev_b32 v6, 2, {vN}\nv_lshl_add_u32 v25, v6, 3, v25\nv_add_u32 v25, {VEC2A}, v25")
    vec2b_addr("v26")
    a(f"s_mul_i32 s54, {sG}, {8*RS}\ns_add_u32 s52, s54, {REC+RE}\ns_add_u32 s53, s52, {4*RS}\ns_add_u32 s54, s54, {REC+RQ}\ns_add_u32 s55, s54, {4*RS}")
    a(f"s_mov_b32 s56, {f2u(192**-0.5*math.log2(math.e))}\ns_mov_b32 s57, s56")
    a("s_getreg_b32 s58, hwreg(HW_REG_XCC_ID, 0, 4)\ns_xor_b32 s58, s58, s32\ns_mov_b32 s59, s33\nv_mov_b32 v27, 1")
    if P["hintA"]:
        a(f"s_lshl_b32 s43, {sG}, 11\ns_add_u32 s43, s43, {HT}\ns_lshl2_add_u32 s51, {sJ}, s43\nv_lshlrev_b32 v6, 6, {vLane}\nv_mov_b32 v7, s32\ns_mov_b32 s48, s32\ns_mov_b32 s49, s32")
    if P["gA"]==1:
        a(f"s_lshl_b32 s43, {sG}, 11\ns_add_u32 s43, s43, {HT}\ns_add_u32 s96, s28, s43\ns_addc_u32 s97, s29, 0\ns_lshl_b32 s51, {sB}, 8\ns_add_u32 s51, s51, {HT}\ns_mov_b32 s48, s32\ns_mov_b32 s49, s32")
        a("v_mov_b32 v8, s32\nv_mov_b32 v9, s32\nv_mov_b32 v10, s32\nv_mov_b32 v11, s32")
    wait_flag("PUBA",3)
    if P["gA"]==1:
        a(f"s_mov_b64 exec, 15\nbuffer_store_dwordx4 v[8:11], v28, {WS}, s51 offen sc1\ns_mov_b64 exec, -1")
        ghint("s[96:97]", 256, 8, "s[48:49]")
    elif P["hintA"]:
        a(f"s_mov_b64 exec, 0xffff\nbuffer_store_dword v7, v6, {WS}, s51 offen\ns_mov_b64 exec, -1")
        hint_wait("s43", 8, "s[48:49]")
    else: wait_flag("CNT","s43")
    stamp(1)
    gather(2,"v24",["s54","s55"],"GA", xcc="q")
    stamp(2)
    a(f"v_pk_mul_f32 {vr(GX,2)}, {vr(GX,2)}, s[56:57]\nv_pk_mul_f32 {vr(GX+2,2)}, {vr(GX+2,2)}, s[56:57]")
    vec2_write("v25","V2A","v27","ds_max_u32")
    a(f"L_gadone:\ns_cmp_eq_u32 {sW}, 6\ns_cbranch_scc1 L_w6b")
    a(f"s_lshl_b32 s54, {sX}, 14\ns_and_b32 s55, {sG}, 3\ns_lshl_b32 s55, s55, 4\ns_add_u32 s54, s54, s55\ns_add_u32 s44, s54, {ST}\ns_add_u32 s45, s44, 4096\ns_add_u32 s46, s44, 8192\ns_add_u32 s47, s44, 12288\nv_lshlrev_b32 v22, 6, {vLane}\nv_add_u32 v23, {XB}, v28")
    wait_flag(*{"DST":("DST",4),"S4M":("S4M",1),"PUBC":("PUBC",2),"PUBD":("PUBD",4)}[P["stattrig"]])
    stamp(3)
    l,ok=loop_head("SS")
    SM=108
    for k in range(4): a(f"buffer_load_dwordx4 {vr(SM+4*k,4)}, v22, {WS}, s{44+k} offen sc1")
    a("s_waitcnt vmcnt(0)")
    for k in range(4): a(f"v_cmpx_eq_u64 vcc, s[32:33], {vr(SM+4*k+2,2)}")
    a(f"s_cmp_eq_u64 exec, -1\ns_mov_b64 exec, -1\ns_cbranch_scc0 {l}\n{ok}:")
    stamp(4)
    st3=("quad_perm:[1,0,3,2]","quad_perm:[2,3,0,1]","row_half_mirror")
    for i,s in enumerate(st3):
        for k in range(4):
            src = f"v{SM+4*k}" if i==0 else f"v{32+k}"
            a(f"v_max_f32_dpp v{32+k}, {src}, {src} {s} {DP}")
    a("v_max3_f32 v36, v32, v33, v34\nv_max_f32 v36, v36, v35")
    rowreduce("v_max_f32","v36",("row_mirror",))
    xreduce("v_max_f32","v36","v37")
    for k in range(4): a(f"v_sub_f32 v{SM+4*k}, v{SM+4*k}, v36\nv_sub_f32 v{32+k}, v{32+k}, v36")
    for k in range(4): a(f"v_exp_f32 v{SM+4*k}, v{SM+4*k}\nv_exp_f32 v{32+k}, v{32+k}")
    a(f"v_mul_f32 v38, v{SM}, v{SM+1}\nv_fmac_f32 v38, v{SM+4}, v{SM+5}\nv_fmac_f32 v38, v{SM+8}, v{SM+9}\nv_fmac_f32 v38, v{SM+12}, v{SM+13}")
    for k in range(4): a(f"v_cvt_pk_bf16_f32 v{32+k}, v{32+k}, v{32+k}")
    rowreduce("v_add_f32","v38")
    xreduce("v_add_f32","v38","v37")
    a("v_rcp_f32 v38, v38")
    a("ds_write_b128 v23, v[32:35]\nds_write_b32 v23, v38 offset:1024")
    sig("STOK")
    stamp(5)
    a(f"s_cmp_lt_u32 {sJ}, 5\ns_cbranch_scc1 L_w7e\ns_cmp_lt_u32 {sV}, 10\ns_cbranch_scc0 L_fin")
    a("L_ffn2:")
    trcore("v8", vTmp)
    a(f"s_and_b32 s52, {sW}, 1\ns_lshl_b32 s55, s52, 6\nv_lshrrev_b32 v6, 5, {vLane}\nv_lshl_add_u32 v8, v6, 11, v8\nv_xor_b32 v8, s55, v8\nv_add_u32 {vT6[0]}, {R2}, v8\nv_xor_b32 {vT6[1]}, 32, {vT6[0]}")
    a(f"v_lshlrev_b32 {vVec}, 4, {vGl}\nv_add_u32 {vVec}, {VEC1A}, {vVec}")
    a(f"s_mul_i32 s54, {sX}, 2560\ns_lshl_b32 s55, {sV}, 8\ns_add_u32 s54, s54, s55\ns_lshl_b32 s55, s52, 7\ns_add_u32 s54, s54, s55\ns_add_u32 s54, s54, {YP}\ns_movk_i32 {t6}, {234+CB}")
    wait_flag("PUBC",2)
    a("s_branch L_s6go")
    a("L_w7e:")
    wait_flag("PUBE",3)
    stamp(6)
    gather(2,"v24",["s52","s53"],"GE")
    stamp(7)
    vec2_write("v26","V2B")
    a("s_branch L_fin")

    a("L_w5:")
    a(f"v_lshlrev_b32 v6, 4, {vLane}\nv_mov_b32 v8, -1\nv_mov_b32 v9, -1\nv_mov_b32 v10, -1\nv_mov_b32 v11, -1")
    a(f"s_mul_i32 s52, {sB}, {RS}\ns_add_u32 s52, s52, {REC}\ns_add_u32 s53, s52, {RP}")
    a(f"s_lshl_b32 s54, {sB}, 8\ns_add_u32 s54, s54, {HT-60*64}\nv_mov_b32 v7, s54\nv_mov_b32 v23, s53\nv_cmp_gt_u32 vcc, 60, {vLane}\nv_lshlrev_b32 v22, 6, {vLane}\nv_cndmask_b32 v7, v7, v23, vcc\nv_add_u32 v7, v7, v22")
    pm=((1<<64)-1)
    if P["gC"]: pm&=~((1<<36)-1)
    if P["gA"]: pm&=~(0xffff<<48)
    if not (P["hintA"] or P["hintC"]): pm&=~(0xf<<60)
    pm2=0
    if P.get("latetouch"): pm2=pm&((1<<48)-1); pm&=~pm2
    if pm: a(f"s_mov_b32 exec_lo, {pm&0xffffffff}\ns_mov_b32 exec_hi, {pm>>32}\nbuffer_load_dword v23, v7, {WS}, 0 offen sc1\ns_mov_b64 exec, -1")
    def gclear():
        a(f"s_cmp_lt_u32 s2, 100\ns_cbranch_scc0 L_ng\ns_lshl_b32 s54, s2, 10\ns_add_u32 s54, s54, {G}\nbuffer_store_dwordx4 v[8:11], v6, {WS}, s54 offen sc1\nL_ng:")
    if not P.get("lateG"): gclear()
    a("s_setprio 2")
    MK=12
    a(f"v_and_b32 v7, 1, {vN}\nv_lshlrev_b32 v7, 4, v7\nv_mov_b32 v16, 0xffff\nv_lshlrev_b32 v7, v7, v16\nv_lshrrev_b32 v16, 1, {vN}")
    for k in range(3): a(f"v_cmp_eq_u32 vcc, {2*k}, v16\nv_cndmask_b32 v{MK+k}, 0, v7, vcc")
    for k in range(8): a(f"v_mov_b32 v{43+4*k}, 0")
    a(f"v_bfe_u32 v7, {vN}, 2, 1\nv_mad_u32_u24 v7, v7, 3, {vGl}\nv_lshrrev_b32 v17, 3, {vN}\nv_lshlrev_b32 v18, 6, v17\nv_lshl_add_u32 v18, v7, 2, v18")
    a(f"v_lshlrev_b32 v19, 3, v17\nv_lshl_add_u32 v19, v7, 2, v19\nv_add_u32 v19, 112, v19\nv_cmp_gt_u32 vcc, 4, v7\nv_cndmask_b32 v18, v19, v18, vcc")
    a(f"v_and_b32 v7, 3, {vN}\nv_lshl_add_u32 v18, v7, 4, v18\nv_add_u32 v18, {VEC1B}, v18")
    a(f"s_movk_i32 s55, {FLG}\nv_lshlrev_b32 v16, 7, {vLane}")
    tag_finish()
    a("s_barrier")
    if pm2:
        wait_flag("CNT",P["latetouch"])
        a(f"s_mov_b32 exec_lo, {pm2&0xffffffff}\ns_mov_b32 exec_hi, {pm2>>32}\nbuffer_load_dword v23, v22, {WS}, s53 offen sc1\ns_mov_b64 exec, -1")
    if P.get("lateG")==1: gclear()
    a("s_waitcnt vmcnt(0)")
    if P.get("lateG")==2: gclear()
    cf="sc1" if P["gC"] else ""
    a(f"buffer_store_dwordx4 v[8:11], v6, {WS}, s53 offen {cf}\nbuffer_store_dwordx4 v[8:11], v6, {WS}, s53 offen offset:1024 {cf}\ns_mov_b64 exec, 0xffff\nbuffer_store_dwordx4 v[8:11], v6, {WS}, s53 offen offset:2048 {cf}\ns_mov_b64 exec, -1")
    stamp(1)
    wait_flag("CNT",P["thrF"])
    l,ok=loop_head("FL")
    a(f"s_mov_b64 exec, 0xff\nbuffer_load_dwordx2 v[24:25], v16, {WS}, s55 offen sc1\ns_waitcnt vmcnt(0)\nv_cmp_ne_u64 vcc, s[32:33], v[24:25]\ns_mov_b64 exec, -1\ns_cbranch_vccnz {l}\n{ok}:")
    sig("CLR")
    stamp(2)
    if P.get("retouch"):
        wait_flag(*P["retouch"])
        a(f"s_mov_b32 exec_hi, 0x0000ffff\nbuffer_load_dword v23, v22, {WS}, s53 offen sc1\ns_mov_b64 exec, -1")
    a(f"s_add_u32 s53, s52, 4096\nv_add_u32 v20, {XB}, v6\ns_and_b32 s56, s32, 0xbfffbfff")
    a(f"v_lshlrev_b32 v7, 9, {vGl}\nv_lshl_add_u32 v7, {vN}, 3, v7\nv_add_u32 v7, {MLB}, v7\nv_lshrrev_b32 v17, 2, {vLane}\nv_lshlrev_b32 v17, 14, v17\nv_and_b32 v19, 3, {vLane}\nv_lshl_add_u32 v17, v19, 4, v17")
    a(f"s_lshl_b32 s54, {sB}, 6\ns_add_u32 s54, s54, {ST}\nv_mov_b32 v26, s32\nv_mov_b32 v27, s33")
    wait_flag("PUBC",2)
    a(f"s_mov_b32 exec_hi, 0\nds_read_b64 v[24:25], v7\nds_read_b32 v28, v7 offset:132\nds_read_b32 v29, v7 offset:260\nds_read_b32 v30, v7 offset:388\ns_waitcnt lgkmcnt(0)")
    a(f"v_add_f32 v25, v25, v28\nv_add_f32 v29, v29, v30\nv_add_f32 v25, v25, v29\nbuffer_store_dwordx4 v[24:27], v17, {WS}, s54 offen sc1\ns_mov_b64 exec, -1")
    SAa=40; SD=72; SX=104
    def clloads():
        for s in range(8): a(f"buffer_load_dwordx4 {vr(SD+4*s,4)}, v6, {WS}, s{52+(s>>2)} offen offset:{1024*(s&3)} sc1")
    wait_flag("PUBD",4)
    for w_ in P.get("dtrig",()): wait_flag(*w_)
    stamp(5)
    clloads()
    sig("CDI")
    l=a.lab("SW")
    spin(l); a(f"ds_read_b32 {vTmp}, {vL4} offset:{F['STOK']}\nds_read_b128 v[32:35], v20\nds_read_b32 v38, v20 offset:1024\ns_waitcnt lgkmcnt(0)\nv_cmp_gt_u32 vcc, 1, {vTmp}\ns_cbranch_vccnz {l}")
    stamp(4)
    for s in range(8):
        for r in range(3): a(f"v_and_b32_dpp v{SAa+4*s+r}, v{32+(s>>1)}, v{MK+r} row_newbcast:{8*(s&1)} {DP}")
    a("v_mov_b32 v39, v38\ns_branch L_cdm")
    l,ok=loop_head("CD")
    clloads()
    a("L_cdm:")
    for s in range(8):
        a(f"s_waitcnt vmcnt({7-s})\nv_mfma_f32_16x16x32_bf16 {vr(SX,4)}, {vr(SAa+4*s,4)}, {vr(SD+4*s,4)}, {vr(SX,4) if s else 0}")
    for s in range(8): a(f"v_cmpx_eq_u32 vcc, s56, v{SD+4*s+3}")
    a(f"s_cmp_eq_u64 exec, -1\ns_mov_b64 exec, -1\ns_cbranch_scc0 {l}\n{ok}:")
    stamp(6)
    a(f"s_mov_b32 exec_hi, 0xffff\nv_pk_mul_f32 {vr(SX,2)}, {vr(SX,2)}, v[38:39]\nv_cvt_pk_bf16_f32 v{SX}, v{SX}, v{SX+1}")
    a(f"ds_write_b32 v18, v{SX}\ns_mov_b64 exec, -1")
    sig("V1B")
    a("s_branch L_fin")

    a("L_w6:")
    a(f"v_lshlrev_b32 v6, 2, {vLane}\nv_add_u32 v6, {XB}, v6")
    a(f"s_mul_i32 s52, {sJ}, 160\ns_min_u32 s53, {sV}, 9\ns_lshl_b32 s53, s53, 7\ns_sub_u32 s53, s53, 256\nv_mov_b32 v16, s52\nv_mov_b32 v13, s53\nv_cmp_gt_u32 vcc, 32, {vLane}\nv_cndmask_b32 v16, v13, v16, vcc\nv_lshl_add_u32 v16, {vLane}, 3, v16\nv_add_u32 v16, {XB}, v16")
    a(f"v_bfe_u32 v7, {vLane}, 3, 2\nv_lshlrev_b32 v27, 6, v7\nv_and_b32 v7, 3, {vLane}\nv_lshl_add_u32 v27, v7, 4, v27\nv_bfe_u32 v7, {vLane}, 2, 1\nv_lshl_add_u32 v27, v7, 3, v27\nv_lshrrev_b32 v7, 5, {vLane}\nv_mul_u32_u24 v7, {VEC1F-VEC1A}, v7\nv_add_u32 v27, v27, v7\nv_add_u32 v27, {VEC1A}, v27")
    a("s_mov_b32 s54, 0xffff0000\ns_barrier")
    for k in range(5): a(f"ds_read_b32 v{8+k}, v6 offset:{256*k}")
    a("ds_read_b64 v[14:15], v16\ns_waitcnt lgkmcnt(0)")
    stamp(1)
    for k in range(5): a(f"v_lshlrev_b32 v{32+2*k}, 16, v{8+k}\nv_and_b32 v{33+2*k}, s54, v{8+k}")
    a("v_pk_add_f32 v[44:45], v[32:33], v[34:35]\nv_pk_add_f32 v[46:47], v[36:37], v[38:39]\nv_pk_add_f32 v[44:45], v[44:45], v[40:41]\nv_pk_add_f32 v[44:45], v[44:45], v[46:47]\nv_add_f32 v44, v44, v45")
    rowreduce("v_add_f32","v44"); xreduce("v_add_f32","v44","v45")
    a(f"v_mul_f32 v44, {hex(f2u(1/640))}, v44")
    for k in range(10): a(f"v_sub_f32 v{32+k}, v{32+k}, v44")
    a("v_mul_f32 v46, v32, v32")
    for k in range(1,10): a(f"v_fmac_f32 v46, v{32+k}, v{32+k}")
    rowreduce("v_add_f32","v46"); xreduce("v_add_f32","v46","v45")
    def rbf(v): a(f"v_cvt_pk_bf16_f32 {v}, {v}, {v}\nv_and_b32 {v}, s54, {v}")
    a(f"v_mul_f32 v46, {hex(f2u(1/640))}, v46"); rbf("v46"); rbf("v44")
    a(f"v_add_f32 v46, {hex(f2u(1e-5))}, v46"); rbf("v46")
    a("v_sqrt_f32 v46, v46"); rbf("v46")
    a("v_rcp_f32 v46, v46")
    a("v_lshlrev_b32 v32, 16, v14\nv_and_b32 v33, s54, v14\nv_lshlrev_b32 v34, 16, v15\nv_and_b32 v35, s54, v15")
    for k in range(4): a(f"v_sub_f32 v{32+k}, v{32+k}, v44")
    a("v_cvt_pk_bf16_f32 v14, v32, v33\nv_cvt_pk_bf16_f32 v15, v34, v35")
    a("v_lshlrev_b32 v32, 16, v14\nv_and_b32 v33, s54, v14\nv_lshlrev_b32 v34, 16, v15\nv_and_b32 v35, s54, v15")
    for k in range(4): a(f"v_mul_f32 v{32+k}, v{32+k}, v46")
    a("v_cvt_pk_bf16_f32 v14, v32, v33\nv_cvt_pk_bf16_f32 v15, v34, v35")
    a("s_mov_b32 exec_lo, 0x000fffff\ns_mov_b32 exec_hi, 0xffff\nds_write_b64 v27, v[14:15]\ns_mov_b64 exec, -1")
    sig("V1A")
    stamp(2)
    tag_finish()
    if P["thrG2"]: a(f"s_movk_i32 s43, {P['thrG2']+CB}\ns_branch L_ga")
    a("L_w6b:\ns_mov_b32 s54, 0xffff0000")
    a(f"s_cmp_lt_u32 s2, 20\ns_cbranch_scc1 L_final\ns_cmp_lt_u32 {sV}, 10\ns_cbranch_scc0 L_fin")
    masks()
    srd(44, 20, 3072)
    a(f"v_lshlrev_b32 v8, 7, {vGl}\nv_and_b32 v6, 3, {vN}\nv_lshl_add_u32 v8, v6, 5, v8\nv_lshrrev_b32 v6, 2, {vN}\nv_lshl_add_u32 v8, v6, 3, v8\ns_mul_i32 s52, {sX}, 384")
    a(f"buffer_load_dwordx2 v[22:23], v8, {SA}, s52 offen")
    gather_setup("v24",8*RS); vec2b_addr("v26")
    a(f"v_lshlrev_b32 v28, 4, {vLane}\ns_mul_i32 s40, {sB}, {RS}\ns_add_u32 s40, s40, {REC+RP}\ns_mov_b32 s48, s32\ns_xor_b32 s49, s33, 1")
    a("s_getreg_b32 s50, hwreg(HW_REG_XCC_ID, 0, 4)\ns_xor_b32 s50, s50, s32")
    trcore("v80", vTmp)
    a(f"v_lshrrev_b32 v6, 5, {vLane}\nv_mul_u32_u24 v6, 3072, v6\nv_add_u32 v80, v80, v6\nv_add_u32 v80, {R3 if FF else R1}, v80")
    for t in range(1,4): a(f"v_xor_b32 v{80+t}, {32*t}, v80")
    a(f"v_lshlrev_b32 v84, 6, {vGl}\nv_lshl_add_u32 v84, {vN}, 4, v84\nv_lshlrev_b32 v85, 4, {vGl}\nv_add_u32 v85, {VEC1F}, v85")
    a(f"ds_read_b128 v[88:91], v85\nds_read_b128 v[92:95], v85 offset:64\nv_mov_b32 v78, s50\nv_mov_b32 v79, s49")
    for u in range(3): a(f"v_mov_b32 v{GD+24+4*u}, 0\nv_mov_b32 v{GD+25+4*u}, 0\nv_mov_b32 v{GD+27+4*u}, s49")
    a(f"s_mul_i32 s52, {sX}, {32*RS}\ns_add_u32 s52, s52, {REC+5*RS+RQ}\ns_add_u32 s53, s52, {RS}\ns_add_u32 s51, s53, {RS}\ns_add_u32 s55, s40, {RQ-RP}\ns_mov_b32 s43, 0")
    wait_flag("PUBC",2)
    wait_flag("CNT",186 if FF else 222)
    stamp(3)
    def f1reads():
        for t in range(4):
            for h in range(4): a(f"ds_read_b64_tr_b16 {vr(96+8*t+2*h,2)}, v{80+t} offset:{2*h*3072}")
    f1reads()
    l=a.lab("F1")
    a(f"{l}:")
    for t in range(4):
        a(f"v_add_u32 v{80+t}, 1024, v{80+t}\ns_waitcnt lgkmcnt({12-4*t})")
        a(f"v_mfma_f32_16x16x32_bf16 {vr(128+4*t,4)}, {vr(96+8*t,4)}, v[88:91], 0\nv_mfma_f32_16x16x32_bf16 {vr(128+4*t,4)}, {vr(100+8*t,4)}, v[92:95], {vr(128+4*t,4)}")
    f1reads()
    publish4(128, 76, "v84", "s55", mode="plain")
    a(f"s_add_u32 s55, s55, 256\ns_add_u32 s43, s43, 1\ns_cmp_lt_u32 s43, 3\ns_cbranch_scc1 {l}")
    stamp(4)
    a("s_mov_b32 s58, s50\ns_mov_b32 s59, s49\ns_mov_b32 s61, s40")
    gather(3,"v24",["s52","s53","s51"],"GH", xcc="h", tag="s[48:49]")
    stamp(5)
    a("v_lshlrev_b32 v8, 16, v22\nv_and_b32 v9, s54, v22\nv_lshlrev_b32 v10, 16, v23\nv_and_b32 v11, s54, v23")
    c1 = -2*math.sqrt(2/math.pi)*math.log2(math.e)
    a(f"s_mov_b32 s56, {f2u(c1*0.044715)}\nv_mov_b32 v7, {hex(f2u(c1))}")
    for k in range(4): a(f"v_add_f32 v{GX+k}, v{GX+k}, v{8+k}")
    for k in range(4): a(f"v_mul_f32 v{8+k}, v{GX+k}, v{GX+k}")
    for k in range(4): a(f"v_fma_f32 v{8+k}, v{8+k}, s56, v7")
    for k in range(4): a(f"v_mul_f32 v{8+k}, v{8+k}, v{GX+k}")
    for k in range(4): a(f"v_exp_f32 v{8+k}, v{8+k}")
    for k in range(4): a(f"v_add_f32 v{8+k}, 1.0, v{8+k}")
    for k in range(4): a(f"v_rcp_f32 v{8+k}, v{8+k}")
    for k in range(4): a(f"v_mul_f32 v{GX+k}, v{GX+k}, v{8+k}")
    vec2_write("v26","V2B")
    a("s_branch L_ffn2")

    a("L_final:")
    a(f"s_mov_b32 s40, s2")
    a(f"v_and_b32 v6, 7, {vLane}\nv_lshlrev_b32 v8, 3, v6\nv_bfe_u32 v7, {vLane}, 4, 1\nv_lshl_add_u32 v8, v7, 2, v8\nv_lshrrev_b32 v7, 5, {vLane}\nv_lshl_add_u32 v8, v7, 1, v8")
    a(f"s_lshl_b32 s52, s40, 6")
    srd(44,4,1280); srd(48,24,1280)
    a(f"buffer_load_ushort v10, v8, {SA}, s52 offen\nbuffer_load_ushort v11, v8, {SB}, s52 offen")
    a(f"v_lshrrev_b32 v7, 3, {vLane}\nv_mul_u32_u24 v7, 2560, v7\nv_lshl_add_u32 v9, v6, 4, v7")
    a(f"s_lshl_b32 s53, s40, 7\ns_add_u32 s56, s53, {OP}\ns_add_u32 s57, s56, 20480\ns_add_u32 s58, s57, 20480\ns_add_u32 s59, s58, 20480\ns_add_u32 s53, s53, {YP}")
    a("s_waitcnt vmcnt(0)\nv_lshlrev_b32 v10, 16, v10\nv_lshlrev_b32 v11, 16, v11")
    srd(44,26,1280)
    def red4(b):
        a(f"v_permlane32_swap_b32 v{b}, v{b+1}\nv_permlane32_swap_b32 v{b+2}, v{b+3}\nv_add_f32 v{b}, v{b}, v{b+1}\nv_add_f32 v{b+2}, v{b+2}, v{b+3}")
        a(f"v_permlane16_swap_b32 v{b}, v{b+2}\nv_add_f32 v{b}, v{b}, v{b+2}\nv_add_f32_dpp v{b}, v{b}, v{b} row_ror:8 {DP}")
    wait_flag("PUBF",4)
    stamp(9)
    l,ok=loop_head("FS")
    a(f"buffer_load_dwordx4 v[28:31], v9, {WS}, s53 offen sc1")
    for k in range(4): a(f"buffer_load_dwordx4 {vr(12+4*k,4)}, v9, {WS}, s{56+k} offen sc1")
    a(f"""s_waitcnt vmcnt(4)
v_permlane32_swap_b32 v28, v29
v_permlane32_swap_b32 v30, v31
v_add_f32 v28, v28, v29
v_add_f32 v30, v30, v31
s_waitcnt vmcnt(2)
v_pk_add_f32 v[12:13], v[12:13], v[16:17]
v_permlane16_swap_b32 v28, v30
v_add_f32 v28, v28, v30
v_pk_add_f32 v[14:15], v[14:15], v[18:19]
s_waitcnt vmcnt(0)
v_add_f32_dpp v28, v28, v28 row_ror:8 {DP}
v_pk_add_f32 v[20:21], v[20:21], v[24:25]
v_add_f32 v28, v28, v11
v_pk_add_f32 v[22:23], v[22:23], v[26:27]
v_mul_f32 v29, {hex(f2u(-math.log2(math.e)))}, v28
v_pk_add_f32 v[12:13], v[12:13], v[20:21]
v_pk_add_f32 v[14:15], v[14:15], v[22:23]
v_exp_f32 v29, v29
v_permlane32_swap_b32 v12, v13
v_permlane32_swap_b32 v14, v15
v_add_f32 v12, v12, v13
v_add_f32 v14, v14, v15
v_add_f32 v29, 1.0, v29
v_rcp_f32 v29, v29
v_permlane16_swap_b32 v12, v14
v_add_f32 v12, v12, v14
v_mul_f32 v28, v28, v29
v_add_f32_dpp v12, v12, v12 row_ror:8 {DP}
v_cmp_u_f32 vcc, v12, v28
v_fma_f32 v13, v12, v28, v10
s_cbranch_vccnz {l}
{ok}:""")
    a(f"v_cvt_pk_bf16_f32 v13, v13, v13\ns_mov_b32 exec_lo, 0x00ff00ff\ns_mov_b32 exec_hi, 0x00ff00ff\nbuffer_store_short v13, v8, {SA}, s52 offen sc1")
    stamp(10)
    a(f"s_cmp_eq_u32 s40, 0\ns_cbranch_scc0 L_fin\ns_mov_b64 exec, 1\nv_mov_b32 v14, s32\nv_mov_b32 v15, s33\nv_mov_b32 v6, {EPOCH}\nbuffer_store_dwordx2 v[14:15], v6, {WS}, 0 offen sc1")
    if P.get("dbgdelay"):
        a(f"s_memrealtime s[8:9]\ns_waitcnt lgkmcnt(0)\nL_dd:\ns_memrealtime s[10:11]\ns_waitcnt lgkmcnt(0)\ns_sub_u32 s10, s10, s8\ns_cmp_lt_u32 s10, {P['dbgdelay']}\ns_cbranch_scc1 L_dd")
    if P.get("trace"):
        L2=[]
        for x in a.L:
            L2.append(x)
            if x.startswith(("ds_max_u32","ds_write_b32")) and x.endswith(f"v10 offset:{F['CNT']}"):
                L2+=["s_memrealtime s[62:63]","v_readfirstlane_b32 s97, v10","s_waitcnt lgkmcnt(0)","s_lshl_b32 s62, s62, 12","s_or_b32 s62, s62, s97","s_and_b32 s98, s96, 63","s_cmp_lt_u32 s96, 64","s_cselect_b64 vcc, -1, 0","v_mov_b32 v32, s62","v_cmp_eq_u32 s[62:63], s98, v0","s_add_u32 s96, s96, 1","s_and_b64 vcc, vcc, s[62:63]","v_cndmask_b32 v30, v30, v32, vcc","v_cndmask_b32 v31, v31, v32, s[62:63]"]
            if x=="s_setprio 3": L2+=["s_mov_b32 s96, 0","v_mov_b32 v30, 0","v_mov_b32 v31, 0"]
        a.L=L2
    if P.get("allsc1"): a.L=[(x+" sc1" if (x.startswith("buffer_store") and "sc1" not in x) else x) for x in a.L]
    if P.get("nostores"):
        L2=[]; n_=0
        for x in a.L:
            if x.startswith("buffer_store") and WS in x:
                if n_ in P.get("keep",()): L2.append(x)
                n_+=1
            else: L2.append(x)
        a.L=L2
    a("L_fin:")
    if diag:
        stamp(15)
        a("s_load_dwordx2 s[28:29], s[0:1], 104")
        a(f"s_waitcnt lgkmcnt(0) vmcnt(0)\ns_mov_b32 s30, {WSSIZE}\ns_mov_b32 s31, 0x20000\ns_mov_b64 exec, 1")
        if P["wsb"]: a(f"s_add_u32 s28, s28, {P['wsb']}\ns_addc_u32 s29, s29, 0")
        for i in range(16): a(f"v_mov_b32 v{8+i}, s{64+2*i}")
        a(f"v_mov_b32 v24, {sBud}\nv_mov_b32 v6, 0\ns_lshl_b32 s52, {sB}, 3\ns_add_u32 s52, s52, {sW}\ns_lshl_b32 s52, s52, 7\ns_add_u32 s52, s52, {DBG}")
        dfl=P.get("dfl","")
        for i in range(4): a(f"buffer_store_dwordx4 {vr(8+4*i,4)}, v6, {WS}, s52 offen offset:{16*i} {dfl}")
        a(f"buffer_store_dword v24, v6, {WS}, s52 offen offset:64 {dfl}")
        if P.get("trace"):
            a(f"s_cmp_eq_u32 {sW}, 4\ns_cbranch_scc0 L_ntr\ns_mov_b64 exec, -1\nv_lshlrev_b32 v6, 2, v0\ns_lshl_b32 s52, {sB}, 9\ns_add_u32 s52, s52, {DBG+0x40000}\nbuffer_store_dword v30, v6, {WS}, s52 offen\nbuffer_store_dword v31, v6, {WS}, s52 offen offset:256\nL_ntr:")
    a("s_endpgm")
    for f_ in far: a(f_)
    a("L_end:\ns_endpgm")
    body = a.finish(verbose=P.get("verbose",False))
    hdr = open("cdna_kernels/"+NAME+".s.ref").read().split("; Override launch")[0] if P.get("hdr",True) else ""
    return hdr + f"""; Single persistent launch: 256 workgroups (one per CU) x 8 waves; generated by my own script (gen/gen.py).
; @launch grid=(256,1,1) block=(512,1,1) lds={LDS_BYTES}
.amdgcn_target "amdgcn-amd-amdhsa--gfx950"
.text
.globl {NAME}_kernel
.p2align 8
.type {NAME}_kernel,@function
{NAME}_kernel:
{body}
.section .rodata,"a"
.p2align 6
.amdhsa_kernel {NAME}_kernel
  .amdhsa_next_free_vgpr 220
  .amdhsa_next_free_sgpr 100
  .amdhsa_accum_offset 220
  .amdhsa_group_segment_fixed_size 0
  .amdhsa_kernarg_size 112
  .amdhsa_user_sgpr_count 2
  .amdhsa_user_sgpr_kernarg_segment_ptr 1
  .amdhsa_system_sgpr_workgroup_id_x 1
.end_amdhsa_kernel
"""
if __name__=="__main__":
    kw={}
    out="cdna_kernels/"+NAME+".s"
    for arg in sys.argv[1:]:
        k,v=arg.split("=",1)
        if k=="out": out=v
        else:
            try: kw[k]=eval(v)
            except Exception: kw[k]=v
    open(out,"w").write(gen(verbose=True, **kw))
    print("wrote",out,"LDS",LDS_BYTES)
```

```python
import sys, math, struct
from asmlib import Asm
NAME = "recurrent_scan__compressed_kv_cla__dense_activation_gelu__decode"
def f2u(x): return struct.unpack("<I", struct.pack("<f", x))[0]

EPOCH=0; FLG=0x1000; QA=0x4000; HT=0x10000; G=0x24000; OP=G; YP=G+81920; ST=0x40000
REC=0x60000; RP=8192; RM=RP+2048; RE=RM+256; RQ=RE+768; RS=RQ+768; DBG=0x380000; WSSIZE=0x400000
assert REC+256*RS<=DBG
R1=0; R2=49152; R3=R2+51200; SCR=R3+36864
XB=SCR; VEC1A=XB+4096; VEC1F=VEC1A+192; VEC1B=VEC1F+128; VEC2A=VEC1B+192; VEC2B=VEC2A+384; MLB=VEC2B+384
FLAGS=(MLB+2048+255)//256*256
FN = ["CNT","RDB","V1A","V2A","CLR","X0","X1","V1B","V2B","S4M","RDUK","RDA","PUBA","PUBC","PUBD","PUBE","PUBF","PUBB","QISS","DST","CDI","STOK","GISS","S4K","H0","S3K","STR","GOK"]
F = {n:256*i for i,n in enumerate(FN)}
LDS_BYTES = FLAGS+256*len(FN)

Q_=('QISS',4); M_=('S4M',4); K_=('S4K',4); D_=('DST',4); C_=('CDI',1); V_=('V1B',1); S_=('S3K',4)
DEF = dict(sched=[(0,Q_,24),(36,M_,6),(42,K_,24),(66,C_,24)], gA=False, mshare=False, psplit=(8,0), ge2=False, sttrig=('PUBC',2), lateG=0, s1pipe=True, holdP=0, gateA=0, wb=(8,('PUBF',4)), outf='sc1', blate=True, prio=(0,2,3), epochearly=True, latetouch=27, gC=False, fsched=None, T=24, TA=30, TL=24, thrG=54, pauseQ=True, ntA='nt', ntB='nt', nt="nt", diag=False, wsb=0, thrF=30, clrstep=8, gate=True, n1=18, n2=66, thrG2=0, incC=False, mfirst=True, hintA=False, hintC=False, holdG=False, n0=0, ackA=False, ackC=False, s4late=True, ffnfirst=True, fg=(24,84), dtrig=[('STOK',1)], thrQ=150, adual=True,  local=True, stattrig="DST", pref='s', budget=400000, safe=False)

def gen(**kw):
    P = dict(DEF); P.update(kw)
    T=P["T"]; TL=P["TL"]; NT=P["nt"]; diag=P["diag"]
    a = Asm()
    far=[]
    sW,sX,sY,sG,sJ,sB,sV = "s34","s35","s36","s37","s38","s39","s41"
    sBud="s42"; WS="s[28:31]"; SA="s[44:47]"; SB="s[48:51]"
    nst=[0]
    def stamp(i):
        if diag: a(f"s_memrealtime s[{64+2*i}:{65+2*i}]")
    def srd(base, ptr, size):
        a(f"s_mov_b32 s{base}, s{ptr}\ns_mov_b32 s{base+1}, s{ptr+1}\ns_mov_b32 s{base+2}, {size}\ns_mov_b32 s{base+3}, 0x20000")
    vLane="v0"; vL4="v1"; vOne="v2"; vTmp="v3"; vN="v4"; vGl="v5"
    CB=64
    def spin(l):
        a(f"{l}:")
        if P["safe"]: a("s_sub_u32 s99, s99, 1\ns_cbranch_scc1 L_fin")
        if P.get("slp") is not None and l.startswith("WF"): a(f"s_sleep {P['slp']}")
    def wait_flag(name, thr):
        if name=="CNT" and isinstance(thr,int): thr+=CB
        l=a.lab("WF")
        spin(l)
        a(f"ds_read_b32 {vTmp}, {vL4} offset:{F[name]}\ns_waitcnt lgkmcnt(0)\nv_cmp_gt_u32 vcc, {thr}, {vTmp}\ns_cbranch_vccnz {l}")
    def sig(name, v=vOne):
        a(f"ds_add_u32 {vL4}, {v} offset:{F[name]}")
    def loop_head(base, sigs=()):
        l=a.lab(base); g=a.lab("GU"); ok=a.lab("OK")
        a(f"{l}:\ns_sub_u32 {sBud}, {sBud}, 1\ns_cbranch_scc1 {g}")
        far.append(f"{g}:\ns_mov_b32 {sBud}, 0\ns_mov_b64 exec, -1\n"+"".join(f"ds_add_u32 {vL4}, {vOne} offset:{F[n]}\n" for n in sigs)+f"s_nop 7\ns_branch {ok}")
        return l, ok
    def vr(b,n): return f"v[{b}:{b+n-1}]"
    def tag_finish():
        a("s_waitcnt lgkmcnt(0)\ns_add_u32 s32, s32, 0x7f4a7c10\ns_addc_u32 s33, s33, 0x9e3779b9\ns_or_b32 s32, s32, 15")
    def hint_wait(off, base, tp):
        l=a.lab("HW"); ok=a.lab("HK")
        r=lambda i: f"s[{base+2*i}:{base+2*i+1}]"
        a(f"{l}:\ns_load_dwordx8 s[{base}:{base+7}], s[28:29], {off}\ns_add_u32 {off}, {off}, 64\ns_waitcnt lgkmcnt(0)")
        a("\n".join(f"s_xor_b64 {r(i)}, {r(i)}, {tp}" for i in range(4)))
        a(f"s_or_b64 {r(0)}, {r(0)}, {r(1)}\ns_or_b64 {r(2)}, {r(2)}, {r(3)}\ns_or_b64 {r(0)}, {r(0)}, {r(2)}\ns_cbranch_scc0 {ok}")
        a(f"s_and_b32 s{base}, {off}, 0x3c0\ns_cbranch_scc1 {l}\n{ok}:")
    def ghint(pair, stride, base, test):
        l=a.lab("GW"); ok=a.lab("GK")
        r=lambda i: f"s[{base+2*i}:{base+2*i+1}]"
        a(f"s_movk_i32 s98, 200\n{l}:")
        for k in range(8): a(f"s_load_dword s{base+k}, {pair}, {k*stride} glc")
        a(f"s_sub_u32 s98, s98, 1\ns_cbranch_scc1 {ok}\ns_waitcnt lgkmcnt(0)")
        if test=="sentinel":
            a("\n".join(f"s_max_u32 s{base}, s{base}, s{base+k}" for k in range(1,8))+f"\ns_cmp_eq_u32 s{base}, -1\ns_cbranch_scc1 {l}")
        else:
            a("\n".join(f"s_xor_b64 {r(i)}, {r(i)}, {test}" for i in range(4)))
            a(f"s_or_b64 {r(0)}, {r(0)}, {r(1)}\ns_or_b64 {r(2)}, {r(2)}, {r(3)}\ns_or_b64 {r(0)}, {r(0)}, {r(2)}\ns_cbranch_scc1 {l}")
        a(f"{ok}:\ns_waitcnt lgkmcnt(0)")
    def sprefetch(end_o, kb_o, end_f, kb_f):
        nf=a.lab("PN"); dn=a.lab("PD")
        a(f"s_cmp_lt_u32 {sJ}, 5\ns_cbranch_scc0 {nf}")
        for lab,ptr,base,rows_kb,sec,end,kb in ((None,14,f"s_mul_i32 s96, {sG}, 245760\ns_lshl_b32 s97, {sJ}, 8",4,4,end_o,kb_o),(nf,22,f"s_mul_i32 s96, {sX}, 245760\ns_lshl_b32 s97, {sV}, 7",8,2,end_f,kb_f)):
            if lab: a(f"{lab}:\ns_cmp_lt_u32 {sV}, 10\ns_cbranch_scc0 {dn}")
            if kb:
                assert kb%3==0 and 0<=end-kb and end*rows_kb<=192
                l=a.lab("PL"); rpi=12//sec
                a(f"{base}\ns_add_u32 s96, s96, s97\ns_add_u32 s96, s96, {(end-kb)*rows_kb*1280}\ns_add_u32 s96, s96, s{ptr}\ns_addc_u32 s97, s{ptr+1}, 0\ns_movk_i32 s98, {kb*rows_kb//rpi}\n{l}:")
                for r_ in range(rpi):
                    for c_ in range(sec): a(f"s_load_dword s43, s[96:97], {r_*1280+c_*64}")
                a(f"s_add_u32 s96, s96, {rpi*1280}\ns_addc_u32 s97, s97, 0\ns_sub_u32 s98, s98, 1\ns_cmp_lg_u32 s98, 0\ns_cbranch_scc1 {l}")
            if not lab: a(f"s_branch {dn}")
        a(f"{dn}:\ns_waitcnt lgkmcnt(0)")
    def xreduce(op, v, t):
        a(f"v_mov_b32 {t}, {v}\nv_permlane16_swap_b32 {v}, {t}\n{op} {v}, {v}, {t}")
        a(f"v_mov_b32 {t}, {v}\nv_permlane32_swap_b32 {v}, {t}\n{op} {v}, {v}, {t}")
    DP="row_mask:0xf bank_mask:0xf"
    def rowreduce(op, v, steps=("quad_perm:[1,0,3,2]","quad_perm:[2,3,0,1]","row_half_mirror","row_mirror")):
        for s in steps: a(f"{op}_dpp {v}, {v}, {v} {s} {DP}")

    vW,vK,vF,vO,vC,vT,vA0,vA1,vA2,vP,vTR = "v6","v7","v8","v9","v10","v11","v12","v13","v14","v15","v16"
    CS=P["clrstep"]
    def ids():
        a(f"s_and_b32 {sX}, s2, 7\ns_lshr_b32 {sY}, s2, 3\ns_lshl_b32 {sB}, {sX}, 5\ns_or_b32 {sB}, {sB}, {sY}\ns_lshr_b32 {sG}, {sB}, 3\ns_and_b32 {sJ}, {sY}, 7")
    def ids2():
        if diag:
            for i in range(1,16):
                if i not in (8,9) : a(f"s_mov_b32 s{64+2*i}, 0")
        if P["safe"]: a("s_mov_b32 s99, 2000000")
        a(f"s_and_b32 {sV}, {sG}, 3\ns_lshl2_add_u32 {sV}, {sJ}, {sV}\ns_sub_u32 {sV}, {sV}, 20")
        a(f"v_lshlrev_b32 {vL4}, 2, {vLane}\nv_add_u32 {vL4}, {FLAGS}, {vL4}")
    if P.get("skewinj"):
        a(f"s_and_b32 s52, s2, 6\ns_cmp_eq_u32 s52, 4\ns_cbranch_scc0 L_nsk\ns_sleep {P['skewinj']}\nL_nsk:")
    a("s_load_dwordx16 s[4:19], s[0:1], 0")
    stamp(0)
    a(f"v_readfirstlane_b32 {sW}, v0\ns_load_dwordx2 s[28:29], s[0:1], 104\ns_cmp_ge_u32 s2, 256\ns_cbranch_scc1 L_end")
    if P["pref"]=="v":
        a(f"s_getpc_b64 s[52:53]\nL_pc:\nv_lshlrev_b32 v1, 7, v0\nv_subrev_u32 v1, 8192, v1\nv_cmp_gt_u32 vcc, L_end-L_pc, v1\ns_and_saveexec_b64 s[54:55], vcc\ns_cbranch_execz L_np\nglobal_load_dword v207, v1, s[52:53]\nL_np:\ns_mov_b64 exec, -1")
    ids()
    if P["pref"]=="s":
        a(f"s_lshr_b32 {sW}, {sW}, 6\ns_cbranch_scc0 L_loader\ns_getpc_b64 s[52:53]\nL_pc:\ns_mul_i32 s54, {sY}, 7\ns_add_u32 s54, s54, {sW}\ns_lshl_b32 s54, s54, 7\ns_min_u32 s54, s54, L_end-L_pc-64")
        a("s_load_dword s56, s[52:53], s54\ns_add_u32 s54, s54, 64\ns_load_dword s57, s[52:53], s54\ns_branch L_notloader\nL_loader:")
    else: a(f"s_lshr_b32 {sW}, {sW}, 6\ns_cbranch_scc1 L_notloader")

    a(f"v_lshrrev_b32 {vP}, 3, {vLane}\nv_and_b32 {vT}, 6, {vP}\nv_xor_b32 {vTR}, {vT}, {vLane}\nv_and_b32 {vTR}, 7, {vTR}\nv_lshlrev_b32 {vTR}, 4, {vTR}")
    a(f"v_mul_u32_u24 {vK}, 12288, {vP}\nv_add_u32 {vW}, {vK}, {vTR}\nv_lshlrev_b32 {vA0}, 4, {vLane}")
    a(f"s_mul_i32 s52, {sJ}, {80*12288}\ns_mul_i32 s53, {sG}, 384\ns_add_u32 s52, s52, s53")
    a(f"s_mov_b32 m0, {XB}\ns_mov_b32 s46, {640*12288}\ns_mov_b32 s47, 0x20000\ns_mov_b32 s51, 0x20000\ns_movk_i32 s50, 1280")
    a(f"s_movk_i32 s56, 896\ns_movk_i32 s57, 1280\ns_and_b32 s62, s2, {(~(7*CS))&0xff}")
    if P["lateG"]==-1:
        assert not P["wsb"]
        a(f"v_mov_b64 v[24:25], -1\nv_mov_b64 v[26:27], -1\ns_mov_b32 s30, {G+102400}\ns_mov_b32 s31, 0x20000\ns_lshl_b32 s54, s2, 10\ns_add_u32 s54, s54, {G}\ns_cmp_lg_u32 s62, 0")
    a("s_waitcnt lgkmcnt(0)")
    if P["lateG"]==-1: a(f"buffer_store_dwordx4 v[24:27], {vA0}, {WS}, s54 offen sc1")
    stamp(8)
    a("s_mov_b64 s[48:49], s[4:5]\ns_mov_b64 s[44:45], s[8:9]\ns_cbranch_scc0 L_qa\nL_nqa:")
    a(f"buffer_load_dwordx4 {vA0}, {SB}, 0 offen lds\nbuffer_load_dwordx4 {vA0}, {SB}, 0 offen offset:1024 lds\ns_mov_b32 m0, {R2}")
    stamp(9)
    def pub(iss='s61'):
        a(f"s_getreg_b32 s63, hwreg(HW_REG_IB_STS)\ns_bfe_u32 s62, s63, 0x20016\ns_and_b32 s63, s63, 15\ns_lshl4_add_u32 s63, s62, s63\ns_sub_u32 s63, {iss}, s63\nv_mov_b32 v23, s63\nds_max_u32 {vL4}, v23 offset:{F['CNT']}")
    def cpub(k):
        if P.get("exact"): pub()
        else: a(f"s_sub_u32 s63, s61, {k}\nv_mov_b32 v23, s63\nds_max_u32 {vL4}, v23 offset:{F['CNT']}")
    def wait_pub(name, thr):
        l=a.lab("WP")
        spin(l); pub()
        a(f"ds_read_b32 {vTmp}, {vL4} offset:{F[name]}\ns_waitcnt lgkmcnt(0)\nv_cmp_gt_u32 vcc, {thr}, {vTmp}\ns_cbranch_vccnz {l}")
    def seg384(srdq, vaddr, soff, step, m0end, thr, xor=False, d1="s56", d2="s57"):
        l=a.lab("SG")
        a(f"{l}:")
        v=vaddr
        if xor:
            a(f"v_xor_b32 {vT}, s55, {vaddr}\ns_add_u32 s55, s55, 32\ns_and_b32 s55, s55, 0x60"); v=vT
        if thr:
            a(f"s_waitcnt vmcnt({thr-3})"); cpub(thr-3)
        a(f"buffer_load_dwordx4 {v}, {srdq}, {soff} offen {NT} lds\ns_add_u32 m0, m0, {d1}")
        if thr: a(f"s_add_u32 s61, s61, 3")
        a(f"buffer_load_dwordx4 {v}, {srdq}, {soff} offen offset:128 {NT} lds\ns_add_u32 m0, m0, {d1}")
        a(f"buffer_load_dwordx4 {v}, {srdq}, {soff} offen offset:256 {NT} lds\ns_add_u32 m0, m0, {d2}")
        a(f"s_add_u32 {soff}, {soff}, {step}\ns_cmp_lg_u32 m0, {m0end}\ns_cbranch_scc1 {l}")
    if P.get("unrollq",True):
        a("s_mov_b32 s55, 98304")
        for r_ in range(10):
            a(f"buffer_load_dwordx4 {vW}, {SA}, s52 offen {NT} lds\ns_add_u32 m0, m0, s56\ns_nop 0\nbuffer_load_dwordx4 {vW}, {SA}, s52 offen offset:128 {NT} lds\ns_add_u32 m0, m0, s56\ns_nop 0\nbuffer_load_dwordx4 {vW}, {SA}, s52 offen offset:256 {NT} lds")
            if r_<9: a("s_add_u32 m0, m0, s57\ns_add_u32 s52, s52, s55")
    else: seg384(SA, vW, "s52", 98304, R2+30720, None)
    a("s_branch L_ld2")
    a(f"L_qa:\ns_mov_b32 s30, {WSSIZE}\ns_mov_b32 s31, 0x20000")
    if P["wsb"]: a(f"s_add_u32 s28, s28, {P['wsb']}\ns_addc_u32 s29, s29, 0")
    a(f"s_load_dwordx2 s[32:33], s[28:29], {EPOCH}\nv_mov_b64 v[24:25], -1\nv_mov_b64 v[26:27], -1")
    a(f"s_mul_i32 s54, s2, {6144//CS}\ns_add_u32 s54, s54, {QA}\ns_add_u32 s55, s54, 4096")
    for k in range(6): a(f"buffer_store_dwordx4 v[24:27], {vA0}, {WS}, s{54+(k>>2)} offen offset:{1024*(k&3)} sc1")
    a("s_branch L_nqa")
    a("L_notloader:")
    a(f"s_load_dwordx8 s[20:27], s[0:1], 64\ns_xor_b32 {sW}, {sW}, 4\nv_and_b32 v0, 63, v0")
    if diag: a("s_mov_b32 s80, 0\ns_mov_b32 s82, 0")
    ids2()
    a("s_branch L_others")
    a(f"L_ld2:\ns_setprio {P['prio'][2]}\ns_load_dwordx8 s[20:27], s[0:1], 64\ns_mov_b32 {sW}, 4")
    ids2()
    stamp(1)
    a("s_waitcnt lgkmcnt(0)")
    a(f"v_bfe_u32 {vT}, {vLane}, 4, 1\nv_xor_b32 {vT}, {vT}, {vLane}\nv_and_b32 {vT}, 7, {vT}\nv_lshl_add_u32 {vK}, {vT}, 4, {vK}")
    a(f"s_mul_i32 s52, {sJ}, {96*12288}\ns_add_u32 s52, s52, s53\ns_mov_b32 s54, s52\ns_mov_b32 s55, 0")
    a(f"s_mov_b32 s44, s10\ns_mov_b32 s45, s11\ns_mov_b32 s46, {768*12288}\ns_mov_b32 m0, {R3}")
    a(f"s_movk_i32 s61, {CB+30}")
    a("s_waitcnt vmcnt(30)\ns_barrier")
    a(f"s_cmp_eq_u32 s62, 0\ns_cbranch_scc0 L_nfl")
    tag_finish()
    a(f"s_mov_b32 s30, {WSSIZE}\ns_mov_b32 s31, 0x20000\nv_mov_b32 v24, s32\nv_mov_b32 v25, s33\ns_mul_i32 s63, s2, {128//CS}\ns_add_u32 s63, s63, {FLG}\ns_mov_b64 exec, 15")
    a(f"buffer_store_dwordx4 v[24:27], {vA0}, {WS}, s63 offen sc1\ns_mov_b64 exec, -1\nL_nfl:")
    a(f"v_lshrrev_b32 {vT}, 5, {vLane}\nv_lshlrev_b32 {vT}, 4, {vT}\nv_xor_b32 {vA1}, {vA0}, {vT}\nv_xor_b32 {vA2}, 16, {vA0}")
    for t in range(3):
        a(f"v_add_u32 v17, {64*t}, {vLane}\nv_mul_u32_u24 v18, 0x5556, v17\nv_lshrrev_b32 v18, 18, v18\nv_mul_u32_u24 v19, 12, v18\nv_sub_u32 v17, v17, v19")
        a(f"v_lshrrev_b32 v19, 1, v18\nv_and_b32 v18, 1, v18\nv_lshl_add_u32 v18, v19, 5, v18\nv_and_b32 v19, 2, v19\nv_xor_b32 v17, v17, v19\nv_mul_u32_u24 v18, 1536, v18\nv_lshl_add_u32 v{20+t}, v17, 4, v18")
        if P.get("b16"):
            a(f"v_add_u32 v17, {64*t}, {vLane}\nv_mul_u32_u24 v18, 0xaaab, v17\nv_lshrrev_b32 v18, 18, v18\nv_mul_u32_u24 v19, 6, v18\nv_sub_u32 v17, v17, v19")
            a(f"v_lshrrev_b32 v19, 1, v18\nv_and_b32 v18, 1, v18\nv_lshl_add_u32 v18, v19, 5, v18\nv_mul_u32_u24 v18, 1536, v18\nv_lshl_add_u32 v{20+t}, v17, 4, v18")
        if P.get("bfull"):
            a(f"v_lshrrev_b32 v18, 3, {vLane}\nv_lshrrev_b32 v19, 1, v18\nv_and_b32 v18, 1, v18\nv_lshl_add_u32 v18, v19, 5, v18\nv_mul_u32_u24 v18, 1536, v18\nv_and_b32 v17, 7, {vLane}\nv_lshl_add_u32 v{20+t}, v17, 4, v18")
            a(f"s_and_b32 s63, {sJ}, 1")
            if t<2: a(f"s_lshl_b32 s63, s63, 8\ns_add_u32 s63, s63, {t*128*1536+2048}")
            else: a(f"s_mul_i32 s63, s63, {128*1536}\ns_add_u32 s63, s63, {128+2048}")
            a(f"v_add_u32 v{20+t}, s63, v{20+t}")
        if t: a(f"v_subrev_u32 v{20+t}, {1024*t}, v{20+t}")
    a(f"v_mul_u32_u24 {vO}, 1280, {vP}\nv_add_u32 {vO}, {vO}, {vTR}\nv_mul_u32_u24 {vF}, 3072, {vP}\nv_add_u32 {vF}, {vF}, {vTR}")
    a(f"s_mov_b32 s48, s6\ns_mov_b32 s49, s7\ns_mov_b32 s50, {8192*1536}")
    a(f"s_mul_i32 s58, {sG}, {256*1536}\ns_mul_i32 s53, {sJ}, 192\ns_add_u32 s58, s58, s53\ns_mov_b32 s59, {R1}\ns_mov_b32 s60, {R2}")
    if P.get("bfull"): a(f"s_mul_i32 s58, {sG}, {256*1536}\ns_lshr_b32 s53, {sJ}, 1\ns_mul_i32 s53, s53, 384\ns_add_u32 s58, s58, s53\ns_max_u32 s58, s58, 2048\ns_sub_u32 s58, s58, 2048")
    if P.get("b16"): a(f"s_lshr_b32 s58, {sB}, 4\ns_mul_i32 s58, s58, {512*1536}\ns_and_b32 s53, {sB}, 15\ns_mul_i32 s53, s53, 96\ns_add_u32 s58, s58, s53")
    if P["holdP"]:
        assert 0<P["holdP"]<36 and P["holdP"]%3==0
        seg384(SA, vK, "s52", 98304, R3+1024*P["holdP"], P.get("T0",T), xor=True)
        wait_pub("PUBA",3)
    seg384(SA, vK, "s52", 98304, R3+36864, T, xor=True)
    stamp(2)
    TA=P["TA"]; NA=P["ntA"]; NB=P["ntB"]
    def drain(tgt):
        l=a.lab("DR")
        spin(l); pub(); a(f"s_sub_u32 s63, s61, s63\ns_cmp_gt_u32 s63, {tgt}\ns_cbranch_scc1 {l}")
    a(f"s_mul_i32 s52, {sB}, 49152")
    if T>P.get("holdA",18): drain(P.get("holdA",18))
    wait_pub(*(("GISS",1) if P["holdG"] else ("PUBA",3)))
    def segAB(nst, ex, TA=TA):
        l=a.lab("SA")
        a(f"{l}:\nv_xor_b32 v17, s55, {vA0}\nv_xor_b32 v18, s55, {vA1}\nv_xor_b32 v19, s55, {vA2}\ns_mov_b32 m0, s59")
        a(f"s_waitcnt vmcnt({TA-6})")
        if ex: pub()
        else: cpub(TA-6)
        a(f"buffer_load_dwordx4 v17, {SB}, s52 offen {NA} lds\nbuffer_load_dwordx4 v18, {SB}, s52 offen offset:1024 {NA} lds\nbuffer_load_dwordx4 v19, {SB}, s52 offen offset:2048 {NA} lds")
        a(f"s_mov_b32 m0, s60\ns_add_u32 s61, s61, 6")
        for t in range(3): a(f"buffer_load_dwordx4 v{20+t}, {SB}, {'s58' if not P.get('bnone') else 's50'} offen offset:{1024*t} {NB} lds")
        a(f"s_add_u32 s55, s55, 32\ns_and_b32 s55, s55, 0xe0\ns_add_u32 s52, s52, 3072\ns_add_u32 s58, s58, 3072\ns_add_u32 s60, s60, 3200\ns_add_u32 s59, s59, 3072")
        a(f"s_cmp_lg_u32 s59, {R1+3072*nst}\ns_cbranch_scc1 {l}")
    if P["gateA"]:
        assert 0<P["gateA"]<16
        segAB(P["gateA"], True); wait_pub("V2A",1)
    if P.get("gateQ"):
        n_=P["gateQ"]
        assert P["gateA"]<n_<16 and P["thrQ"]<=66+6*n_ and not P.get("TA2")
        segAB(n_, P["holdG"] or P["gateA"]); wait_pub("QISS",4); segAB(16, False, P.get("TA3",TA))
    elif P.get("TA2"):
        n_,t_=P["TA2"]
        assert P["gateA"]<n_<16 and t_%6==0
        segAB(n_, P["holdG"] or P["gateA"]); segAB(16, P.get("exA",False), t_)
    else: segAB(16, P["holdG"] or P["gateA"])
    stamp(3)
    a(f"s_mov_b32 s44, s12\ns_mov_b32 s45, s13\ns_mov_b32 m0, {R3}")
    FF=True
    def check(sc):
        at=[x[0] for x in sc]
        assert at[0]==0 and at==sorted(set(at)) and all(x%3==0 for x in at) and all(3<x[2]<=60 and x[2]%3==0 for x in sc)
        return sc
    sched=check(P["sched"]); fsched=check(P.get("fsched") or P["sched"])
    if sched[0][1]!=("QISS",4):
        drain(sched[0][2]-3); wait_pub("RDUK",3)
    stamp(4)
    def late(sc, done, n, emit):
        tl=[x[2] for x in sc if x[0]<=done][-1]
        for at,fl,t_ in sc:
            if done<at<done+n: emit(at-done, tl)
            if done<=at<done+n:
                if fl: wait_pub(*fl)
                tl=t_
        emit(n, tl)
    def seg_wo(k, TL):
        assert k%6==0
        l=a.lab("SO")
        a(f"{l}:")
        for i in range(6):
            if i%3==0: a(f"s_waitcnt vmcnt({TL-3})"); cpub(TL-3)
            if i%2==0:
                a(f"buffer_load_dwordx4 {vO}, {SB}, s52 offen {NT} lds\ns_add_u32 m0, m0, s56")
            else:
                a(f"buffer_load_dwordx4 {vO}, {SB}, s52 offen offset:128 {NT} lds\ns_add_u32 m0, m0, 1152\ns_add_u32 s52, s52, 10240")
            if i%3==0: a(f"s_add_u32 s61, s61, 3")
        a(f"s_cmp_lg_u32 m0, {R1+1024*k}\ns_cbranch_scc1 {l}")
    def seg_w2(k, TL):
        l=a.lab("S2")
        a(f"{l}:\ns_waitcnt vmcnt({TL-3})"); cpub(TL-3)
        for i in range(3):
            a(f"buffer_load_dwordx4 {vO}, {SB}, s52 offen {NT} lds\ns_add_u32 m0, m0, 2048\ns_add_u32 s52, s52, 10240")
        a(f"s_add_u32 s61, s61, 3\ns_cmp_lg_u32 m0, {R2+2048*k}\ns_cbranch_scc1 {l}")
    a(f"s_cmp_lt_u32 {sV}, 10\ns_cbranch_scc0 L_noff")
    a(f"s_mul_i32 s52, {sV}, {64*3072}\ns_mul_i32 s53, {sX}, 384\ns_add_u32 s52, s52, s53")
    a(f"s_mov_b32 s48, s18\ns_mov_b32 s49, s19\ns_mov_b32 s50, {640*3072}")
    late(fsched, 0, 24, lambda k,t_: seg384(SB, vF, "s52", 24576, R3+1024*k, t_))
    a(f"s_mul_i32 s52, {sX}, 245760\ns_lshl_b32 s53, {sV}, 7\ns_add_u32 s52, s52, s53")
    a(f"s_mov_b32 s48, s22\ns_mov_b32 s49, s23\ns_mov_b32 s50, {1536*1280}\ns_mov_b32 m0, {R1}")
    wait_pub("RDA",4)
    late(fsched, 24, 36, lambda k,t_: seg384(SA, vW, "s54", 98304, R1+1024*k, t_))
    a(f"s_mov_b32 m0, {R2}")
    wait_pub("RDB",4)
    late(fsched, 60, 24, seg_w2)
    a("s_branch L_drain\nL_noff:")
    a(f"s_mul_i32 s52, {sG}, 245760\ns_lshl_b32 s53, {sJ}, 8\ns_add_u32 s52, s52, s53")
    a(f"s_mov_b32 s48, s14\ns_mov_b32 s49, s15\ns_mov_b32 s50, {6144*1280}")
    late(sched, 0, 36, lambda k,t_: seg384(SA, vW, "s54", 98304, R3+1024*k, t_))
    stamp(5)
    a(f"s_mov_b32 m0, {R1}\ns_cmp_lt_u32 {sJ}, 5\ns_cbranch_scc0 L_drain")
    wait_pub("RDA",4)
    late(sched, 36, 48, seg_wo)
    a("L_drain:")
    stamp(6)
    drain(6)
    a(f"v_mov_b32 {vC}, s61\ns_waitcnt vmcnt(0)\nds_write_b32 {vL4}, {vC} offset:{F['CNT']}")
    stamp(7)
    if P.get("wb"):
        n_,fl=P["wb"]
        a(f"s_cmp_lt_u32 s2, {n_}\ns_cbranch_scc0 L_fin")
        wait_flag(*fl)
        a("buffer_wbl2 sc1\ns_waitcnt vmcnt(0)")
        stamp(10)
    a("s_branch L_fin")

    a("L_others:")
    a(f"v_and_b32 {vN}, 15, {vLane}\nv_lshrrev_b32 {vGl}, 4, {vLane}\nv_mov_b32 {vOne}, 1\ns_mov_b32 {sBud}, {P['budget']}")
    a(f"s_mov_b32 s30, {WSSIZE}\ns_mov_b32 s31, 0x20000\ns_waitcnt lgkmcnt(0)")
    if P["wsb"]: a(f"s_add_u32 s28, s28, {P['wsb']}\ns_addc_u32 s29, s29, 0")
    a(f"s_load_dwordx2 s[32:33], s[28:29], {EPOCH}")
    a(f"s_cmp_eq_u32 {sW}, 5\ns_cbranch_scc1 L_w5\ns_cmp_eq_u32 {sW}, 6\ns_cbranch_scc1 L_w6\ns_cmp_eq_u32 {sW}, 7\ns_cbranch_scc1 L_w7")

    def trcore(dst, t):
        a(f"v_bfe_u32 {t}, {vLane}, 2, 3\nv_lshlrev_b32 {dst}, 7, {t}\nv_lshrrev_b32 {t}, 1, {t}\nv_lshl_add_u32 {dst}, {t}, 5, {dst}\nv_and_b32 {t}, 3, {vLane}\nv_lshl_add_u32 {dst}, {t}, 3, {dst}")
    MASKT=[f"s[{56+2*t}:{57+2*t}]" for t in range(4)]
    def masks():
        for t in range(4): a(f"s_mov_b32 s{56+2*t}, {0x00010001<<t}\ns_mov_b32 s{57+2*t}, {0x00010001<<t}")
    def mstore(txt):
        wt="\n".join(x+" sc1" if x.startswith("buffer_store") else x for x in txt.split("\n"))
        if not P["local"]:
            a(wt); return
        r=a.lab("RM"); bk=a.lab("BK")
        a(f"s_cbranch_scc0 {r}\n{txt}\n{bk}:")
        far.append(f"{r}:\ns_nop 7\n{wt}\ns_nop 1\ns_branch {bk}")
    def publish4(acc, vS, vAddr, soff, imm=0, mode=False):
        for t in range(4):
            a(f"s_mov_b64 exec, {MASKT[t]}\nv_cvt_pk_bf16_f32 v{vS}, v{acc+4*t}, v{acc+4*t+1}\nv_cvt_pk_bf16_f32 v{vS+1}, v{acc+4*t+2}, v{acc+4*t+3}")
        a(f"s_mov_b32 exec_lo, 0x000f000f\ns_mov_b32 exec_hi, 0x000f000f")
        txt=f"buffer_store_dwordx4 {vr(vS,4)}, {vAddr}, {WS}, {soff} offen offset:{imm}"
        if mode=="plain": a(txt)
        elif mode: mstore(txt)
        else: a(txt+" sc1")
        a("s_mov_b64 exec, -1")

    a('; ======== W0..W3 main')
    FR=64; QR=16; AC=160; vS=176
    vT1=[f"v{180+t}" for t in range(4)]; vVec="v184"; vPub="v185"; vU=["v186","v187"]; vA=[f"v{188+t}" for t in range(4)]
    vLin="v192"; vB=["v193","v194","v199"]; vPl="v195"; vMl="v196"; vBp="v197"; vC4="v198"; vT6=["v200","v201"]; vCore="v202"; vSt="v203"; vXa="v204"; vM0="v205"; vQa="v208"
    sHH="s52"; sKH="s53"
    a(f"s_cmp_eq_u32 {sW}, 0\ns_cbranch_scc0 L_nz")
    a(f"v_lshlrev_b32 v6, 4, {vLane}\nv_add_u32 v6, {FLAGS}, v6\nv_mov_b32 v8, 0\nv_mov_b32 v9, 0\nv_mov_b32 v10, 0\nv_mov_b32 v11, 0")
    extra = P["gC"] or P["lateG"]==3 or ("STR",1) in P["dtrig"] or any(x[1]==S_ for x in P["sched"])
    for i in range(len(FN)//4 if extra else 6): a(f"ds_write_b128 v6, v[8:11] offset:{1024*i}")
    a("L_nz:")
    if P['prio'][0]: a(f"s_setprio {P['prio'][0]}")
    a(f"s_and_b32 {sHH}, {sW}, 1\ns_lshr_b32 {sKH}, {sW}, 1")
    masks()
    trcore(vCore, vTmp)
    a(f"v_lshrrev_b32 v6, 5, {vLane}")
    a(f"s_lshl_b32 s54, {sW}, 10\ns_add_u32 s54, s54, {R2}\nv_mul_u32_u24 v7, 3072, v6\nv_add3_u32 {vT1[0]}, {vCore}, v7, s54")
    for t in range(1,4): a(f"v_xor_b32 {vT1[t]}, {32*t}, {vT1[0]}")
    a(f"s_lshl_b32 s54, {sKH}, 10\ns_lshl_b32 s55, {sHH}, 6\nv_lshlrev_b32 v7, 11, v6\nv_add3_u32 {vT6[0]}, {vCore}, v7, s54\nv_xor_b32 {vT6[0]}, s55, {vT6[0]}\nv_xor_b32 {vT6[1]}, 32, {vT6[0]}")
    a(f"v_lshlrev_b32 {vVec}, 4, {vGl}\nv_add_u32 {vVec}, {VEC1A}, {vVec}")
    a(f"v_lshlrev_b32 {vPub}, 6, {vGl}\nv_lshl_add_u32 {vPub}, {vN}, 4, {vPub}")
    a(f"v_lshlrev_b32 {vLin}, 4, {vLane}")
    a(f"v_lshrrev_b32 v7, 1, {vN}\nv_lshlrev_b32 {vQa}, 6, v7\nv_and_b32 v7, 1, {vN}\nv_lshl_add_u32 {vQa}, v7, 4, {vQa}\nv_and_b32 v7, 1, {vGl}\nv_lshl_add_u32 {vQa}, v7, 5, {vQa}\nv_lshl_add_u32 {vQa}, v6, 10, {vQa}")
    a(f"s_mul_i32 s54, {sW}, 12288\ns_add_u32 s54, s54, {R3}\nv_lshrrev_b32 v7, 2, {vN}\nv_mul_u32_u24 v7, 3072, v7\nv_and_b32 v8, 3, {vN}\nv_lshl_add_u32 v7, v8, 7, v7")
    a(f"v_lshrrev_b32 v8, 1, {vN}\nv_xor_b32 v8, v8, {vGl}\nv_lshlrev_b32 v8, 4, v8\nv_add3_u32 {vU[0]}, v7, v8, s54\nv_xor_b32 {vU[1]}, 64, {vU[0]}")
    a(f"s_mul_i32 s54, {sKH}, 768\nv_mul_u32_u24 v7, 1536, {vN}\nv_lshlrev_b32 v8, 1, {vGl}\nv_xor_b32 v8, {vN}, v8\nv_lshlrev_b32 v8, 4, v8\nv_add3_u32 {vA[0]}, v7, v8, s54")
    for t in range(1,4): a(f"v_xor_b32 {vA[t]}, {128*(t>>1)+16*(t&1)}, {vA[0]}")
    a(f"v_bfe_u32 v7, {vN}, 3, 1\nv_mul_u32_u24 v7, 3200, v7\nv_bfe_u32 v8, {vN}, 2, 1\nv_mul_u32_u24 v8, 192, v8\nv_mul_u32_u24 v9, 768, {vGl}\nv_add3_u32 v7, v7, v8, v9")
    a(f"v_and_b32 v8, 3, {vN}\nv_lshl_add_u32 v7, v8, 3, v7\nv_add_u32 v7, {R2}, v7\nv_and_b32 v9, 1, {vGl}\nv_lshlrev_b32 v9, 5, v9")
    a(f"s_lshl_b32 s54, {sKH}, 6\nv_add3_u32 {vB[0]}, v7, v9, s54\nv_xor_b32 v10, 32, v9\nv_add3_u32 {vB[1]}, v7, v10, s54")
    a(f"s_lshl_b32 s54, {sKH}, 5\nv_xor_b32 v10, s54, v9\nv_add_u32 v10, 128, v10\nv_add_u32 {vB[2]}, v7, v10")
    a(f"v_mul_u32_u24 v7, {2*RS}, {vGl}\nv_lshl_add_u32 {vPl}, {vN}, 4, v7\nv_lshlrev_b32 {vM0}, 2, {vN}\nv_add_u32 {vMl}, {vM0}, v7")
    a(f"v_lshrrev_b32 v7, 2, {vLane}\nv_lshl_add_u32 {vBp}, v8, 4, v7\nv_lshlrev_b32 {vBp}, 2, {vBp}")
    a(f"v_mul_u32_u24 v7, {8*RS}, v7\nv_lshl_add_u32 {vC4}, v8, 4, v7")
    a(f"s_lshl_b32 s54, {sHH}, 11\ns_add_u32 s54, s54, {XB}\nv_add_u32 {vXa}, s54, {vLin}")
    if P.get("spf3"): a("s_mov_b64 s[26:27], s[14:15]\ns_mov_b64 s[24:25], s[22:23]")
    oQ,oQA,oQL,oP,oM,oPL,oML,oCL,oE,oUV,tUV,oF,t6 = "s4","s5",("s6","s7","s8"),"s9","s10",("s11","s12"),("s13","s14"),"s15","s16","s17","s18","s54","s19"
    a(f"s_mul_i32 s20, {sB}, {RS}\ns_add_u32 s20, s20, {REC}\ns_lshl_b32 s55, {sW}, 8\ns_add_u32 s21, s20, s55\ns_add_u32 {oQ}, s21, {RQ}\ns_add_u32 {oE}, s21, {RE}")
    a(f"s_lshl_b32 s22, {sHH}, 10\ns_add_u32 s22, s22, {RP}\ns_lshl_b32 s23, {sHH}, 7\ns_add_u32 s23, s23, {RM}\ns_add_u32 {oP}, s20, s22\ns_add_u32 {oM}, s20, s23")
    a(f"s_mul_i32 s20, {sG}, {8*RS}\ns_add_u32 s20, s20, {REC}\ns_add_u32 {oPL[0]}, s20, s22\ns_add_u32 {oPL[1]}, {oPL[0]}, {RS}\ns_add_u32 {oML[0]}, s20, s23\ns_add_u32 {oML[1]}, {oML[0]}, {RS}")
    a(f"s_lshr_b32 s20, {sG}, 4\ns_mul_i32 s20, s20, 24\ns_mul_i32 s55, {sJ}, 3\ns_add_u32 s55, s55, {sW}\ns_add_u32 s20, s20, s55\ns_lshl_b32 s20, s20, 10")
    a(f"s_bfe_u32 s55, {sG}, 0x30001\ns_and_b32 s21, {sG}, 1\ns_lshl3_add_u32 s55, s21, s55\ns_lshl_b32 s55, s55, 6\ns_add_u32 s20, s20, s55\ns_add_u32 {oQA}, s20, {QA}")
    a(f"s_lshl1_add_u32 s20, {sHH}, {sKH}\ns_mul_i32 s20, s20, 12288\ns_add_u32 {oQL[0]}, s20, {QA}\ns_add_u32 {oQL[1]}, {oQL[0]}, 4096\ns_add_u32 {oQL[2]}, {oQL[0]}, 8192")
    a(f"s_lshl_b32 s20, {sHH}, 7\ns_add_u32 s20, s20, {sJ}\ns_mul_i32 s20, s20, {RS}\ns_lshl_b32 s55, {sKH}, 7\ns_add_u32 s20, s20, s55\ns_add_u32 s20, s20, {REC}")
    a(f"s_and_b32 s55, {sG}, 24\ns_bfe_u32 s21, {sG}, 0x20001\ns_or_b32 s55, s55, s21\ns_and_b32 s21, {sG}, 1\ns_lshl2_add_u32 s55, s21, s55\ns_lshl_b32 s55, s55, 8\ns_add_u32 {oCL}, s20, s55")
    a(f"s_mul_i32 {oF}, {sG}, 2560\ns_lshl_b32 s55, {sJ}, 9\ns_add_u32 {oF}, {oF}, s55\ns_lshl_b32 s55, {sW}, 7\ns_add_u32 {oF}, {oF}, s55\ns_add_u32 {oF}, {oF}, {OP}\ns_movk_i32 {t6}, {222+CB}")
    a(f"s_mov_b32 s48, 0x00800080\ns_mov_b32 s49, 0x437f0000\ns_lshl_b32 s55, {sHH}, 8\nv_add_u32 v6, s55, {vL4}")
    a(f"s_lshl_b32 s55, {sHH}, 9\ns_add_u32 s55, s55, {MLB}\nv_lshl_add_u32 {vSt}, {vLane}, 3, s55")
    if P["mshare"]: a(f"v_mov_b64 v[8:9], -1\nds_write_b64 {vSt}, v[8:9] offset:1024")
    tag_finish()
    CT=212
    a(f"s_getreg_b32 s55, hwreg(HW_REG_XCC_ID, 0, 4)\ns_xor_b32 s55, s55, s32\nv_mov_b32 v{vS+2}, s55\nv_mov_b32 v{vS+3}, s33")
    a(f"s_and_b32 s55, s32, 0xbfffbfff\nv_mov_b32 v{CT+3}, s55\nv_mov_b32 v{CT+7}, s55")
    oH,oHW="s17","s18"
    if P["hintC"]: a(f"s_lshl_b32 {oH}, {sG}, 11\ns_lshl_b32 s55, {sHH}, 5\ns_add_u32 {oH}, {oH}, s55\ns_add_u32 {oH}, {oH}, {HT+1024}\ns_lshl2_add_u32 {oHW}, {sJ}, {oH}\nv_lshlrev_b32 v209, 6, {vLane}\ns_mov_b32 s44, s32\ns_mov_b32 s45, s32")
    a("s_barrier")
    a(f"s_cmp_eq_u32 {sW}, 3\ns_cbranch_scc1 {'L_w3p' if P.get('spf3') else 'L_s3'}")
    a('; ---- S1: q partial')
    if P.get("pretQA") is not None: a(f"s_mov_b64 exec, 1\nbuffer_load_dword v206, {vLin}, {WS}, {oQA} offen {P['pretQA']}\ns_mov_b64 exec, -1")
    wait_flag("V1A",1)
    for s in range(2): a(f"ds_read_b128 {vr(QR+4*s,4)}, {vVec} offset:{64*s}")
    a(f"ds_read_b64 {vr(QR+8,2)}, {vVec} offset:128\nv_mov_b64 {vr(QR+10,2)}, 0")
    for t in range(4): a(f"v_mov_b64 {vr(FR+12*t+10,2)}, 0")
    if P["s1pipe"]:
        wait_flag("CNT",24)
        for t in range(4):
            for h in range(4): a(f"ds_read_b64_tr_b16 {vr(FR+12*t+2*h,2)}, {vT1[t]} offset:{2*h*3072}")
        for t in range(4):
            a(f"s_waitcnt lgkmcnt({12-4*t})")
            for s in range(2): a(f"v_mfma_f32_16x16x32_bf16 {vr(AC+4*t,4)}, {vr(FR+12*t+4*s,4)}, {vr(QR+4*s,4)}, {vr(AC+4*t,4) if s else 0}")
        l=a.lab("W1")
        spin(l); a(f"ds_read_b32 {vTmp}, {vL4} offset:{F['CNT']}")
        for t in range(4): a(f"ds_read_b64_tr_b16 {vr(FR+12*t+8,2)}, {vT1[t]} offset:{8*3072}")
        a(f"s_waitcnt lgkmcnt(0)\nv_cmp_gt_u32 vcc, {30+CB}, {vTmp}\ns_cbranch_vccnz {l}")
        stamp(1)
        for t in range(4): a(f"v_mfma_f32_16x16x32_bf16 {vr(AC+4*t,4)}, {vr(FR+12*t+8,4)}, {vr(QR+8,4)}, {vr(AC+4*t,4)}")
    else:
        wait_flag("CNT",30)
        stamp(1)
        for t in range(4):
            for h in range(5): a(f"ds_read_b64_tr_b16 {vr(FR+12*t+2*h,2)}, {vT1[t]} offset:{2*h*3072}")
        for t in range(4):
            a(f"s_waitcnt lgkmcnt({15-5*t})")
            for s in range(3): a(f"v_mfma_f32_16x16x32_bf16 {vr(AC+4*t,4)}, {vr(FR+12*t+4*s,4)}, {vr(QR+4*s,4)}, {vr(AC+4*t,4) if s else 0}")
    publish4(AC, vS, vPub, oQ, mode=False if P["gA"] else "plain")
    if P["ackA"]: a("s_waitcnt vmcnt(0)")
    sig("PUBA")
    stamp(2)
    a(f"s_mov_b32 s46, {R3-R2}\ns_movk_i32 s47, {198+CB}")
    if FF: a(f"s_cmp_lt_u32 {sV}, 10\ns_cselect_b32 s46, {R1-R2}, s46\ns_cselect_b32 s47, {222+CB}, s47")
    for t in range(4): a(f"v_add_u32 {vT1[t]}, s46, {vT1[t]}")
    a(f"v_mov_b32 v{vS+2}, s32")
    wait_flag("CLR",1)
    wait_flag("CNT",66)
    for s in range(6):
        for t in range(2): a(f"ds_read_b128 {vr(FR+8*s+4*t,4)}, {vU[s&1]} offset:{1024*(s>>1)+512*t}")
    if P["sched"][0][1]!=Q_: sig("RDUK")
    def vec2_mfma(flag, thr, vec, wfirst, fr):
        l=a.lab("V2")
        spin(l); a(f"ds_read_b32 {vTmp}, {vL4} offset:{F[flag]}")
        for s in range(6): a(f"ds_read_b128 {vr(QR+4*s,4)}, {vVec} offset:{vec-VEC1A+64*s}")
        a(f"s_waitcnt lgkmcnt(6)\nv_cmp_gt_u32 vcc, {thr}, {vTmp}\ns_cbranch_vccnz {l}")
        for s in range(6):
            a(f"s_waitcnt lgkmcnt({5-s})")
            for t in range(2):
                w_,q_=vr(fr+8*s+4*t,4),vr(QR+4*s,4)
                A_,B_=(w_,q_) if wfirst else (q_,w_)
                a(f"v_mfma_f32_16x16x32_bf16 {vr(AC+4*t,4)}, {A_}, {B_}, {vr(AC+4*t,4) if s else 0}")
    vec2_mfma("V2A",1,VEC2A,True,FR)
    a(f"v_readfirstlane_b32 s50, {vTmp}\ns_lshr_b32 s50, s50, 1")
    stamp(3)
    for k in range(4): a(f"v_cvt_pk_bf16_f32 v{AC+8+k}, v{AC+2*k}, v{AC+2*k+1}\nds_bpermute_b32 v{AC+12+k}, {vBp}, v{AC+8+k}")
    if P.get("batom"):
        a(f"s_mov_b64 exec, 15\ns_waitcnt lgkmcnt(0)\nbuffer_atomic_{P['batom']}_x2 {vr(AC+12,2)}, {vLin}, {WS}, {oQA} offen sc1\nbuffer_atomic_{P['batom']}_x2 {vr(AC+14,2)}, {vLin}, {WS}, {oQA} offen offset:8 sc1\ns_mov_b64 exec, -1\ns_waitcnt vmcnt(0)")
    if P.get("bexp"):
        m_,sh=P["bexp"]
        a(f"s_sub_u32 {oQA}, {oQA}, {QA}\ns_mul_i32 {oQA}, {oQA}, {sh}\ns_add_u32 {oQA}, {oQA}, {QA if sh<=2 else REC}")
    if not P.get("batom"): a(f"s_mov_b64 exec, {P['bexp'][0] if P.get('bexp') else 15}\ns_waitcnt lgkmcnt(0)\nbuffer_store_dwordx4 {vr(AC+12,4)}, {vLin}, {WS}, {oQA} offen {P.get('bfl','sc1')}\ns_mov_b64 exec, -1\ns_waitcnt vmcnt(0)")
    sig("PUBB")
    a("L_s3:")
    def areads(kt):
        for s in range(12): a(f"ds_read_b128 {vr(FR+48*kt+4*s,4)}, {vA[s&3]} offset:{24576*kt+256*(s>>2)}")
    def qloads():
        if P.get("skipq"): return
        for s in range(12): a(f"buffer_load_dwordx4 {vr(QR+4*s,4)}, {vQa}, {WS}, {oQL[s>>2]} offen offset:{2048*((s>>1)&1)+512*(s&1)} sc1")
    if P["thrQ"]>=114:
        wait_flag("CNT",114)
        areads(0)
    wait_flag("PUBB",3)
    if P["thrQ"]!=114: wait_flag("CNT",P["thrQ"])
    stamp(4); qloads(); sig("QISS")
    if P["thrQ"]<114:
        wait_flag("CNT",114)
        areads(0)
    if P["thrQ"]<162: wait_flag("CNT",162)
    areads(1)
    sig("RDA")
    a("s_waitcnt lgkmcnt(0)\ns_branch L_s3m")
    l,ok=loop_head("S3")
    qloads()
    a("L_s3m:")
    BQ=lambda f: FR+4*f
    def breads():
        for f in range(24):
            s4,ct=divmod(f,3)
            for e2 in range(2): a(f"ds_read_b64_tr_b16 {vr(BQ(f)+2*e2,2)}, {vB[ct]} offset:{3200*(8*e2+2*(s4&3))+384*(s4>>2)}")
        sig("RDB")
    TQ=[8,12]
    def fix(sg):
        L0=QR+8*sg; L1=L0+4
        o=[f"s_waitcnt vmcnt({10-2*sg})"]
        o+=[f"v_cndmask_b32_dpp v{TQ[sg&1]+k}, v{L1+k}, v{L0+k}, vcc quad_perm:[0,0,2,2] {DP}" for k in range(4)]
        o+=["s_not_b64 vcc, vcc"]
        o+=[f"v_cndmask_b32_dpp v{L1+k}, v{L0+k}, v{L1+k}, vcc quad_perm:[1,1,3,3] {DP}" for k in range(4)]
        o+=["s_not_b64 vcc, vcc"]
        return o
    a("s_mov_b32 vcc_lo, 0x55555555\ns_mov_b32 vcc_hi, 0x55555555")
    a("\n".join(fix(0)))
    for sg in range(6):
        nx=fix(sg+1) if sg<5 else []
        cut=[3,6,8,11]; st_=0
        for i in range(4):
            pi,kt=i>>1,i&1
            qreg=TQ[sg&1] if pi==0 else QR+8*sg+4
            a(f"v_mfma_f32_16x16x32_bf16 {vr(AC+4*kt,4)}, {vr(FR+48*kt+4*(2*sg+pi),4)}, {vr(qreg,4)}, {vr(AC+4*kt,4) if 2*sg+pi else 0}")
            if nx: a("\n".join(nx[st_:cut[i]])); st_=cut[i]
    a(f"s_cmp_eq_u32 {sKH}, 0\nv_cmp_u_f32 vcc, v{AC}, v{AC+4}\ns_cbranch_vccnz {l}\n{ok}:")
    if any(x[1]==("S3K",4) for x in P["sched"]): sig("S3K")
    stamp(6)
    far[-1]=far[-1].replace("s_nop 7",f"s_cmp_eq_u32 {sKH}, 0\ns_nop 7")
    a(f"s_cbranch_scc1 {'L_soft' if P['blate'] else 'L_nox'}")
    a(f"ds_write_b128 {vXa}, {vr(AC,4)}\nds_write_b128 {vXa}, {vr(AC+4,4)} offset:1024\nds_add_u32 v6, {vOne} offset:{F['X0']}")
    if P["blate"]: a("s_branch L_s4\nL_soft:")
    else:
        a("L_nox:")
        breads()
        a("s_cbranch_scc0 L_s4\nL_soft:")
    l=a.lab("XW")
    spin(l); a(f"ds_read_b32 {vTmp}, v6 offset:{F['X0']}\nds_read_b128 {vr(AC+8,4)}, {vXa}\nds_read_b128 {vr(AC+12,4)}, {vXa} offset:1024")
    a(f"s_waitcnt lgkmcnt(0)\nv_cmp_gt_u32 vcc, 1, {vTmp}\ns_cbranch_vccnz {l}")
    for k in range(4): a(f"v_pk_add_f32 {vr(AC+2*k,2)}, {vr(AC+2*k,2)}, {vr(AC+8+2*k,2)}")
    a(f"v_max3_f32 v8, v{AC}, v{AC+1}, v{AC+2}\nv_max3_f32 v9, v{AC+3}, v{AC+4}, v{AC+5}\nv_max3_f32 v8, v8, v{AC+6}, v{AC+7}\nv_max_f32 v8, v8, v9")
    xreduce("v_max_f32","v8","v9")
    a("v_ceil_f32 v8, v8\ns_cmp_eq_u32 s50, 0")
    for k in range(4): a(f"v_pk_add_f32 {vr(AC+2*k,2)}, {vr(AC+2*k,2)}, v[8:9] op_sel_hi:[1,0] neg_lo:[0,1] neg_hi:[0,1]")
    for k in range(8): a(f"v_exp_f32 v{AC+k}, v{AC+k}")
    for k in range(4): a(f"v_cvt_pk_bf16_f32 v{AC+8+k}, v{AC+2*k}, v{AC+2*k+1}")
    (lambda t: a(t.replace("offen","offen sc1")) if P["gC"] else mstore(t))(f"buffer_store_dwordx4 {vr(AC+8,4)}, {vLin}, {WS}, {oP} offen\ns_mov_b64 exec, 0xffff\nbuffer_store_dword v8, {vM0}, {WS}, {oM} offen")
    if P["hintC"] and not P["ackC"] and not P.get("verC"): a(f"buffer_store_dword v{vS+2}, v209, {WS}, {oHW} offen")
    a("s_mov_b64 exec, -1")
    a(f"v_pk_add_f32 {vr(AC,2)}, {vr(AC,2)}, {vr(AC+2,2)}\nv_pk_add_f32 {vr(AC+4,2)}, {vr(AC+4,2)}, {vr(AC+6,2)}\nv_pk_add_f32 {vr(AC,2)}, {vr(AC,2)}, {vr(AC+4,2)}\nv_add_f32 v9, v{AC}, v{AC+1}")
    a(f"ds_write_b64 {vSt}, v[8:9]")
    sig("PUBC")
    if P["hintC"] and P.get("verC"):
        vk=a.lab("VK")
        for tr_ in range(2):
            a(f"s_add_u32 s96, s28, {oP}\ns_addc_u32 s97, s29, 0" if tr_==0 else "")
            for k in range(8): a(f"s_load_dword s{20+k}, s[96:97], {128*k+64*(1-tr_)}")
            a("s_waitcnt lgkmcnt(0)\ns_or_b64 s[20:21], s[20:21], s[22:23]\ns_or_b64 s[24:25], s[24:25], s[26:27]\ns_or_b64 s[20:21], s[20:21], s[24:25]\ns_or_b32 s20, s20, s21\ns_bitcmp0_b32 s20, 31")
            a(f"s_cbranch_scc1 {vk}")
        a(f"s_waitcnt vmcnt(0)\n{vk}:\ns_mov_b64 exec, 0xffff\nbuffer_store_dword v{vS+2}, v209, {WS}, {oHW} offen\ns_mov_b64 exec, -1")
    elif P["hintC"] and P["ackC"]: a(f"s_mov_b64 exec, 0xffff\ns_waitcnt vmcnt(0)\nbuffer_store_dword v{vS+2}, v209, {WS}, {oHW} offen\ns_mov_b64 exec, -1")
    a("L_s4:")
    stamp(7)
    if P["blate"]: breads()
    wait_flag("PUBC",2)
    stamp(8)
    a("v_mov_b32 v13, 1")
    if P["mshare"]: a(f"s_branch L_s4l\nL_s4f:\nds_read_b64 v[8:9], {vSt} offset:1024\ns_waitcnt lgkmcnt(0)\nv_cmp_u_f32 vcc, v8, v9\nv_max_f32 v10, v8, v9\ns_cbranch_vccz L_s4p\nL_s4l:")
    l,ok=loop_head("S4",("S4M",))
    a(f"buffer_load_dword v8, {vMl}, {WS}, {oML[0]} offen sc1\nbuffer_load_dword v9, {vMl}, {WS}, {oML[1]} offen sc1")
    a(f"s_waitcnt vmcnt(0)\nv_cmp_u_f32 vcc, v8, v9\nv_max_f32 v10, v8, v9\ns_cbranch_vccnz {'L_s4f' if P['mshare'] else l}")
    if P["mshare"]: a(f"ds_write_b64 {vSt}, v[8:9] offset:1024")
    a("L_s4p:")
    def ploads(lo,hi):
        for s in range(lo,hi): a(f"buffer_load_dwordx4 {vr(QR+4*s,4)}, {vPl}, {WS}, {oPL[s>>2]} offen offset:{256*(s&3)} sc1")
        if hi==8 and lo<8:
            sig("S4M","v13"); a("v_mov_b32 v13, 0"); stamp(5)
            if P["lateG"]==3: a(f"ds_read_b32 v14, {vL4} offset:{F['GOK']}")
    n1_,n2_=P["psplit"]
    ploads(0,n1_)
    xreduce("v_max_f32","v10","v11")
    ploads(n1_,n1_+n2_)
    a("v_sub_f32 v8, v10, v8\nv_sub_f32 v9, v10, v9\nv_min_f32 v8, s49, v8\nv_min_f32 v9, s49, v9\nv_cvt_u32_f32 v8, v8\nv_cvt_u32_f32 v9, v9\nv_mul_u32_u24 v8, s48, v8\nv_mul_u32_u24 v9, s48, v9")
    ploads(n1_+n2_,8)
    a(f"s_waitcnt vmcnt(7)")
    for k in range(4): a(f"v_pk_sub_u16 v{QR+k}, v{QR+k}, v8 clamp")
    for s in range(8):
        mf=lambda ct: a(f"v_mfma_f32_16x16x32_bf16 {vr(AC+4*ct,4)}, {vr(BQ(3*s+ct),4)}, {vr(QR+4*s,4)}, {vr(AC+4*ct,4) if s else 0}")
        q=QR+4*s
        if s==0: a(f"v_or3_b32 v12, v{q}, v{q+1}, v{q+2}\nv_or_b32 v12, v12, v{q+3}")
        mf(0)
        if s<7:
            a(f"s_waitcnt vmcnt({6-s})")
            a(f"v_pk_sub_u16 v{q+4}, v{q+4}, v{8+((s+1)>>2)} clamp\nv_pk_sub_u16 v{q+5}, v{q+5}, v{8+((s+1)>>2)} clamp")
        mf(1)
        if s<7: a(f"v_pk_sub_u16 v{q+6}, v{q+6}, v{8+((s+1)>>2)} clamp\nv_pk_sub_u16 v{q+7}, v{q+7}, v{8+((s+1)>>2)} clamp")
        mf(2)
        if s<7: a(f"v_or3_b32 v12, v12, v{q+4}, v{q+5}\nv_or3_b32 v12, v12, v{q+6}, v{q+7}")
    a(f"v_and_b32 v12, 0x80008000, v12\nv_cmp_ne_u32 vcc, 0, v12\ns_cbranch_vccnz {l}\n{ok}:")
    if P["lateG"]==3:
        gw=a.lab("GW"); gb=a.lab("GB")
        a(f"s_waitcnt lgkmcnt(0)\nv_cmp_ne_u32 vcc, 1, v14\ns_cbranch_vccnz {gw}\n{gb}:")
        far.append(f"{gw}:\nds_read_b32 v14, {vL4} offset:{F['GOK']}\ns_waitcnt lgkmcnt(0)\nv_cmp_ne_u32 vcc, 1, v14\ns_cbranch_vccnz {gw}\ns_nop 4\ns_branch {gb}")
    sig("S4K")
    stamp(9)
    for k in range(6): a(f"v_cvt_pk_bf16_f32 v{QR+k}, v{AC+2*k}, v{AC+2*k+1}\nds_bpermute_b32 v{CT+k+k//3}, {vBp}, v{QR+k}")
    if P.get("dhalf"): a(f"s_cmp_eq_u32 {sKH}, 0\ns_cbranch_scc0 L_nod")
    a(f"s_waitcnt lgkmcnt(3)\nbuffer_store_dwordx4 {vr(CT,4)}, {vC4}, {WS}, {oCL} offen sc1")
    a(f"s_waitcnt lgkmcnt(0)\nbuffer_store_dwordx4 {vr(CT+4,4)}, {vC4}, {WS}, {oCL} offen offset:64 sc1")
    if P.get("dhalf"): a("L_nod:")
    sig("DST")
    stamp(10)
    a(f"s_waitcnt vmcnt({P.get('dack',0)})")
    sig("PUBD")
    F6=FR+48
    def s6reads(half):
        for s in range(3*half,3*half+3):
            for t in range(2):
                for e2 in range(2): a(f"ds_read_b64_tr_b16 {vr(F6+8*s+4*t+2*e2,2)}, {vT6[t]} offset:{(4*s+2*e2)*2048}")
    a(f"s_cmp_eq_u32 {sW}, 3\ns_cbranch_scc1 L_s6")
    wait_flag("CNT","s47")
    for t in range(4):
        for h in range(6): a(f"ds_read_b64_tr_b16 {vr(FR+12*t+2*h,2)}, {vT1[t]} offset:{2*h*3072}")
    l=a.lab("V1")
    spin(l); a(f"ds_read_b32 {vTmp}, {vL4} offset:{F['V1B']}")
    for s in range(3): a(f"ds_read_b128 {vr(QR+4*s,4)}, {vVec} offset:{VEC1B-VEC1A+64*s}")
    a(f"s_waitcnt lgkmcnt(0)\nv_cmp_gt_u32 vcc, 1, {vTmp}\ns_cbranch_vccnz {l}")
    stamp(11)
    for t in range(4):
        for s in range(3):
            a(f"v_mfma_f32_16x16x32_bf16 {vr(AC+4*t,4)}, {vr(FR+12*t+4*s,4)}, {vr(QR+4*s,4)}, {vr(AC+4*t,4) if s else 0}")
    a("s_cmp_eq_u32 s50, 0")
    publish4(AC, vS, vPub, oE, mode=True)
    sig("PUBE")
    a('; ---- S6: output projection (w_o) or second FFN GEMV (w2)')
    a("L_s6:")
    stamp(12)
    a(f"s_cmp_lt_u32 {sJ}, 5\ns_cbranch_scc0 L_fin")
    a("L_s6go:")
    a(f"v_lshlrev_b32 v6, 2, {vLane}\ns_mov_b32 s56, 0xffff0000\ns_mov_b32 s57, 0")
    wait_flag("CNT",t6)
    s6reads(0)
    wait_flag("CNT",246)
    s6reads(1)
    stamp(13)
    vec2_mfma("V2B",1,VEC2B,False,F6)
    a(f"s_mov_b32 exec_hi, 0\nv_cndmask_b32 v7, v{AC}, v{AC+4}, s[56:57]\nbuffer_store_dword v7, v6, {WS}, {oF} offen sc1")
    stamp(14)
    a("s_mov_b64 exec, -1\ns_waitcnt vmcnt(0)")
    sig("PUBF")
    a("s_branch L_fin")
    if P["incC"]:
        i_=a.L.index("L_soft:"); a.L[i_:i_]=incstub.split("\n")

    if P.get("spf3"):
        a("L_w3p:")
        n0_=len(a.L)
        sprefetch(*P["spf3"])
        a.L[n0_:]=[x.replace("s96, s96, s14","s96, s96, s26").replace("s97, s15, 0","s97, s27, 0").replace("s96, s96, s22","s96, s96, s24").replace("s97, s23, 0","s97, s25, 0") for x in a.L[n0_:]]
        stamp(1)
        a("s_branch L_s3")
    GA=16; GD=32; GX=72
    def gather_setup(vOff, stride):
        a(f"v_mul_u32_u24 {vOff}, {stride}, {vGl}\nv_lshl_add_u32 {vOff}, {vN}, 4, {vOff}")
        a(f"v_and_b32 v6, 1, {vN}\nv_lshlrev_b32 v6, 4, v6\nv_mov_b32 v7, 0x3f80\nv_lshlrev_b32 v6, v6, v7\nv_lshrrev_b32 v7, 1, {vN}")
        for k in range(6): a(f"v_cmp_eq_u32 vcc, {k}, v7\nv_cndmask_b32 v{GA+k}, 0, v6, vcc")
    def gather(nq, vOff, soffs, name, xcc=False, tag="s[32:33]"):
        if xcc: a(f"s_andn2_b32 {sBud}, {sBud}, 15")
        l,ok=loop_head(name, ("GISS",) if xcc=="q" and P["holdG"] else ())
        if nq==3:
            for u in range(3): a(f"v_mov_b32 v{GD+26+4*u}, s58")
        for q in range(nq):
            if q==2: a("s_mov_b32 exec_hi, 0")
            for u in range(3):
                a(f"buffer_load_dwordx4 {vr(GD+4*(3*q+u),4)}, {vOff}, {WS}, {soffs[q]} offen offset:{256*u} sc1")
        if nq==3: a("s_mov_b64 exec, -1")
        if xcc=="q" and P["holdG"]: sig("GISS")
        n=3*nq
        for k in range(n):
            a(f"s_waitcnt vmcnt({n-1-k})\nv_mfma_f32_16x16x16_bf16 {vr(GX,4)}, {vr(GA+2*(k%3),2)}, {vr(GD+4*k,2)}, {vr(GX,4) if k else 0}")
        if not xcc:
            for k in range(n): a(f"v_cmpx_eq_u64 vcc, s[32:33], {vr(GD+4*k+2,2)}")
            a(f"s_cmp_eq_u64 exec, -1\ns_mov_b64 exec, -1\ns_cbranch_scc0 {l}\n{ok}:")
        else:
            sl=a.lab("SL")
            for k in range(n): a(f"v_cmpx_eq_u64 vcc, s[58:59], {vr(GD+4*k+2,2)}")
            a(f"s_cmp_eq_u64 exec, -1\ns_mov_b64 exec, -1\ns_cbranch_scc1 {ok}")
            if xcc=="q" and P["thrG2"]: a(f"ds_read_b32 {vTmp}, {vL4} offset:{F['V2A']}\ns_waitcnt lgkmcnt(0)\nv_cmp_lt_u32 vcc, 0, {vTmp}\ns_cbranch_vccnz L_gadone\ns_cmp_eq_u32 {sW}, 6\ns_cbranch_scc1 {l}")
            for k in range(n): a(f"v_or_b32 v{GD+4*k+2}, 15, v{GD+4*k+2}\nv_cmpx_eq_u64 vcc, {tag}, {vr(GD+4*k+2,2)}")
            a(f"s_cmp_eq_u64 exec, -1\ns_mov_b64 exec, -1\ns_cselect_b32 s60, 0, {sBud}\ns_cselect_b32 s63, 1, 0\ns_and_b32 s60, s60, 15\ns_cbranch_scc1 {l}\ns_branch {sl}\n{ok}:")
            far.append(f"""{sl}:
s_mov_b32 exec_hi, 0xffff
buffer_load_dwordx4 v[76:79], v28, {WS}, s61 offen offset:{RQ-RP} sc1
s_waitcnt vmcnt(0)
buffer_store_dwordx4 v[76:79], v28, {WS}, s61 offen offset:{RQ-RP} sc1
s_mov_b64 exec, -1
s_waitcnt vmcnt(0)
s_cmp_eq_u32 s63, 0
s_cbranch_scc1 {l}
"""+(f"s_branch {ok}" if xcc!="q" else f"""v_mov_b32 v76, -1
v_mov_b32 v77, -1
v_mov_b32 v78, -1
v_mov_b32 v79, -1
v_mov_b32 v27, 3
buffer_store_dwordx4 v[76:79], v28, {WS}, s61 offen sc1
buffer_store_dwordx4 v[76:79], v28, {WS}, s61 offen offset:1024 sc1
s_mov_b64 exec, 0xffff
buffer_store_dwordx4 v[76:79], v28, {WS}, s61 offen offset:2048 sc1
s_mov_b64 exec, -1
s_waitcnt vmcnt(0)
s_branch {ok}"""))
    def vec2_write(vAddr, flag, v=vOne, op="ds_add_u32"):
        a(f"s_mov_b32 exec_hi, 0xffff\nv_cvt_pk_bf16_f32 v{GX}, v{GX}, v{GX+1}\nv_cvt_pk_bf16_f32 v{GX+1}, v{GX+2}, v{GX+3}\nds_write_b64 {vAddr}, {vr(GX,2)}\ns_mov_b64 exec, -1")
        a(f"{op} {vL4}, {v} offset:{F[flag]}")
    def vec2b_addr(dst):
        a(f"v_lshlrev_b32 {dst}, 7, {vGl}\nv_bfe_u32 v6, {vN}, 1, 1\nv_lshl_add_u32 {dst}, v6, 6, {dst}\nv_lshrrev_b32 v6, 2, {vN}\nv_lshl_add_u32 {dst}, v6, 4, {dst}\nv_and_b32 v6, 1, {vN}\nv_lshl_add_u32 {dst}, v6, 3, {dst}\nv_add_u32 {dst}, {VEC2B}, {dst}")

    a('; ======== W7: code prefetch, q gather, tile B loader, ctx gather')
    a("L_w7:")
    a(f"s_movk_i32 s43, {P['thrG']+CB}")
    tag_finish()
    a(f"s_barrier\nL_ga:\ns_setprio {P['prio'][1]}")
    gather_setup("v24", RS)
    a(f"v_lshlrev_b32 v28, 4, {vLane}\ns_mul_i32 s61, {sB}, {RS}\ns_add_u32 s61, s61, {REC+RP}")
    a(f"v_lshlrev_b32 v25, 7, {vGl}\nv_and_b32 v6, 3, {vN}\nv_lshl_add_u32 v25, v6, 5, v25\nv_lshrrev_b32 v6, 2, {vN}\nv_lshl_add_u32 v25, v6, 3, v25\nv_add_u32 v25, {VEC2A}, v25")
    vec2b_addr("v26")
    a(f"s_mul_i32 s54, {sG}, {8*RS}\ns_add_u32 s52, s54, {REC+RE}\ns_add_u32 s53, s52, {4*RS}\ns_add_u32 s54, s54, {REC+RQ}\ns_add_u32 s55, s54, {4*RS}")
    a(f"s_mov_b32 s56, {f2u(192**-0.5*math.log2(math.e))}\ns_mov_b32 s57, s56")
    a("s_getreg_b32 s58, hwreg(HW_REG_XCC_ID, 0, 4)\ns_xor_b32 s58, s58, s32\ns_mov_b32 s59, s33\nv_mov_b32 v27, 1")
    if P["hintA"]:
        a(f"s_lshl_b32 s43, {sG}, 11\ns_add_u32 s43, s43, {HT}\ns_lshl2_add_u32 s51, {sJ}, s43\nv_lshlrev_b32 v6, 6, {vLane}\nv_mov_b32 v7, s32\ns_mov_b32 s48, s32\ns_mov_b32 s49, s32")
    if P["gA"]==1:
        a(f"s_lshl_b32 s43, {sG}, 11\ns_add_u32 s43, s43, {HT}\ns_add_u32 s96, s28, s43\ns_addc_u32 s97, s29, 0\ns_lshl_b32 s51, {sB}, 8\ns_add_u32 s51, s51, {HT}\ns_mov_b32 s48, s32\ns_mov_b32 s49, s32")
        a("v_mov_b32 v8, s32\nv_mov_b32 v9, s32\nv_mov_b32 v10, s32\nv_mov_b32 v11, s32")
    wait_flag("PUBA",3)
    if P["gA"]==1:
        a(f"s_mov_b64 exec, 15\nbuffer_store_dwordx4 v[8:11], v28, {WS}, s51 offen sc1\ns_mov_b64 exec, -1")
        ghint("s[96:97]", 256, 8, "s[48:49]")
    elif P["hintA"]:
        a(f"s_mov_b64 exec, 0xffff\nbuffer_store_dword v7, v6, {WS}, s51 offen\ns_mov_b64 exec, -1")
        hint_wait("s43", 8, "s[48:49]")
    else: wait_flag("CNT","s43")
    stamp(1)
    gather(2,"v24",["s54","s55"],"GA", xcc="q")
    stamp(2)
    a(f"v_pk_mul_f32 {vr(GX,2)}, {vr(GX,2)}, s[56:57]\nv_pk_mul_f32 {vr(GX+2,2)}, {vr(GX+2,2)}, s[56:57]")
    vec2_write("v25","V2A","v27","ds_max_u32")
    if P["thrG2"]: a(f"L_gadone:\ns_cmp_eq_u32 {sW}, 6\ns_cbranch_scc1 L_w6b")
    a(f"s_lshl_b32 s54, {sX}, 14\ns_and_b32 s55, {sG}, 3\ns_lshl_b32 s55, s55, 4\ns_add_u32 s54, s54, s55\ns_add_u32 s44, s54, {ST}\ns_add_u32 s45, s44, 4096\ns_add_u32 s46, s44, 8192\ns_add_u32 s47, s44, 12288\nv_lshlrev_b32 v22, 6, {vLane}\nv_add_u32 v23, {XB}, v28")
    wait_flag(*{"DST":("DST",4),"S4M":("S4M",1),"PUBC":("PUBC",2),"PUBD":("PUBD",4)}[P["stattrig"]])
    stamp(3)
    l,ok=loop_head("SS")
    SM=108
    for k in range(4): a(f"buffer_load_dwordx4 {vr(SM+4*k,4)}, v22, {WS}, s{44+k} offen sc1")
    a("s_waitcnt vmcnt(0)")
    for k in range(4): a(f"v_cmpx_eq_u64 vcc, s[32:33], {vr(SM+4*k+2,2)}")
    a(f"s_cmp_eq_u64 exec, -1\ns_mov_b64 exec, -1\ns_cbranch_scc0 {l}\n{ok}:")
    if ("STR",1) in P["dtrig"]: sig("STR")
    stamp(4)
    st3=("quad_perm:[1,0,3,2]","quad_perm:[2,3,0,1]","row_half_mirror")
    for i,s in enumerate(st3):
        for k in range(4):
            src = f"v{SM+4*k}" if i==0 else f"v{32+k}"
            a(f"v_max_f32_dpp v{32+k}, {src}, {src} {s} {DP}")
    a("v_max3_f32 v36, v32, v33, v34\nv_max_f32 v36, v36, v35")
    rowreduce("v_max_f32","v36",("row_mirror",))
    xreduce("v_max_f32","v36","v37")
    for k in range(4): a(f"v_sub_f32 v{SM+4*k}, v{SM+4*k}, v36\nv_sub_f32 v{32+k}, v{32+k}, v36")
    for k in range(4): a(f"v_exp_f32 v{SM+4*k}, v{SM+4*k}\nv_exp_f32 v{32+k}, v{32+k}")
    a(f"v_mul_f32 v38, v{SM}, v{SM+1}\nv_fmac_f32 v38, v{SM+4}, v{SM+5}\nv_fmac_f32 v38, v{SM+8}, v{SM+9}\nv_fmac_f32 v38, v{SM+12}, v{SM+13}")
    for k in range(4): a(f"v_cvt_pk_bf16_f32 v{32+k}, v{32+k}, v{32+k}")
    rowreduce("v_add_f32","v38")
    xreduce("v_add_f32","v38","v37")
    a("v_rcp_f32 v38, v38")
    a("ds_write_b128 v23, v[32:35]\nds_write_b32 v23, v38 offset:1024")
    sig("STOK")
    stamp(5)
    a(f"s_cmp_lt_u32 {sJ}, 5\ns_cbranch_scc1 L_w7e\ns_cmp_lt_u32 {sV}, 10\ns_cbranch_scc0 L_fin")
    a("L_ffn2:")
    trcore("v8", vTmp)
    a(f"s_and_b32 s52, {sW}, 1\ns_lshl_b32 s55, s52, 6\nv_lshrrev_b32 v6, 5, {vLane}\nv_lshl_add_u32 v8, v6, 11, v8\nv_xor_b32 v8, s55, v8\nv_add_u32 {vT6[0]}, {R2}, v8\nv_xor_b32 {vT6[1]}, 32, {vT6[0]}")
    a(f"v_lshlrev_b32 {vVec}, 4, {vGl}\nv_add_u32 {vVec}, {VEC1A}, {vVec}")
    a(f"s_mul_i32 s54, {sX}, 2560\ns_lshl_b32 s55, {sV}, 8\ns_add_u32 s54, s54, s55\ns_lshl_b32 s55, s52, 7\ns_add_u32 s54, s54, s55\ns_add_u32 s54, s54, {YP}\ns_movk_i32 {t6}, {234+CB}")
    wait_flag(*(("GOK",1) if P["lateG"]==3 else ("PUBC",2)))
    a("s_branch L_s6go")
    a("L_w7e:")
    wait_flag("PUBE",3)
    a("L_ge:")
    stamp(6)
    gather(2,"v24",["s52","s53"],"GE")
    stamp(7)
    vec2_write("v26","V2B")
    if P["ge2"]: a(f"s_cmp_eq_u32 {sW}, 6\ns_cbranch_scc0 L_fin\ns_cmp_lt_u32 s2, 20\ns_cbranch_scc1 L_fin2")
    a("s_branch L_fin")

    a("L_w5:")
    a(f"v_lshlrev_b32 v6, 4, {vLane}\nv_mov_b32 v8, -1\nv_mov_b32 v9, -1\nv_mov_b32 v10, -1\nv_mov_b32 v11, -1")
    a(f"s_mul_i32 s52, {sB}, {RS}\ns_add_u32 s52, s52, {REC}\ns_add_u32 s53, s52, {RP}")
    if P["hintA"] or P["hintC"]: a(f"s_lshl_b32 s54, {sB}, 8\ns_add_u32 s54, s54, {HT-60*64}\nv_mov_b32 v7, s54\nv_mov_b32 v23, s53\nv_cmp_gt_u32 vcc, 60, {vLane}\nv_lshlrev_b32 v22, 6, {vLane}\nv_cndmask_b32 v7, v7, v23, vcc\nv_add_u32 v7, v7, v22")
    else: a(f"v_lshlrev_b32 v22, 6, {vLane}\nv_add_u32 v7, s53, v22")
    pm=((1<<64)-1)
    if P["gC"]: pm&=~((1<<36)-1)
    if P["gA"]: pm&=~(0xffff<<48)
    if not (P["hintA"] or P["hintC"]): pm&=~(0xf<<60)
    pm2=0
    if P.get("latetouch"): pm2=pm&((1<<48)-1); pm&=~pm2
    if pm: a(f"s_mov_b32 exec_lo, {pm&0xffffffff}\ns_mov_b32 exec_hi, {pm>>32}\nbuffer_load_dword v23, v7, {WS}, 0 offen sc1\ns_mov_b64 exec, -1")
    def gclear():
        a(f"s_cmp_lt_u32 s2, 100\ns_cbranch_scc0 L_ng\ns_lshl_b32 s54, s2, 10\ns_add_u32 s54, s54, {G}\nbuffer_store_dwordx4 v[8:11], v6, {WS}, s54 offen sc1\nL_ng:")
    if not P.get("lateG"): gclear()
    a(f"s_setprio {P['prio'][1]}")
    MK=12
    a(f"v_and_b32 v7, 1, {vN}\nv_lshlrev_b32 v7, 4, v7\nv_mov_b32 v16, 0xffff\nv_lshlrev_b32 v7, v7, v16\nv_lshrrev_b32 v16, 1, {vN}")
    for k in range(3): a(f"v_cmp_eq_u32 vcc, {2*k}, v16\nv_cndmask_b32 v{MK+k}, 0, v7, vcc")
    for k in range(8): a(f"v_mov_b32 v{43+4*k}, 0")
    a(f"v_bfe_u32 v7, {vN}, 2, 1\nv_mad_u32_u24 v7, v7, 3, {vGl}\nv_lshrrev_b32 v17, 3, {vN}\nv_lshlrev_b32 v18, 6, v17\nv_lshl_add_u32 v18, v7, 2, v18")
    a(f"v_lshlrev_b32 v19, 3, v17\nv_lshl_add_u32 v19, v7, 2, v19\nv_add_u32 v19, 112, v19\nv_cmp_gt_u32 vcc, 4, v7\nv_cndmask_b32 v18, v19, v18, vcc")
    a(f"v_and_b32 v7, 3, {vN}\nv_lshl_add_u32 v18, v7, 4, v18\nv_add_u32 v18, {VEC1B}, v18")
    a(f"s_movk_i32 s55, {FLG}\nv_lshlrev_b32 v16, 7, {vLane}")
    tag_finish()
    a("s_barrier")
    if pm2:
        wait_flag("CNT",P["latetouch"])
        a(f"s_mov_b32 exec_lo, {pm2&0xffffffff}\ns_mov_b32 exec_hi, {pm2>>32}\nbuffer_load_dword v23, v22, {WS}, s53 offen sc1\ns_mov_b64 exec, -1")
    if P.get("lateG")==1: gclear()
    a("s_waitcnt vmcnt(0)")
    if P.get("lateG")==2: gclear()
    cf="sc1" if P["gC"] else ""
    a(f"buffer_store_dwordx4 v[8:11], v6, {WS}, s53 offen {cf}\nbuffer_store_dwordx4 v[8:11], v6, {WS}, s53 offen offset:1024 {cf}\ns_mov_b64 exec, 0xffff\nbuffer_store_dwordx4 v[8:11], v6, {WS}, s53 offen offset:2048 {cf}\ns_mov_b64 exec, -1")
    stamp(1)
    wait_flag("CNT",P["thrF"])
    l,ok=loop_head("FL")
    a(f"s_mov_b64 exec, 0xff\nbuffer_load_dwordx2 v[24:25], v16, {WS}, s55 offen sc1\ns_waitcnt vmcnt(0)\nv_cmp_ne_u64 vcc, s[32:33], v[24:25]\ns_mov_b64 exec, -1\ns_cbranch_vccnz {l}\n{ok}:")
    sig("CLR")
    stamp(2)
    if P.get("retouch"):
        wait_flag(*P["retouch"])
        a(f"s_mov_b32 exec_hi, 0x0000ffff\nbuffer_load_dword v23, v22, {WS}, s53 offen sc1\ns_mov_b64 exec, -1")
    a(f"s_add_u32 s53, s52, 4096\nv_add_u32 v20, {XB}, v6\ns_and_b32 s56, s32, 0xbfffbfff")
    a(f"v_lshlrev_b32 v7, 9, {vGl}\nv_lshl_add_u32 v7, {vN}, 3, v7\nv_add_u32 v7, {MLB}, v7\nv_lshrrev_b32 v17, 2, {vLane}\nv_lshlrev_b32 v17, 14, v17\nv_and_b32 v19, 3, {vLane}\nv_lshl_add_u32 v17, v19, 4, v17")
    a(f"s_lshl_b32 s54, {sB}, 6\ns_add_u32 s54, s54, {ST}\nv_mov_b32 v26, s32\nv_mov_b32 v27, s33")
    if P["lateG"]==3:
        a(f"s_mul_i32 s57, {sG}, 2560\ns_lshl_b32 s55, {sJ}, 9\ns_add_u32 s57, s57, s55\ns_add_u32 s57, s57, {OP}\ns_mov_b32 s58, -1")
        a(f"s_cmp_lt_u32 {sJ}, 5\ns_cbranch_scc1 L_g3\ns_mul_i32 s57, {sX}, 2560\ns_lshl_b32 s55, {sV}, 8\ns_add_u32 s57, s57, s55\ns_add_u32 s57, s57, {YP}\ns_mov_b32 s58, 0xffff\ns_cmp_lt_u32 {sV}, 10\ns_cselect_b32 s57, s57, {WSSIZE}\nL_g3:")
    wait_flag(*P["sttrig"])
    a(f"s_mov_b32 exec_hi, 0\nds_read_b64 v[24:25], v7\nds_read_b32 v28, v7 offset:132\nds_read_b32 v29, v7 offset:260\nds_read_b32 v30, v7 offset:388\ns_waitcnt lgkmcnt(0)")
    a(f"v_add_f32 v25, v25, v28\nv_add_f32 v29, v29, v30\nv_add_f32 v25, v25, v29\nbuffer_store_dwordx4 v[24:27], v17, {WS}, s54 offen sc1")
    if P["lateG"]==3: a(f"s_mov_b32 exec_lo, s58\nbuffer_store_dwordx4 v[8:11], v6, {WS}, s57 offen sc1")
    a("s_mov_b64 exec, -1")
    if P["lateG"]==3:
        a("s_waitcnt vmcnt(0)"); sig("GOK")
    SAa=40; SD=72; SX=104
    def clloads():
        if P.get("dhalf"):
            a("s_mov_b32 exec_lo, 0x00ff00ff\ns_mov_b32 exec_hi, 0x00ff00ff")
            for s in range(8): a(f"buffer_load_dwordx4 {vr(SD+4*s,4)}, v6, {WS}, s{52+(s>>2)} offen offset:{1024*(s&3)} sc1")
            a("s_mov_b64 exec, -1")
            return
        for s in range(8): a(f"buffer_load_dwordx4 {vr(SD+4*s,4)}, v6, {WS}, s{52+(s>>2)} offen offset:{1024*(s&3)} sc1")
    if P.get("dhalf"):
        for s in range(8): a(f"v_mov_b64 {vr(SD+4*s,2)}, 0\nv_mov_b32 v{SD+4*s+2}, 0\nv_mov_b32 v{SD+4*s+3}, s56")
    wait_flag("PUBD",4)
    for w_ in P.get("dtrig",()): wait_flag(*w_)
    stamp(5)
    clloads()
    sig("CDI")
    l=a.lab("SW")
    spin(l); a(f"ds_read_b32 {vTmp}, {vL4} offset:{F['STOK']}\nds_read_b128 v[32:35], v20\nds_read_b32 v38, v20 offset:1024\ns_waitcnt lgkmcnt(0)\nv_cmp_gt_u32 vcc, 1, {vTmp}\ns_cbranch_vccnz {l}")
    stamp(4)
    for s in range(8):
        for r in range(3): a(f"v_and_b32_dpp v{SAa+4*s+r}, v{32+(s>>1)}, v{MK+r} row_newbcast:{8*(s&1)} {DP}")
    a("v_mov_b32 v39, v38\ns_branch L_cdm")
    l,ok=loop_head("CD")
    clloads()
    a("L_cdm:")
    for s in range(8):
        a(f"s_waitcnt vmcnt({7-s})\nv_mfma_f32_16x16x32_bf16 {vr(SX,4)}, {vr(SAa+4*s,4)}, {vr(SD+4*s,4)}, {vr(SX,4) if s else 0}")
    for s in range(8): a(f"v_cmpx_eq_u32 vcc, s56, v{SD+4*s+3}")
    a(f"s_cmp_eq_u64 exec, -1\ns_mov_b64 exec, -1\ns_cbranch_scc0 {l}\n{ok}:")
    stamp(6)
    a(f"s_mov_b32 exec_hi, 0xffff\nv_pk_mul_f32 {vr(SX,2)}, {vr(SX,2)}, v[38:39]\nv_cvt_pk_bf16_f32 v{SX}, v{SX}, v{SX+1}")
    a(f"ds_write_b32 v18, v{SX}\ns_mov_b64 exec, -1")
    sig("V1B")
    a("s_branch L_fin")

    a("L_w6:")
    a(f"v_lshlrev_b32 v6, 2, {vLane}\nv_add_u32 v6, {XB}, v6")
    a(f"s_mul_i32 s52, {sJ}, 160\ns_min_u32 s53, {sV}, 9\ns_lshl_b32 s53, s53, 7\ns_sub_u32 s53, s53, 256\nv_mov_b32 v16, s52\nv_mov_b32 v13, s53\nv_cmp_gt_u32 vcc, 32, {vLane}\nv_cndmask_b32 v16, v13, v16, vcc\nv_lshl_add_u32 v16, {vLane}, 3, v16\nv_add_u32 v16, {XB}, v16")
    a(f"v_bfe_u32 v7, {vLane}, 3, 2\nv_lshlrev_b32 v27, 6, v7\nv_and_b32 v7, 3, {vLane}\nv_lshl_add_u32 v27, v7, 4, v27\nv_bfe_u32 v7, {vLane}, 2, 1\nv_lshl_add_u32 v27, v7, 3, v27\nv_lshrrev_b32 v7, 5, {vLane}\nv_mul_u32_u24 v7, {VEC1F-VEC1A}, v7\nv_add_u32 v27, v27, v7\nv_add_u32 v27, {VEC1A}, v27")
    a("s_mov_b32 s54, 0xffff0000\ns_barrier")
    for k in range(5): a(f"ds_read_b32 v{8+k}, v6 offset:{256*k}")
    a("ds_read_b64 v[14:15], v16\ns_waitcnt lgkmcnt(0)")
    stamp(1)
    for k in range(5): a(f"v_lshlrev_b32 v{32+2*k}, 16, v{8+k}\nv_and_b32 v{33+2*k}, s54, v{8+k}")
    a("v_pk_add_f32 v[44:45], v[32:33], v[34:35]\nv_pk_add_f32 v[46:47], v[36:37], v[38:39]\nv_pk_add_f32 v[44:45], v[44:45], v[40:41]\nv_pk_add_f32 v[44:45], v[44:45], v[46:47]\nv_add_f32 v44, v44, v45")
    rowreduce("v_add_f32","v44"); xreduce("v_add_f32","v44","v45")
    a(f"v_mul_f32 v44, {hex(f2u(1/640))}, v44")
    for k in range(10): a(f"v_sub_f32 v{32+k}, v{32+k}, v44")
    a("v_mul_f32 v46, v32, v32")
    for k in range(1,10): a(f"v_fmac_f32 v46, v{32+k}, v{32+k}")
    rowreduce("v_add_f32","v46"); xreduce("v_add_f32","v46","v45")
    def rbf(v): a(f"v_cvt_pk_bf16_f32 {v}, {v}, {v}\nv_and_b32 {v}, s54, {v}")
    a(f"v_mul_f32 v46, {hex(f2u(1/640))}, v46"); rbf("v46"); rbf("v44")
    a(f"v_add_f32 v46, {hex(f2u(1e-5))}, v46"); rbf("v46")
    a("v_sqrt_f32 v46, v46"); rbf("v46")
    a("v_rcp_f32 v46, v46")
    a("v_lshlrev_b32 v32, 16, v14\nv_and_b32 v33, s54, v14\nv_lshlrev_b32 v34, 16, v15\nv_and_b32 v35, s54, v15")
    for k in range(4): a(f"v_sub_f32 v{32+k}, v{32+k}, v44")
    a("v_cvt_pk_bf16_f32 v14, v32, v33\nv_cvt_pk_bf16_f32 v15, v34, v35")
    a("v_lshlrev_b32 v32, 16, v14\nv_and_b32 v33, s54, v14\nv_lshlrev_b32 v34, 16, v15\nv_and_b32 v35, s54, v15")
    for k in range(4): a(f"v_mul_f32 v{32+k}, v{32+k}, v46")
    a("v_cvt_pk_bf16_f32 v14, v32, v33\nv_cvt_pk_bf16_f32 v15, v34, v35")
    a("s_mov_b32 exec_lo, 0x000fffff\ns_mov_b32 exec_hi, 0xffff\nds_write_b64 v27, v[14:15]\ns_mov_b64 exec, -1")
    sig("V1A")
    stamp(2)
    tag_finish()
    if P["thrG2"]: a(f"s_movk_i32 s43, {P['thrG2']+CB}\ns_branch L_ga")
    a("L_w6b:\ns_mov_b32 s54, 0xffff0000")
    if P.get("spf6"):
        if P.get("spf6w"): wait_flag(*P["spf6w"])
        sprefetch(*P["spf6"])
        stamp(6)
    if P.get("wb6"):
        a(f"s_cmp_eq_u32 {sY}, 3\ns_cbranch_scc0 L_nwb")
        for fl in P["wb6"]:
            wait_flag(*fl)
            a("buffer_wbl2 sc1\ns_waitcnt vmcnt(0)")
        a("s_branch L_fin\nL_nwb:")
    a(f"s_cmp_lt_u32 s2, 20\ns_cbranch_scc1 L_final")
    if P["ge2"]: a(f"s_mov_b32 s40, 1\ns_cmp_lt_u32 {sJ}, 5\ns_cbranch_scc1 L_ge2")
    a(f"s_cmp_lt_u32 {sV}, 10\ns_cbranch_scc0 L_fin")
    masks()
    srd(44, 20, 3072)
    a(f"v_lshlrev_b32 v8, 7, {vGl}\nv_and_b32 v6, 3, {vN}\nv_lshl_add_u32 v8, v6, 5, v8\nv_lshrrev_b32 v6, 2, {vN}\nv_lshl_add_u32 v8, v6, 3, v8\ns_mul_i32 s52, {sX}, 384")
    a(f"buffer_load_dwordx2 v[22:23], v8, {SA}, s52 offen")
    gather_setup("v24",8*RS); vec2b_addr("v26")
    a(f"v_lshlrev_b32 v28, 4, {vLane}\ns_mul_i32 s40, {sB}, {RS}\ns_add_u32 s40, s40, {REC+RP}\ns_mov_b32 s48, s32\ns_xor_b32 s49, s33, 1")
    a("s_getreg_b32 s50, hwreg(HW_REG_XCC_ID, 0, 4)\ns_xor_b32 s50, s50, s32")
    trcore("v80", vTmp)
    a(f"v_lshrrev_b32 v6, 5, {vLane}\nv_mul_u32_u24 v6, 3072, v6\nv_add_u32 v80, v80, v6\nv_add_u32 v80, {R3 if FF else R1}, v80")
    for t in range(1,4): a(f"v_xor_b32 v{80+t}, {32*t}, v80")
    a(f"v_lshlrev_b32 v84, 6, {vGl}\nv_lshl_add_u32 v84, {vN}, 4, v84\nv_lshlrev_b32 v85, 4, {vGl}\nv_add_u32 v85, {VEC1F}, v85")
    a(f"ds_read_b128 v[88:91], v85\nds_read_b128 v[92:95], v85 offset:64\nv_mov_b32 v78, s50\nv_mov_b32 v79, s49")
    for u in range(3): a(f"v_mov_b32 v{GD+24+4*u}, 0\nv_mov_b32 v{GD+25+4*u}, 0\nv_mov_b32 v{GD+27+4*u}, s49")
    a(f"s_mul_i32 s52, {sX}, {32*RS}\ns_add_u32 s52, s52, {REC+5*RS+RQ}\ns_add_u32 s53, s52, {RS}\ns_add_u32 s51, s53, {RS}\ns_add_u32 s55, s40, {RQ-RP}\ns_mov_b32 s43, 0")
    wait_flag("PUBC",2)
    wait_flag("CNT",186 if FF else 222)
    stamp(3)
    def f1reads():
        for t in range(4):
            for h in range(4): a(f"ds_read_b64_tr_b16 {vr(96+8*t+2*h,2)}, v{80+t} offset:{2*h*3072}")
    f1reads()
    l=a.lab("F1")
    a(f"{l}:")
    for t in range(4):
        a(f"v_add_u32 v{80+t}, 1024, v{80+t}\ns_waitcnt lgkmcnt({12-4*t})")
        a(f"v_mfma_f32_16x16x32_bf16 {vr(128+4*t,4)}, {vr(96+8*t,4)}, v[88:91], 0\nv_mfma_f32_16x16x32_bf16 {vr(128+4*t,4)}, {vr(100+8*t,4)}, v[92:95], {vr(128+4*t,4)}")
    f1reads()
    publish4(128, 76, "v84", "s55", mode="plain")
    a(f"s_add_u32 s55, s55, 256\ns_add_u32 s43, s43, 1\ns_cmp_lt_u32 s43, 3\ns_cbranch_scc1 {l}")
    stamp(4)
    a("s_mov_b32 s58, s50\ns_mov_b32 s59, s49\ns_mov_b32 s61, s40")
    gather(3,"v24",["s52","s53","s51"],"GH", xcc="h", tag="s[48:49]")
    stamp(5)
    a("v_lshlrev_b32 v8, 16, v22\nv_and_b32 v9, s54, v22\nv_lshlrev_b32 v10, 16, v23\nv_and_b32 v11, s54, v23")
    c1 = -2*math.sqrt(2/math.pi)*math.log2(math.e)
    a(f"s_mov_b32 s56, {f2u(c1*0.044715)}\nv_mov_b32 v7, {hex(f2u(c1))}")
    for k in range(4): a(f"v_add_f32 v{GX+k}, v{GX+k}, v{8+k}")
    for k in range(4): a(f"v_mul_f32 v{8+k}, v{GX+k}, v{GX+k}")
    for k in range(4): a(f"v_fma_f32 v{8+k}, v{8+k}, s56, v7")
    for k in range(4): a(f"v_mul_f32 v{8+k}, v{8+k}, v{GX+k}")
    for k in range(4): a(f"v_exp_f32 v{8+k}, v{8+k}")
    for k in range(4): a(f"v_add_f32 v{8+k}, 1.0, v{8+k}")
    for k in range(4): a(f"v_rcp_f32 v{8+k}, v{8+k}")
    for k in range(4): a(f"v_mul_f32 v{GX+k}, v{GX+k}, v{8+k}")
    vec2_write("v26","V2B")
    a("s_branch L_ffn2")

    a('; ======== final reducer: unit = s40 + 2x + (g&1), 32 output columns')
    a("L_final:")
    a(f"s_mov_b32 s40, s2")
    a(f"v_and_b32 v6, 7, {vLane}\nv_lshlrev_b32 v8, 3, v6\nv_bfe_u32 v7, {vLane}, 4, 1\nv_lshl_add_u32 v8, v7, 2, v8\nv_lshrrev_b32 v7, 5, {vLane}\nv_lshl_add_u32 v8, v7, 1, v8")
    a(f"s_lshl_b32 s52, s40, 6")
    srd(44,4,1280); srd(48,24,1280)
    a(f"buffer_load_ushort v10, v8, {SA}, s52 offen\nbuffer_load_ushort v11, v8, {SB}, s52 offen")
    a(f"v_lshrrev_b32 v7, 3, {vLane}\nv_mul_u32_u24 v7, 2560, v7\nv_lshl_add_u32 v9, v6, 4, v7")
    a(f"s_lshl_b32 s53, s40, 7\ns_add_u32 s56, s53, {OP}\ns_add_u32 s57, s56, 20480\ns_add_u32 s58, s57, 20480\ns_add_u32 s59, s58, 20480\ns_add_u32 s53, s53, {YP}")
    a("s_waitcnt vmcnt(0)\nv_lshlrev_b32 v10, 16, v10\nv_lshlrev_b32 v11, 16, v11")
    srd(44,26,1280)
    def red4(b):
        a(f"v_permlane32_swap_b32 v{b}, v{b+1}\nv_permlane32_swap_b32 v{b+2}, v{b+3}\nv_add_f32 v{b}, v{b}, v{b+1}\nv_add_f32 v{b+2}, v{b+2}, v{b+3}")
        a(f"v_permlane16_swap_b32 v{b}, v{b+2}\nv_add_f32 v{b}, v{b}, v{b+2}\nv_add_f32_dpp v{b}, v{b}, v{b} row_ror:8 {DP}")
    def epoch(skip):
        a(f"s_cmp_eq_u32 s40, 0\ns_cbranch_scc0 {skip}\ns_mov_b64 exec, 0xff\nv_mov_b32 v14, s32\nv_mov_b32 v15, s33\nv_lshlrev_b32 v6, 3, {vLane}\nbuffer_store_dwordx2 v[14:15], v6, {WS}, 0 offen offset:{EPOCH} sc1\ns_mov_b64 exec, -1")
    if P["ge2"]:
        assert P["epochearly"]
        a("s_mov_b32 s60, s52\ns_mov_b32 s61, s53\nL_ge2:")
        gather_setup("v24", RS); vec2b_addr("v26")
        a(f"s_mul_i32 s52, {sG}, {8*RS}\ns_add_u32 s52, s52, {REC+RE}\ns_add_u32 s53, s52, {4*RS}")
    if P["epochearly"]:
        wait_flag("V1B",1)
        epoch("L_nep"); a("L_nep:")
    if P["ge2"]: a("s_branch L_ge\nL_fin2:\ns_mov_b32 s52, s60\ns_mov_b32 s53, s61")
    wait_flag("PUBF",4)
    stamp(9)
    l,ok=loop_head("FS")
    a(f"buffer_load_dwordx4 v[28:31], v9, {WS}, s53 offen sc1")
    for k in range(4): a(f"buffer_load_dwordx4 {vr(12+4*k,4)}, v9, {WS}, s{56+k} offen sc1")
    a(f"""s_waitcnt vmcnt(4)
v_permlane32_swap_b32 v28, v29
v_permlane32_swap_b32 v30, v31
v_add_f32 v28, v28, v29
v_add_f32 v30, v30, v31
s_waitcnt vmcnt(2)
v_pk_add_f32 v[12:13], v[12:13], v[16:17]
v_permlane16_swap_b32 v28, v30
v_add_f32 v28, v28, v30
v_pk_add_f32 v[14:15], v[14:15], v[18:19]
s_waitcnt vmcnt(0)
v_add_f32_dpp v28, v28, v28 row_ror:8 {DP}
v_pk_add_f32 v[20:21], v[20:21], v[24:25]
v_add_f32 v28, v28, v11
v_pk_add_f32 v[22:23], v[22:23], v[26:27]
v_mul_f32 v29, {hex(f2u(-math.log2(math.e)))}, v28
v_pk_add_f32 v[12:13], v[12:13], v[20:21]
v_pk_add_f32 v[14:15], v[14:15], v[22:23]
v_exp_f32 v29, v29
v_permlane32_swap_b32 v12, v13
v_permlane32_swap_b32 v14, v15
v_add_f32 v12, v12, v13
v_add_f32 v14, v14, v15
v_add_f32 v29, 1.0, v29
v_rcp_f32 v29, v29
v_permlane16_swap_b32 v12, v14
v_add_f32 v12, v12, v14
v_mul_f32 v28, v28, v29
v_add_f32_dpp v12, v12, v12 row_ror:8 {DP}
v_cmp_u_f32 vcc, v12, v28
v_fma_f32 v13, v12, v28, v10
s_cbranch_vccnz {l}
{ok}:""")
    a(f"v_cvt_pk_bf16_f32 v13, v13, v13\ns_mov_b32 exec_lo, 0x00ff00ff\ns_mov_b32 exec_hi, 0x00ff00ff\nbuffer_store_short v13, v8, {SA}, s52 offen {P['outf']}")
    stamp(10)
    if not P["epochearly"]: epoch("L_fin")
    if P.get("dbgdelay"):
        a(f"s_memrealtime s[8:9]\ns_waitcnt lgkmcnt(0)\nL_dd:\ns_memrealtime s[10:11]\ns_waitcnt lgkmcnt(0)\ns_sub_u32 s10, s10, s8\ns_cmp_lt_u32 s10, {P['dbgdelay']}\ns_cbranch_scc1 L_dd")
    if P.get("trace"):
        L2=[]
        for x in a.L:
            L2.append(x)
            if x.startswith(("ds_max_u32","ds_write_b32")) and x.endswith(f"v10 offset:{F['CNT']}"):
                L2+=["s_memrealtime s[62:63]","v_readfirstlane_b32 s97, v10","s_waitcnt lgkmcnt(0)","s_lshl_b32 s62, s62, 12","s_or_b32 s62, s62, s97","s_and_b32 s98, s96, 63","s_cmp_lt_u32 s96, 64","s_cselect_b64 vcc, -1, 0","v_mov_b32 v32, s62","v_cmp_eq_u32 s[62:63], s98, v0","s_add_u32 s96, s96, 1","s_and_b64 vcc, vcc, s[62:63]","v_cndmask_b32 v30, v30, v32, vcc","v_cndmask_b32 v31, v31, v32, s[62:63]"]
            if x=="L_ld2:": L2+=["s_mov_b32 s96, 0","v_mov_b32 v30, 0","v_mov_b32 v31, 0"]
        a.L=L2
    if P.get("allsc1"): a.L=[(x+" sc1" if (x.startswith("buffer_store") and "sc1" not in x) else x) for x in a.L]
    if P.get("nostores"):
        L2=[]; n_=0
        for x in a.L:
            if x.startswith("buffer_store") and WS in x:
                if n_ in P.get("keep",()): L2.append(x)
                n_+=1
            else: L2.append(x)
        a.L=L2
    a("L_fin:")
    if diag:
        stamp(15)
        if P.get("mind"): a(f"s_cmp_eq_u32 {sW}, 4\ns_cbranch_scc1 L_dump\ns_cmp_eq_u32 {sW}, 6\ns_cbranch_scc0 L_end\nL_dump:")
        a("s_load_dwordx2 s[28:29], s[0:1], 104")
        a(f"s_waitcnt lgkmcnt(0) vmcnt(0)\ns_mov_b32 s30, {WSSIZE}\ns_mov_b32 s31, 0x20000\ns_mov_b64 exec, 1")
        if P["wsb"]: a(f"s_add_u32 s28, s28, {P['wsb']}\ns_addc_u32 s29, s29, 0")
        for i in range(16): a(f"v_mov_b32 v{8+i}, s{64+2*i}")
        a(f"v_mov_b32 v24, {sBud}\nv_mov_b32 v6, 0\ns_lshl_b32 s52, {sB}, 3\ns_add_u32 s52, s52, {sW}\ns_lshl_b32 s52, s52, 7\ns_add_u32 s52, s52, {DBG}")
        dfl=P.get("dfl","")
        for i in range(4): a(f"buffer_store_dwordx4 {vr(8+4*i,4)}, v6, {WS}, s52 offen offset:{16*i} {dfl}")
        a(f"buffer_store_dword v24, v6, {WS}, s52 offen offset:64 {dfl}")
        if P.get("trace"):
            a(f"s_cmp_eq_u32 {sW}, 4\ns_cbranch_scc0 L_ntr\ns_mov_b64 exec, -1\nv_lshlrev_b32 v6, 2, v0\ns_lshl_b32 s52, {sB}, 9\ns_add_u32 s52, s52, {DBG+0x40000}\nbuffer_store_dword v30, v6, {WS}, s52 offen\nbuffer_store_dword v31, v6, {WS}, s52 offen offset:256\nL_ntr:")
    a("s_endpgm")
    for f_ in far: a(f_)
    a("L_end:\ns_endpgm")
    body = a.finish(verbose=P.get("verbose",False))
    hdr = open("cdna_kernels/"+NAME+".s.ref").read().split("; Override launch")[0] if P.get("hdr",True) else ""
    return hdr + f"""; Single persistent launch: 256 workgroups (one per CU) x 8 waves. Written with my own generator script.
; Math (absorbed form of the reference, exact reordering): xn = LN(x); q = xn.Wq; qa[h,c] = q[h,:].Wuk[c,h,:] * D^-0.5 * log2e;
;   S = qa.ckv^T; p = 2^(S - ceil(block max)) per 32-key block, blocks rescaled by exact powers of two against the true row max;
;   cl = (p.ckv)/sum p; ctx = cl.Wuv; s = ctx.Wo; out = x + s * silu(gelu(xn.W1 + b1).W2 + b2).
; Workgroup b: x = b&7, y = b>>3, group g = 4x + (y>>3) (head g, keys 256g..256g+255), j = y&7 (row / column slice).
; Waves (role = hardware wave ^ 4): 0-3 matrix stages, 4 LDS-DMA stream of all weights and c_kv tiles, 5 sentinel fill / statistics
;   store / weighted combine, 6 layernorm / FFN / final reduce, 7 gathers and softmax statistics. Waves meet through LDS counters.
; Hand-offs between workgroups go through d_ws. Every handed-off word is validated by the reader: either it carries this launch's tag
;   (tag = epoch word found in d_ws on entry + constant; the tag becomes the next epoch), or its slot was filled with a NaN sentinel in
;   this launch before anyone may write or read it. Write-through stores are used across groups. Inside a group plain stores are used
;   only while they are known or re-published: tags carry the writer's XCC id, and a group found (or suspected) to span dies
;   switches to write-through stores, so any placement is correct. Every global poll is bounded.
; @launch grid=(256,1,1) block=(512,1,1) lds={LDS_BYTES}
.amdgcn_target "amdgcn-amd-amdhsa--gfx950"
.text
.globl {NAME}_kernel
.p2align 8
.type {NAME}_kernel,@function
{NAME}_kernel:
{body}
.section .rodata,"a"
.p2align 6
.amdhsa_kernel {NAME}_kernel
  .amdhsa_next_free_vgpr 220
  .amdhsa_next_free_sgpr 100
  .amdhsa_accum_offset 220
  .amdhsa_group_segment_fixed_size 0
  .amdhsa_kernarg_size 112
  .amdhsa_user_sgpr_count 2
  .amdhsa_user_sgpr_kernarg_segment_ptr 1
  .amdhsa_system_sgpr_workgroup_id_x 1
.end_amdhsa_kernel
"""
if __name__=="__main__":
    kw={}
    out="cdna_kernels/"+NAME+".s"
    for arg in sys.argv[1:]:
        k,v=arg.split("=",1)
        if k=="out": out=v
        else:
            try: kw[k]=eval(v)
            except Exception: kw[k]=v
    open(out,"w").write(gen(verbose=True, **kw))
    print("wrote",out,"LDS",LDS_BYTES)
```

```python
import sys, math, struct
from asmlib import Asm
NAME = "recurrent_scan__compressed_kv_cla__dense_activation_gelu__decode"
def f2u(x): return struct.unpack("<I", struct.pack("<f", x))[0]

EPOCH=0; FLG=0x1000; QA=0x4000; HT=0x10000; G=0x24000; OP=G; YP=G+81920; ST=0x40000
REC=0x60000; RP=8192; RM=RP+2048; RE=RM+256; RQ=RE+768; RS=RQ+768; DBG=0x380000; WSSIZE=0x400000
assert REC+256*RS<=DBG
R1=0; R2=49152; R3=R2+51200; SCR=R3+36864
XB=SCR; VEC1A=XB+4096; VEC1F=VEC1A+192; VEC1B=VEC1F+128; VEC2A=VEC1B+192; VEC2B=VEC2A+384; MLB=VEC2B+384
FLAGS=(MLB+2048+255)//256*256
FN = ["CNT","RDB","V1A","V2A","CLR","X0","X1","V1B","V2B","S4M","RDUK","RDA","PUBA","PUBC","PUBD","PUBE","PUBF","PUBB","QISS","DST","CDI","STOK","GISS","S4K","H0","S3K","STR","GOK"]
F = {n:256*i for i,n in enumerate(FN)}
LDS_BYTES = FLAGS+256*len(FN)

Q_=('QISS',4); M_=('S4M',4); K_=('S4K',4); D_=('DST',4); C_=('CDI',1); V_=('V1B',1); S_=('S3K',4)
DEF = dict(sched=[(0,Q_,18),(36,M_,12),(48,K_,24),(66,C_,24)], holdA=21, gA=False, mshare=False, psplit=(8,0), ge2=False, sttrig=('PUBC',2), lateG=0, s1pipe=True, holdP=0, gateA=0, wb=None, outf='', blate=True, prio=(0,2,3), epochearly=True, latetouch=30, gC=False, fsched=None, T=24, TA=30, TL=24, thrG=60, pauseQ=True, ntA='nt', ntB='nt', nt="nt", diag=False, wsb=0, thrF=30, clrstep=8, gate=True, n1=18, n2=66, thrG2=0, incC=False, mfirst=True, hintA=False, hintC=False, holdG=False, n0=0, ackA=False, ackC=False, s4late=True, ffnfirst=True, fg=(24,84), dtrig=[('STOK',1)], thrQ=150, adual=True,  local=True, stattrig="DST", pref='s', budget=400000, safe=False)

def gen(**kw):
    P = dict(DEF); P.update(kw)
    T=P["T"]; TL=P["TL"]; NT=P["nt"]; diag=P["diag"]
    a = Asm()
    far=[]
    sW,sX,sY,sG,sJ,sB,sV = "s34","s35","s36","s37","s38","s39","s41"
    sBud="s42"; WS="s[28:31]"; SA="s[44:47]"; SB="s[48:51]"
    nst=[0]
    def stamp(i):
        if diag: a(f"s_memrealtime s[{64+2*i}:{65+2*i}]")
    def srd(base, ptr, size):
        a(f"s_mov_b32 s{base}, s{ptr}\ns_mov_b32 s{base+1}, s{ptr+1}\ns_mov_b32 s{base+2}, {size}\ns_mov_b32 s{base+3}, 0x20000")
    vLane="v0"; vL4="v1"; vOne="v2"; vTmp="v3"; vN="v4"; vGl="v5"
    CB=64
    def spin(l):
        a(f"{l}:")
        if P["safe"]: a("s_sub_u32 s99, s99, 1\ns_cbranch_scc1 L_fin")
        if P.get("slp") is not None and l.startswith("WF"): a(f"s_sleep {P['slp']}")
    def wait_flag(name, thr):
        if name=="CNT" and isinstance(thr,int): thr+=CB
        l=a.lab("WF")
        spin(l)
        a(f"ds_read_b32 {vTmp}, {vL4} offset:{F[name]}\ns_waitcnt lgkmcnt(0)\nv_cmp_gt_u32 vcc, {thr}, {vTmp}\ns_cbranch_vccnz {l}")
    def sig(name, v=vOne):
        a(f"ds_add_u32 {vL4}, {v} offset:{F[name]}")
    def loop_head(base, sigs=()):
        l=a.lab(base); g=a.lab("GU"); ok=a.lab("OK")
        a(f"{l}:\ns_sub_u32 {sBud}, {sBud}, 1\ns_cbranch_scc1 {g}")
        far.append(f"{g}:\ns_mov_b32 {sBud}, 0\ns_mov_b64 exec, -1\n"+"".join(f"ds_add_u32 {vL4}, {vOne} offset:{F[n]}\n" for n in sigs)+f"s_nop 7\ns_branch {ok}")
        return l, ok
    def vr(b,n): return f"v[{b}:{b+n-1}]"
    def tag_finish():
        a("s_waitcnt lgkmcnt(0)\ns_add_u32 s32, s32, 0x7f4a7c10\ns_addc_u32 s33, s33, 0x9e3779b9\ns_or_b32 s32, s32, 15")
    def hint_wait(off, base, tp):
        l=a.lab("HW"); ok=a.lab("HK")
        r=lambda i: f"s[{base+2*i}:{base+2*i+1}]"
        a(f"{l}:\ns_load_dwordx8 s[{base}:{base+7}], s[28:29], {off}\ns_add_u32 {off}, {off}, 64\ns_waitcnt lgkmcnt(0)")
        a("\n".join(f"s_xor_b64 {r(i)}, {r(i)}, {tp}" for i in range(4)))
        a(f"s_or_b64 {r(0)}, {r(0)}, {r(1)}\ns_or_b64 {r(2)}, {r(2)}, {r(3)}\ns_or_b64 {r(0)}, {r(0)}, {r(2)}\ns_cbranch_scc0 {ok}")
        a(f"s_and_b32 s{base}, {off}, 0x3c0\ns_cbranch_scc1 {l}\n{ok}:")
    def ghint(pair, stride, base, test):
        l=a.lab("GW"); ok=a.lab("GK")
        r=lambda i: f"s[{base+2*i}:{base+2*i+1}]"
        a(f"s_movk_i32 s98, 200\n{l}:")
        for k in range(8): a(f"s_load_dword s{base+k}, {pair}, {k*stride} glc")
        a(f"s_sub_u32 s98, s98, 1\ns_cbranch_scc1 {ok}\ns_waitcnt lgkmcnt(0)")
        if test=="sentinel":
            a("\n".join(f"s_max_u32 s{base}, s{base}, s{base+k}" for k in range(1,8))+f"\ns_cmp_eq_u32 s{base}, -1\ns_cbranch_scc1 {l}")
        else:
            a("\n".join(f"s_xor_b64 {r(i)}, {r(i)}, {test}" for i in range(4)))
            a(f"s_or_b64 {r(0)}, {r(0)}, {r(1)}\ns_or_b64 {r(2)}, {r(2)}, {r(3)}\ns_or_b64 {r(0)}, {r(0)}, {r(2)}\ns_cbranch_scc1 {l}")
        a(f"{ok}:\ns_waitcnt lgkmcnt(0)")
    def sprefetch(end_o, kb_o, end_f, kb_f):
        nf=a.lab("PN"); dn=a.lab("PD")
        a(f"s_cmp_lt_u32 {sJ}, 5\ns_cbranch_scc0 {nf}")
        for lab,ptr,base,rows_kb,sec,end,kb in ((None,14,f"s_mul_i32 s96, {sG}, 245760\ns_lshl_b32 s97, {sJ}, 8",4,4,end_o,kb_o),(nf,22,f"s_mul_i32 s96, {sX}, 245760\ns_lshl_b32 s97, {sV}, 7",8,2,end_f,kb_f)):
            if lab: a(f"{lab}:\ns_cmp_lt_u32 {sV}, 10\ns_cbranch_scc0 {dn}")
            if kb:
                assert kb%3==0 and 0<=end-kb and end*rows_kb<=192
                l=a.lab("PL"); rpi=12//sec
                a(f"{base}\ns_add_u32 s96, s96, s97\ns_add_u32 s96, s96, {(end-kb)*rows_kb*1280}\ns_add_u32 s96, s96, s{ptr}\ns_addc_u32 s97, s{ptr+1}, 0\ns_movk_i32 s98, {kb*rows_kb//rpi}\n{l}:")
                for r_ in range(rpi):
                    for c_ in range(sec): a(f"s_load_dword s43, s[96:97], {r_*1280+c_*64}")
                a(f"s_add_u32 s96, s96, {rpi*1280}\ns_addc_u32 s97, s97, 0\ns_sub_u32 s98, s98, 1\ns_cmp_lg_u32 s98, 0\ns_cbranch_scc1 {l}")
            if not lab: a(f"s_branch {dn}")
        a(f"{dn}:\ns_waitcnt lgkmcnt(0)")
    def xreduce(op, v, t):
        a(f"v_mov_b32 {t}, {v}\nv_permlane16_swap_b32 {v}, {t}\n{op} {v}, {v}, {t}")
        a(f"v_mov_b32 {t}, {v}\nv_permlane32_swap_b32 {v}, {t}\n{op} {v}, {v}, {t}")
    DP="row_mask:0xf bank_mask:0xf"
    def rowreduce(op, v, steps=("quad_perm:[1,0,3,2]","quad_perm:[2,3,0,1]","row_half_mirror","row_mirror")):
        for s in steps: a(f"{op}_dpp {v}, {v}, {v} {s} {DP}")

    vW,vK,vF,vO,vC,vT,vA0,vA1,vA2,vP,vTR = "v6","v7","v8","v9","v10","v11","v12","v13","v14","v15","v16"
    CS=P["clrstep"]
    def ids():
        a(f"s_and_b32 {sX}, s2, 7\ns_lshr_b32 {sY}, s2, 3\ns_lshl_b32 {sB}, {sX}, 5\ns_or_b32 {sB}, {sB}, {sY}\ns_lshr_b32 {sG}, {sB}, 3\ns_and_b32 {sJ}, {sY}, 7")
    def ids2():
        if diag:
            for i in range(1,16):
                if i not in (8,9) : a(f"s_mov_b32 s{64+2*i}, 0")
        if P["safe"]: a("s_mov_b32 s99, 2000000")
        a(f"s_and_b32 {sV}, {sG}, 3\ns_lshl2_add_u32 {sV}, {sJ}, {sV}\ns_sub_u32 {sV}, {sV}, 20")
        a(f"v_lshlrev_b32 {vL4}, 2, {vLane}\nv_add_u32 {vL4}, {FLAGS}, {vL4}")
    if P.get("skewinj"):
        a(f"s_and_b32 s52, s2, 6\ns_cmp_eq_u32 s52, 4\ns_cbranch_scc0 L_nsk\ns_sleep {P['skewinj']}\nL_nsk:")
    a("s_load_dwordx16 s[4:19], s[0:1], 0")
    stamp(0)
    a(f"v_readfirstlane_b32 {sW}, v0\ns_load_dwordx2 s[28:29], s[0:1], 104\ns_cmp_ge_u32 s2, 256\ns_cbranch_scc1 L_end")
    if P["pref"]=="v":
        a(f"s_getpc_b64 s[52:53]\nL_pc:\nv_lshlrev_b32 v1, 7, v0\nv_subrev_u32 v1, 8192, v1\nv_cmp_gt_u32 vcc, L_end-L_pc, v1\ns_and_saveexec_b64 s[54:55], vcc\ns_cbranch_execz L_np\nglobal_load_dword v207, v1, s[52:53]\nL_np:\ns_mov_b64 exec, -1")
    ids()
    if P["pref"]=="s":
        a(f"s_lshr_b32 {sW}, {sW}, 6\ns_cbranch_scc0 L_loader\ns_getpc_b64 s[52:53]\nL_pc:\ns_mul_i32 s54, {sY}, 7\ns_add_u32 s54, s54, {sW}\ns_lshl_b32 s54, s54, 7\ns_min_u32 s54, s54, L_end-L_pc-64")
        a("s_load_dword s56, s[52:53], s54\ns_add_u32 s54, s54, 64\ns_load_dword s57, s[52:53], s54\ns_branch L_notloader\nL_loader:")
    else: a(f"s_lshr_b32 {sW}, {sW}, 6\ns_cbranch_scc1 L_notloader")

    a(f"v_lshrrev_b32 {vP}, 3, {vLane}\nv_and_b32 {vT}, 6, {vP}\nv_xor_b32 {vTR}, {vT}, {vLane}\nv_and_b32 {vTR}, 7, {vTR}\nv_lshlrev_b32 {vTR}, 4, {vTR}")
    a(f"v_mul_u32_u24 {vK}, 12288, {vP}\nv_add_u32 {vW}, {vK}, {vTR}\nv_lshlrev_b32 {vA0}, 4, {vLane}")
    a(f"s_mul_i32 s52, {sJ}, {80*12288}\ns_mul_i32 s53, {sG}, 384\ns_add_u32 s52, s52, s53")
    a(f"s_mov_b32 m0, {XB}\ns_mov_b32 s46, {640*12288}\ns_mov_b32 s47, 0x20000\ns_mov_b32 s51, 0x20000\ns_movk_i32 s50, 1280")
    a(f"s_movk_i32 s56, 896\ns_movk_i32 s57, 1280\ns_and_b32 s62, s2, {(~(7*CS))&0xff}")
    if P["lateG"]==-1:
        assert not P["wsb"]
        a(f"v_mov_b64 v[24:25], -1\nv_mov_b64 v[26:27], -1\ns_mov_b32 s30, {G+102400}\ns_mov_b32 s31, 0x20000\ns_lshl_b32 s54, s2, 10\ns_add_u32 s54, s54, {G}\ns_cmp_lg_u32 s62, 0")
    a("s_waitcnt lgkmcnt(0)")
    if P["lateG"]==-1: a(f"buffer_store_dwordx4 v[24:27], {vA0}, {WS}, s54 offen sc1")
    stamp(8)
    a("s_mov_b64 s[48:49], s[4:5]\ns_mov_b64 s[44:45], s[8:9]\ns_cbranch_scc0 L_qa\nL_nqa:")
    a(f"buffer_load_dwordx4 {vA0}, {SB}, 0 offen lds\nbuffer_load_dwordx4 {vA0}, {SB}, 0 offen offset:1024 lds\ns_mov_b32 m0, {R2}")
    stamp(9)
    def pub(iss='s61'):
        a(f"s_getreg_b32 s63, hwreg(HW_REG_IB_STS)\ns_bfe_u32 s62, s63, 0x20016\ns_and_b32 s63, s63, 15\ns_lshl4_add_u32 s63, s62, s63\ns_sub_u32 s63, {iss}, s63\nv_mov_b32 v23, s63\nds_max_u32 {vL4}, v23 offset:{F['CNT']}")
    def cpub(k):
        if P.get("exact"): pub()
        else: a(f"s_sub_u32 s63, s61, {k}\nv_mov_b32 v23, s63\nds_max_u32 {vL4}, v23 offset:{F['CNT']}")
    def wait_pub(name, thr):
        l=a.lab("WP")
        spin(l); pub()
        a(f"ds_read_b32 {vTmp}, {vL4} offset:{F[name]}\ns_waitcnt lgkmcnt(0)\nv_cmp_gt_u32 vcc, {thr}, {vTmp}\ns_cbranch_vccnz {l}")
    def seg384(srdq, vaddr, soff, step, m0end, thr, xor=False, d1="s56", d2="s57"):
        l=a.lab("SG")
        a(f"{l}:")
        v=vaddr
        if xor:
            a(f"v_xor_b32 {vT}, s55, {vaddr}\ns_add_u32 s55, s55, 32\ns_and_b32 s55, s55, 0x60"); v=vT
        if thr:
            a(f"s_waitcnt vmcnt({thr-3})"); cpub(thr-3)
        a(f"buffer_load_dwordx4 {v}, {srdq}, {soff} offen {NT} lds\ns_add_u32 m0, m0, {d1}")
        if thr: a(f"s_add_u32 s61, s61, 3")
        a(f"buffer_load_dwordx4 {v}, {srdq}, {soff} offen offset:128 {NT} lds\ns_add_u32 m0, m0, {d1}")
        a(f"buffer_load_dwordx4 {v}, {srdq}, {soff} offen offset:256 {NT} lds\ns_add_u32 m0, m0, {d2}")
        a(f"s_add_u32 {soff}, {soff}, {step}\ns_cmp_lg_u32 m0, {m0end}\ns_cbranch_scc1 {l}")
    if P.get("unrollq",True):
        a("s_mov_b32 s55, 98304")
        for r_ in range(10):
            a(f"buffer_load_dwordx4 {vW}, {SA}, s52 offen {NT} lds\ns_add_u32 m0, m0, s56\ns_nop 0\nbuffer_load_dwordx4 {vW}, {SA}, s52 offen offset:128 {NT} lds\ns_add_u32 m0, m0, s56\ns_nop 0\nbuffer_load_dwordx4 {vW}, {SA}, s52 offen offset:256 {NT} lds")
            if r_<9: a("s_add_u32 m0, m0, s57\ns_add_u32 s52, s52, s55")
    else: seg384(SA, vW, "s52", 98304, R2+30720, None)
    a("s_branch L_ld2")
    a(f"L_qa:\ns_mov_b32 s30, {WSSIZE}\ns_mov_b32 s31, 0x20000")
    if P["wsb"]: a(f"s_add_u32 s28, s28, {P['wsb']}\ns_addc_u32 s29, s29, 0")
    a(f"s_load_dwordx2 s[32:33], s[28:29], {EPOCH}\nv_mov_b64 v[24:25], -1\nv_mov_b64 v[26:27], -1")
    a(f"s_mul_i32 s54, s2, {6144//CS}\ns_add_u32 s54, s54, {QA}\ns_add_u32 s55, s54, 4096")
    for k in range(6): a(f"buffer_store_dwordx4 v[24:27], {vA0}, {WS}, s{54+(k>>2)} offen offset:{1024*(k&3)} sc1")
    a("s_branch L_nqa")
    a("L_notloader:")
    a(f"s_load_dwordx8 s[20:27], s[0:1], 64\ns_xor_b32 {sW}, {sW}, 4\nv_and_b32 v0, 63, v0")
    if diag: a("s_mov_b32 s80, 0\ns_mov_b32 s82, 0")
    ids2()
    a("s_branch L_others")
    a(f"L_ld2:\ns_setprio {P['prio'][2]}\ns_load_dwordx8 s[20:27], s[0:1], 64\ns_mov_b32 {sW}, 4")
    ids2()
    stamp(1)
    a("s_waitcnt lgkmcnt(0)")
    a(f"v_bfe_u32 {vT}, {vLane}, 4, 1\nv_xor_b32 {vT}, {vT}, {vLane}\nv_and_b32 {vT}, 7, {vT}\nv_lshl_add_u32 {vK}, {vT}, 4, {vK}")
    a(f"s_mul_i32 s52, {sJ}, {96*12288}\ns_add_u32 s52, s52, s53\ns_mov_b32 s54, s52\ns_mov_b32 s55, 0")
    a(f"s_mov_b32 s44, s10\ns_mov_b32 s45, s11\ns_mov_b32 s46, {768*12288}\ns_mov_b32 m0, {R3}")
    a(f"s_movk_i32 s61, {CB+30}")
    a("s_waitcnt vmcnt(30)\ns_barrier")
    a(f"s_cmp_eq_u32 s62, 0\ns_cbranch_scc0 L_nfl")
    tag_finish()
    a(f"s_mov_b32 s30, {WSSIZE}\ns_mov_b32 s31, 0x20000\nv_mov_b32 v24, s32\nv_mov_b32 v25, s33\ns_mul_i32 s63, s2, {128//CS}\ns_add_u32 s63, s63, {FLG}\ns_mov_b64 exec, 15")
    a(f"buffer_store_dwordx4 v[24:27], {vA0}, {WS}, s63 offen sc1\ns_mov_b64 exec, -1\nL_nfl:")
    a(f"v_lshrrev_b32 {vT}, 5, {vLane}\nv_lshlrev_b32 {vT}, 4, {vT}\nv_xor_b32 {vA1}, {vA0}, {vT}\nv_xor_b32 {vA2}, 16, {vA0}")
    for t in range(3):
        a(f"v_add_u32 v17, {64*t}, {vLane}\nv_mul_u32_u24 v18, 0x5556, v17\nv_lshrrev_b32 v18, 18, v18\nv_mul_u32_u24 v19, 12, v18\nv_sub_u32 v17, v17, v19")
        a(f"v_lshrrev_b32 v19, 1, v18\nv_and_b32 v18, 1, v18\nv_lshl_add_u32 v18, v19, 5, v18\nv_and_b32 v19, 2, v19\nv_xor_b32 v17, v17, v19\nv_mul_u32_u24 v18, 1536, v18\nv_lshl_add_u32 v{20+t}, v17, 4, v18")
        if P.get("b16"):
            a(f"v_add_u32 v17, {64*t}, {vLane}\nv_mul_u32_u24 v18, 0xaaab, v17\nv_lshrrev_b32 v18, 18, v18\nv_mul_u32_u24 v19, 6, v18\nv_sub_u32 v17, v17, v19")
            a(f"v_lshrrev_b32 v19, 1, v18\nv_and_b32 v18, 1, v18\nv_lshl_add_u32 v18, v19, 5, v18\nv_mul_u32_u24 v18, 1536, v18\nv_lshl_add_u32 v{20+t}, v17, 4, v18")
        if P.get("bfull"):
            a(f"v_lshrrev_b32 v18, 3, {vLane}\nv_lshrrev_b32 v19, 1, v18\nv_and_b32 v18, 1, v18\nv_lshl_add_u32 v18, v19, 5, v18\nv_mul_u32_u24 v18, 1536, v18\nv_and_b32 v17, 7, {vLane}\nv_lshl_add_u32 v{20+t}, v17, 4, v18")
            a(f"s_and_b32 s63, {sJ}, 1")
            if t<2: a(f"s_lshl_b32 s63, s63, 8\ns_add_u32 s63, s63, {t*128*1536+2048}")
            else: a(f"s_mul_i32 s63, s63, {128*1536}\ns_add_u32 s63, s63, {128+2048}")
            a(f"v_add_u32 v{20+t}, s63, v{20+t}")
        if t: a(f"v_subrev_u32 v{20+t}, {1024*t}, v{20+t}")
    a(f"v_mul_u32_u24 {vO}, 1280, {vP}\nv_add_u32 {vO}, {vO}, {vTR}\nv_mul_u32_u24 {vF}, 3072, {vP}\nv_add_u32 {vF}, {vF}, {vTR}")
    a(f"s_mov_b32 s48, s6\ns_mov_b32 s49, s7\ns_mov_b32 s50, {8192*1536}")
    a(f"s_mul_i32 s58, {sG}, {256*1536}\ns_mul_i32 s53, {sJ}, 192\ns_add_u32 s58, s58, s53\ns_mov_b32 s59, {R1}\ns_mov_b32 s60, {R2}")
    if P.get("bfull"): a(f"s_mul_i32 s58, {sG}, {256*1536}\ns_lshr_b32 s53, {sJ}, 1\ns_mul_i32 s53, s53, 384\ns_add_u32 s58, s58, s53\ns_max_u32 s58, s58, 2048\ns_sub_u32 s58, s58, 2048")
    if P.get("b16"): a(f"s_lshr_b32 s58, {sB}, 4\ns_mul_i32 s58, s58, {512*1536}\ns_and_b32 s53, {sB}, 15\ns_mul_i32 s53, s53, 96\ns_add_u32 s58, s58, s53")
    if P["holdP"]:
        assert 0<P["holdP"]<36 and P["holdP"]%3==0
        seg384(SA, vK, "s52", 98304, R3+1024*P["holdP"], P.get("T0",T), xor=True)
        wait_pub("PUBA",3)
    seg384(SA, vK, "s52", 98304, R3+36864, T, xor=True)
    stamp(2)
    TA=P["TA"]; NA=P["ntA"]; NB=P["ntB"]
    def drain(tgt):
        l=a.lab("DR")
        spin(l); pub(); a(f"s_sub_u32 s63, s61, s63\ns_cmp_gt_u32 s63, {tgt}\ns_cbranch_scc1 {l}")
    a(f"s_mul_i32 s52, {sB}, 49152")
    if T>P.get("holdA",18): drain(P.get("holdA",18))
    wait_pub(*(("GISS",1) if P["holdG"] else ("PUBA",3)))
    def segAB(nst, ex, TA=TA):
        l=a.lab("SA")
        a(f"{l}:\nv_xor_b32 v17, s55, {vA0}\nv_xor_b32 v18, s55, {vA1}\nv_xor_b32 v19, s55, {vA2}\ns_mov_b32 m0, s59")
        a(f"s_waitcnt vmcnt({TA-6})")
        if ex: pub()
        else: cpub(TA-6)
        a(f"buffer_load_dwordx4 v17, {SB}, s52 offen {NA} lds\nbuffer_load_dwordx4 v18, {SB}, s52 offen offset:1024 {NA} lds\nbuffer_load_dwordx4 v19, {SB}, s52 offen offset:2048 {NA} lds")
        a(f"s_mov_b32 m0, s60\ns_add_u32 s61, s61, 6")
        for t in range(3): a(f"buffer_load_dwordx4 v{20+t}, {SB}, {'s58' if not P.get('bnone') else 's50'} offen offset:{1024*t} {NB} lds")
        a(f"s_add_u32 s55, s55, 32\ns_and_b32 s55, s55, 0xe0\ns_add_u32 s52, s52, 3072\ns_add_u32 s58, s58, 3072\ns_add_u32 s60, s60, 3200\ns_add_u32 s59, s59, 3072")
        a(f"s_cmp_lg_u32 s59, {R1+3072*nst}\ns_cbranch_scc1 {l}")
    if P["gateA"]:
        assert 0<P["gateA"]<16
        segAB(P["gateA"], True); wait_pub("V2A",1)
    if P.get("gateQ"):
        n_=P["gateQ"]
        assert P["gateA"]<n_<16 and P["thrQ"]<=66+6*n_ and not P.get("TA2")
        segAB(n_, P["holdG"] or P["gateA"]); wait_pub("QISS",4); segAB(16, False, P.get("TA3",TA))
    elif P.get("TA2"):
        n_,t_=P["TA2"]
        assert P["gateA"]<n_<16 and t_%6==0
        segAB(n_, P["holdG"] or P["gateA"]); segAB(16, P.get("exA",False), t_)
    else: segAB(16, P["holdG"] or P["gateA"])
    stamp(3)
    a(f"s_mov_b32 s44, s12\ns_mov_b32 s45, s13\ns_mov_b32 m0, {R3}")
    FF=True
    def check(sc):
        at=[x[0] for x in sc]
        assert at[0]==0 and at==sorted(set(at)) and all(x%3==0 for x in at) and all(3<x[2]<=60 and x[2]%3==0 for x in sc)
        return sc
    sched=check(P["sched"]); fsched=check(P.get("fsched") or P["sched"])
    if sched[0][1]!=("QISS",4):
        drain(sched[0][2]-3); wait_pub("RDUK",3)
    stamp(4)
    def late(sc, done, n, emit):
        tl=[x[2] for x in sc if x[0]<=done][-1]
        for at,fl,t_ in sc:
            if done<at<done+n: emit(at-done, tl)
            if done<=at<done+n:
                if fl: wait_pub(*fl)
                tl=t_
        emit(n, tl)
    def seg_wo(k, TL):
        assert k%6==0
        l=a.lab("SO")
        a(f"{l}:")
        for i in range(6):
            if i%3==0: a(f"s_waitcnt vmcnt({TL-3})"); cpub(TL-3)
            if i%2==0:
                a(f"buffer_load_dwordx4 {vO}, {SB}, s52 offen {NT} lds\ns_add_u32 m0, m0, s56")
            else:
                a(f"buffer_load_dwordx4 {vO}, {SB}, s52 offen offset:128 {NT} lds\ns_add_u32 m0, m0, 1152\ns_add_u32 s52, s52, 10240")
            if i%3==0: a(f"s_add_u32 s61, s61, 3")
        a(f"s_cmp_lg_u32 m0, {R1+1024*k}\ns_cbranch_scc1 {l}")
    def seg_w2(k, TL):
        l=a.lab("S2")
        a(f"{l}:\ns_waitcnt vmcnt({TL-3})"); cpub(TL-3)
        for i in range(3):
            a(f"buffer_load_dwordx4 {vO}, {SB}, s52 offen {NT} lds\ns_add_u32 m0, m0, 2048\ns_add_u32 s52, s52, 10240")
        a(f"s_add_u32 s61, s61, 3\ns_cmp_lg_u32 m0, {R2+2048*k}\ns_cbranch_scc1 {l}")
    a(f"s_cmp_lt_u32 {sV}, 10\ns_cbranch_scc0 L_noff")
    a(f"s_mul_i32 s52, {sV}, {64*3072}\ns_mul_i32 s53, {sX}, 384\ns_add_u32 s52, s52, s53")
    a(f"s_mov_b32 s48, s18\ns_mov_b32 s49, s19\ns_mov_b32 s50, {640*3072}")
    late(fsched, 0, 24, lambda k,t_: seg384(SB, vF, "s52", 24576, R3+1024*k, t_))
    a(f"s_mul_i32 s52, {sX}, 245760\ns_lshl_b32 s53, {sV}, 7\ns_add_u32 s52, s52, s53")
    a(f"s_mov_b32 s48, s22\ns_mov_b32 s49, s23\ns_mov_b32 s50, {1536*1280}\ns_mov_b32 m0, {R1}")
    wait_pub("RDA",4)
    late(fsched, 24, 36, lambda k,t_: seg384(SA, vW, "s54", 98304, R1+1024*k, t_))
    a(f"s_mov_b32 m0, {R2}")
    wait_pub("RDB",4)
    late(fsched, 60, 24, seg_w2)
    a("s_branch L_drain\nL_noff:")
    a(f"s_mul_i32 s52, {sG}, 245760\ns_lshl_b32 s53, {sJ}, 8\ns_add_u32 s52, s52, s53")
    a(f"s_mov_b32 s48, s14\ns_mov_b32 s49, s15\ns_mov_b32 s50, {6144*1280}")
    late(sched, 0, 36, lambda k,t_: seg384(SA, vW, "s54", 98304, R3+1024*k, t_))
    stamp(5)
    a(f"s_mov_b32 m0, {R1}\ns_cmp_lt_u32 {sJ}, 5\ns_cbranch_scc0 L_drain")
    wait_pub("RDA",4)
    late(sched, 36, 48, seg_wo)
    a("L_drain:")
    stamp(6)
    drain(6)
    a(f"v_mov_b32 {vC}, s61\ns_waitcnt vmcnt(0)\nds_write_b32 {vL4}, {vC} offset:{F['CNT']}")
    stamp(7)
    if P.get("wb"):
        n_,fl=P["wb"]
        a(f"s_cmp_lt_u32 s2, {n_}\ns_cbranch_scc0 L_fin")
        wait_flag(*fl)
        a("buffer_wbl2 sc1\ns_waitcnt vmcnt(0)")
        stamp(10)
    a("s_branch L_fin")

    a("L_others:")
    a(f"v_and_b32 {vN}, 15, {vLane}\nv_lshrrev_b32 {vGl}, 4, {vLane}\nv_mov_b32 {vOne}, 1\ns_mov_b32 {sBud}, {P['budget']}")
    a(f"s_mov_b32 s30, {WSSIZE}\ns_mov_b32 s31, 0x20000\ns_waitcnt lgkmcnt(0)")
    if P["wsb"]: a(f"s_add_u32 s28, s28, {P['wsb']}\ns_addc_u32 s29, s29, 0")
    a(f"s_load_dwordx2 s[32:33], s[28:29], {EPOCH}")
    a(f"s_cmp_eq_u32 {sW}, 5\ns_cbranch_scc1 L_w5\ns_cmp_eq_u32 {sW}, 6\ns_cbranch_scc1 L_w6\ns_cmp_eq_u32 {sW}, 7\ns_cbranch_scc1 L_w7")

    def trcore(dst, t):
        a(f"v_bfe_u32 {t}, {vLane}, 2, 3\nv_lshlrev_b32 {dst}, 7, {t}\nv_lshrrev_b32 {t}, 1, {t}\nv_lshl_add_u32 {dst}, {t}, 5, {dst}\nv_and_b32 {t}, 3, {vLane}\nv_lshl_add_u32 {dst}, {t}, 3, {dst}")
    MASKT=[f"s[{56+2*t}:{57+2*t}]" for t in range(4)]
    def masks():
        for t in range(4): a(f"s_mov_b32 s{56+2*t}, {0x00010001<<t}\ns_mov_b32 s{57+2*t}, {0x00010001<<t}")
    def mstore(txt):
        wt="\n".join(x+" sc1" if x.startswith("buffer_store") else x for x in txt.split("\n"))
        if not P["local"]:
            a(wt); return
        r=a.lab("RM"); bk=a.lab("BK")
        a(f"s_cbranch_scc0 {r}\n{txt}\n{bk}:")
        far.append(f"{r}:\ns_nop 7\n{wt}\ns_nop 1\ns_branch {bk}")
    def publish4(acc, vS, vAddr, soff, imm=0, mode=False):
        for t in range(4):
            a(f"s_mov_b64 exec, {MASKT[t]}\nv_cvt_pk_bf16_f32 v{vS}, v{acc+4*t}, v{acc+4*t+1}\nv_cvt_pk_bf16_f32 v{vS+1}, v{acc+4*t+2}, v{acc+4*t+3}")
        a(f"s_mov_b32 exec_lo, 0x000f000f\ns_mov_b32 exec_hi, 0x000f000f")
        txt=f"buffer_store_dwordx4 {vr(vS,4)}, {vAddr}, {WS}, {soff} offen offset:{imm}"
        if mode=="plain": a(txt)
        elif mode: mstore(txt)
        else: a(txt+" sc1")
        a("s_mov_b64 exec, -1")

    a('; ======== W0..W3 main')
    FR=64; QR=16; AC=160; vS=176
    vT1=[f"v{180+t}" for t in range(4)]; vVec="v184"; vPub="v185"; vU=["v186","v187"]; vA=[f"v{188+t}" for t in range(4)]
    vLin="v192"; vB=["v193","v194","v199"]; vPl="v195"; vMl="v196"; vBp="v197"; vC4="v198"; vT6=["v200","v201"]; vCore="v202"; vSt="v203"; vXa="v204"; vM0="v205"; vQa="v208"
    sHH="s52"; sKH="s53"
    a(f"s_cmp_eq_u32 {sW}, 0\ns_cbranch_scc0 L_nz")
    a(f"v_lshlrev_b32 v6, 4, {vLane}\nv_add_u32 v6, {FLAGS}, v6\nv_mov_b32 v8, 0\nv_mov_b32 v9, 0\nv_mov_b32 v10, 0\nv_mov_b32 v11, 0")
    extra = P["gC"] or P["lateG"]==3 or ("STR",1) in P["dtrig"] or any(x[1]==S_ for x in P["sched"])
    for i in range(len(FN)//4 if extra else 6): a(f"ds_write_b128 v6, v[8:11] offset:{1024*i}")
    a("L_nz:")
    if P['prio'][0]: a(f"s_setprio {P['prio'][0]}")
    a(f"s_and_b32 {sHH}, {sW}, 1\ns_lshr_b32 {sKH}, {sW}, 1")
    masks()
    trcore(vCore, vTmp)
    a(f"v_lshrrev_b32 v6, 5, {vLane}")
    a(f"s_lshl_b32 s54, {sW}, 10\ns_add_u32 s54, s54, {R2}\nv_mul_u32_u24 v7, 3072, v6\nv_add3_u32 {vT1[0]}, {vCore}, v7, s54")
    for t in range(1,4): a(f"v_xor_b32 {vT1[t]}, {32*t}, {vT1[0]}")
    a(f"s_lshl_b32 s54, {sKH}, 10\ns_lshl_b32 s55, {sHH}, 6\nv_lshlrev_b32 v7, 11, v6\nv_add3_u32 {vT6[0]}, {vCore}, v7, s54\nv_xor_b32 {vT6[0]}, s55, {vT6[0]}\nv_xor_b32 {vT6[1]}, 32, {vT6[0]}")
    a(f"v_lshlrev_b32 {vVec}, 4, {vGl}\nv_add_u32 {vVec}, {VEC1A}, {vVec}")
    a(f"v_lshlrev_b32 {vPub}, 6, {vGl}\nv_lshl_add_u32 {vPub}, {vN}, 4, {vPub}")
    a(f"v_lshlrev_b32 {vLin}, 4, {vLane}")
    a(f"v_lshrrev_b32 v7, 1, {vN}\nv_lshlrev_b32 {vQa}, 6, v7\nv_and_b32 v7, 1, {vN}\nv_lshl_add_u32 {vQa}, v7, 4, {vQa}\nv_and_b32 v7, 1, {vGl}\nv_lshl_add_u32 {vQa}, v7, 5, {vQa}\nv_lshl_add_u32 {vQa}, v6, 10, {vQa}")
    a(f"s_mul_i32 s54, {sW}, 12288\ns_add_u32 s54, s54, {R3}\nv_lshrrev_b32 v7, 2, {vN}\nv_mul_u32_u24 v7, 3072, v7\nv_and_b32 v8, 3, {vN}\nv_lshl_add_u32 v7, v8, 7, v7")
    a(f"v_lshrrev_b32 v8, 1, {vN}\nv_xor_b32 v8, v8, {vGl}\nv_lshlrev_b32 v8, 4, v8\nv_add3_u32 {vU[0]}, v7, v8, s54\nv_xor_b32 {vU[1]}, 64, {vU[0]}")
    a(f"s_mul_i32 s54, {sKH}, 768\nv_mul_u32_u24 v7, 1536, {vN}\nv_lshlrev_b32 v8, 1, {vGl}\nv_xor_b32 v8, {vN}, v8\nv_lshlrev_b32 v8, 4, v8\nv_add3_u32 {vA[0]}, v7, v8, s54")
    for t in range(1,4): a(f"v_xor_b32 {vA[t]}, {128*(t>>1)+16*(t&1)}, {vA[0]}")
    a(f"v_bfe_u32 v7, {vN}, 3, 1\nv_mul_u32_u24 v7, 3200, v7\nv_bfe_u32 v8, {vN}, 2, 1\nv_mul_u32_u24 v8, 192, v8\nv_mul_u32_u24 v9, 768, {vGl}\nv_add3_u32 v7, v7, v8, v9")
    a(f"v_and_b32 v8, 3, {vN}\nv_lshl_add_u32 v7, v8, 3, v7\nv_add_u32 v7, {R2}, v7\nv_and_b32 v9, 1, {vGl}\nv_lshlrev_b32 v9, 5, v9")
    a(f"s_lshl_b32 s54, {sKH}, 6\nv_add3_u32 {vB[0]}, v7, v9, s54\nv_xor_b32 v10, 32, v9\nv_add3_u32 {vB[1]}, v7, v10, s54")
    a(f"s_lshl_b32 s54, {sKH}, 5\nv_xor_b32 v10, s54, v9\nv_add_u32 v10, 128, v10\nv_add_u32 {vB[2]}, v7, v10")
    a(f"v_mul_u32_u24 v7, {2*RS}, {vGl}\nv_lshl_add_u32 {vPl}, {vN}, 4, v7\nv_lshlrev_b32 {vM0}, 2, {vN}\nv_add_u32 {vMl}, {vM0}, v7")
    a(f"v_lshrrev_b32 v7, 2, {vLane}\nv_lshl_add_u32 {vBp}, v8, 4, v7\nv_lshlrev_b32 {vBp}, 2, {vBp}")
    a(f"v_mul_u32_u24 v7, {8*RS}, v7\nv_lshl_add_u32 {vC4}, v8, 4, v7")
    a(f"s_lshl_b32 s54, {sHH}, 11\ns_add_u32 s54, s54, {XB}\nv_add_u32 {vXa}, s54, {vLin}")
    if P.get("spf3"): a("s_mov_b64 s[26:27], s[14:15]\ns_mov_b64 s[24:25], s[22:23]")
    oQ,oQA,oQL,oP,oM,oPL,oML,oCL,oE,oUV,tUV,oF,t6 = "s4","s5",("s6","s7","s8"),"s9","s10",("s11","s12"),("s13","s14"),"s15","s16","s17","s18","s54","s19"
    a(f"s_mul_i32 s20, {sB}, {RS}\ns_add_u32 s20, s20, {REC}\ns_lshl_b32 s55, {sW}, 8\ns_add_u32 s21, s20, s55\ns_add_u32 {oQ}, s21, {RQ}\ns_add_u32 {oE}, s21, {RE}")
    a(f"s_lshl_b32 s22, {sHH}, 10\ns_add_u32 s22, s22, {RP}\ns_lshl_b32 s23, {sHH}, 7\ns_add_u32 s23, s23, {RM}\ns_add_u32 {oP}, s20, s22\ns_add_u32 {oM}, s20, s23")
    a(f"s_mul_i32 s20, {sG}, {8*RS}\ns_add_u32 s20, s20, {REC}\ns_add_u32 {oPL[0]}, s20, s22\ns_add_u32 {oPL[1]}, {oPL[0]}, {RS}\ns_add_u32 {oML[0]}, s20, s23\ns_add_u32 {oML[1]}, {oML[0]}, {RS}")
    a(f"s_lshr_b32 s20, {sG}, 4\ns_mul_i32 s20, s20, 24\ns_mul_i32 s55, {sJ}, 3\ns_add_u32 s55, s55, {sW}\ns_add_u32 s20, s20, s55\ns_lshl_b32 s20, s20, 10")
    a(f"s_bfe_u32 s55, {sG}, 0x30001\ns_and_b32 s21, {sG}, 1\ns_lshl3_add_u32 s55, s21, s55\ns_lshl_b32 s55, s55, 6\ns_add_u32 s20, s20, s55\ns_add_u32 {oQA}, s20, {QA}")
    a(f"s_lshl1_add_u32 s20, {sHH}, {sKH}\ns_mul_i32 s20, s20, 12288\ns_add_u32 {oQL[0]}, s20, {QA}\ns_add_u32 {oQL[1]}, {oQL[0]}, 4096\ns_add_u32 {oQL[2]}, {oQL[0]}, 8192")
    a(f"s_lshl_b32 s20, {sHH}, 7\ns_add_u32 s20, s20, {sJ}\ns_mul_i32 s20, s20, {RS}\ns_lshl_b32 s55, {sKH}, 7\ns_add_u32 s20, s20, s55\ns_add_u32 s20, s20, {REC}")
    a(f"s_and_b32 s55, {sG}, 24\ns_bfe_u32 s21, {sG}, 0x20001\ns_or_b32 s55, s55, s21\ns_and_b32 s21, {sG}, 1\ns_lshl2_add_u32 s55, s21, s55\ns_lshl_b32 s55, s55, 8\ns_add_u32 {oCL}, s20, s55")
    a(f"s_mul_i32 {oF}, {sG}, 2560\ns_lshl_b32 s55, {sJ}, 9\ns_add_u32 {oF}, {oF}, s55\ns_lshl_b32 s55, {sW}, 7\ns_add_u32 {oF}, {oF}, s55\ns_add_u32 {oF}, {oF}, {OP}\ns_movk_i32 {t6}, {222+CB}")
    a(f"s_mov_b32 s48, 0x00800080\ns_mov_b32 s49, 0x437f0000\ns_lshl_b32 s55, {sHH}, 8\nv_add_u32 v6, s55, {vL4}")
    a(f"s_lshl_b32 s55, {sHH}, 9\ns_add_u32 s55, s55, {MLB}\nv_lshl_add_u32 {vSt}, {vLane}, 3, s55")
    if P["mshare"]: a(f"v_mov_b64 v[8:9], -1\nds_write_b64 {vSt}, v[8:9] offset:1024")
    tag_finish()
    CT=212
    a(f"s_getreg_b32 s55, hwreg(HW_REG_XCC_ID, 0, 4)\ns_xor_b32 s55, s55, s32\nv_mov_b32 v{vS+2}, s55\nv_mov_b32 v{vS+3}, s33")
    a(f"s_and_b32 s55, s32, 0xbfffbfff\nv_mov_b32 v{CT+3}, s55\nv_mov_b32 v{CT+7}, s55")
    oH,oHW="s17","s18"
    if P["hintC"]: a(f"s_lshl_b32 {oH}, {sG}, 11\ns_lshl_b32 s55, {sHH}, 5\ns_add_u32 {oH}, {oH}, s55\ns_add_u32 {oH}, {oH}, {HT+1024}\ns_lshl2_add_u32 {oHW}, {sJ}, {oH}\nv_lshlrev_b32 v209, 6, {vLane}\ns_mov_b32 s44, s32\ns_mov_b32 s45, s32")
    a("s_barrier")
    a(f"s_cmp_eq_u32 {sW}, 3\ns_cbranch_scc1 {'L_w3p' if P.get('spf3') else 'L_s3'}")
    a('; ---- S1: q partial')
    if P.get("pretQA") is not None: a(f"s_mov_b64 exec, 1\nbuffer_load_dword v206, {vLin}, {WS}, {oQA} offen {P['pretQA']}\ns_mov_b64 exec, -1")
    wait_flag("V1A",1)
    for s in range(2): a(f"ds_read_b128 {vr(QR+4*s,4)}, {vVec} offset:{64*s}")
    a(f"ds_read_b64 {vr(QR+8,2)}, {vVec} offset:128\nv_mov_b64 {vr(QR+10,2)}, 0")
    for t in range(4): a(f"v_mov_b64 {vr(FR+12*t+10,2)}, 0")
    if P["s1pipe"]:
        wait_flag("CNT",24)
        for t in range(4):
            for h in range(4): a(f"ds_read_b64_tr_b16 {vr(FR+12*t+2*h,2)}, {vT1[t]} offset:{2*h*3072}")
        for t in range(4):
            a(f"s_waitcnt lgkmcnt({12-4*t})")
            for s in range(2): a(f"v_mfma_f32_16x16x32_bf16 {vr(AC+4*t,4)}, {vr(FR+12*t+4*s,4)}, {vr(QR+4*s,4)}, {vr(AC+4*t,4) if s else 0}")
        l=a.lab("W1")
        spin(l); a(f"ds_read_b32 {vTmp}, {vL4} offset:{F['CNT']}")
        for t in range(4): a(f"ds_read_b64_tr_b16 {vr(FR+12*t+8,2)}, {vT1[t]} offset:{8*3072}")
        a(f"s_waitcnt lgkmcnt(0)\nv_cmp_gt_u32 vcc, {30+CB}, {vTmp}\ns_cbranch_vccnz {l}")
        stamp(1)
        for t in range(4): a(f"v_mfma_f32_16x16x32_bf16 {vr(AC+4*t,4)}, {vr(FR+12*t+8,4)}, {vr(QR+8,4)}, {vr(AC+4*t,4)}")
    else:
        wait_flag("CNT",30)
        stamp(1)
        for t in range(4):
            for h in range(5): a(f"ds_read_b64_tr_b16 {vr(FR+12*t+2*h,2)}, {vT1[t]} offset:{2*h*3072}")
        for t in range(4):
            a(f"s_waitcnt lgkmcnt({15-5*t})")
            for s in range(3): a(f"v_mfma_f32_16x16x32_bf16 {vr(AC+4*t,4)}, {vr(FR+12*t+4*s,4)}, {vr(QR+4*s,4)}, {vr(AC+4*t,4) if s else 0}")
    publish4(AC, vS, vPub, oQ, mode=False if P["gA"] else "plain")
    if P["ackA"]: a("s_waitcnt vmcnt(0)")
    sig("PUBA")
    stamp(2)
    a(f"s_mov_b32 s46, {R3-R2}\ns_movk_i32 s47, {198+CB}")
    if FF: a(f"s_cmp_lt_u32 {sV}, 10\ns_cselect_b32 s46, {R1-R2}, s46\ns_cselect_b32 s47, {222+CB}, s47")
    for t in range(4): a(f"v_add_u32 {vT1[t]}, s46, {vT1[t]}")
    a(f"v_mov_b32 v{vS+2}, s32")
    wait_flag("CLR",1)
    wait_flag("CNT",66)
    for s in range(6):
        for t in range(2): a(f"ds_read_b128 {vr(FR+8*s+4*t,4)}, {vU[s&1]} offset:{1024*(s>>1)+512*t}")
    if P["sched"][0][1]!=Q_: sig("RDUK")
    def vec2_mfma(flag, thr, vec, wfirst, fr):
        l=a.lab("V2")
        spin(l); a(f"ds_read_b32 {vTmp}, {vL4} offset:{F[flag]}")
        for s in range(6): a(f"ds_read_b128 {vr(QR+4*s,4)}, {vVec} offset:{vec-VEC1A+64*s}")
        a(f"s_waitcnt lgkmcnt(6)\nv_cmp_gt_u32 vcc, {thr}, {vTmp}\ns_cbranch_vccnz {l}")
        for s in range(6):
            a(f"s_waitcnt lgkmcnt({5-s})")
            for t in range(2):
                w_,q_=vr(fr+8*s+4*t,4),vr(QR+4*s,4)
                A_,B_=(w_,q_) if wfirst else (q_,w_)
                a(f"v_mfma_f32_16x16x32_bf16 {vr(AC+4*t,4)}, {A_}, {B_}, {vr(AC+4*t,4) if s else 0}")
    vec2_mfma("V2A",1,VEC2A,True,FR)
    a(f"v_readfirstlane_b32 s50, {vTmp}\ns_lshr_b32 s50, s50, 1")
    stamp(3)
    for k in range(4): a(f"v_cvt_pk_bf16_f32 v{AC+8+k}, v{AC+2*k}, v{AC+2*k+1}\nds_bpermute_b32 v{AC+12+k}, {vBp}, v{AC+8+k}")
    if P.get("batom"):
        a(f"s_mov_b64 exec, 15\ns_waitcnt lgkmcnt(0)\nbuffer_atomic_{P['batom']}_x2 {vr(AC+12,2)}, {vLin}, {WS}, {oQA} offen sc1\nbuffer_atomic_{P['batom']}_x2 {vr(AC+14,2)}, {vLin}, {WS}, {oQA} offen offset:8 sc1\ns_mov_b64 exec, -1\ns_waitcnt vmcnt(0)")
    if P.get("bexp"):
        m_,sh=P["bexp"]
        a(f"s_sub_u32 {oQA}, {oQA}, {QA}\ns_mul_i32 {oQA}, {oQA}, {sh}\ns_add_u32 {oQA}, {oQA}, {QA if sh<=2 else REC}")
    if not P.get("batom"): a(f"s_mov_b64 exec, {P['bexp'][0] if P.get('bexp') else 15}\ns_waitcnt lgkmcnt(0)\nbuffer_store_dwordx4 {vr(AC+12,4)}, {vLin}, {WS}, {oQA} offen {P.get('bfl','sc1')}\ns_mov_b64 exec, -1\ns_waitcnt vmcnt(0)")
    sig("PUBB")
    a("L_s3:")
    def areads(kt):
        for s in range(12): a(f"ds_read_b128 {vr(FR+48*kt+4*s,4)}, {vA[s&3]} offset:{24576*kt+256*(s>>2)}")
    def qloads():
        if P.get("skipq"): return
        for s in range(12): a(f"buffer_load_dwordx4 {vr(QR+4*s,4)}, {vQa}, {WS}, {oQL[s>>2]} offen offset:{2048*((s>>1)&1)+512*(s&1)} sc1")
    if P["thrQ"]>=114:
        wait_flag("CNT",114)
        areads(0)
    wait_flag("PUBB",3)
    if P["thrQ"]!=114: wait_flag("CNT",P["thrQ"])
    stamp(4); qloads(); sig("QISS")
    if P["thrQ"]<114:
        wait_flag("CNT",114)
        areads(0)
    if P["thrQ"]<162: wait_flag("CNT",162)
    areads(1)
    sig("RDA")
    a("s_waitcnt lgkmcnt(0)\ns_branch L_s3m")
    l,ok=loop_head("S3")
    qloads()
    a("L_s3m:")
    BQ=lambda f: FR+4*f
    def breads():
        for f in range(24):
            s4,ct=divmod(f,3)
            for e2 in range(2): a(f"ds_read_b64_tr_b16 {vr(BQ(f)+2*e2,2)}, {vB[ct]} offset:{3200*(8*e2+2*(s4&3))+384*(s4>>2)}")
        sig("RDB")
    TQ=[8,12]
    def fix(sg):
        L0=QR+8*sg; L1=L0+4
        o=[f"s_waitcnt vmcnt({10-2*sg})"]
        o+=[f"v_cndmask_b32_dpp v{TQ[sg&1]+k}, v{L1+k}, v{L0+k}, vcc quad_perm:[0,0,2,2] {DP}" for k in range(4)]
        o+=["s_not_b64 vcc, vcc"]
        o+=[f"v_cndmask_b32_dpp v{L1+k}, v{L0+k}, v{L1+k}, vcc quad_perm:[1,1,3,3] {DP}" for k in range(4)]
        o+=["s_not_b64 vcc, vcc"]
        return o
    a("s_mov_b32 vcc_lo, 0x55555555\ns_mov_b32 vcc_hi, 0x55555555")
    a("\n".join(fix(0)))
    for sg in range(6):
        nx=fix(sg+1) if sg<5 else []
        cut=[3,6,8,11]; st_=0
        for i in range(4):
            pi,kt=i>>1,i&1
            qreg=TQ[sg&1] if pi==0 else QR+8*sg+4
            a(f"v_mfma_f32_16x16x32_bf16 {vr(AC+4*kt,4)}, {vr(FR+48*kt+4*(2*sg+pi),4)}, {vr(qreg,4)}, {vr(AC+4*kt,4) if 2*sg+pi else 0}")
            if nx: a("\n".join(nx[st_:cut[i]])); st_=cut[i]
    a(f"s_cmp_eq_u32 {sKH}, 0\nv_cmp_u_f32 vcc, v{AC}, v{AC+4}\ns_cbranch_vccnz {l}\n{ok}:")
    if any(x[1]==("S3K",4) for x in P["sched"]): sig("S3K")
    stamp(6)
    far[-1]=far[-1].replace("s_nop 7",f"s_cmp_eq_u32 {sKH}, 0\ns_nop 7")
    a(f"s_cbranch_scc1 {'L_soft' if P['blate'] else 'L_nox'}")
    a(f"ds_write_b128 {vXa}, {vr(AC,4)}\nds_write_b128 {vXa}, {vr(AC+4,4)} offset:1024\nds_add_u32 v6, {vOne} offset:{F['X0']}")
    if P["blate"]: a("s_branch L_s4\nL_soft:")
    else:
        a("L_nox:")
        breads()
        a("s_cbranch_scc0 L_s4\nL_soft:")
    l=a.lab("XW")
    spin(l); a(f"ds_read_b32 {vTmp}, v6 offset:{F['X0']}\nds_read_b128 {vr(AC+8,4)}, {vXa}\nds_read_b128 {vr(AC+12,4)}, {vXa} offset:1024")
    a(f"s_waitcnt lgkmcnt(0)\nv_cmp_gt_u32 vcc, 1, {vTmp}\ns_cbranch_vccnz {l}")
    for k in range(4): a(f"v_pk_add_f32 {vr(AC+2*k,2)}, {vr(AC+2*k,2)}, {vr(AC+8+2*k,2)}")
    a(f"v_max3_f32 v8, v{AC}, v{AC+1}, v{AC+2}\nv_max3_f32 v9, v{AC+3}, v{AC+4}, v{AC+5}\nv_max3_f32 v8, v8, v{AC+6}, v{AC+7}\nv_max_f32 v8, v8, v9")
    xreduce("v_max_f32","v8","v9")
    a("v_ceil_f32 v8, v8\ns_cmp_eq_u32 s50, 0")
    for k in range(4): a(f"v_pk_add_f32 {vr(AC+2*k,2)}, {vr(AC+2*k,2)}, v[8:9] op_sel_hi:[1,0] neg_lo:[0,1] neg_hi:[0,1]")
    for k in range(8): a(f"v_exp_f32 v{AC+k}, v{AC+k}")
    for k in range(4): a(f"v_cvt_pk_bf16_f32 v{AC+8+k}, v{AC+2*k}, v{AC+2*k+1}")
    (lambda t: a(t.replace("offen","offen sc1")) if P["gC"] else mstore(t))(f"buffer_store_dwordx4 {vr(AC+8,4)}, {vLin}, {WS}, {oP} offen\ns_mov_b64 exec, 0xffff\nbuffer_store_dword v8, {vM0}, {WS}, {oM} offen")
    if P["hintC"] and not P["ackC"] and not P.get("verC"): a(f"buffer_store_dword v{vS+2}, v209, {WS}, {oHW} offen")
    a("s_mov_b64 exec, -1")
    a(f"v_pk_add_f32 {vr(AC,2)}, {vr(AC,2)}, {vr(AC+2,2)}\nv_pk_add_f32 {vr(AC+4,2)}, {vr(AC+4,2)}, {vr(AC+6,2)}\nv_pk_add_f32 {vr(AC,2)}, {vr(AC,2)}, {vr(AC+4,2)}\nv_add_f32 v9, v{AC}, v{AC+1}")
    a(f"ds_write_b64 {vSt}, v[8:9]")
    sig("PUBC")
    if P["hintC"] and P.get("verC"):
        vk=a.lab("VK")
        for tr_ in range(2):
            a(f"s_add_u32 s96, s28, {oP}\ns_addc_u32 s97, s29, 0" if tr_==0 else "")
            for k in range(8): a(f"s_load_dword s{20+k}, s[96:97], {128*k+64*(1-tr_)}")
            a("s_waitcnt lgkmcnt(0)\ns_or_b64 s[20:21], s[20:21], s[22:23]\ns_or_b64 s[24:25], s[24:25], s[26:27]\ns_or_b64 s[20:21], s[20:21], s[24:25]\ns_or_b32 s20, s20, s21\ns_bitcmp0_b32 s20, 31")
            a(f"s_cbranch_scc1 {vk}")
        a(f"s_waitcnt vmcnt(0)\n{vk}:\ns_mov_b64 exec, 0xffff\nbuffer_store_dword v{vS+2}, v209, {WS}, {oHW} offen\ns_mov_b64 exec, -1")
    elif P["hintC"] and P["ackC"]: a(f"s_mov_b64 exec, 0xffff\ns_waitcnt vmcnt(0)\nbuffer_store_dword v{vS+2}, v209, {WS}, {oHW} offen\ns_mov_b64 exec, -1")
    a("L_s4:")
    stamp(7)
    if P["blate"]: breads()
    wait_flag("PUBC",2)
    stamp(8)
    a("v_mov_b32 v13, 1")
    if P["mshare"]: a(f"s_branch L_s4l\nL_s4f:\nds_read_b64 v[8:9], {vSt} offset:1024\ns_waitcnt lgkmcnt(0)\nv_cmp_u_f32 vcc, v8, v9\nv_max_f32 v10, v8, v9\ns_cbranch_vccz L_s4p\nL_s4l:")
    l,ok=loop_head("S4",("S4M",))
    a(f"buffer_load_dword v8, {vMl}, {WS}, {oML[0]} offen sc1\nbuffer_load_dword v9, {vMl}, {WS}, {oML[1]} offen sc1")
    a(f"s_waitcnt vmcnt(0)\nv_cmp_u_f32 vcc, v8, v9\nv_max_f32 v10, v8, v9\ns_cbranch_vccnz {'L_s4f' if P['mshare'] else l}")
    if P["mshare"]: a(f"ds_write_b64 {vSt}, v[8:9] offset:1024")
    a("L_s4p:")
    def ploads(lo,hi):
        for s in range(lo,hi): a(f"buffer_load_dwordx4 {vr(QR+4*s,4)}, {vPl}, {WS}, {oPL[s>>2]} offen offset:{256*(s&3)} sc1")
        if hi==8 and lo<8:
            sig("S4M","v13"); a("v_mov_b32 v13, 0"); stamp(5)
            if P["lateG"]==3: a(f"ds_read_b32 v14, {vL4} offset:{F['GOK']}")
    n1_,n2_=P["psplit"]
    ploads(0,n1_)
    xreduce("v_max_f32","v10","v11")
    ploads(n1_,n1_+n2_)
    a("v_sub_f32 v8, v10, v8\nv_sub_f32 v9, v10, v9\nv_min_f32 v8, s49, v8\nv_min_f32 v9, s49, v9\nv_cvt_u32_f32 v8, v8\nv_cvt_u32_f32 v9, v9\nv_mul_u32_u24 v8, s48, v8\nv_mul_u32_u24 v9, s48, v9")
    ploads(n1_+n2_,8)
    a(f"s_waitcnt vmcnt(7)")
    for k in range(4): a(f"v_pk_sub_u16 v{QR+k}, v{QR+k}, v8 clamp")
    for s in range(8):
        mf=lambda ct: a(f"v_mfma_f32_16x16x32_bf16 {vr(AC+4*ct,4)}, {vr(BQ(3*s+ct),4)}, {vr(QR+4*s,4)}, {vr(AC+4*ct,4) if s else 0}")
        q=QR+4*s
        if s==0: a(f"v_or3_b32 v12, v{q}, v{q+1}, v{q+2}\nv_or_b32 v12, v12, v{q+3}")
        mf(0)
        if s<7:
            a(f"s_waitcnt vmcnt({6-s})")
            a(f"v_pk_sub_u16 v{q+4}, v{q+4}, v{8+((s+1)>>2)} clamp\nv_pk_sub_u16 v{q+5}, v{q+5}, v{8+((s+1)>>2)} clamp")
        mf(1)
        if s<7: a(f"v_pk_sub_u16 v{q+6}, v{q+6}, v{8+((s+1)>>2)} clamp\nv_pk_sub_u16 v{q+7}, v{q+7}, v{8+((s+1)>>2)} clamp")
        mf(2)
        if s<7: a(f"v_or3_b32 v12, v12, v{q+4}, v{q+5}\nv_or3_b32 v12, v12, v{q+6}, v{q+7}")
    a(f"v_and_b32 v12, 0x80008000, v12\nv_cmp_ne_u32 vcc, 0, v12\ns_cbranch_vccnz {l}\n{ok}:")
    if P["lateG"]==3:
        gw=a.lab("GW"); gb=a.lab("GB")
        a(f"s_waitcnt lgkmcnt(0)\nv_cmp_ne_u32 vcc, 1, v14\ns_cbranch_vccnz {gw}\n{gb}:")
        far.append(f"{gw}:\nds_read_b32 v14, {vL4} offset:{F['GOK']}\ns_waitcnt lgkmcnt(0)\nv_cmp_ne_u32 vcc, 1, v14\ns_cbranch_vccnz {gw}\ns_nop 4\ns_branch {gb}")
    sig("S4K")
    stamp(9)
    for k in range(6): a(f"v_cvt_pk_bf16_f32 v{QR+k}, v{AC+2*k}, v{AC+2*k+1}\nds_bpermute_b32 v{CT+k+k//3}, {vBp}, v{QR+k}")
    if P.get("dhalf"): a(f"s_cmp_eq_u32 {sKH}, 0\ns_cbranch_scc0 L_nod")
    a(f"s_waitcnt lgkmcnt(3)\nbuffer_store_dwordx4 {vr(CT,4)}, {vC4}, {WS}, {oCL} offen sc1")
    a(f"s_waitcnt lgkmcnt(0)\nbuffer_store_dwordx4 {vr(CT+4,4)}, {vC4}, {WS}, {oCL} offen offset:64 sc1")
    if P.get("dhalf"): a("L_nod:")
    sig("DST")
    stamp(10)
    a(f"s_waitcnt vmcnt({P.get('dack',0)})")
    sig("PUBD")
    F6=FR+48
    def s6reads(half):
        for s in range(3*half,3*half+3):
            for t in range(2):
                for e2 in range(2): a(f"ds_read_b64_tr_b16 {vr(F6+8*s+4*t+2*e2,2)}, {vT6[t]} offset:{(4*s+2*e2)*2048}")
    a(f"s_cmp_eq_u32 {sW}, 3\ns_cbranch_scc1 L_s6")
    wait_flag("CNT","s47")
    for t in range(4):
        for h in range(6): a(f"ds_read_b64_tr_b16 {vr(FR+12*t+2*h,2)}, {vT1[t]} offset:{2*h*3072}")
    l=a.lab("V1")
    spin(l); a(f"ds_read_b32 {vTmp}, {vL4} offset:{F['V1B']}")
    for s in range(3): a(f"ds_read_b128 {vr(QR+4*s,4)}, {vVec} offset:{VEC1B-VEC1A+64*s}")
    a(f"s_waitcnt lgkmcnt(0)\nv_cmp_gt_u32 vcc, 1, {vTmp}\ns_cbranch_vccnz {l}")
    stamp(11)
    for t in range(4):
        for s in range(3):
            a(f"v_mfma_f32_16x16x32_bf16 {vr(AC+4*t,4)}, {vr(FR+12*t+4*s,4)}, {vr(QR+4*s,4)}, {vr(AC+4*t,4) if s else 0}")
    a("s_cmp_eq_u32 s50, 0")
    publish4(AC, vS, vPub, oE, mode=True)
    sig("PUBE")
    a('; ---- S6: output projection (w_o) or second FFN GEMV (w2)')
    a("L_s6:")
    stamp(12)
    a(f"s_cmp_lt_u32 {sJ}, 5\ns_cbranch_scc0 L_fin")
    a("L_s6go:")
    a(f"v_lshlrev_b32 v6, 2, {vLane}\ns_mov_b32 s56, 0xffff0000\ns_mov_b32 s57, 0")
    wait_flag("CNT",t6)
    s6reads(0)
    wait_flag("CNT",246)
    s6reads(1)
    stamp(13)
    vec2_mfma("V2B",1,VEC2B,False,F6)
    a(f"s_mov_b32 exec_hi, 0\nv_cndmask_b32 v7, v{AC}, v{AC+4}, s[56:57]\nbuffer_store_dword v7, v6, {WS}, {oF} offen sc1")
    stamp(14)
    a("s_mov_b64 exec, -1\ns_waitcnt vmcnt(0)")
    sig("PUBF")
    a("s_branch L_fin")
    if P["incC"]:
        i_=a.L.index("L_soft:"); a.L[i_:i_]=incstub.split("\n")

    if P.get("spf3"):
        a("L_w3p:")
        n0_=len(a.L)
        sprefetch(*P["spf3"])
        a.L[n0_:]=[x.replace("s96, s96, s14","s96, s96, s26").replace("s97, s15, 0","s97, s27, 0").replace("s96, s96, s22","s96, s96, s24").replace("s97, s23, 0","s97, s25, 0") for x in a.L[n0_:]]
        stamp(1)
        a("s_branch L_s3")
    GA=16; GD=32; GX=72
    def gather_setup(vOff, stride):
        a(f"v_mul_u32_u24 {vOff}, {stride}, {vGl}\nv_lshl_add_u32 {vOff}, {vN}, 4, {vOff}")
        a(f"v_and_b32 v6, 1, {vN}\nv_lshlrev_b32 v6, 4, v6\nv_mov_b32 v7, 0x3f80\nv_lshlrev_b32 v6, v6, v7\nv_lshrrev_b32 v7, 1, {vN}")
        for k in range(6): a(f"v_cmp_eq_u32 vcc, {k}, v7\nv_cndmask_b32 v{GA+k}, 0, v6, vcc")
    def gather(nq, vOff, soffs, name, xcc=False, tag="s[32:33]"):
        if xcc: a(f"s_andn2_b32 {sBud}, {sBud}, 15")
        l,ok=loop_head(name, ("GISS",) if xcc=="q" and P["holdG"] else ())
        if nq==3:
            for u in range(3): a(f"v_mov_b32 v{GD+26+4*u}, s58")
        for q in range(nq):
            if q==2: a("s_mov_b32 exec_hi, 0")
            for u in range(3):
                a(f"buffer_load_dwordx4 {vr(GD+4*(3*q+u),4)}, {vOff}, {WS}, {soffs[q]} offen offset:{256*u} sc1")
        if nq==3: a("s_mov_b64 exec, -1")
        if xcc=="q" and P["holdG"]: sig("GISS")
        n=3*nq
        for k in range(n):
            a(f"s_waitcnt vmcnt({n-1-k})\nv_mfma_f32_16x16x16_bf16 {vr(GX,4)}, {vr(GA+2*(k%3),2)}, {vr(GD+4*k,2)}, {vr(GX,4) if k else 0}")
        if not xcc:
            for k in range(n): a(f"v_cmpx_eq_u64 vcc, s[32:33], {vr(GD+4*k+2,2)}")
            a(f"s_cmp_eq_u64 exec, -1\ns_mov_b64 exec, -1\ns_cbranch_scc0 {l}\n{ok}:")
        else:
            sl=a.lab("SL")
            for k in range(n): a(f"v_cmpx_eq_u64 vcc, s[58:59], {vr(GD+4*k+2,2)}")
            a(f"s_cmp_eq_u64 exec, -1\ns_mov_b64 exec, -1\ns_cbranch_scc1 {ok}")
            if xcc=="q" and P["thrG2"]: a(f"ds_read_b32 {vTmp}, {vL4} offset:{F['V2A']}\ns_waitcnt lgkmcnt(0)\nv_cmp_lt_u32 vcc, 0, {vTmp}\ns_cbranch_vccnz L_gadone\ns_cmp_eq_u32 {sW}, 6\ns_cbranch_scc1 {l}")
            for k in range(n): a(f"v_or_b32 v{GD+4*k+2}, 15, v{GD+4*k+2}\nv_cmpx_eq_u64 vcc, {tag}, {vr(GD+4*k+2,2)}")
            a(f"s_cmp_eq_u64 exec, -1\ns_mov_b64 exec, -1\ns_cselect_b32 s60, 0, {sBud}\ns_cselect_b32 s63, 1, 0\ns_and_b32 s60, s60, 15\ns_cbranch_scc1 {l}\ns_branch {sl}\n{ok}:")
            far.append(f"""{sl}:
s_mov_b32 exec_hi, 0xffff
buffer_load_dwordx4 v[76:79], v28, {WS}, s61 offen offset:{RQ-RP} sc1
s_waitcnt vmcnt(0)
buffer_store_dwordx4 v[76:79], v28, {WS}, s61 offen offset:{RQ-RP} sc1
s_mov_b64 exec, -1
s_waitcnt vmcnt(0)
s_cmp_eq_u32 s63, 0
s_cbranch_scc1 {l}
"""+(f"s_branch {ok}" if xcc!="q" else f"""v_mov_b32 v76, -1
v_mov_b32 v77, -1
v_mov_b32 v78, -1
v_mov_b32 v79, -1
v_mov_b32 v27, 3
buffer_store_dwordx4 v[76:79], v28, {WS}, s61 offen sc1
buffer_store_dwordx4 v[76:79], v28, {WS}, s61 offen offset:1024 sc1
s_mov_b64 exec, 0xffff
buffer_store_dwordx4 v[76:79], v28, {WS}, s61 offen offset:2048 sc1
s_mov_b64 exec, -1
s_waitcnt vmcnt(0)
s_branch {ok}"""))
    def vec2_write(vAddr, flag, v=vOne, op="ds_add_u32"):
        a(f"s_mov_b32 exec_hi, 0xffff\nv_cvt_pk_bf16_f32 v{GX}, v{GX}, v{GX+1}\nv_cvt_pk_bf16_f32 v{GX+1}, v{GX+2}, v{GX+3}\nds_write_b64 {vAddr}, {vr(GX,2)}\ns_mov_b64 exec, -1")
        a(f"{op} {vL4}, {v} offset:{F[flag]}")
    def vec2b_addr(dst):
        a(f"v_lshlrev_b32 {dst}, 7, {vGl}\nv_bfe_u32 v6, {vN}, 1, 1\nv_lshl_add_u32 {dst}, v6, 6, {dst}\nv_lshrrev_b32 v6, 2, {vN}\nv_lshl_add_u32 {dst}, v6, 4, {dst}\nv_and_b32 v6, 1, {vN}\nv_lshl_add_u32 {dst}, v6, 3, {dst}\nv_add_u32 {dst}, {VEC2B}, {dst}")

    a("L_w7:")
    a(f"s_movk_i32 s43, {P['thrG']+CB}")
    tag_finish()
    a(f"s_barrier\nL_ga:\ns_setprio {P['prio'][1]}")
    gather_setup("v24", RS)
    a(f"v_lshlrev_b32 v28, 4, {vLane}\ns_mul_i32 s61, {sB}, {RS}\ns_add_u32 s61, s61, {REC+RP}")
    a(f"v_lshlrev_b32 v25, 7, {vGl}\nv_and_b32 v6, 3, {vN}\nv_lshl_add_u32 v25, v6, 5, v25\nv_lshrrev_b32 v6, 2, {vN}\nv_lshl_add_u32 v25, v6, 3, v25\nv_add_u32 v25, {VEC2A}, v25")
    vec2b_addr("v26")
    a(f"s_mul_i32 s54, {sG}, {8*RS}\ns_add_u32 s52, s54, {REC+RE}\ns_add_u32 s53, s52, {4*RS}\ns_add_u32 s54, s54, {REC+RQ}\ns_add_u32 s55, s54, {4*RS}")
    a(f"s_mov_b32 s56, {f2u(192**-0.5*math.log2(math.e))}\ns_mov_b32 s57, s56")
    a("s_getreg_b32 s58, hwreg(HW_REG_XCC_ID, 0, 4)\ns_xor_b32 s58, s58, s32\ns_mov_b32 s59, s33\nv_mov_b32 v27, 1")
    if P["hintA"]:
        a(f"s_lshl_b32 s43, {sG}, 11\ns_add_u32 s43, s43, {HT}\ns_lshl2_add_u32 s51, {sJ}, s43\nv_lshlrev_b32 v6, 6, {vLane}\nv_mov_b32 v7, s32\ns_mov_b32 s48, s32\ns_mov_b32 s49, s32")
    if P["gA"]==1:
        a(f"s_lshl_b32 s43, {sG}, 11\ns_add_u32 s43, s43, {HT}\ns_add_u32 s96, s28, s43\ns_addc_u32 s97, s29, 0\ns_lshl_b32 s51, {sB}, 8\ns_add_u32 s51, s51, {HT}\ns_mov_b32 s48, s32\ns_mov_b32 s49, s32")
        a("v_mov_b32 v8, s32\nv_mov_b32 v9, s32\nv_mov_b32 v10, s32\nv_mov_b32 v11, s32")
    wait_flag("PUBA",3)
    if P["gA"]==1:
        a(f"s_mov_b64 exec, 15\nbuffer_store_dwordx4 v[8:11], v28, {WS}, s51 offen sc1\ns_mov_b64 exec, -1")
        ghint("s[96:97]", 256, 8, "s[48:49]")
    elif P["hintA"]:
        a(f"s_mov_b64 exec, 0xffff\nbuffer_store_dword v7, v6, {WS}, s51 offen\ns_mov_b64 exec, -1")
        hint_wait("s43", 8, "s[48:49]")
    else: wait_flag("CNT","s43")
    stamp(1)
    gather(2,"v24",["s54","s55"],"GA", xcc="q")
    stamp(2)
    a(f"v_pk_mul_f32 {vr(GX,2)}, {vr(GX,2)}, s[56:57]\nv_pk_mul_f32 {vr(GX+2,2)}, {vr(GX+2,2)}, s[56:57]")
    vec2_write("v25","V2A","v27","ds_max_u32")
    if P["thrG2"]: a(f"L_gadone:\ns_cmp_eq_u32 {sW}, 6\ns_cbranch_scc1 L_w6b")
    a(f"s_lshl_b32 s54, {sX}, 14\ns_and_b32 s55, {sG}, 3\ns_lshl_b32 s55, s55, 4\ns_add_u32 s54, s54, s55\ns_add_u32 s44, s54, {ST}\ns_add_u32 s45, s44, 4096\ns_add_u32 s46, s44, 8192\ns_add_u32 s47, s44, 12288\nv_lshlrev_b32 v22, 6, {vLane}\nv_add_u32 v23, {XB}, v28")
    wait_flag(*{"DST":("DST",4),"S4M":("S4M",1),"PUBC":("PUBC",2),"PUBD":("PUBD",4)}[P["stattrig"]])
    stamp(3)
    l,ok=loop_head("SS")
    SM=108
    for k in range(4): a(f"buffer_load_dwordx4 {vr(SM+4*k,4)}, v22, {WS}, s{44+k} offen sc1")
    a("s_waitcnt vmcnt(0)")
    for k in range(4): a(f"v_cmpx_eq_u64 vcc, s[32:33], {vr(SM+4*k+2,2)}")
    a(f"s_cmp_eq_u64 exec, -1\ns_mov_b64 exec, -1\ns_cbranch_scc0 {l}\n{ok}:")
    if ("STR",1) in P["dtrig"]: sig("STR")
    stamp(4)
    st3=("quad_perm:[1,0,3,2]","quad_perm:[2,3,0,1]","row_half_mirror")
    for i,s in enumerate(st3):
        for k in range(4):
            src = f"v{SM+4*k}" if i==0 else f"v{32+k}"
            a(f"v_max_f32_dpp v{32+k}, {src}, {src} {s} {DP}")
    a("v_max3_f32 v36, v32, v33, v34\nv_max_f32 v36, v36, v35")
    rowreduce("v_max_f32","v36",("row_mirror",))
    xreduce("v_max_f32","v36","v37")
    for k in range(4): a(f"v_sub_f32 v{SM+4*k}, v{SM+4*k}, v36\nv_sub_f32 v{32+k}, v{32+k}, v36")
    for k in range(4): a(f"v_exp_f32 v{SM+4*k}, v{SM+4*k}\nv_exp_f32 v{32+k}, v{32+k}")
    a(f"v_mul_f32 v38, v{SM}, v{SM+1}\nv_fmac_f32 v38, v{SM+4}, v{SM+5}\nv_fmac_f32 v38, v{SM+8}, v{SM+9}\nv_fmac_f32 v38, v{SM+12}, v{SM+13}")
    for k in range(4): a(f"v_cvt_pk_bf16_f32 v{32+k}, v{32+k}, v{32+k}")
    rowreduce("v_add_f32","v38")
    xreduce("v_add_f32","v38","v37")
    a("v_rcp_f32 v38, v38")
    a("ds_write_b128 v23, v[32:35]\nds_write_b32 v23, v38 offset:1024")
    sig("STOK")
    stamp(5)
    a(f"s_cmp_lt_u32 {sJ}, 5\ns_cbranch_scc1 L_w7e\ns_cmp_lt_u32 {sV}, 10\ns_cbranch_scc0 L_fin")
    a("L_ffn2:")
    trcore("v8", vTmp)
    a(f"s_and_b32 s52, {sW}, 1\ns_lshl_b32 s55, s52, 6\nv_lshrrev_b32 v6, 5, {vLane}\nv_lshl_add_u32 v8, v6, 11, v8\nv_xor_b32 v8, s55, v8\nv_add_u32 {vT6[0]}, {R2}, v8\nv_xor_b32 {vT6[1]}, 32, {vT6[0]}")
    a(f"v_lshlrev_b32 {vVec}, 4, {vGl}\nv_add_u32 {vVec}, {VEC1A}, {vVec}")
    a(f"s_mul_i32 s54, {sX}, 2560\ns_lshl_b32 s55, {sV}, 8\ns_add_u32 s54, s54, s55\ns_lshl_b32 s55, s52, 7\ns_add_u32 s54, s54, s55\ns_add_u32 s54, s54, {YP}\ns_movk_i32 {t6}, {234+CB}")
    wait_flag(*(("GOK",1) if P["lateG"]==3 else ("PUBC",2)))
    a("s_branch L_s6go")
    a("L_w7e:")
    wait_flag("PUBE",3)
    a("L_ge:")
    stamp(6)
    gather(2,"v24",["s52","s53"],"GE")
    stamp(7)
    vec2_write("v26","V2B")
    if P["ge2"]: a(f"s_cmp_eq_u32 {sW}, 6\ns_cbranch_scc0 L_fin\ns_cmp_lt_u32 s2, 20\ns_cbranch_scc1 L_fin2")
    a("s_branch L_fin")

    a('; ======== W5: sentinel fill, fill flags, statistics store, weighted combine of the 32 key-group partials')
    a("L_w5:")
    a(f"v_lshlrev_b32 v6, 4, {vLane}\nv_mov_b32 v8, -1\nv_mov_b32 v9, -1\nv_mov_b32 v10, -1\nv_mov_b32 v11, -1")
    a(f"s_mul_i32 s52, {sB}, {RS}\ns_add_u32 s52, s52, {REC}\ns_add_u32 s53, s52, {RP}")
    if P["hintA"] or P["hintC"]: a(f"s_lshl_b32 s54, {sB}, 8\ns_add_u32 s54, s54, {HT-60*64}\nv_mov_b32 v7, s54\nv_mov_b32 v23, s53\nv_cmp_gt_u32 vcc, 60, {vLane}\nv_lshlrev_b32 v22, 6, {vLane}\nv_cndmask_b32 v7, v7, v23, vcc\nv_add_u32 v7, v7, v22")
    else: a(f"v_lshlrev_b32 v22, 6, {vLane}\nv_add_u32 v7, s53, v22")
    pm=((1<<64)-1)
    if P["gC"]: pm&=~((1<<36)-1)
    if P["gA"]: pm&=~(0xffff<<48)
    if not (P["hintA"] or P["hintC"]): pm&=~(0xf<<60)
    pm2=0
    if P.get("latetouch"): pm2=pm&((1<<48)-1); pm&=~pm2
    if pm: a(f"s_mov_b32 exec_lo, {pm&0xffffffff}\ns_mov_b32 exec_hi, {pm>>32}\nbuffer_load_dword v23, v7, {WS}, 0 offen sc1\ns_mov_b64 exec, -1")
    def gclear():
        a(f"s_cmp_lt_u32 s2, 100\ns_cbranch_scc0 L_ng\ns_lshl_b32 s54, s2, 10\ns_add_u32 s54, s54, {G}\nbuffer_store_dwordx4 v[8:11], v6, {WS}, s54 offen sc1\nL_ng:")
    if not P.get("lateG"): gclear()
    a(f"s_setprio {P['prio'][1]}")
    MK=12
    a(f"v_and_b32 v7, 1, {vN}\nv_lshlrev_b32 v7, 4, v7\nv_mov_b32 v16, 0xffff\nv_lshlrev_b32 v7, v7, v16\nv_lshrrev_b32 v16, 1, {vN}")
    for k in range(3): a(f"v_cmp_eq_u32 vcc, {2*k}, v16\nv_cndmask_b32 v{MK+k}, 0, v7, vcc")
    for k in range(8): a(f"v_mov_b32 v{43+4*k}, 0")
    a(f"v_bfe_u32 v7, {vN}, 2, 1\nv_mad_u32_u24 v7, v7, 3, {vGl}\nv_lshrrev_b32 v17, 3, {vN}\nv_lshlrev_b32 v18, 6, v17\nv_lshl_add_u32 v18, v7, 2, v18")
    a(f"v_lshlrev_b32 v19, 3, v17\nv_lshl_add_u32 v19, v7, 2, v19\nv_add_u32 v19, 112, v19\nv_cmp_gt_u32 vcc, 4, v7\nv_cndmask_b32 v18, v19, v18, vcc")
    a(f"v_and_b32 v7, 3, {vN}\nv_lshl_add_u32 v18, v7, 4, v18\nv_add_u32 v18, {VEC1B}, v18")
    a(f"s_movk_i32 s55, {FLG}\nv_lshlrev_b32 v16, 7, {vLane}")
    tag_finish()
    a("s_barrier")
    if pm2:
        wait_flag("CNT",P["latetouch"])
        a(f"s_mov_b32 exec_lo, {pm2&0xffffffff}\ns_mov_b32 exec_hi, {pm2>>32}\nbuffer_load_dword v23, v22, {WS}, s53 offen sc1\ns_mov_b64 exec, -1")
    if P.get("lateG")==1: gclear()
    a("s_waitcnt vmcnt(0)")
    if P.get("lateG")==2: gclear()
    cf="sc1" if P["gC"] else ""
    a(f"buffer_store_dwordx4 v[8:11], v6, {WS}, s53 offen {cf}\nbuffer_store_dwordx4 v[8:11], v6, {WS}, s53 offen offset:1024 {cf}\ns_mov_b64 exec, 0xffff\nbuffer_store_dwordx4 v[8:11], v6, {WS}, s53 offen offset:2048 {cf}\ns_mov_b64 exec, -1")
    stamp(1)
    wait_flag("CNT",P["thrF"])
    l,ok=loop_head("FL")
    a(f"s_mov_b64 exec, 0xff\nbuffer_load_dwordx2 v[24:25], v16, {WS}, s55 offen sc1\ns_waitcnt vmcnt(0)\nv_cmp_ne_u64 vcc, s[32:33], v[24:25]\ns_mov_b64 exec, -1\ns_cbranch_vccnz {l}\n{ok}:")
    sig("CLR")
    stamp(2)
    if P.get("retouch"):
        wait_flag(*P["retouch"])
        a(f"s_mov_b32 exec_hi, 0x0000ffff\nbuffer_load_dword v23, v22, {WS}, s53 offen sc1\ns_mov_b64 exec, -1")
    a(f"s_add_u32 s53, s52, 4096\nv_add_u32 v20, {XB}, v6\ns_and_b32 s56, s32, 0xbfffbfff")
    a(f"v_lshlrev_b32 v7, 9, {vGl}\nv_lshl_add_u32 v7, {vN}, 3, v7\nv_add_u32 v7, {MLB}, v7\nv_lshrrev_b32 v17, 2, {vLane}\nv_lshlrev_b32 v17, 14, v17\nv_and_b32 v19, 3, {vLane}\nv_lshl_add_u32 v17, v19, 4, v17")
    a(f"s_lshl_b32 s54, {sB}, 6\ns_add_u32 s54, s54, {ST}\nv_mov_b32 v26, s32\nv_mov_b32 v27, s33")
    if P["lateG"]==3:
        a(f"s_mul_i32 s57, {sG}, 2560\ns_lshl_b32 s55, {sJ}, 9\ns_add_u32 s57, s57, s55\ns_add_u32 s57, s57, {OP}\ns_mov_b32 s58, -1")
        a(f"s_cmp_lt_u32 {sJ}, 5\ns_cbranch_scc1 L_g3\ns_mul_i32 s57, {sX}, 2560\ns_lshl_b32 s55, {sV}, 8\ns_add_u32 s57, s57, s55\ns_add_u32 s57, s57, {YP}\ns_mov_b32 s58, 0xffff\ns_cmp_lt_u32 {sV}, 10\ns_cselect_b32 s57, s57, {WSSIZE}\nL_g3:")
    wait_flag(*P["sttrig"])
    a(f"s_mov_b32 exec_hi, 0\nds_read_b64 v[24:25], v7\nds_read_b32 v28, v7 offset:132\nds_read_b32 v29, v7 offset:260\nds_read_b32 v30, v7 offset:388\ns_waitcnt lgkmcnt(0)")
    a(f"v_add_f32 v25, v25, v28\nv_add_f32 v29, v29, v30\nv_add_f32 v25, v25, v29\nbuffer_store_dwordx4 v[24:27], v17, {WS}, s54 offen sc1")
    if P["lateG"]==3: a(f"s_mov_b32 exec_lo, s58\nbuffer_store_dwordx4 v[8:11], v6, {WS}, s57 offen sc1")
    a("s_mov_b64 exec, -1")
    if P["lateG"]==3:
        a("s_waitcnt vmcnt(0)"); sig("GOK")
    SAa=40; SD=72; SX=104
    def clloads():
        if P.get("dhalf"):
            a("s_mov_b32 exec_lo, 0x00ff00ff\ns_mov_b32 exec_hi, 0x00ff00ff")
            for s in range(8): a(f"buffer_load_dwordx4 {vr(SD+4*s,4)}, v6, {WS}, s{52+(s>>2)} offen offset:{1024*(s&3)} sc1")
            a("s_mov_b64 exec, -1")
            return
        for s in range(8): a(f"buffer_load_dwordx4 {vr(SD+4*s,4)}, v6, {WS}, s{52+(s>>2)} offen offset:{1024*(s&3)} sc1")
    if P.get("dhalf"):
        for s in range(8): a(f"v_mov_b64 {vr(SD+4*s,2)}, 0\nv_mov_b32 v{SD+4*s+2}, 0\nv_mov_b32 v{SD+4*s+3}, s56")
    if P.get("probe"):
        nr,skip=P["probe"]
        R_=list(range(4,28))+list(range(44,52))
        a("s_add_u32 s96, s28, s52\ns_addc_u32 s97, s29, 0\ns_mov_b32 s57, s56")
        wait_flag("DST",4)
        for r_ in range(skip): a("s_load_dword s4, s[96:97], 252 glc\ns_waitcnt lgkmcnt(0)")
        a(f"s_movk_i32 s98, {nr}\nL_pr:")
        for p_ in range(32): a(f"s_load_dword s{R_[p_]}, s[96:97], {256*p_+252} glc")
        a("s_waitcnt lgkmcnt(0)")
        pr=[f"s[{R_[2*i]}:{R_[2*i]+1}]" for i in range(16)]
        a(f"s_and_b64 s[58:59], {pr[0]}, {pr[1]}\ns_or_b64 s[60:61], {pr[0]}, {pr[1]}")
        for i in range(2,16): a(f"s_and_b64 s[58:59], s[58:59], {pr[i]}\ns_or_b64 s[60:61], s[60:61], {pr[i]}")
        a("s_xor_b64 s[58:59], s[58:59], s[56:57]\ns_xor_b64 s[60:61], s[60:61], s[56:57]\ns_or_b64 s[58:59], s[58:59], s[60:61]\ns_cbranch_scc0 L_cdgo")
        a("s_sub_u32 s98, s98, 1\ns_cmp_lg_u32 s98, 0\ns_cbranch_scc1 L_pr")
    wait_flag("PUBD",4)
    for w_ in P.get("dtrig",()): wait_flag(*w_)
    a("L_cdgo:")
    stamp(5)
    clloads()
    sig("CDI")
    l=a.lab("SW")
    spin(l); a(f"ds_read_b32 {vTmp}, {vL4} offset:{F['STOK']}\nds_read_b128 v[32:35], v20\nds_read_b32 v38, v20 offset:1024\ns_waitcnt lgkmcnt(0)\nv_cmp_gt_u32 vcc, 1, {vTmp}\ns_cbranch_vccnz {l}")
    stamp(4)
    for s in range(8):
        for r in range(3): a(f"v_and_b32_dpp v{SAa+4*s+r}, v{32+(s>>1)}, v{MK+r} row_newbcast:{8*(s&1)} {DP}")
    a("v_mov_b32 v39, v38\ns_branch L_cdm")
    l,ok=loop_head("CD")
    clloads()
    a("L_cdm:")
    for s in range(8):
        a(f"s_waitcnt vmcnt({7-s})\nv_mfma_f32_16x16x32_bf16 {vr(SX,4)}, {vr(SAa+4*s,4)}, {vr(SD+4*s,4)}, {vr(SX,4) if s else 0}")
    for s in range(8): a(f"v_cmpx_eq_u32 vcc, s56, v{SD+4*s+3}")
    a(f"s_cmp_eq_u64 exec, -1\ns_mov_b64 exec, -1\ns_cbranch_scc0 {l}\n{ok}:")
    stamp(6)
    a(f"s_mov_b32 exec_hi, 0xffff\nv_pk_mul_f32 {vr(SX,2)}, {vr(SX,2)}, v[38:39]\nv_cvt_pk_bf16_f32 v{SX}, v{SX}, v{SX+1}")
    a(f"ds_write_b32 v18, v{SX}\ns_mov_b64 exec, -1")
    sig("V1B")
    a("s_branch L_fin")

    a("L_w6:")
    a(f"v_lshlrev_b32 v6, 2, {vLane}\nv_add_u32 v6, {XB}, v6")
    a(f"s_mul_i32 s52, {sJ}, 160\ns_min_u32 s53, {sV}, 9\ns_lshl_b32 s53, s53, 7\ns_sub_u32 s53, s53, 256\nv_mov_b32 v16, s52\nv_mov_b32 v13, s53\nv_cmp_gt_u32 vcc, 32, {vLane}\nv_cndmask_b32 v16, v13, v16, vcc\nv_lshl_add_u32 v16, {vLane}, 3, v16\nv_add_u32 v16, {XB}, v16")
    a(f"v_bfe_u32 v7, {vLane}, 3, 2\nv_lshlrev_b32 v27, 6, v7\nv_and_b32 v7, 3, {vLane}\nv_lshl_add_u32 v27, v7, 4, v27\nv_bfe_u32 v7, {vLane}, 2, 1\nv_lshl_add_u32 v27, v7, 3, v27\nv_lshrrev_b32 v7, 5, {vLane}\nv_mul_u32_u24 v7, {VEC1F-VEC1A}, v7\nv_add_u32 v27, v27, v7\nv_add_u32 v27, {VEC1A}, v27")
    a("s_mov_b32 s54, 0xffff0000\ns_barrier")
    for k in range(5): a(f"ds_read_b32 v{8+k}, v6 offset:{256*k}")
    a("ds_read_b64 v[14:15], v16\ns_waitcnt lgkmcnt(0)")
    stamp(1)
    for k in range(5): a(f"v_lshlrev_b32 v{32+2*k}, 16, v{8+k}\nv_and_b32 v{33+2*k}, s54, v{8+k}")
    a("v_pk_add_f32 v[44:45], v[32:33], v[34:35]\nv_pk_add_f32 v[46:47], v[36:37], v[38:39]\nv_pk_add_f32 v[44:45], v[44:45], v[40:41]\nv_pk_add_f32 v[44:45], v[44:45], v[46:47]\nv_add_f32 v44, v44, v45")
    rowreduce("v_add_f32","v44"); xreduce("v_add_f32","v44","v45")
    a(f"v_mul_f32 v44, {hex(f2u(1/640))}, v44")
    for k in range(10): a(f"v_sub_f32 v{32+k}, v{32+k}, v44")
    a("v_mul_f32 v46, v32, v32")
    for k in range(1,10): a(f"v_fmac_f32 v46, v{32+k}, v{32+k}")
    rowreduce("v_add_f32","v46"); xreduce("v_add_f32","v46","v45")
    def rbf(v): a(f"v_cvt_pk_bf16_f32 {v}, {v}, {v}\nv_and_b32 {v}, s54, {v}")
    a(f"v_mul_f32 v46, {hex(f2u(1/640))}, v46"); rbf("v46"); rbf("v44")
    a(f"v_add_f32 v46, {hex(f2u(1e-5))}, v46"); rbf("v46")
    a("v_sqrt_f32 v46, v46"); rbf("v46")
    a("v_rcp_f32 v46, v46")
    a("v_lshlrev_b32 v32, 16, v14\nv_and_b32 v33, s54, v14\nv_lshlrev_b32 v34, 16, v15\nv_and_b32 v35, s54, v15")
    for k in range(4): a(f"v_sub_f32 v{32+k}, v{32+k}, v44")
    a("v_cvt_pk_bf16_f32 v14, v32, v33\nv_cvt_pk_bf16_f32 v15, v34, v35")
    a("v_lshlrev_b32 v32, 16, v14\nv_and_b32 v33, s54, v14\nv_lshlrev_b32 v34, 16, v15\nv_and_b32 v35, s54, v15")
    for k in range(4): a(f"v_mul_f32 v{32+k}, v{32+k}, v46")
    a("v_cvt_pk_bf16_f32 v14, v32, v33\nv_cvt_pk_bf16_f32 v15, v34, v35")
    a("s_mov_b32 exec_lo, 0x000fffff\ns_mov_b32 exec_hi, 0xffff\nds_write_b64 v27, v[14:15]\ns_mov_b64 exec, -1")
    sig("V1A")
    stamp(2)
    tag_finish()
    if P["thrG2"]: a(f"s_movk_i32 s43, {P['thrG2']+CB}\ns_branch L_ga")
    a("L_w6b:\ns_mov_b32 s54, 0xffff0000")
    if P.get("spf6"):
        if P.get("spf6w"): wait_flag(*P["spf6w"])
        sprefetch(*P["spf6"])
        stamp(6)
    if P.get("wb6"):
        a(f"s_cmp_eq_u32 {sY}, 3\ns_cbranch_scc0 L_nwb")
        for fl in P["wb6"]:
            wait_flag(*fl)
            a("buffer_wbl2 sc1\ns_waitcnt vmcnt(0)")
        a("s_branch L_fin\nL_nwb:")
    a(f"s_cmp_lt_u32 s2, 20\ns_cbranch_scc1 L_final")
    if P["ge2"]: a(f"s_mov_b32 s40, 1\ns_cmp_lt_u32 {sJ}, 5\ns_cbranch_scc1 L_ge2")
    a(f"s_cmp_lt_u32 {sV}, 10\ns_cbranch_scc0 L_fin")
    masks()
    srd(44, 20, 3072)
    a(f"v_lshlrev_b32 v8, 7, {vGl}\nv_and_b32 v6, 3, {vN}\nv_lshl_add_u32 v8, v6, 5, v8\nv_lshrrev_b32 v6, 2, {vN}\nv_lshl_add_u32 v8, v6, 3, v8\ns_mul_i32 s52, {sX}, 384")
    a(f"buffer_load_dwordx2 v[22:23], v8, {SA}, s52 offen")
    gather_setup("v24",8*RS); vec2b_addr("v26")
    a(f"v_lshlrev_b32 v28, 4, {vLane}\ns_mul_i32 s40, {sB}, {RS}\ns_add_u32 s40, s40, {REC+RP}\ns_mov_b32 s48, s32\ns_xor_b32 s49, s33, 1")
    a("s_getreg_b32 s50, hwreg(HW_REG_XCC_ID, 0, 4)\ns_xor_b32 s50, s50, s32")
    trcore("v80", vTmp)
    a(f"v_lshrrev_b32 v6, 5, {vLane}\nv_mul_u32_u24 v6, 3072, v6\nv_add_u32 v80, v80, v6\nv_add_u32 v80, {R3 if FF else R1}, v80")
    for t in range(1,4): a(f"v_xor_b32 v{80+t}, {32*t}, v80")
    a(f"v_lshlrev_b32 v84, 6, {vGl}\nv_lshl_add_u32 v84, {vN}, 4, v84\nv_lshlrev_b32 v85, 4, {vGl}\nv_add_u32 v85, {VEC1F}, v85")
    a(f"ds_read_b128 v[88:91], v85\nds_read_b128 v[92:95], v85 offset:64\nv_mov_b32 v78, s50\nv_mov_b32 v79, s49")
    for u in range(3): a(f"v_mov_b32 v{GD+24+4*u}, 0\nv_mov_b32 v{GD+25+4*u}, 0\nv_mov_b32 v{GD+27+4*u}, s49")
    a(f"s_mul_i32 s52, {sX}, {32*RS}\ns_add_u32 s52, s52, {REC+5*RS+RQ}\ns_add_u32 s53, s52, {RS}\ns_add_u32 s51, s53, {RS}\ns_add_u32 s55, s40, {RQ-RP}\ns_mov_b32 s43, 0")
    wait_flag("PUBC",2)
    wait_flag("CNT",186 if FF else 222)
    stamp(3)
    def f1reads():
        for t in range(4):
            for h in range(4): a(f"ds_read_b64_tr_b16 {vr(96+8*t+2*h,2)}, v{80+t} offset:{2*h*3072}")
    f1reads()
    l=a.lab("F1")
    a(f"{l}:")
    for t in range(4):
        a(f"v_add_u32 v{80+t}, 1024, v{80+t}\ns_waitcnt lgkmcnt({12-4*t})")
        a(f"v_mfma_f32_16x16x32_bf16 {vr(128+4*t,4)}, {vr(96+8*t,4)}, v[88:91], 0\nv_mfma_f32_16x16x32_bf16 {vr(128+4*t,4)}, {vr(100+8*t,4)}, v[92:95], {vr(128+4*t,4)}")
    f1reads()
    publish4(128, 76, "v84", "s55", mode="plain")
    a(f"s_add_u32 s55, s55, 256\ns_add_u32 s43, s43, 1\ns_cmp_lt_u32 s43, 3\ns_cbranch_scc1 {l}")
    stamp(4)
    a("s_mov_b32 s58, s50\ns_mov_b32 s59, s49\ns_mov_b32 s61, s40")
    gather(3,"v24",["s52","s53","s51"],"GH", xcc="h", tag="s[48:49]")
    stamp(5)
    a("v_lshlrev_b32 v8, 16, v22\nv_and_b32 v9, s54, v22\nv_lshlrev_b32 v10, 16, v23\nv_and_b32 v11, s54, v23")
    c1 = -2*math.sqrt(2/math.pi)*math.log2(math.e)
    a(f"s_mov_b32 s56, {f2u(c1*0.044715)}\nv_mov_b32 v7, {hex(f2u(c1))}")
    for k in range(4): a(f"v_add_f32 v{GX+k}, v{GX+k}, v{8+k}")
    for k in range(4): a(f"v_mul_f32 v{8+k}, v{GX+k}, v{GX+k}")
    for k in range(4): a(f"v_fma_f32 v{8+k}, v{8+k}, s56, v7")
    for k in range(4): a(f"v_mul_f32 v{8+k}, v{8+k}, v{GX+k}")
    for k in range(4): a(f"v_exp_f32 v{8+k}, v{8+k}")
    for k in range(4): a(f"v_add_f32 v{8+k}, 1.0, v{8+k}")
    for k in range(4): a(f"v_rcp_f32 v{8+k}, v{8+k}")
    for k in range(4): a(f"v_mul_f32 v{GX+k}, v{GX+k}, v{8+k}")
    vec2_write("v26","V2B")
    a("s_branch L_ffn2")

    a('; ======== final reducer: workgroups 0..19, 32 output columns each')
    a("L_final:")
    a(f"s_mov_b32 s40, s2")
    a(f"v_and_b32 v6, 7, {vLane}\nv_lshlrev_b32 v8, 3, v6\nv_bfe_u32 v7, {vLane}, 4, 1\nv_lshl_add_u32 v8, v7, 2, v8\nv_lshrrev_b32 v7, 5, {vLane}\nv_lshl_add_u32 v8, v7, 1, v8")
    a(f"s_lshl_b32 s52, s40, 6")
    srd(44,4,1280); srd(48,24,1280)
    a(f"buffer_load_ushort v10, v8, {SA}, s52 offen\nbuffer_load_ushort v11, v8, {SB}, s52 offen")
    a(f"v_lshrrev_b32 v7, 3, {vLane}\nv_mul_u32_u24 v7, 2560, v7\nv_lshl_add_u32 v9, v6, 4, v7")
    a(f"s_lshl_b32 s53, s40, 7\ns_add_u32 s56, s53, {OP}\ns_add_u32 s57, s56, 20480\ns_add_u32 s58, s57, 20480\ns_add_u32 s59, s58, 20480\ns_add_u32 s53, s53, {YP}")
    a("s_waitcnt vmcnt(0)\nv_lshlrev_b32 v10, 16, v10\nv_lshlrev_b32 v11, 16, v11")
    srd(44,26,1280)
    def red4(b):
        a(f"v_permlane32_swap_b32 v{b}, v{b+1}\nv_permlane32_swap_b32 v{b+2}, v{b+3}\nv_add_f32 v{b}, v{b}, v{b+1}\nv_add_f32 v{b+2}, v{b+2}, v{b+3}")
        a(f"v_permlane16_swap_b32 v{b}, v{b+2}\nv_add_f32 v{b}, v{b}, v{b+2}\nv_add_f32_dpp v{b}, v{b}, v{b} row_ror:8 {DP}")
    def epoch(skip):
        a(f"s_cmp_eq_u32 s40, 0\ns_cbranch_scc0 {skip}\ns_mov_b64 exec, 0xff\nv_mov_b32 v14, s32\nv_mov_b32 v15, s33\nv_lshlrev_b32 v6, 3, {vLane}\nbuffer_store_dwordx2 v[14:15], v6, {WS}, 0 offen offset:{EPOCH} sc1\ns_mov_b64 exec, -1")
    if P["ge2"]:
        assert P["epochearly"]
        a("s_mov_b32 s60, s52\ns_mov_b32 s61, s53\nL_ge2:")
        gather_setup("v24", RS); vec2b_addr("v26")
        a(f"s_mul_i32 s52, {sG}, {8*RS}\ns_add_u32 s52, s52, {REC+RE}\ns_add_u32 s53, s52, {4*RS}")
    if P["epochearly"]:
        wait_flag("V1B",1)
        epoch("L_nep"); a("L_nep:")
    if P["ge2"]: a("s_branch L_ge\nL_fin2:\ns_mov_b32 s52, s60\ns_mov_b32 s53, s61")
    wait_flag("PUBF",4)
    stamp(9)
    l,ok=loop_head("FS")
    a(f"buffer_load_dwordx4 v[28:31], v9, {WS}, s53 offen sc1")
    for k in range(4): a(f"buffer_load_dwordx4 {vr(12+4*k,4)}, v9, {WS}, s{56+k} offen sc1")
    a(f"""s_waitcnt vmcnt(4)
v_permlane32_swap_b32 v28, v29
v_permlane32_swap_b32 v30, v31
v_add_f32 v28, v28, v29
v_add_f32 v30, v30, v31
s_waitcnt vmcnt(2)
v_pk_add_f32 v[12:13], v[12:13], v[16:17]
v_permlane16_swap_b32 v28, v30
v_add_f32 v28, v28, v30
v_pk_add_f32 v[14:15], v[14:15], v[18:19]
s_waitcnt vmcnt(0)
v_add_f32_dpp v28, v28, v28 row_ror:8 {DP}
v_pk_add_f32 v[20:21], v[20:21], v[24:25]
v_add_f32 v28, v28, v11
v_pk_add_f32 v[22:23], v[22:23], v[26:27]
v_mul_f32 v29, {hex(f2u(-math.log2(math.e)))}, v28
v_pk_add_f32 v[12:13], v[12:13], v[20:21]
v_pk_add_f32 v[14:15], v[14:15], v[22:23]
v_exp_f32 v29, v29
v_permlane32_swap_b32 v12, v13
v_permlane32_swap_b32 v14, v15
v_add_f32 v12, v12, v13
v_add_f32 v14, v14, v15
v_add_f32 v29, 1.0, v29
v_rcp_f32 v29, v29
v_permlane16_swap_b32 v12, v14
v_add_f32 v12, v12, v14
v_mul_f32 v28, v28, v29
v_add_f32_dpp v12, v12, v12 row_ror:8 {DP}
v_cmp_u_f32 vcc, v12, v28
v_fma_f32 v13, v12, v28, v10
s_cbranch_vccnz {l}
{ok}:""")
    a(f"v_cvt_pk_bf16_f32 v13, v13, v13\ns_mov_b32 exec_lo, 0x00ff00ff\ns_mov_b32 exec_hi, 0x00ff00ff\nbuffer_store_short v13, v8, {SA}, s52 offen {P['outf']}")
    stamp(10)
    if not P["epochearly"]: epoch("L_fin")
    if P.get("dbgdelay"):
        a(f"s_memrealtime s[8:9]\ns_waitcnt lgkmcnt(0)\nL_dd:\ns_memrealtime s[10:11]\ns_waitcnt lgkmcnt(0)\ns_sub_u32 s10, s10, s8\ns_cmp_lt_u32 s10, {P['dbgdelay']}\ns_cbranch_scc1 L_dd")
    if P.get("trace"):
        L2=[]
        for x in a.L:
            L2.append(x)
            if x.startswith(("ds_max_u32","ds_write_b32")) and x.endswith(f"v10 offset:{F['CNT']}"):
                L2+=["s_memrealtime s[62:63]","v_readfirstlane_b32 s97, v10","s_waitcnt lgkmcnt(0)","s_lshl_b32 s62, s62, 12","s_or_b32 s62, s62, s97","s_and_b32 s98, s96, 63","s_cmp_lt_u32 s96, 64","s_cselect_b64 vcc, -1, 0","v_mov_b32 v32, s62","v_cmp_eq_u32 s[62:63], s98, v0","s_add_u32 s96, s96, 1","s_and_b64 vcc, vcc, s[62:63]","v_cndmask_b32 v30, v30, v32, vcc","v_cndmask_b32 v31, v31, v32, s[62:63]"]
            if x=="L_ld2:": L2+=["s_mov_b32 s96, 0","v_mov_b32 v30, 0","v_mov_b32 v31, 0"]
        a.L=L2
    if P.get("allsc1"): a.L=[(x+" sc1" if (x.startswith("buffer_store") and "sc1" not in x) else x) for x in a.L]
    if P.get("nostores"):
        L2=[]; n_=0
        for x in a.L:
            if x.startswith("buffer_store") and WS in x:
                if n_ in P.get("keep",()): L2.append(x)
                n_+=1
            else: L2.append(x)
        a.L=L2
    a("L_fin:")
    if diag:
        stamp(15)
        if P.get("mind"): a(f"s_cmp_eq_u32 {sW}, 4\ns_cbranch_scc1 L_dump\ns_cmp_eq_u32 {sW}, 6\ns_cbranch_scc0 L_end\nL_dump:")
        a("s_load_dwordx2 s[28:29], s[0:1], 104")
        a(f"s_waitcnt lgkmcnt(0) vmcnt(0)\ns_mov_b32 s30, {WSSIZE}\ns_mov_b32 s31, 0x20000\ns_mov_b64 exec, 1")
        if P["wsb"]: a(f"s_add_u32 s28, s28, {P['wsb']}\ns_addc_u32 s29, s29, 0")
        for i in range(16): a(f"v_mov_b32 v{8+i}, s{64+2*i}")
        a(f"v_mov_b32 v24, {sBud}\nv_mov_b32 v6, 0\ns_lshl_b32 s52, {sB}, 3\ns_add_u32 s52, s52, {sW}\ns_lshl_b32 s52, s52, 7\ns_add_u32 s52, s52, {DBG}")
        dfl=P.get("dfl","")
        for i in range(4): a(f"buffer_store_dwordx4 {vr(8+4*i,4)}, v6, {WS}, s52 offen offset:{16*i} {dfl}")
        a(f"buffer_store_dword v24, v6, {WS}, s52 offen offset:64 {dfl}")
        if P.get("trace"):
            a(f"s_cmp_eq_u32 {sW}, 4\ns_cbranch_scc0 L_ntr\ns_mov_b64 exec, -1\nv_lshlrev_b32 v6, 2, v0\ns_lshl_b32 s52, {sB}, 9\ns_add_u32 s52, s52, {DBG+0x40000}\nbuffer_store_dword v30, v6, {WS}, s52 offen\nbuffer_store_dword v31, v6, {WS}, s52 offen offset:256\nL_ntr:")
    a("s_endpgm")
    a("; ======== out of line: poll give-up exits, write-through variants for groups that span dies")
    for f_ in far: a(f_)
    a("L_end:\ns_endpgm")
    body = a.finish(verbose=P.get("verbose",False))
    hdr = open("cdna_kernels/"+NAME+".s.ref").read().split("; Override launch")[0] if P.get("hdr",True) else ""
    return hdr + f"""; Single persistent launch: 256 workgroups (one per CU) x 8 waves. Written with my own generator script.
; Math (absorbed form of the reference, exact reordering): xn = LN(x); q = xn.Wq; qa[h,c] = q[h,:].Wuk[c,h,:] * D^-0.5 * log2e;
;   S = qa.ckv^T; p = 2^(S - ceil(block max)) per 32-key block, blocks rescaled by exact powers of two against the true row max;
;   cl = (p.ckv)/sum p; ctx = cl.Wuv; s = ctx.Wo; out = x + s * silu(gelu(xn.W1 + b1).W2 + b2).
; Workgroup b: x = b&7, y = b>>3, group g = 4x + (y>>3) (head g, keys 256g..256g+255), j = y&7 (row / column slice).
; Waves (role = hardware wave ^ 4): 0-3 matrix stages, 4 LDS-DMA stream of all weights and c_kv tiles, 5 sentinel fill / statistics
;   store / weighted combine, 6 layernorm / FFN / final reduce, 7 gathers and softmax statistics. Waves meet through LDS counters.
; Hand-offs between workgroups go through d_ws. Every handed-off word is validated by the reader: either it carries this launch's tag
;   (tag = epoch word found in d_ws on entry + constant; the tag becomes the next epoch), or its slot was filled with a NaN sentinel in
;   this launch before anyone may write or read it. Write-through stores are used across groups. Inside a group plain stores are used
;   only while they are known or re-published: tags carry the writer's XCC id, and a group found (or suspected) to span dies
;   switches to write-through stores, so any placement is correct. Every global poll is bounded.
; @launch grid=(256,1,1) block=(512,1,1) lds={LDS_BYTES}
.amdgcn_target "amdgcn-amd-amdhsa--gfx950"
.text
.globl {NAME}_kernel
.p2align 8
.type {NAME}_kernel,@function
{NAME}_kernel:
{body}
.section .rodata,"a"
.p2align 6
.amdhsa_kernel {NAME}_kernel
  .amdhsa_next_free_vgpr 220
  .amdhsa_next_free_sgpr 100
  .amdhsa_accum_offset 220
  .amdhsa_group_segment_fixed_size 0
  .amdhsa_kernarg_size 112
  .amdhsa_user_sgpr_count 2
  .amdhsa_user_sgpr_kernarg_segment_ptr 1
  .amdhsa_system_sgpr_workgroup_id_x 1
.end_amdhsa_kernel
"""
if __name__=="__main__":
    kw={}
    out="cdna_kernels/"+NAME+".s"
    for arg in sys.argv[1:]:
        k,v=arg.split("=",1)
        if k=="out": out=v
        else:
            try: kw[k]=eval(v)
            except Exception: kw[k]=v
    open(out,"w").write(gen(verbose=True, **kw))
    print("wrote",out,"LDS",LDS_BYTES)
```

```python
import sys, math, struct
from asmlib import Asm
NAME = "recurrent_scan__compressed_kv_cla__dense_activation_gelu__decode"
def f2u(x): return struct.unpack("<I", struct.pack("<f", x))[0]

EPOCH=0; FLG=0x1000; QA=0x4000; HT=0x10000; G=0x24000; OP=G; YP=G+81920; ST=0x40000
REC=0x60000; RP=8192; RM=RP+2048; RE=RM+256; RQ=RE+768; RS=RQ+768; DBG=0x380000; WSSIZE=0x400000
assert REC+256*RS<=DBG
R1=0; R2=49152; R3=R2+51200; SCR=R3+36864
XB=SCR; VEC1A=XB+4096; VEC1F=VEC1A+192; VEC1B=VEC1F+128; VEC2A=VEC1B+192; VEC2B=VEC2A+384; MLB=VEC2B+384
FLAGS=(MLB+2048+255)//256*256
FN = ["CNT","RDB","V1A","V2A","CLR","X0","X1","V1B","V2B","S4M","RDUK","RDA","PUBA","PUBC","PUBD","PUBE","PUBF","PUBB","QISS","DST","CDI","STOK","GISS","S4K","H0","S3K","STR","GOK"]
F = {n:256*i for i,n in enumerate(FN)}
LDS_BYTES = FLAGS+256*len(FN)

Q_=('QISS',4); M_=('S4M',4); K_=('S4K',4); D_=('DST',4); C_=('CDI',1); V_=('V1B',1); S_=('S3K',4)
DEF = dict(sched=[(0,Q_,18),(36,M_,12),(48,K_,24),(66,C_,24)], holdA=21, gA=False, tlb=False, latesmall=False, warmout=False, mshare=False, psplit=(8,0), ge2=False, sttrig=('PUBC',2), lateG=0, s1pipe=True, holdP=0, gateA=0, wb=None, outf='', blate=True, prio=(0,2,3), epochearly=True, latetouch=30, gC=False, fsched=None, T=24, TA=30, TL=24, thrG=60, pauseQ=True, ntA='nt', ntB='nt', nt="nt", diag=False, wsb=0, thrF=30, clrstep=8, gate=True, n1=18, n2=66, thrG2=0, incC=False, mfirst=True, hintA=False, hintC=False, holdG=False, n0=0, ackA=False, ackC=False, s4late=True, ffnfirst=True, fg=(24,84), dtrig=[('STOK',1)], thrQ=150, adual=True,  local=True, stattrig="DST", pref='s', budget=400000, safe=False)

def gen(**kw):
    P = dict(DEF); P.update(kw)
    T=P["T"]; TL=P["TL"]; NT=P["nt"]; diag=P["diag"]
    a = Asm()
    far=[]
    sW,sX,sY,sG,sJ,sB,sV = "s34","s35","s36","s37","s38","s39","s41"
    sBud="s42"; WS="s[28:31]"; SA="s[44:47]"; SB="s[48:51]"
    nst=[0]
    def stamp(i):
        if diag: a(f"s_memrealtime s[{64+2*i}:{65+2*i}]")
    def srd(base, ptr, size):
        a(f"s_mov_b32 s{base}, s{ptr}\ns_mov_b32 s{base+1}, s{ptr+1}\ns_mov_b32 s{base+2}, {size}\ns_mov_b32 s{base+3}, 0x20000")
    vLane="v0"; vL4="v1"; vOne="v2"; vTmp="v3"; vN="v4"; vGl="v5"
    CB=64
    def spin(l):
        a(f"{l}:")
        if P["safe"]: a("s_sub_u32 s99, s99, 1\ns_cbranch_scc1 L_fin")
        if P.get("slp") is not None and l.startswith("WF"): a(f"s_sleep {P['slp']}")
    def wait_flag(name, thr):
        if name=="CNT" and isinstance(thr,int): thr+=CB
        l=a.lab("WF")
        spin(l)
        a(f"ds_read_b32 {vTmp}, {vL4} offset:{F[name]}\ns_waitcnt lgkmcnt(0)\nv_cmp_gt_u32 vcc, {thr}, {vTmp}\ns_cbranch_vccnz {l}")
    def sig(name, v=vOne):
        a(f"ds_add_u32 {vL4}, {v} offset:{F[name]}")
    def loop_head(base, sigs=()):
        l=a.lab(base); g=a.lab("GU"); ok=a.lab("OK")
        a(f"{l}:\ns_sub_u32 {sBud}, {sBud}, 1\ns_cbranch_scc1 {g}")
        far.append(f"{g}:\ns_mov_b32 {sBud}, 0\ns_mov_b64 exec, -1\n"+"".join(f"ds_add_u32 {vL4}, {vOne} offset:{F[n]}\n" for n in sigs)+f"s_nop 7\ns_branch {ok}")
        return l, ok
    def vr(b,n): return f"v[{b}:{b+n-1}]"
    def tag_finish():
        a("s_waitcnt lgkmcnt(0)\ns_add_u32 s32, s32, 0x7f4a7c10\ns_addc_u32 s33, s33, 0x9e3779b9\ns_or_b32 s32, s32, 15")
    def hint_wait(off, base, tp):
        l=a.lab("HW"); ok=a.lab("HK")
        r=lambda i: f"s[{base+2*i}:{base+2*i+1}]"
        a(f"{l}:\ns_load_dwordx8 s[{base}:{base+7}], s[28:29], {off}\ns_add_u32 {off}, {off}, 64\ns_waitcnt lgkmcnt(0)")
        a("\n".join(f"s_xor_b64 {r(i)}, {r(i)}, {tp}" for i in range(4)))
        a(f"s_or_b64 {r(0)}, {r(0)}, {r(1)}\ns_or_b64 {r(2)}, {r(2)}, {r(3)}\ns_or_b64 {r(0)}, {r(0)}, {r(2)}\ns_cbranch_scc0 {ok}")
        a(f"s_and_b32 s{base}, {off}, 0x3c0\ns_cbranch_scc1 {l}\n{ok}:")
    def ghint(pair, stride, base, test):
        l=a.lab("GW"); ok=a.lab("GK")
        r=lambda i: f"s[{base+2*i}:{base+2*i+1}]"
        a(f"s_movk_i32 s98, 200\n{l}:")
        for k in range(8): a(f"s_load_dword s{base+k}, {pair}, {k*stride} glc")
        a(f"s_sub_u32 s98, s98, 1\ns_cbranch_scc1 {ok}\ns_waitcnt lgkmcnt(0)")
        if test=="sentinel":
            a("\n".join(f"s_max_u32 s{base}, s{base}, s{base+k}" for k in range(1,8))+f"\ns_cmp_eq_u32 s{base}, -1\ns_cbranch_scc1 {l}")
        else:
            a("\n".join(f"s_xor_b64 {r(i)}, {r(i)}, {test}" for i in range(4)))
            a(f"s_or_b64 {r(0)}, {r(0)}, {r(1)}\ns_or_b64 {r(2)}, {r(2)}, {r(3)}\ns_or_b64 {r(0)}, {r(0)}, {r(2)}\ns_cbranch_scc1 {l}")
        a(f"{ok}:\ns_waitcnt lgkmcnt(0)")
    def sprefetch(end_o, kb_o, end_f, kb_f):
        nf=a.lab("PN"); dn=a.lab("PD")
        a(f"s_cmp_lt_u32 {sJ}, 5\ns_cbranch_scc0 {nf}")
        for lab,ptr,base,rows_kb,sec,end,kb in ((None,14,f"s_mul_i32 s96, {sG}, 245760\ns_lshl_b32 s97, {sJ}, 8",4,4,end_o,kb_o),(nf,22,f"s_mul_i32 s96, {sX}, 245760\ns_lshl_b32 s97, {sV}, 7",8,2,end_f,kb_f)):
            if lab: a(f"{lab}:\ns_cmp_lt_u32 {sV}, 10\ns_cbranch_scc0 {dn}")
            if kb:
                assert kb%3==0 and 0<=end-kb and end*rows_kb<=192
                l=a.lab("PL"); rpi=12//sec
                a(f"{base}\ns_add_u32 s96, s96, s97\ns_add_u32 s96, s96, {(end-kb)*rows_kb*1280}\ns_add_u32 s96, s96, s{ptr}\ns_addc_u32 s97, s{ptr+1}, 0\ns_movk_i32 s98, {kb*rows_kb//rpi}\n{l}:")
                for r_ in range(rpi):
                    for c_ in range(sec): a(f"s_load_dword s43, s[96:97], {r_*1280+c_*64}")
                a(f"s_add_u32 s96, s96, {rpi*1280}\ns_addc_u32 s97, s97, 0\ns_sub_u32 s98, s98, 1\ns_cmp_lg_u32 s98, 0\ns_cbranch_scc1 {l}")
            if not lab: a(f"s_branch {dn}")
        a(f"{dn}:\ns_waitcnt lgkmcnt(0)")
    def xreduce(op, v, t):
        a(f"v_mov_b32 {t}, {v}\nv_permlane16_swap_b32 {v}, {t}\n{op} {v}, {v}, {t}")
        a(f"v_mov_b32 {t}, {v}\nv_permlane32_swap_b32 {v}, {t}\n{op} {v}, {v}, {t}")
    DP="row_mask:0xf bank_mask:0xf"
    def rowreduce(op, v, steps=("quad_perm:[1,0,3,2]","quad_perm:[2,3,0,1]","row_half_mirror","row_mirror")):
        for s in steps: a(f"{op}_dpp {v}, {v}, {v} {s} {DP}")

    vW,vK,vF,vO,vC,vT,vA0,vA1,vA2,vP,vTR = "v6","v7","v8","v9","v10","v11","v12","v13","v14","v15","v16"
    CS=P["clrstep"]
    def ids():
        a(f"s_and_b32 {sX}, s2, 7\ns_lshr_b32 {sY}, s2, 3\ns_lshl_b32 {sB}, {sX}, 5\ns_or_b32 {sB}, {sB}, {sY}\ns_lshr_b32 {sG}, {sB}, 3\ns_and_b32 {sJ}, {sY}, 7")
    def ids2():
        if diag:
            for i in range(1,16):
                if i not in (8,9) : a(f"s_mov_b32 s{64+2*i}, 0")
        if P["safe"]: a("s_mov_b32 s99, 2000000")
        a(f"s_and_b32 {sV}, {sG}, 3\ns_lshl2_add_u32 {sV}, {sJ}, {sV}\ns_sub_u32 {sV}, {sV}, 20")
        a(f"v_lshlrev_b32 {vL4}, 2, {vLane}\nv_add_u32 {vL4}, {FLAGS}, {vL4}")
    if P.get("skewinj"):
        a(f"s_and_b32 s52, s2, 6\ns_cmp_eq_u32 s52, 4\ns_cbranch_scc0 L_nsk\ns_sleep {P['skewinj']}\nL_nsk:")
    a("s_load_dwordx16 s[4:19], s[0:1], 0")
    stamp(0)
    a(f"v_readfirstlane_b32 {sW}, v0\ns_load_dwordx2 s[28:29], s[0:1], 104\ns_cmp_ge_u32 s2, 256\ns_cbranch_scc1 L_end")
    if P["pref"]=="v":
        a(f"s_getpc_b64 s[52:53]\nL_pc:\nv_lshlrev_b32 v1, 7, v0\nv_subrev_u32 v1, 8192, v1\nv_cmp_gt_u32 vcc, L_end-L_pc, v1\ns_and_saveexec_b64 s[54:55], vcc\ns_cbranch_execz L_np\nglobal_load_dword v207, v1, s[52:53]\nL_np:\ns_mov_b64 exec, -1")
    ids()
    if P["pref"]=="s":
        a(f"s_lshr_b32 {sW}, {sW}, 6\ns_cbranch_scc0 L_loader\ns_and_b32 s62, s2, {(~(7*CS))&0xff}\ns_xor_b32 s63, {sW}, 7\ns_or_b32 s40, s62, s63\ns_cbranch_scc0 L_qa\nL_nqa:\ns_getpc_b64 s[52:53]\nL_pc:\ns_mul_i32 s54, {sY}, 7\ns_add_u32 s54, s54, {sW}\ns_lshl_b32 s54, s54, 7\ns_min_u32 s54, s54, L_end-L_pc-64")
        a("s_load_dword s56, s[52:53], s54\ns_add_u32 s54, s54, 64\ns_load_dword s57, s[52:53], s54\ns_branch L_notloader\nL_loader:")
    else: a(f"s_lshr_b32 {sW}, {sW}, 6\ns_cbranch_scc1 L_notloader")

    a(f"v_lshrrev_b32 {vP}, 3, {vLane}\nv_and_b32 {vT}, 6, {vP}\nv_xor_b32 {vTR}, {vT}, {vLane}\nv_and_b32 {vTR}, 7, {vTR}\nv_lshlrev_b32 {vTR}, 4, {vTR}")
    a(f"v_mul_u32_u24 {vK}, 12288, {vP}\nv_add_u32 {vW}, {vK}, {vTR}\nv_lshlrev_b32 {vA0}, 4, {vLane}")
    a(f"s_mul_i32 s52, {sJ}, {80*12288}\ns_mul_i32 s53, {sG}, 384\ns_add_u32 s52, s52, s53")
    a(f"s_mov_b32 m0, {XB}\ns_mov_b32 s46, {640*12288}\ns_mov_b32 s47, 0x20000\ns_mov_b32 s51, 0x20000\ns_movk_i32 s50, 1280")
    a(f"s_movk_i32 s56, 896\ns_movk_i32 s57, 1280")
    if P["lateG"]==-1:
        assert not P["wsb"]
        a(f"v_mov_b64 v[24:25], -1\nv_mov_b64 v[26:27], -1\ns_mov_b32 s30, {G+102400}\ns_mov_b32 s31, 0x20000\ns_lshl_b32 s54, s2, 10\ns_add_u32 s54, s54, {G}\ns_cmp_lg_u32 s62, 0")
    a("s_waitcnt lgkmcnt(0)")
    if P["lateG"]==-1: a(f"buffer_store_dwordx4 v[24:27], {vA0}, {WS}, s54 offen sc1")
    stamp(8)
    a("s_mov_b64 s[48:49], s[4:5]\ns_mov_b64 s[44:45], s[8:9]")
    a(f"buffer_load_dwordx4 {vA0}, {SB}, 0 offen lds\nbuffer_load_dwordx4 {vA0}, {SB}, 0 offen offset:1024 lds\ns_mov_b32 m0, {R2}")
    stamp(9)
    def pub(iss='s61'):
        a(f"s_getreg_b32 s63, hwreg(HW_REG_IB_STS)\ns_bfe_u32 s62, s63, 0x20016\ns_and_b32 s63, s63, 15\ns_lshl4_add_u32 s63, s62, s63\ns_sub_u32 s63, {iss}, s63\nv_mov_b32 v23, s63\nds_max_u32 {vL4}, v23 offset:{F['CNT']}")
    def cpub(k):
        if P.get("exact"): pub()
        else: a(f"s_sub_u32 s63, s61, {k}\nv_mov_b32 v23, s63\nds_max_u32 {vL4}, v23 offset:{F['CNT']}")
    def wait_pub(name, thr):
        l=a.lab("WP")
        spin(l); pub()
        a(f"ds_read_b32 {vTmp}, {vL4} offset:{F[name]}\ns_waitcnt lgkmcnt(0)\nv_cmp_gt_u32 vcc, {thr}, {vTmp}\ns_cbranch_vccnz {l}")
    def seg384(srdq, vaddr, soff, step, m0end, thr, xor=False, d1="s56", d2="s57"):
        l=a.lab("SG")
        a(f"{l}:")
        v=vaddr
        if xor:
            a(f"v_xor_b32 {vT}, s55, {vaddr}\ns_add_u32 s55, s55, 32\ns_and_b32 s55, s55, 0x60"); v=vT
        if thr:
            a(f"s_waitcnt vmcnt({thr-3})"); cpub(thr-3)
        a(f"buffer_load_dwordx4 {v}, {srdq}, {soff} offen {NT} lds\ns_add_u32 m0, m0, {d1}")
        if thr: a(f"s_add_u32 s61, s61, 3")
        a(f"buffer_load_dwordx4 {v}, {srdq}, {soff} offen offset:128 {NT} lds\ns_add_u32 m0, m0, {d1}")
        a(f"buffer_load_dwordx4 {v}, {srdq}, {soff} offen offset:256 {NT} lds\ns_add_u32 m0, m0, {d2}")
        a(f"s_add_u32 {soff}, {soff}, {step}\ns_cmp_lg_u32 m0, {m0end}\ns_cbranch_scc1 {l}")
    if P.get("unrollq",True):
        a("s_mov_b32 s55, 98304")
        for r_ in range(10):
            a(f"buffer_load_dwordx4 {vW}, {SA}, s52 offen {NT} lds\ns_add_u32 m0, m0, s56\ns_nop 0\nbuffer_load_dwordx4 {vW}, {SA}, s52 offen offset:128 {NT} lds\ns_add_u32 m0, m0, s56\ns_nop 0\nbuffer_load_dwordx4 {vW}, {SA}, s52 offen offset:256 {NT} lds")
            if r_<9: a("s_add_u32 m0, m0, s57\ns_add_u32 s52, s52, s55")
    else: seg384(SA, vW, "s52", 98304, R2+30720, None)
    a("s_branch L_ld2")
    a("; wave role 3 of eight workgroups: sentinel fill of the q_abs array (its flag follows once these stores are acknowledged)")
    assert not P["wsb"] and P["pref"]=="s"
    a(f"L_qa:\ns_mov_b32 s30, {WSSIZE}\ns_mov_b32 s31, 0x20000\nv_mov_b64 v[24:25], -1\nv_mov_b64 v[26:27], -1\nv_and_b32 v28, 63, v0\nv_lshlrev_b32 v28, 4, v28")
    a(f"s_mul_i32 s54, s2, {6144//CS}\ns_add_u32 s54, s54, {QA}\ns_add_u32 s55, s54, 4096\ns_waitcnt lgkmcnt(0)")
    for k in range(6): a(f"buffer_store_dwordx4 v[24:27], v28, {WS}, s{54+(k>>2)} offen offset:{1024*(k&3)} sc1")
    a("s_branch L_nqa")
    a("L_notloader:")
    a(f"s_load_dwordx8 s[20:27], s[0:1], 64\ns_xor_b32 {sW}, {sW}, 4\nv_and_b32 v0, 63, v0")
    if diag: a("s_mov_b32 s80, 0\ns_mov_b32 s82, 0")
    ids2()
    a("s_branch L_others")
    a(f"L_ld2:\ns_setprio {P['prio'][2]}\ns_load_dwordx8 s[20:27], s[0:1], 64\ns_mov_b32 {sW}, 4")
    ids2()
    stamp(1)
    a("s_waitcnt lgkmcnt(0)")
    a(f"v_bfe_u32 {vT}, {vLane}, 4, 1\nv_xor_b32 {vT}, {vT}, {vLane}\nv_and_b32 {vT}, 7, {vT}\nv_lshl_add_u32 {vK}, {vT}, 4, {vK}")
    a(f"s_mul_i32 s52, {sJ}, {96*12288}\ns_add_u32 s52, s52, s53\ns_mov_b32 s54, s52\ns_mov_b32 s55, 0")
    a(f"s_mov_b32 s44, s10\ns_mov_b32 s45, s11\ns_mov_b32 s46, {768*12288}\ns_mov_b32 m0, {R3}")
    a(f"s_movk_i32 s61, {CB+30}")
    a("s_waitcnt vmcnt(30)\ns_barrier")
    a(f"v_lshrrev_b32 {vT}, 5, {vLane}\nv_lshlrev_b32 {vT}, 4, {vT}\nv_xor_b32 {vA1}, {vA0}, {vT}\nv_xor_b32 {vA2}, 16, {vA0}")
    for t in range(3):
        a(f"v_add_u32 v17, {64*t}, {vLane}\nv_mul_u32_u24 v18, 0x5556, v17\nv_lshrrev_b32 v18, 18, v18\nv_mul_u32_u24 v19, 12, v18\nv_sub_u32 v17, v17, v19")
        a(f"v_lshrrev_b32 v19, 1, v18\nv_and_b32 v18, 1, v18\nv_lshl_add_u32 v18, v19, 5, v18\nv_and_b32 v19, 2, v19\nv_xor_b32 v17, v17, v19\nv_mul_u32_u24 v18, 1536, v18\nv_lshl_add_u32 v{20+t}, v17, 4, v18")
        if P.get("b16"):
            a(f"v_add_u32 v17, {64*t}, {vLane}\nv_mul_u32_u24 v18, 0xaaab, v17\nv_lshrrev_b32 v18, 18, v18\nv_mul_u32_u24 v19, 6, v18\nv_sub_u32 v17, v17, v19")
            a(f"v_lshrrev_b32 v19, 1, v18\nv_and_b32 v18, 1, v18\nv_lshl_add_u32 v18, v19, 5, v18\nv_mul_u32_u24 v18, 1536, v18\nv_lshl_add_u32 v{20+t}, v17, 4, v18")
        if P.get("bfull"):
            a(f"v_lshrrev_b32 v18, 3, {vLane}\nv_lshrrev_b32 v19, 1, v18\nv_and_b32 v18, 1, v18\nv_lshl_add_u32 v18, v19, 5, v18\nv_mul_u32_u24 v18, 1536, v18\nv_and_b32 v17, 7, {vLane}\nv_lshl_add_u32 v{20+t}, v17, 4, v18")
            a(f"s_and_b32 s63, {sJ}, 1")
            if t<2: a(f"s_lshl_b32 s63, s63, 8\ns_add_u32 s63, s63, {t*128*1536+2048}")
            else: a(f"s_mul_i32 s63, s63, {128*1536}\ns_add_u32 s63, s63, {128+2048}")
            a(f"v_add_u32 v{20+t}, s63, v{20+t}")
        if t: a(f"v_subrev_u32 v{20+t}, {1024*t}, v{20+t}")
    a(f"v_mul_u32_u24 {vO}, 1280, {vP}\nv_add_u32 {vO}, {vO}, {vTR}\nv_mul_u32_u24 {vF}, 3072, {vP}\nv_add_u32 {vF}, {vF}, {vTR}")
    a(f"s_mov_b32 s48, s6\ns_mov_b32 s49, s7\ns_mov_b32 s50, {8192*1536}")
    a(f"s_mul_i32 s58, {sG}, {256*1536}\ns_mul_i32 s53, {sJ}, 192\ns_add_u32 s58, s58, s53\ns_mov_b32 s59, {R1}\ns_mov_b32 s60, {R2}")
    if P.get("bfull"): a(f"s_mul_i32 s58, {sG}, {256*1536}\ns_lshr_b32 s53, {sJ}, 1\ns_mul_i32 s53, s53, 384\ns_add_u32 s58, s58, s53\ns_max_u32 s58, s58, 2048\ns_sub_u32 s58, s58, 2048")
    if P.get("b16"): a(f"s_lshr_b32 s58, {sB}, 4\ns_mul_i32 s58, s58, {512*1536}\ns_and_b32 s53, {sB}, 15\ns_mul_i32 s53, s53, 96\ns_add_u32 s58, s58, s53")
    if P["holdP"]:
        assert 0<P["holdP"]<36 and P["holdP"]%3==0
        seg384(SA, vK, "s52", 98304, R3+1024*P["holdP"], P.get("T0",T), xor=True)
        if not P.get("T0"): wait_pub("PUBA",3)
    seg384(SA, vK, "s52", 98304, R3+36864, T, xor=True)
    stamp(2)
    TA=P["TA"]; NA=P["ntA"]; NB=P["ntB"]
    def drain(tgt):
        l=a.lab("DR")
        spin(l); pub(); a(f"s_sub_u32 s63, s61, s63\ns_cmp_gt_u32 s63, {tgt}\ns_cbranch_scc1 {l}")
    a(f"s_mul_i32 s52, {sB}, 49152")
    if T>P.get("holdA",18): drain(P.get("holdA",18))
    wait_pub(*(("GISS",1) if P["holdG"] else ("PUBA",3)))
    def segAB(nst, ex, TA=TA):
        l=a.lab("SA")
        a(f"{l}:\nv_xor_b32 v17, s55, {vA0}\nv_xor_b32 v18, s55, {vA1}\nv_xor_b32 v19, s55, {vA2}\ns_mov_b32 m0, s59")
        a(f"s_waitcnt vmcnt({TA-6})")
        if ex: pub()
        else: cpub(TA-6)
        a(f"buffer_load_dwordx4 v17, {SB}, s52 offen {NA} lds\nbuffer_load_dwordx4 v18, {SB}, s52 offen offset:1024 {NA} lds\nbuffer_load_dwordx4 v19, {SB}, s52 offen offset:2048 {NA} lds")
        a(f"s_mov_b32 m0, s60\ns_add_u32 s61, s61, 6")
        for t in range(3): a(f"buffer_load_dwordx4 v{20+t}, {SB}, {'s58' if not P.get('bnone') else 's50'} offen offset:{1024*t} {NB} lds")
        a(f"s_add_u32 s55, s55, 32\ns_and_b32 s55, s55, 0xe0\ns_add_u32 s52, s52, 3072\ns_add_u32 s58, s58, 3072\ns_add_u32 s60, s60, 3200\ns_add_u32 s59, s59, 3072")
        a(f"s_cmp_lg_u32 s59, {R1+3072*nst}\ns_cbranch_scc1 {l}")
    if P["gateA"]:
        assert 0<P["gateA"]<16
        segAB(P["gateA"], True); wait_pub("V2A",1)
    if P.get("gateQ"):
        n_=P["gateQ"]
        assert P["gateA"]<n_<16 and P["thrQ"]<=66+6*n_ and not P.get("TA2")
        segAB(n_, P["holdG"] or P["gateA"]); wait_pub("QISS",4); segAB(16, False, P.get("TA3",TA))
    elif P.get("TA2"):
        n_,t_=P["TA2"]
        assert P["gateA"]<n_<16 and t_%6==0
        segAB(n_, P["holdG"] or P["gateA"]); segAB(16, P.get("exA",False), t_)
    else: segAB(16, P["holdG"] or P["gateA"])
    stamp(3)
    a(f"s_mov_b32 s44, s12\ns_mov_b32 s45, s13\ns_mov_b32 m0, {R3}")
    FF=True
    def check(sc):
        at=[x[0] for x in sc]
        assert at[0]==0 and at==sorted(set(at)) and all(x%3==0 for x in at) and all(3<x[2]<=60 and x[2]%3==0 for x in sc)
        return sc
    sched=check(P["sched"]); fsched=check(P.get("fsched") or P["sched"])
    if sched[0][1]!=("QISS",4):
        drain(sched[0][2]-3); wait_pub("RDUK",3)
    stamp(4)
    def late(sc, done, n, emit):
        tl=[x[2] for x in sc if x[0]<=done][-1]
        for at,fl,t_ in sc:
            if done<at<done+n: emit(at-done, tl)
            if done<=at<done+n:
                if fl: wait_pub(*fl)
                tl=t_
        emit(n, tl)
    def seg_wo(k, TL):
        assert k%6==0
        l=a.lab("SO")
        a(f"{l}:")
        for i in range(6):
            if i%3==0: a(f"s_waitcnt vmcnt({TL-3})"); cpub(TL-3)
            if i%2==0:
                a(f"buffer_load_dwordx4 {vO}, {SB}, s52 offen {NT} lds\ns_add_u32 m0, m0, s56")
            else:
                a(f"buffer_load_dwordx4 {vO}, {SB}, s52 offen offset:128 {NT} lds\ns_add_u32 m0, m0, 1152\ns_add_u32 s52, s52, 10240")
            if i%3==0: a(f"s_add_u32 s61, s61, 3")
        a(f"s_cmp_lg_u32 m0, {R1+1024*k}\ns_cbranch_scc1 {l}")
    def seg_w2(k, TL):
        l=a.lab("S2")
        a(f"{l}:\ns_waitcnt vmcnt({TL-3})"); cpub(TL-3)
        for i in range(3):
            a(f"buffer_load_dwordx4 {vO}, {SB}, s52 offen {NT} lds\ns_add_u32 m0, m0, 2048\ns_add_u32 s52, s52, 10240")
        a(f"s_add_u32 s61, s61, 3\ns_cmp_lg_u32 m0, {R2+2048*k}\ns_cbranch_scc1 {l}")
    a(f"s_cmp_lt_u32 {sV}, 10\ns_cbranch_scc0 L_noff")
    a(f"s_mul_i32 s52, {sV}, {64*3072}\ns_mul_i32 s53, {sX}, 384\ns_add_u32 s52, s52, s53")
    a(f"s_mov_b32 s48, s18\ns_mov_b32 s49, s19\ns_mov_b32 s50, {640*3072}")
    late(fsched, 0, 24, lambda k,t_: seg384(SB, vF, "s52", 24576, R3+1024*k, t_))
    a(f"s_mul_i32 s52, {sX}, 245760\ns_lshl_b32 s53, {sV}, 7\ns_add_u32 s52, s52, s53")
    a(f"s_mov_b32 s48, s22\ns_mov_b32 s49, s23\ns_mov_b32 s50, {1536*1280}\ns_mov_b32 m0, {R1}")
    wait_pub("RDA",4)
    late(fsched, 24, 36, lambda k,t_: seg384(SA, vW, "s54", 98304, R1+1024*k, t_))
    a(f"s_mov_b32 m0, {R2}")
    wait_pub("RDB",4)
    late(fsched, 60, 24, seg_w2)
    a("s_branch L_drain\nL_noff:")
    a(f"s_mul_i32 s52, {sG}, 245760\ns_lshl_b32 s53, {sJ}, 8\ns_add_u32 s52, s52, s53")
    a(f"s_mov_b32 s48, s14\ns_mov_b32 s49, s15\ns_mov_b32 s50, {6144*1280}")
    late(sched, 0, 36, lambda k,t_: seg384(SA, vW, "s54", 98304, R3+1024*k, t_))
    stamp(5)
    a(f"s_mov_b32 m0, {R1}\ns_cmp_lt_u32 {sJ}, 5\ns_cbranch_scc0 L_drain")
    wait_pub("RDA",4)
    late(sched, 36, 48, seg_wo)
    a("L_drain:")
    stamp(6)
    drain(6)
    a(f"v_mov_b32 {vC}, s61\ns_waitcnt vmcnt(0)\nds_write_b32 {vL4}, {vC} offset:{F['CNT']}")
    stamp(7)
    if P.get("wb"):
        n_,fl=P["wb"]
        a(f"s_cmp_lt_u32 s2, {n_}\ns_cbranch_scc0 L_fin")
        wait_flag(*fl)
        a("buffer_wbl2 sc1\ns_waitcnt vmcnt(0)")
        stamp(10)
    a("s_branch L_fin")

    a("L_others:")
    a(f"v_and_b32 {vN}, 15, {vLane}\nv_lshrrev_b32 {vGl}, 4, {vLane}\nv_mov_b32 {vOne}, 1\ns_mov_b32 {sBud}, {P['budget']}")
    a(f"s_mov_b32 s30, {WSSIZE}\ns_mov_b32 s31, 0x20000\ns_waitcnt lgkmcnt(0)")
    if P["wsb"]: a(f"s_add_u32 s28, s28, {P['wsb']}\ns_addc_u32 s29, s29, 0")
    a(f"s_load_dwordx2 s[32:33], s[28:29], {EPOCH}")
    a(f"s_cmp_eq_u32 {sW}, 5\ns_cbranch_scc1 L_w5\ns_cmp_eq_u32 {sW}, 6\ns_cbranch_scc1 L_w6\ns_cmp_eq_u32 {sW}, 7\ns_cbranch_scc1 L_w7")

    def trcore(dst, t):
        a(f"v_bfe_u32 {t}, {vLane}, 2, 3\nv_lshlrev_b32 {dst}, 7, {t}\nv_lshrrev_b32 {t}, 1, {t}\nv_lshl_add_u32 {dst}, {t}, 5, {dst}\nv_and_b32 {t}, 3, {vLane}\nv_lshl_add_u32 {dst}, {t}, 3, {dst}")
    MASKT=[f"s[{56+2*t}:{57+2*t}]" for t in range(4)]
    def masks():
        for t in range(4): a(f"s_mov_b32 s{56+2*t}, {0x00010001<<t}\ns_mov_b32 s{57+2*t}, {0x00010001<<t}")
    def mstore(txt):
        wt="\n".join(x+" sc1" if x.startswith("buffer_store") else x for x in txt.split("\n"))
        if not P["local"]:
            a(wt); return
        r=a.lab("RM"); bk=a.lab("BK")
        a(f"s_cbranch_scc0 {r}\n{txt}\n{bk}:")
        far.append(f"{r}:\ns_nop 7\n{wt}\ns_nop 1\ns_branch {bk}")
    def publish4(acc, vS, vAddr, soff, imm=0, mode=False):
        for t in range(4):
            a(f"s_mov_b64 exec, {MASKT[t]}\nv_cvt_pk_bf16_f32 v{vS}, v{acc+4*t}, v{acc+4*t+1}\nv_cvt_pk_bf16_f32 v{vS+1}, v{acc+4*t+2}, v{acc+4*t+3}")
        a(f"s_mov_b32 exec_lo, 0x000f000f\ns_mov_b32 exec_hi, 0x000f000f")
        txt=f"buffer_store_dwordx4 {vr(vS,4)}, {vAddr}, {WS}, {soff} offen offset:{imm}"
        if mode=="plain": a(txt)
        elif mode: mstore(txt)
        else: a(txt+" sc1")
        a("s_mov_b64 exec, -1")

    a('; ======== W0..W3 main')
    FR=64; QR=16; AC=160; vS=176
    vT1=[f"v{180+t}" for t in range(4)]; vVec="v184"; vPub="v185"; vU=["v186","v187"]; vA=[f"v{188+t}" for t in range(4)]
    vLin="v192"; vB=["v193","v194","v199"]; vPl="v195"; vMl="v196"; vBp="v197"; vC4="v198"; vT6=["v200","v201"]; vCore="v202"; vSt="v203"; vXa="v204"; vM0="v205"; vQa="v208"
    sHH="s52"; sKH="s53"
    a(f"s_cmp_eq_u32 {sW}, 0\ns_cbranch_scc0 L_nz")
    a(f"v_lshlrev_b32 v6, 4, {vLane}\nv_add_u32 v6, {FLAGS}, v6\nv_mov_b32 v8, 0\nv_mov_b32 v9, 0\nv_mov_b32 v10, 0\nv_mov_b32 v11, 0")
    extra = P["gC"] or P["lateG"]==3 or ("STR",1) in P["dtrig"] or any(x[1]==S_ for x in P["sched"])
    for i in range(len(FN)//4 if extra else 6): a(f"ds_write_b128 v6, v[8:11] offset:{1024*i}")
    a("L_nz:")
    if P['prio'][0]: a(f"s_setprio {P['prio'][0]}")
    a(f"s_and_b32 {sHH}, {sW}, 1\ns_lshr_b32 {sKH}, {sW}, 1")
    masks()
    trcore(vCore, vTmp)
    a(f"v_lshrrev_b32 v6, 5, {vLane}")
    a(f"s_lshl_b32 s54, {sW}, 10\ns_add_u32 s54, s54, {R2}\nv_mul_u32_u24 v7, 3072, v6\nv_add3_u32 {vT1[0]}, {vCore}, v7, s54")
    for t in range(1,4): a(f"v_xor_b32 {vT1[t]}, {32*t}, {vT1[0]}")
    a(f"s_lshl_b32 s54, {sKH}, 10\ns_lshl_b32 s55, {sHH}, 6\nv_lshlrev_b32 v7, 11, v6\nv_add3_u32 {vT6[0]}, {vCore}, v7, s54\nv_xor_b32 {vT6[0]}, s55, {vT6[0]}\nv_xor_b32 {vT6[1]}, 32, {vT6[0]}")
    a(f"v_lshlrev_b32 {vVec}, 4, {vGl}\nv_add_u32 {vVec}, {VEC1A}, {vVec}")
    a(f"v_lshlrev_b32 {vPub}, 6, {vGl}\nv_lshl_add_u32 {vPub}, {vN}, 4, {vPub}")
    a(f"v_lshlrev_b32 {vLin}, 4, {vLane}")
    a(f"v_lshrrev_b32 v7, 1, {vN}\nv_lshlrev_b32 {vQa}, 6, v7\nv_and_b32 v7, 1, {vN}\nv_lshl_add_u32 {vQa}, v7, 4, {vQa}\nv_and_b32 v7, 1, {vGl}\nv_lshl_add_u32 {vQa}, v7, 5, {vQa}\nv_lshl_add_u32 {vQa}, v6, 10, {vQa}")
    a(f"s_mul_i32 s54, {sW}, 12288\ns_add_u32 s54, s54, {R3}\nv_lshrrev_b32 v7, 2, {vN}\nv_mul_u32_u24 v7, 3072, v7\nv_and_b32 v8, 3, {vN}\nv_lshl_add_u32 v7, v8, 7, v7")
    a(f"v_lshrrev_b32 v8, 1, {vN}\nv_xor_b32 v8, v8, {vGl}\nv_lshlrev_b32 v8, 4, v8\nv_add3_u32 {vU[0]}, v7, v8, s54\nv_xor_b32 {vU[1]}, 64, {vU[0]}")
    a(f"s_mul_i32 s54, {sKH}, 768\nv_mul_u32_u24 v7, 1536, {vN}\nv_lshlrev_b32 v8, 1, {vGl}\nv_xor_b32 v8, {vN}, v8\nv_lshlrev_b32 v8, 4, v8\nv_add3_u32 {vA[0]}, v7, v8, s54")
    for t in range(1,4): a(f"v_xor_b32 {vA[t]}, {128*(t>>1)+16*(t&1)}, {vA[0]}")
    a(f"v_bfe_u32 v7, {vN}, 3, 1\nv_mul_u32_u24 v7, 3200, v7\nv_bfe_u32 v8, {vN}, 2, 1\nv_mul_u32_u24 v8, 192, v8\nv_mul_u32_u24 v9, 768, {vGl}\nv_add3_u32 v7, v7, v8, v9")
    a(f"v_and_b32 v8, 3, {vN}\nv_lshl_add_u32 v7, v8, 3, v7\nv_add_u32 v7, {R2}, v7\nv_and_b32 v9, 1, {vGl}\nv_lshlrev_b32 v9, 5, v9")
    a(f"s_lshl_b32 s54, {sKH}, 6\nv_add3_u32 {vB[0]}, v7, v9, s54\nv_xor_b32 v10, 32, v9\nv_add3_u32 {vB[1]}, v7, v10, s54")
    a(f"s_lshl_b32 s54, {sKH}, 5\nv_xor_b32 v10, s54, v9\nv_add_u32 v10, 128, v10\nv_add_u32 {vB[2]}, v7, v10")
    a(f"v_mul_u32_u24 v7, {2*RS}, {vGl}\nv_lshl_add_u32 {vPl}, {vN}, 4, v7\nv_lshlrev_b32 {vM0}, 2, {vN}\nv_add_u32 {vMl}, {vM0}, v7")
    a(f"v_lshrrev_b32 v7, 2, {vLane}\nv_lshl_add_u32 {vBp}, v8, 4, v7\nv_lshlrev_b32 {vBp}, 2, {vBp}")
    a(f"v_mul_u32_u24 v7, {8*RS}, v7\nv_lshl_add_u32 {vC4}, v8, 4, v7")
    a(f"s_lshl_b32 s54, {sHH}, 11\ns_add_u32 s54, s54, {XB}\nv_add_u32 {vXa}, s54, {vLin}")
    if P.get("spf3"): a("s_mov_b64 s[26:27], s[14:15]\ns_mov_b64 s[24:25], s[22:23]")
    oQ,oQA,oQL,oP,oM,oPL,oML,oCL,oE,oUV,tUV,oF,t6 = "s4","s5",("s6","s7","s8"),"s9","s10",("s11","s12"),("s13","s14"),"s15","s16","s17","s18","s54","s19"
    a(f"s_mul_i32 s20, {sB}, {RS}\ns_add_u32 s20, s20, {REC}\ns_lshl_b32 s55, {sW}, 8\ns_add_u32 s21, s20, s55\ns_add_u32 {oQ}, s21, {RQ}\ns_add_u32 {oE}, s21, {RE}")
    a(f"s_lshl_b32 s22, {sHH}, 10\ns_add_u32 s22, s22, {RP}\ns_lshl_b32 s23, {sHH}, 7\ns_add_u32 s23, s23, {RM}\ns_add_u32 {oP}, s20, s22\ns_add_u32 {oM}, s20, s23")
    a(f"s_mul_i32 s20, {sG}, {8*RS}\ns_add_u32 s20, s20, {REC}\ns_add_u32 {oPL[0]}, s20, s22\ns_add_u32 {oPL[1]}, {oPL[0]}, {RS}\ns_add_u32 {oML[0]}, s20, s23\ns_add_u32 {oML[1]}, {oML[0]}, {RS}")
    a(f"s_lshr_b32 s20, {sG}, 4\ns_mul_i32 s20, s20, 24\ns_mul_i32 s55, {sJ}, 3\ns_add_u32 s55, s55, {sW}\ns_add_u32 s20, s20, s55\ns_lshl_b32 s20, s20, 10")
    a(f"s_bfe_u32 s55, {sG}, 0x30001\ns_and_b32 s21, {sG}, 1\ns_lshl3_add_u32 s55, s21, s55\ns_lshl_b32 s55, s55, 6\ns_add_u32 s20, s20, s55\ns_add_u32 {oQA}, s20, {QA}")
    a(f"s_lshl1_add_u32 s20, {sHH}, {sKH}\ns_mul_i32 s20, s20, 12288\ns_add_u32 {oQL[0]}, s20, {QA}\ns_add_u32 {oQL[1]}, {oQL[0]}, 4096\ns_add_u32 {oQL[2]}, {oQL[0]}, 8192")
    a(f"s_lshl_b32 s20, {sHH}, 7\ns_add_u32 s20, s20, {sJ}\ns_mul_i32 s20, s20, {RS}\ns_lshl_b32 s55, {sKH}, 7\ns_add_u32 s20, s20, s55\ns_add_u32 s20, s20, {REC}")
    a(f"s_and_b32 s55, {sG}, 24\ns_bfe_u32 s21, {sG}, 0x20001\ns_or_b32 s55, s55, s21\ns_and_b32 s21, {sG}, 1\ns_lshl2_add_u32 s55, s21, s55\ns_lshl_b32 s55, s55, 8\ns_add_u32 {oCL}, s20, s55")
    a(f"s_mul_i32 {oF}, {sG}, 2560\ns_lshl_b32 s55, {sJ}, 9\ns_add_u32 {oF}, {oF}, s55\ns_lshl_b32 s55, {sW}, 7\ns_add_u32 {oF}, {oF}, s55\ns_add_u32 {oF}, {oF}, {OP}\ns_movk_i32 {t6}, {222+CB}")
    a(f"s_mov_b32 s48, 0x00800080\ns_mov_b32 s49, 0x437f0000\ns_lshl_b32 s55, {sHH}, 8\nv_add_u32 v6, s55, {vL4}")
    a(f"s_lshl_b32 s55, {sHH}, 9\ns_add_u32 s55, s55, {MLB}\nv_lshl_add_u32 {vSt}, {vLane}, 3, s55")
    if P["mshare"]: a(f"v_mov_b64 v[8:9], -1\nds_write_b64 {vSt}, v[8:9] offset:1024")
    tag_finish()
    CT=212
    a(f"s_getreg_b32 s55, hwreg(HW_REG_XCC_ID, 0, 4)\ns_xor_b32 s55, s55, s32\nv_mov_b32 v{vS+2}, s55\nv_mov_b32 v{vS+3}, s33")
    a(f"s_and_b32 s55, s32, 0xbfffbfff\nv_mov_b32 v{CT+3}, s55\nv_mov_b32 v{CT+7}, s55")
    oH,oHW="s17","s18"
    if P["hintC"]: a(f"s_lshl_b32 {oH}, {sG}, 11\ns_lshl_b32 s55, {sHH}, 5\ns_add_u32 {oH}, {oH}, s55\ns_add_u32 {oH}, {oH}, {HT+1024}\ns_lshl2_add_u32 {oHW}, {sJ}, {oH}\nv_lshlrev_b32 v209, 6, {vLane}\ns_mov_b32 s44, s32\ns_mov_b32 s45, s32")
    a("s_barrier")
    a(f"s_cmp_eq_u32 {sW}, 3\ns_cbranch_scc0 L_s1\ns_cmp_eq_u32 s40, 0\ns_cbranch_scc0 L_s3")
    a(f"s_mul_i32 s55, s2, {128//CS}\ns_add_u32 s55, s55, {FLG}\ns_waitcnt vmcnt(0)\nv_mov_b32 v24, s32\nv_mov_b32 v25, s33\ns_mov_b64 exec, 15")
    a(f"buffer_store_dwordx4 v[24:27], {vLin}, {WS}, s55 offen sc1\ns_mov_b64 exec, -1\ns_waitcnt vmcnt(0)\ns_branch L_s3\nL_s1:")
    a('; ---- S1: q partial')
    if P.get("pretQA") is not None: a(f"s_mov_b64 exec, 1\nbuffer_load_dword v206, {vLin}, {WS}, {oQA} offen {P['pretQA']}\ns_mov_b64 exec, -1")
    wait_flag("V1A",1)
    for s in range(2): a(f"ds_read_b128 {vr(QR+4*s,4)}, {vVec} offset:{64*s}")
    a(f"ds_read_b64 {vr(QR+8,2)}, {vVec} offset:128\nv_mov_b64 {vr(QR+10,2)}, 0")
    for t in range(4): a(f"v_mov_b64 {vr(FR+12*t+10,2)}, 0")
    if P["s1pipe"]:
        wait_flag("CNT",24)
        for t in range(4):
            for h in range(4): a(f"ds_read_b64_tr_b16 {vr(FR+12*t+2*h,2)}, {vT1[t]} offset:{2*h*3072}")
        for t in range(4):
            a(f"s_waitcnt lgkmcnt({12-4*t})")
            for s in range(2): a(f"v_mfma_f32_16x16x32_bf16 {vr(AC+4*t,4)}, {vr(FR+12*t+4*s,4)}, {vr(QR+4*s,4)}, {vr(AC+4*t,4) if s else 0}")
        l=a.lab("W1")
        spin(l); a(f"ds_read_b32 {vTmp}, {vL4} offset:{F['CNT']}")
        for t in range(4): a(f"ds_read_b64_tr_b16 {vr(FR+12*t+8,2)}, {vT1[t]} offset:{8*3072}")
        a(f"s_waitcnt lgkmcnt(0)\nv_cmp_gt_u32 vcc, {30+CB}, {vTmp}\ns_cbranch_vccnz {l}")
        stamp(1)
        for t in range(4): a(f"v_mfma_f32_16x16x32_bf16 {vr(AC+4*t,4)}, {vr(FR+12*t+8,4)}, {vr(QR+8,4)}, {vr(AC+4*t,4)}")
    else:
        wait_flag("CNT",30)
        stamp(1)
        for t in range(4):
            for h in range(5): a(f"ds_read_b64_tr_b16 {vr(FR+12*t+2*h,2)}, {vT1[t]} offset:{2*h*3072}")
        for t in range(4):
            a(f"s_waitcnt lgkmcnt({15-5*t})")
            for s in range(3): a(f"v_mfma_f32_16x16x32_bf16 {vr(AC+4*t,4)}, {vr(FR+12*t+4*s,4)}, {vr(QR+4*s,4)}, {vr(AC+4*t,4) if s else 0}")
    publish4(AC, vS, vPub, oQ, mode=False if P["gA"] else "plain")
    if P["ackA"]: a("s_waitcnt vmcnt(0)")
    sig("PUBA")
    stamp(2)
    a(f"s_mov_b32 s46, {R3-R2}\ns_movk_i32 s47, {198+CB}")
    if FF: a(f"s_cmp_lt_u32 {sV}, 10\ns_cselect_b32 s46, {R1-R2}, s46\ns_cselect_b32 s47, {222+CB}, s47")
    for t in range(4): a(f"v_add_u32 {vT1[t]}, s46, {vT1[t]}")
    a(f"v_mov_b32 v{vS+2}, s32")
    wait_flag("CLR",1)
    wait_flag("CNT",66)
    for s in range(6):
        for t in range(2): a(f"ds_read_b128 {vr(FR+8*s+4*t,4)}, {vU[s&1]} offset:{1024*(s>>1)+512*t}")
    if P["sched"][0][1]!=Q_: sig("RDUK")
    def vec2_mfma(flag, thr, vec, wfirst, fr):
        l=a.lab("V2")
        spin(l); a(f"ds_read_b32 {vTmp}, {vL4} offset:{F[flag]}")
        for s in range(6): a(f"ds_read_b128 {vr(QR+4*s,4)}, {vVec} offset:{vec-VEC1A+64*s}")
        a(f"s_waitcnt lgkmcnt(6)\nv_cmp_gt_u32 vcc, {thr}, {vTmp}\ns_cbranch_vccnz {l}")
        for s in range(6):
            a(f"s_waitcnt lgkmcnt({5-s})")
            for t in range(2):
                w_,q_=vr(fr+8*s+4*t,4),vr(QR+4*s,4)
                A_,B_=(w_,q_) if wfirst else (q_,w_)
                a(f"v_mfma_f32_16x16x32_bf16 {vr(AC+4*t,4)}, {A_}, {B_}, {vr(AC+4*t,4) if s else 0}")
    vec2_mfma("V2A",1,VEC2A,True,FR)
    a(f"v_readfirstlane_b32 s50, {vTmp}\ns_lshr_b32 s50, s50, 1")
    stamp(3)
    for k in range(4): a(f"v_cvt_pk_bf16_f32 v{AC+8+k}, v{AC+2*k}, v{AC+2*k+1}\nds_bpermute_b32 v{AC+12+k}, {vBp}, v{AC+8+k}")
    if P.get("batom"):
        a(f"s_mov_b64 exec, 15\ns_waitcnt lgkmcnt(0)\nbuffer_atomic_{P['batom']}_x2 {vr(AC+12,2)}, {vLin}, {WS}, {oQA} offen sc1\nbuffer_atomic_{P['batom']}_x2 {vr(AC+14,2)}, {vLin}, {WS}, {oQA} offen offset:8 sc1\ns_mov_b64 exec, -1\ns_waitcnt vmcnt(0)")
    if P.get("bexp"):
        m_,sh=P["bexp"]
        a(f"s_sub_u32 {oQA}, {oQA}, {QA}\ns_mul_i32 {oQA}, {oQA}, {sh}\ns_add_u32 {oQA}, {oQA}, {QA if sh<=2 else REC}")
    if not P.get("batom"): a(f"s_mov_b64 exec, {P['bexp'][0] if P.get('bexp') else 15}\ns_waitcnt lgkmcnt(0)\nbuffer_store_dwordx4 {vr(AC+12,4)}, {vLin}, {WS}, {oQA} offen {P.get('bfl','sc1')}\ns_mov_b64 exec, -1\ns_waitcnt vmcnt(0)")
    sig("PUBB")
    a("L_s3:")
    def areads(kt):
        for s in range(12): a(f"ds_read_b128 {vr(FR+48*kt+4*s,4)}, {vA[s&3]} offset:{24576*kt+256*(s>>2)}")
    def qloads():
        if P.get("skipq"): return
        for s in range(12): a(f"buffer_load_dwordx4 {vr(QR+4*s,4)}, {vQa}, {WS}, {oQL[s>>2]} offen offset:{2048*((s>>1)&1)+512*(s&1)} sc1")
    if P["thrQ"]>=114:
        wait_flag("CNT",114)
        areads(0)
    wait_flag("PUBB",3)
    if P["thrQ"]!=114: wait_flag("CNT",P["thrQ"])
    stamp(4); qloads(); sig("QISS")
    if P["thrQ"]<114:
        wait_flag("CNT",114)
        areads(0)
    if P["thrQ"]<162: wait_flag("CNT",162)
    areads(1)
    sig("RDA")
    a("s_waitcnt lgkmcnt(0)\ns_branch L_s3m")
    l,ok=loop_head("S3")
    qloads()
    a("L_s3m:")
    BQ=lambda f: FR+4*f
    def breads():
        for f in range(24):
            s4,ct=divmod(f,3)
            for e2 in range(2): a(f"ds_read_b64_tr_b16 {vr(BQ(f)+2*e2,2)}, {vB[ct]} offset:{3200*(8*e2+2*(s4&3))+384*(s4>>2)}")
        sig("RDB")
    TQ=[8,12]
    def fix(sg):
        L0=QR+8*sg; L1=L0+4
        o=[f"s_waitcnt vmcnt({10-2*sg})"]
        o+=[f"v_cndmask_b32_dpp v{TQ[sg&1]+k}, v{L1+k}, v{L0+k}, vcc quad_perm:[0,0,2,2] {DP}" for k in range(4)]
        o+=["s_not_b64 vcc, vcc"]
        o+=[f"v_cndmask_b32_dpp v{L1+k}, v{L0+k}, v{L1+k}, vcc quad_perm:[1,1,3,3] {DP}" for k in range(4)]
        o+=["s_not_b64 vcc, vcc"]
        return o
    a("s_mov_b32 vcc_lo, 0x55555555\ns_mov_b32 vcc_hi, 0x55555555")
    a("\n".join(fix(0)))
    for sg in range(6):
        nx=fix(sg+1) if sg<5 else []
        cut=[3,6,8,11]; st_=0
        for i in range(4):
            pi,kt=i>>1,i&1
            qreg=TQ[sg&1] if pi==0 else QR+8*sg+4
            a(f"v_mfma_f32_16x16x32_bf16 {vr(AC+4*kt,4)}, {vr(FR+48*kt+4*(2*sg+pi),4)}, {vr(qreg,4)}, {vr(AC+4*kt,4) if 2*sg+pi else 0}")
            if nx: a("\n".join(nx[st_:cut[i]])); st_=cut[i]
    a(f"s_cmp_eq_u32 {sKH}, 0\nv_cmp_u_f32 vcc, v{AC}, v{AC+4}\ns_cbranch_vccnz {l}\n{ok}:")
    if any(x[1]==("S3K",4) for x in P["sched"]): sig("S3K")
    stamp(6)
    far[-1]=far[-1].replace("s_nop 7",f"s_cmp_eq_u32 {sKH}, 0\ns_nop 7")
    a(f"s_cbranch_scc1 {'L_soft' if P['blate'] else 'L_nox'}")
    a(f"ds_write_b128 {vXa}, {vr(AC,4)}\nds_write_b128 {vXa}, {vr(AC+4,4)} offset:1024\nds_add_u32 v6, {vOne} offset:{F['X0']}")
    if P["blate"]: a("s_branch L_s4\nL_soft:")
    else:
        a("L_nox:")
        breads()
        a("s_cbranch_scc0 L_s4\nL_soft:")
    l=a.lab("XW")
    spin(l); a(f"ds_read_b32 {vTmp}, v6 offset:{F['X0']}\nds_read_b128 {vr(AC+8,4)}, {vXa}\nds_read_b128 {vr(AC+12,4)}, {vXa} offset:1024")
    a(f"s_waitcnt lgkmcnt(0)\nv_cmp_gt_u32 vcc, 1, {vTmp}\ns_cbranch_vccnz {l}")
    for k in range(4): a(f"v_pk_add_f32 {vr(AC+2*k,2)}, {vr(AC+2*k,2)}, {vr(AC+8+2*k,2)}")
    a(f"v_max3_f32 v8, v{AC}, v{AC+1}, v{AC+2}\nv_max3_f32 v9, v{AC+3}, v{AC+4}, v{AC+5}\nv_max3_f32 v8, v8, v{AC+6}, v{AC+7}\nv_max_f32 v8, v8, v9")
    xreduce("v_max_f32","v8","v9")
    a("v_ceil_f32 v8, v8\ns_cmp_eq_u32 s50, 0")
    for k in range(4): a(f"v_pk_add_f32 {vr(AC+2*k,2)}, {vr(AC+2*k,2)}, v[8:9] op_sel_hi:[1,0] neg_lo:[0,1] neg_hi:[0,1]")
    for k in range(8): a(f"v_exp_f32 v{AC+k}, v{AC+k}")
    for k in range(4): a(f"v_cvt_pk_bf16_f32 v{AC+8+k}, v{AC+2*k}, v{AC+2*k+1}")
    (lambda t: a(t.replace("offen","offen sc1")) if P["gC"] else mstore(t))(f"buffer_store_dwordx4 {vr(AC+8,4)}, {vLin}, {WS}, {oP} offen\ns_mov_b64 exec, 0xffff\nbuffer_store_dword v8, {vM0}, {WS}, {oM} offen")
    if P["hintC"] and not P["ackC"] and not P.get("verC"): a(f"buffer_store_dword v{vS+2}, v209, {WS}, {oHW} offen")
    a("s_mov_b64 exec, -1")
    a(f"v_pk_add_f32 {vr(AC,2)}, {vr(AC,2)}, {vr(AC+2,2)}\nv_pk_add_f32 {vr(AC+4,2)}, {vr(AC+4,2)}, {vr(AC+6,2)}\nv_pk_add_f32 {vr(AC,2)}, {vr(AC,2)}, {vr(AC+4,2)}\nv_add_f32 v9, v{AC}, v{AC+1}")
    a(f"ds_write_b64 {vSt}, v[8:9]")
    sig("PUBC")
    if P["hintC"] and P.get("verC"):
        vk=a.lab("VK")
        for tr_ in range(2):
            a(f"s_add_u32 s96, s28, {oP}\ns_addc_u32 s97, s29, 0" if tr_==0 else "")
            for k in range(8): a(f"s_load_dword s{20+k}, s[96:97], {128*k+64*(1-tr_)}")
            a("s_waitcnt lgkmcnt(0)\ns_or_b64 s[20:21], s[20:21], s[22:23]\ns_or_b64 s[24:25], s[24:25], s[26:27]\ns_or_b64 s[20:21], s[20:21], s[24:25]\ns_or_b32 s20, s20, s21\ns_bitcmp0_b32 s20, 31")
            a(f"s_cbranch_scc1 {vk}")
        a(f"s_waitcnt vmcnt(0)\n{vk}:\ns_mov_b64 exec, 0xffff\nbuffer_store_dword v{vS+2}, v209, {WS}, {oHW} offen\ns_mov_b64 exec, -1")
    elif P["hintC"] and P["ackC"]: a(f"s_mov_b64 exec, 0xffff\ns_waitcnt vmcnt(0)\nbuffer_store_dword v{vS+2}, v209, {WS}, {oHW} offen\ns_mov_b64 exec, -1")
    a("L_s4:")
    stamp(7)
    if P["blate"]: breads()
    wait_flag("PUBC",2)
    stamp(8)
    a("v_mov_b32 v13, 1")
    if P["mshare"]: a(f"s_branch L_s4l\nL_s4f:\nds_read_b64 v[8:9], {vSt} offset:1024\ns_waitcnt lgkmcnt(0)\nv_cmp_u_f32 vcc, v8, v9\nv_max_f32 v10, v8, v9\ns_cbranch_vccz L_s4p\nL_s4l:")
    l,ok=loop_head("S4",("S4M",))
    a(f"buffer_load_dword v8, {vMl}, {WS}, {oML[0]} offen sc1\nbuffer_load_dword v9, {vMl}, {WS}, {oML[1]} offen sc1")
    a(f"s_waitcnt vmcnt(0)\nv_cmp_u_f32 vcc, v8, v9\nv_max_f32 v10, v8, v9\ns_cbranch_vccnz {'L_s4f' if P['mshare'] else l}")
    if P["mshare"]: a(f"ds_write_b64 {vSt}, v[8:9] offset:1024")
    a("L_s4p:")
    def ploads(lo,hi):
        for s in range(lo,hi): a(f"buffer_load_dwordx4 {vr(QR+4*s,4)}, {vPl}, {WS}, {oPL[s>>2]} offen offset:{256*(s&3)} sc1")
        if hi==8 and lo<8:
            sig("S4M","v13"); a("v_mov_b32 v13, 0"); stamp(5)
            if P["lateG"]==3: a(f"ds_read_b32 v14, {vL4} offset:{F['GOK']}")
    n1_,n2_=P["psplit"]
    ploads(0,n1_)
    xreduce("v_max_f32","v10","v11")
    ploads(n1_,n1_+n2_)
    a("v_sub_f32 v8, v10, v8\nv_sub_f32 v9, v10, v9\nv_min_f32 v8, s49, v8\nv_min_f32 v9, s49, v9\nv_cvt_u32_f32 v8, v8\nv_cvt_u32_f32 v9, v9\nv_mul_u32_u24 v8, s48, v8\nv_mul_u32_u24 v9, s48, v9")
    ploads(n1_+n2_,8)
    a(f"s_waitcnt vmcnt(7)")
    for k in range(4): a(f"v_pk_sub_u16 v{QR+k}, v{QR+k}, v8 clamp")
    for s in range(8):
        mf=lambda ct: a(f"v_mfma_f32_16x16x32_bf16 {vr(AC+4*ct,4)}, {vr(BQ(3*s+ct),4)}, {vr(QR+4*s,4)}, {vr(AC+4*ct,4) if s else 0}")
        q=QR+4*s
        if s==0: a(f"v_or3_b32 v12, v{q}, v{q+1}, v{q+2}\nv_or_b32 v12, v12, v{q+3}")
        mf(0)
        if s<7:
            a(f"s_waitcnt vmcnt({6-s})")
            a(f"v_pk_sub_u16 v{q+4}, v{q+4}, v{8+((s+1)>>2)} clamp\nv_pk_sub_u16 v{q+5}, v{q+5}, v{8+((s+1)>>2)} clamp")
        mf(1)
        if s<7: a(f"v_pk_sub_u16 v{q+6}, v{q+6}, v{8+((s+1)>>2)} clamp\nv_pk_sub_u16 v{q+7}, v{q+7}, v{8+((s+1)>>2)} clamp")
        mf(2)
        if s<7: a(f"v_or3_b32 v12, v12, v{q+4}, v{q+5}\nv_or3_b32 v12, v12, v{q+6}, v{q+7}")
    a(f"v_and_b32 v12, 0x80008000, v12\nv_cmp_ne_u32 vcc, 0, v12\ns_cbranch_vccnz {l}\n{ok}:")
    if P["lateG"]==3:
        gw=a.lab("GW"); gb=a.lab("GB")
        a(f"s_waitcnt lgkmcnt(0)\nv_cmp_ne_u32 vcc, 1, v14\ns_cbranch_vccnz {gw}\n{gb}:")
        far.append(f"{gw}:\nds_read_b32 v14, {vL4} offset:{F['GOK']}\ns_waitcnt lgkmcnt(0)\nv_cmp_ne_u32 vcc, 1, v14\ns_cbranch_vccnz {gw}\ns_nop 4\ns_branch {gb}")
    sig("S4K")
    stamp(9)
    for k in range(6): a(f"v_cvt_pk_bf16_f32 v{QR+k}, v{AC+2*k}, v{AC+2*k+1}\nds_bpermute_b32 v{CT+k+k//3}, {vBp}, v{QR+k}")
    if P.get("dhalf"): a(f"s_cmp_eq_u32 {sKH}, 0\ns_cbranch_scc0 L_nod")
    a(f"s_waitcnt lgkmcnt(3)\nbuffer_store_dwordx4 {vr(CT,4)}, {vC4}, {WS}, {oCL} offen sc1")
    a(f"s_waitcnt lgkmcnt(0)\nbuffer_store_dwordx4 {vr(CT+4,4)}, {vC4}, {WS}, {oCL} offen offset:64 sc1")
    if P.get("dhalf"): a("L_nod:")
    sig("DST")
    stamp(10)
    a(f"s_waitcnt vmcnt({P.get('dack',0)})")
    sig("PUBD")
    F6=FR+48
    def s6reads(half):
        for s in range(3*half,3*half+3):
            for t in range(2):
                for e2 in range(2): a(f"ds_read_b64_tr_b16 {vr(F6+8*s+4*t+2*e2,2)}, {vT6[t]} offset:{(4*s+2*e2)*2048}")
    a(f"s_cmp_eq_u32 {sW}, 3\ns_cbranch_scc1 L_s6")
    wait_flag("CNT","s47")
    for t in range(4):
        for h in range(6): a(f"ds_read_b64_tr_b16 {vr(FR+12*t+2*h,2)}, {vT1[t]} offset:{2*h*3072}")
    l=a.lab("V1")
    spin(l); a(f"ds_read_b32 {vTmp}, {vL4} offset:{F['V1B']}")
    for s in range(3): a(f"ds_read_b128 {vr(QR+4*s,4)}, {vVec} offset:{VEC1B-VEC1A+64*s}")
    a(f"s_waitcnt lgkmcnt(0)\nv_cmp_gt_u32 vcc, 1, {vTmp}\ns_cbranch_vccnz {l}")
    stamp(11)
    for t in range(4):
        for s in range(3):
            a(f"v_mfma_f32_16x16x32_bf16 {vr(AC+4*t,4)}, {vr(FR+12*t+4*s,4)}, {vr(QR+4*s,4)}, {vr(AC+4*t,4) if s else 0}")
    a("s_cmp_eq_u32 s50, 0")
    publish4(AC, vS, vPub, oE, mode=True)
    sig("PUBE")
    a('; ---- S6: output projection (w_o) or second FFN GEMV (w2)')
    a("L_s6:")
    stamp(12)
    a(f"s_cmp_lt_u32 {sJ}, 5\ns_cbranch_scc0 L_fin")
    a("L_s6go:")
    a(f"v_lshlrev_b32 v6, 2, {vLane}\ns_mov_b32 s56, 0xffff0000\ns_mov_b32 s57, 0")
    wait_flag("CNT",t6)
    s6reads(0)
    wait_flag("CNT",246)
    s6reads(1)
    stamp(13)
    vec2_mfma("V2B",1,VEC2B,False,F6)
    a(f"s_mov_b32 exec_hi, 0\nv_cndmask_b32 v7, v{AC}, v{AC+4}, s[56:57]\nbuffer_store_dword v7, v6, {WS}, {oF} offen sc1")
    stamp(14)
    a("s_mov_b64 exec, -1\ns_waitcnt vmcnt(0)")
    sig("PUBF")
    a("s_branch L_fin")
    if P["incC"]:
        i_=a.L.index("L_soft:"); a.L[i_:i_]=incstub.split("\n")

    if P.get("spf3"):
        a("L_w3p:")
        n0_=len(a.L)
        sprefetch(*P["spf3"])
        a.L[n0_:]=[x.replace("s96, s96, s14","s96, s96, s26").replace("s97, s15, 0","s97, s27, 0").replace("s96, s96, s22","s96, s96, s24").replace("s97, s23, 0","s97, s25, 0") for x in a.L[n0_:]]
        stamp(1)
        a("s_branch L_s3")
    GA=16; GD=32; GX=72
    def gather_setup(vOff, stride):
        a(f"v_mul_u32_u24 {vOff}, {stride}, {vGl}\nv_lshl_add_u32 {vOff}, {vN}, 4, {vOff}")
        a(f"v_and_b32 v6, 1, {vN}\nv_lshlrev_b32 v6, 4, v6\nv_mov_b32 v7, 0x3f80\nv_lshlrev_b32 v6, v6, v7\nv_lshrrev_b32 v7, 1, {vN}")
        for k in range(6): a(f"v_cmp_eq_u32 vcc, {k}, v7\nv_cndmask_b32 v{GA+k}, 0, v6, vcc")
    def gather(nq, vOff, soffs, name, xcc=False, tag="s[32:33]"):
        if xcc: a(f"s_andn2_b32 {sBud}, {sBud}, 15")
        l,ok=loop_head(name, ("GISS",) if xcc=="q" and P["holdG"] else ())
        if nq==3:
            for u in range(3): a(f"v_mov_b32 v{GD+26+4*u}, s58")
        for q in range(nq):
            if q==2: a("s_mov_b32 exec_hi, 0")
            for u in range(3):
                a(f"buffer_load_dwordx4 {vr(GD+4*(3*q+u),4)}, {vOff}, {WS}, {soffs[q]} offen offset:{256*u} sc1")
        if nq==3: a("s_mov_b64 exec, -1")
        if xcc=="q" and P["holdG"]: sig("GISS")
        n=3*nq
        for k in range(n):
            a(f"s_waitcnt vmcnt({n-1-k})\nv_mfma_f32_16x16x16_bf16 {vr(GX,4)}, {vr(GA+2*(k%3),2)}, {vr(GD+4*k,2)}, {vr(GX,4) if k else 0}")
        if not xcc:
            for k in range(n): a(f"v_cmpx_eq_u64 vcc, s[32:33], {vr(GD+4*k+2,2)}")
            a(f"s_cmp_eq_u64 exec, -1\ns_mov_b64 exec, -1\ns_cbranch_scc0 {l}\n{ok}:")
        else:
            sl=a.lab("SL")
            for k in range(n): a(f"v_cmpx_eq_u64 vcc, s[58:59], {vr(GD+4*k+2,2)}")
            a(f"s_cmp_eq_u64 exec, -1\ns_mov_b64 exec, -1\ns_cbranch_scc1 {ok}")
            if xcc=="q" and P["thrG2"]: a(f"ds_read_b32 {vTmp}, {vL4} offset:{F['V2A']}\ns_waitcnt lgkmcnt(0)\nv_cmp_lt_u32 vcc, 0, {vTmp}\ns_cbranch_vccnz L_gadone\ns_cmp_eq_u32 {sW}, 6\ns_cbranch_scc1 {l}")
            for k in range(n): a(f"v_or_b32 v{GD+4*k+2}, 15, v{GD+4*k+2}\nv_cmpx_eq_u64 vcc, {tag}, {vr(GD+4*k+2,2)}")
            a(f"s_cmp_eq_u64 exec, -1\ns_mov_b64 exec, -1\ns_cselect_b32 s60, 0, {sBud}\ns_cselect_b32 s63, 1, 0\ns_and_b32 s60, s60, 15\ns_cbranch_scc1 {l}\ns_branch {sl}\n{ok}:")
            far.append(f"""{sl}:
s_mov_b32 exec_hi, 0xffff
buffer_load_dwordx4 v[76:79], v28, {WS}, s61 offen offset:{RQ-RP} sc1
s_waitcnt vmcnt(0)
buffer_store_dwordx4 v[76:79], v28, {WS}, s61 offen offset:{RQ-RP} sc1
s_mov_b64 exec, -1
s_waitcnt vmcnt(0)
s_cmp_eq_u32 s63, 0
s_cbranch_scc1 {l}
"""+(f"s_branch {ok}" if xcc!="q" else f"""v_mov_b32 v76, -1
v_mov_b32 v77, -1
v_mov_b32 v78, -1
v_mov_b32 v79, -1
v_mov_b32 v27, 3
buffer_store_dwordx4 v[76:79], v28, {WS}, s61 offen sc1
buffer_store_dwordx4 v[76:79], v28, {WS}, s61 offen offset:1024 sc1
s_mov_b64 exec, 0xffff
buffer_store_dwordx4 v[76:79], v28, {WS}, s61 offen offset:2048 sc1
s_mov_b64 exec, -1
s_waitcnt vmcnt(0)
s_branch {ok}"""))
    def vec2_write(vAddr, flag, v=vOne, op="ds_add_u32"):
        a(f"s_mov_b32 exec_hi, 0xffff\nv_cvt_pk_bf16_f32 v{GX}, v{GX}, v{GX+1}\nv_cvt_pk_bf16_f32 v{GX+1}, v{GX+2}, v{GX+3}\nds_write_b64 {vAddr}, {vr(GX,2)}\ns_mov_b64 exec, -1")
        a(f"{op} {vL4}, {v} offset:{F[flag]}")
    def vec2b_addr(dst):
        a(f"v_lshlrev_b32 {dst}, 7, {vGl}\nv_bfe_u32 v6, {vN}, 1, 1\nv_lshl_add_u32 {dst}, v6, 6, {dst}\nv_lshrrev_b32 v6, 2, {vN}\nv_lshl_add_u32 {dst}, v6, 4, {dst}\nv_and_b32 v6, 1, {vN}\nv_lshl_add_u32 {dst}, v6, 3, {dst}\nv_add_u32 {dst}, {VEC2B}, {dst}")

    a("L_w7:")
    a(f"s_movk_i32 s43, {P['thrG']+CB}")
    tag_finish()
    if P["tlb"]:
        a("; first and last line of every tile this workgroup streams later: warms the address translation while w_q is in flight")
        a(f"s_mul_i32 s52, {sJ}, {96*12288}\ns_mul_i32 s53, {sG}, 384\ns_add_u32 s52, s52, s53\nv_mul_u32_u24 v8, {95*12288}, {vLane}\nv_add_u32 v8, s52, v8")
        a(f"s_mul_i32 s52, {sG}, 393216\nv_mul_u32_u24 v9, 393212, {vLane}\nv_add_u32 v9, s52, v9")
        a(f"s_min_u32 s54, {sV}, 9\ns_mul_i32 s52, {sG}, 245760\ns_mul_i32 s53, {sX}, 245760\ns_cmp_lt_u32 {sJ}, 5\ns_cselect_b32 s52, s52, s53\ns_cselect_b64 s[48:49], s[14:15], s[22:23]\nv_mul_u32_u24 v10, {191*1280}, {vLane}\nv_add_u32 v10, s52, v10")
        a(f"s_mul_i32 s52, s54, {64*3072}\nv_mul_u32_u24 v11, {63*3072}, {vLane}\nv_add_u32 v11, s52, v11\nv_mul_u32_u24 v12, {0x36e000}, {vLane}\nv_add_u32 v12, 0x2000, v12")
    a("s_barrier")
    if P["tlb"]:
        a(f"s_mov_b64 exec, 3\nglobal_load_dword v13, v8, s[10:11]\nglobal_load_dword v13, v9, s[6:7]\nglobal_load_dword v13, v12, s[28:29]\nglobal_load_dword v13, v8, s[12:13]\nglobal_load_dword v13, v10, s[48:49]")
        a(f"s_cmp_lt_u32 {sV}, 10\ns_cbranch_scc0 L_ntw\nglobal_load_dword v13, v11, s[18:19]\nL_ntw:\ns_mov_b64 exec, -1")
    a(f"L_ga:\ns_setprio {P['prio'][1]}")
    gather_setup("v24", RS)
    a(f"v_lshlrev_b32 v28, 4, {vLane}\ns_mul_i32 s61, {sB}, {RS}\ns_add_u32 s61, s61, {REC+RP}")
    a(f"v_lshlrev_b32 v25, 7, {vGl}\nv_and_b32 v6, 3, {vN}\nv_lshl_add_u32 v25, v6, 5, v25\nv_lshrrev_b32 v6, 2, {vN}\nv_lshl_add_u32 v25, v6, 3, v25\nv_add_u32 v25, {VEC2A}, v25")
    vec2b_addr("v26")
    a(f"s_mul_i32 s54, {sG}, {8*RS}\ns_add_u32 s52, s54, {REC+RE}\ns_add_u32 s53, s52, {4*RS}\ns_add_u32 s54, s54, {REC+RQ}\ns_add_u32 s55, s54, {4*RS}")
    a(f"s_mov_b32 s56, {f2u(192**-0.5*math.log2(math.e))}\ns_mov_b32 s57, s56")
    a("s_getreg_b32 s58, hwreg(HW_REG_XCC_ID, 0, 4)\ns_xor_b32 s58, s58, s32\ns_mov_b32 s59, s33\nv_mov_b32 v27, 1")
    if P["hintA"]:
        a(f"s_lshl_b32 s43, {sG}, 11\ns_add_u32 s43, s43, {HT}\ns_lshl2_add_u32 s51, {sJ}, s43\nv_lshlrev_b32 v6, 6, {vLane}\nv_mov_b32 v7, s32\ns_mov_b32 s48, s32\ns_mov_b32 s49, s32")
    if P["gA"]==1:
        a(f"s_lshl_b32 s43, {sG}, 11\ns_add_u32 s43, s43, {HT}\ns_add_u32 s96, s28, s43\ns_addc_u32 s97, s29, 0\ns_lshl_b32 s51, {sB}, 8\ns_add_u32 s51, s51, {HT}\ns_mov_b32 s48, s32\ns_mov_b32 s49, s32")
        a("v_mov_b32 v8, s32\nv_mov_b32 v9, s32\nv_mov_b32 v10, s32\nv_mov_b32 v11, s32")
    wait_flag("PUBA",3)
    if P["gA"]==1:
        a(f"s_mov_b64 exec, 15\nbuffer_store_dwordx4 v[8:11], v28, {WS}, s51 offen sc1\ns_mov_b64 exec, -1")
        ghint("s[96:97]", 256, 8, "s[48:49]")
    elif P["hintA"]:
        a(f"s_mov_b64 exec, 0xffff\nbuffer_store_dword v7, v6, {WS}, s51 offen\ns_mov_b64 exec, -1")
        hint_wait("s43", 8, "s[48:49]")
    else: wait_flag("CNT","s43")
    stamp(1)
    gather(2,"v24",["s54","s55"],"GA", xcc="q")
    stamp(2)
    a(f"v_pk_mul_f32 {vr(GX,2)}, {vr(GX,2)}, s[56:57]\nv_pk_mul_f32 {vr(GX+2,2)}, {vr(GX+2,2)}, s[56:57]")
    vec2_write("v25","V2A","v27","ds_max_u32")
    if P["thrG2"]: a(f"L_gadone:\ns_cmp_eq_u32 {sW}, 6\ns_cbranch_scc1 L_w6b")
    a(f"s_lshl_b32 s54, {sX}, 14\ns_and_b32 s55, {sG}, 3\ns_lshl_b32 s55, s55, 4\ns_add_u32 s54, s54, s55\ns_add_u32 s44, s54, {ST}\ns_add_u32 s45, s44, 4096\ns_add_u32 s46, s44, 8192\ns_add_u32 s47, s44, 12288\nv_lshlrev_b32 v22, 6, {vLane}\nv_add_u32 v23, {XB}, v28")
    wait_flag(*{"DST":("DST",4),"S4M":("S4M",1),"PUBC":("PUBC",2),"PUBD":("PUBD",4)}[P["stattrig"]])
    stamp(3)
    l,ok=loop_head("SS")
    SM=108
    for k in range(4): a(f"buffer_load_dwordx4 {vr(SM+4*k,4)}, v22, {WS}, s{44+k} offen sc1")
    a("s_waitcnt vmcnt(0)")
    for k in range(4): a(f"v_cmpx_eq_u64 vcc, s[32:33], {vr(SM+4*k+2,2)}")
    a(f"s_cmp_eq_u64 exec, -1\ns_mov_b64 exec, -1\ns_cbranch_scc0 {l}\n{ok}:")
    if ("STR",1) in P["dtrig"]: sig("STR")
    stamp(4)
    st3=("quad_perm:[1,0,3,2]","quad_perm:[2,3,0,1]","row_half_mirror")
    for i,s in enumerate(st3):
        for k in range(4):
            src = f"v{SM+4*k}" if i==0 else f"v{32+k}"
            a(f"v_max_f32_dpp v{32+k}, {src}, {src} {s} {DP}")
    a("v_max3_f32 v36, v32, v33, v34\nv_max_f32 v36, v36, v35")
    rowreduce("v_max_f32","v36",("row_mirror",))
    xreduce("v_max_f32","v36","v37")
    for k in range(4): a(f"v_sub_f32 v{SM+4*k}, v{SM+4*k}, v36\nv_sub_f32 v{32+k}, v{32+k}, v36")
    for k in range(4): a(f"v_exp_f32 v{SM+4*k}, v{SM+4*k}\nv_exp_f32 v{32+k}, v{32+k}")
    a(f"v_mul_f32 v38, v{SM}, v{SM+1}\nv_fmac_f32 v38, v{SM+4}, v{SM+5}\nv_fmac_f32 v38, v{SM+8}, v{SM+9}\nv_fmac_f32 v38, v{SM+12}, v{SM+13}")
    for k in range(4): a(f"v_cvt_pk_bf16_f32 v{32+k}, v{32+k}, v{32+k}")
    rowreduce("v_add_f32","v38")
    xreduce("v_add_f32","v38","v37")
    a("v_rcp_f32 v38, v38")
    a("ds_write_b128 v23, v[32:35]\nds_write_b32 v23, v38 offset:1024")
    sig("STOK")
    stamp(5)
    a(f"s_cmp_lt_u32 {sJ}, 5\ns_cbranch_scc1 L_w7e\ns_cmp_lt_u32 {sV}, 10\ns_cbranch_scc0 L_fin")
    a("L_ffn2:")
    trcore("v8", vTmp)
    a(f"s_and_b32 s52, {sW}, 1\ns_lshl_b32 s55, s52, 6\nv_lshrrev_b32 v6, 5, {vLane}\nv_lshl_add_u32 v8, v6, 11, v8\nv_xor_b32 v8, s55, v8\nv_add_u32 {vT6[0]}, {R2}, v8\nv_xor_b32 {vT6[1]}, 32, {vT6[0]}")
    a(f"v_lshlrev_b32 {vVec}, 4, {vGl}\nv_add_u32 {vVec}, {VEC1A}, {vVec}")
    a(f"s_mul_i32 s54, {sX}, 2560\ns_lshl_b32 s55, {sV}, 8\ns_add_u32 s54, s54, s55\ns_lshl_b32 s55, s52, 7\ns_add_u32 s54, s54, s55\ns_add_u32 s54, s54, {YP}\ns_movk_i32 {t6}, {234+CB}")
    wait_flag(*(("GOK",1) if P["lateG"]==3 else ("PUBC",2)))
    a("s_branch L_s6go")
    a("L_w7e:")
    wait_flag("PUBE",3)
    a("L_ge:")
    stamp(6)
    gather(2,"v24",["s52","s53"],"GE")
    stamp(7)
    vec2_write("v26","V2B")
    if P["ge2"]: a(f"s_cmp_eq_u32 {sW}, 6\ns_cbranch_scc0 L_fin\ns_cmp_lt_u32 s2, 20\ns_cbranch_scc1 L_fin2")
    a("s_branch L_fin")

    a('; ======== W5: sentinel fill, fill flags, statistics store, weighted combine of the 32 key-group partials')
    a("L_w5:")
    a(f"v_lshlrev_b32 v6, 4, {vLane}\nv_mov_b32 v8, -1\nv_mov_b32 v9, -1\nv_mov_b32 v10, -1\nv_mov_b32 v11, -1")
    a(f"s_mul_i32 s52, {sB}, {RS}\ns_add_u32 s52, s52, {REC}\ns_add_u32 s53, s52, {RP}")
    if P["hintA"] or P["hintC"]: a(f"s_lshl_b32 s54, {sB}, 8\ns_add_u32 s54, s54, {HT-60*64}\nv_mov_b32 v7, s54\nv_mov_b32 v23, s53\nv_cmp_gt_u32 vcc, 60, {vLane}\nv_lshlrev_b32 v22, 6, {vLane}\nv_cndmask_b32 v7, v7, v23, vcc\nv_add_u32 v7, v7, v22")
    else: a(f"v_lshlrev_b32 v22, 6, {vLane}\nv_add_u32 v7, s53, v22")
    pm=((1<<64)-1)
    if P["gC"]: pm&=~((1<<36)-1)
    if P["gA"]: pm&=~(0xffff<<48)
    if not (P["hintA"] or P["hintC"]): pm&=~(0xf<<60)
    pm2=0
    if P.get("latetouch"): pm2=pm&((1<<48)-1); pm&=~pm2
    if pm: a(f"s_mov_b32 exec_lo, {pm&0xffffffff}\ns_mov_b32 exec_hi, {pm>>32}\nbuffer_load_dword v23, v7, {WS}, 0 offen sc1\ns_mov_b64 exec, -1")
    def gclear():
        a(f"s_cmp_lt_u32 s2, 100\ns_cbranch_scc0 L_ng\ns_lshl_b32 s54, s2, 10\ns_add_u32 s54, s54, {G}\nbuffer_store_dwordx4 v[8:11], v6, {WS}, s54 offen sc1\nL_ng:")
    if not P.get("lateG"): gclear()
    a(f"s_setprio {P['prio'][1]}")
    MK=12
    a(f"v_and_b32 v7, 1, {vN}\nv_lshlrev_b32 v7, 4, v7\nv_mov_b32 v16, 0xffff\nv_lshlrev_b32 v7, v7, v16\nv_lshrrev_b32 v16, 1, {vN}")
    for k in range(3): a(f"v_cmp_eq_u32 vcc, {2*k}, v16\nv_cndmask_b32 v{MK+k}, 0, v7, vcc")
    for k in range(8): a(f"v_mov_b32 v{43+4*k}, 0")
    a(f"v_bfe_u32 v7, {vN}, 2, 1\nv_mad_u32_u24 v7, v7, 3, {vGl}\nv_lshrrev_b32 v17, 3, {vN}\nv_lshlrev_b32 v18, 6, v17\nv_lshl_add_u32 v18, v7, 2, v18")
    a(f"v_lshlrev_b32 v19, 3, v17\nv_lshl_add_u32 v19, v7, 2, v19\nv_add_u32 v19, 112, v19\nv_cmp_gt_u32 vcc, 4, v7\nv_cndmask_b32 v18, v19, v18, vcc")
    a(f"v_and_b32 v7, 3, {vN}\nv_lshl_add_u32 v18, v7, 4, v18\nv_add_u32 v18, {VEC1B}, v18")
    a(f"s_movk_i32 s55, {FLG}\nv_lshlrev_b32 v16, 7, {vLane}")
    tag_finish()
    a("s_barrier")
    if pm2:
        wait_flag("CNT",P["latetouch"])
        a(f"s_mov_b32 exec_lo, {pm2&0xffffffff}\ns_mov_b32 exec_hi, {pm2>>32}\nbuffer_load_dword v23, v22, {WS}, s53 offen sc1\ns_mov_b64 exec, -1")
    if P.get("lateG")==1: gclear()
    a("s_waitcnt vmcnt(0)")
    if P.get("lateG")==2: gclear()
    cf="sc1" if P["gC"] else ""
    a(f"buffer_store_dwordx4 v[8:11], v6, {WS}, s53 offen {cf}\nbuffer_store_dwordx4 v[8:11], v6, {WS}, s53 offen offset:1024 {cf}\ns_mov_b64 exec, 0xffff\nbuffer_store_dwordx4 v[8:11], v6, {WS}, s53 offen offset:2048 {cf}\ns_mov_b64 exec, -1")
    stamp(1)
    wait_flag("CNT",P["thrF"])
    l,ok=loop_head("FL")
    a(f"s_mov_b64 exec, 0xff\nbuffer_load_dwordx2 v[24:25], v16, {WS}, s55 offen sc1\ns_waitcnt vmcnt(0)\nv_cmp_ne_u64 vcc, s[32:33], v[24:25]\ns_mov_b64 exec, -1\ns_cbranch_vccnz {l}\n{ok}:")
    sig("CLR")
    stamp(2)
    if P.get("retouch"):
        wait_flag(*P["retouch"])
        a(f"s_mov_b32 exec_hi, 0x0000ffff\nbuffer_load_dword v23, v22, {WS}, s53 offen sc1\ns_mov_b64 exec, -1")
    a(f"s_add_u32 s53, s52, 4096\nv_add_u32 v20, {XB}, v6\ns_and_b32 s56, s32, 0xbfffbfff")
    a(f"v_lshlrev_b32 v7, 9, {vGl}\nv_lshl_add_u32 v7, {vN}, 3, v7\nv_add_u32 v7, {MLB}, v7\nv_lshrrev_b32 v17, 2, {vLane}\nv_lshlrev_b32 v17, 14, v17\nv_and_b32 v19, 3, {vLane}\nv_lshl_add_u32 v17, v19, 4, v17")
    a(f"s_lshl_b32 s54, {sB}, 6\ns_add_u32 s54, s54, {ST}\nv_mov_b32 v26, s32\nv_mov_b32 v27, s33")
    if P["lateG"]==3:
        a(f"s_mul_i32 s57, {sG}, 2560\ns_lshl_b32 s55, {sJ}, 9\ns_add_u32 s57, s57, s55\ns_add_u32 s57, s57, {OP}\ns_mov_b32 s58, -1")
        a(f"s_cmp_lt_u32 {sJ}, 5\ns_cbranch_scc1 L_g3\ns_mul_i32 s57, {sX}, 2560\ns_lshl_b32 s55, {sV}, 8\ns_add_u32 s57, s57, s55\ns_add_u32 s57, s57, {YP}\ns_mov_b32 s58, 0xffff\ns_cmp_lt_u32 {sV}, 10\ns_cselect_b32 s57, s57, {WSSIZE}\nL_g3:")
    wait_flag(*P["sttrig"])
    a(f"s_mov_b32 exec_hi, 0\nds_read_b64 v[24:25], v7\nds_read_b32 v28, v7 offset:132\nds_read_b32 v29, v7 offset:260\nds_read_b32 v30, v7 offset:388\ns_waitcnt lgkmcnt(0)")
    a(f"v_add_f32 v25, v25, v28\nv_add_f32 v29, v29, v30\nv_add_f32 v25, v25, v29\nbuffer_store_dwordx4 v[24:27], v17, {WS}, s54 offen sc1")
    if P["lateG"]==3: a(f"s_mov_b32 exec_lo, s58\nbuffer_store_dwordx4 v[8:11], v6, {WS}, s57 offen sc1")
    a("s_mov_b64 exec, -1")
    if P["lateG"]==3:
        a("s_waitcnt vmcnt(0)"); sig("GOK")
    SAa=40; SD=72; SX=104
    def clloads():
        if P.get("dhalf"):
            a("s_mov_b32 exec_lo, 0x00ff00ff\ns_mov_b32 exec_hi, 0x00ff00ff")
            for s in range(8): a(f"buffer_load_dwordx4 {vr(SD+4*s,4)}, v6, {WS}, s{52+(s>>2)} offen offset:{1024*(s&3)} sc1")
            a("s_mov_b64 exec, -1")
            return
        for s in range(8): a(f"buffer_load_dwordx4 {vr(SD+4*s,4)}, v6, {WS}, s{52+(s>>2)} offen offset:{1024*(s&3)} sc1")
    if P.get("dhalf"):
        for s in range(8): a(f"v_mov_b64 {vr(SD+4*s,2)}, 0\nv_mov_b32 v{SD+4*s+2}, 0\nv_mov_b32 v{SD+4*s+3}, s56")
    if P.get("probe"):
        nr,skip=P["probe"]
        R_=list(range(4,28))+list(range(44,52))
        a("s_add_u32 s96, s28, s52\ns_addc_u32 s97, s29, 0\ns_mov_b32 s57, s56")
        wait_flag("DST",4)
        for r_ in range(skip): a("s_load_dword s4, s[96:97], 252 glc\ns_waitcnt lgkmcnt(0)")
        a(f"s_movk_i32 s98, {nr}\nL_pr:")
        for p_ in range(32): a(f"s_load_dword s{R_[p_]}, s[96:97], {256*p_+252} glc")
        a("s_waitcnt lgkmcnt(0)")
        pr=[f"s[{R_[2*i]}:{R_[2*i]+1}]" for i in range(16)]
        a(f"s_and_b64 s[58:59], {pr[0]}, {pr[1]}\ns_or_b64 s[60:61], {pr[0]}, {pr[1]}")
        for i in range(2,16): a(f"s_and_b64 s[58:59], s[58:59], {pr[i]}\ns_or_b64 s[60:61], s[60:61], {pr[i]}")
        a("s_xor_b64 s[58:59], s[58:59], s[56:57]\ns_xor_b64 s[60:61], s[60:61], s[56:57]\ns_or_b64 s[58:59], s[58:59], s[60:61]\ns_cbranch_scc0 L_cdgo")
        a("s_sub_u32 s98, s98, 1\ns_cmp_lg_u32 s98, 0\ns_cbranch_scc1 L_pr")
    wait_flag("PUBD",4)
    for w_ in P.get("dtrig",()): wait_flag(*w_)
    a("L_cdgo:")
    stamp(5)
    clloads()
    sig("CDI")
    l=a.lab("SW")
    spin(l); a(f"ds_read_b32 {vTmp}, {vL4} offset:{F['STOK']}\nds_read_b128 v[32:35], v20\nds_read_b32 v38, v20 offset:1024\ns_waitcnt lgkmcnt(0)\nv_cmp_gt_u32 vcc, 1, {vTmp}\ns_cbranch_vccnz {l}")
    stamp(4)
    for s in range(8):
        for r in range(3): a(f"v_and_b32_dpp v{SAa+4*s+r}, v{32+(s>>1)}, v{MK+r} row_newbcast:{8*(s&1)} {DP}")
    a("v_mov_b32 v39, v38\ns_branch L_cdm")
    l,ok=loop_head("CD")
    clloads()
    a("L_cdm:")
    for s in range(8):
        a(f"s_waitcnt vmcnt({7-s})\nv_mfma_f32_16x16x32_bf16 {vr(SX,4)}, {vr(SAa+4*s,4)}, {vr(SD+4*s,4)}, {vr(SX,4) if s else 0}")
    for s in range(8): a(f"v_cmpx_eq_u32 vcc, s56, v{SD+4*s+3}")
    a(f"s_cmp_eq_u64 exec, -1\ns_mov_b64 exec, -1\ns_cbranch_scc0 {l}\n{ok}:")
    stamp(6)
    a(f"s_mov_b32 exec_hi, 0xffff\nv_pk_mul_f32 {vr(SX,2)}, {vr(SX,2)}, v[38:39]\nv_cvt_pk_bf16_f32 v{SX}, v{SX}, v{SX+1}")
    a(f"ds_write_b32 v18, v{SX}\ns_mov_b64 exec, -1")
    sig("V1B")
    a("s_branch L_fin")

    a("L_w6:")
    a(f"v_lshlrev_b32 v6, 2, {vLane}\nv_add_u32 v6, {XB}, v6")
    a(f"s_mul_i32 s52, {sJ}, 160\ns_min_u32 s53, {sV}, 9\ns_lshl_b32 s53, s53, 7\ns_sub_u32 s53, s53, 256\nv_mov_b32 v16, s52\nv_mov_b32 v13, s53\nv_cmp_gt_u32 vcc, 32, {vLane}\nv_cndmask_b32 v16, v13, v16, vcc\nv_lshl_add_u32 v16, {vLane}, 3, v16\nv_add_u32 v16, {XB}, v16")
    a(f"v_bfe_u32 v7, {vLane}, 3, 2\nv_lshlrev_b32 v27, 6, v7\nv_and_b32 v7, 3, {vLane}\nv_lshl_add_u32 v27, v7, 4, v27\nv_bfe_u32 v7, {vLane}, 2, 1\nv_lshl_add_u32 v27, v7, 3, v27\nv_lshrrev_b32 v7, 5, {vLane}\nv_mul_u32_u24 v7, {VEC1F-VEC1A}, v7\nv_add_u32 v27, v27, v7\nv_add_u32 v27, {VEC1A}, v27")
    a("s_mov_b32 s54, 0xffff0000\ns_barrier")
    for k in range(5): a(f"ds_read_b32 v{8+k}, v6 offset:{256*k}")
    a("ds_read_b64 v[14:15], v16\ns_waitcnt lgkmcnt(0)")
    stamp(1)
    for k in range(5): a(f"v_lshlrev_b32 v{32+2*k}, 16, v{8+k}\nv_and_b32 v{33+2*k}, s54, v{8+k}")
    a("v_pk_add_f32 v[44:45], v[32:33], v[34:35]\nv_pk_add_f32 v[46:47], v[36:37], v[38:39]\nv_pk_add_f32 v[44:45], v[44:45], v[40:41]\nv_pk_add_f32 v[44:45], v[44:45], v[46:47]\nv_add_f32 v44, v44, v45")
    rowreduce("v_add_f32","v44"); xreduce("v_add_f32","v44","v45")
    a(f"v_mul_f32 v44, {hex(f2u(1/640))}, v44")
    for k in range(10): a(f"v_sub_f32 v{32+k}, v{32+k}, v44")
    a("v_mul_f32 v46, v32, v32")
    for k in range(1,10): a(f"v_fmac_f32 v46, v{32+k}, v{32+k}")
    rowreduce("v_add_f32","v46"); xreduce("v_add_f32","v46","v45")
    def rbf(v): a(f"v_cvt_pk_bf16_f32 {v}, {v}, {v}\nv_and_b32 {v}, s54, {v}")
    a(f"v_mul_f32 v46, {hex(f2u(1/640))}, v46"); rbf("v46"); rbf("v44")
    a(f"v_add_f32 v46, {hex(f2u(1e-5))}, v46"); rbf("v46")
    a("v_sqrt_f32 v46, v46"); rbf("v46")
    a("v_rcp_f32 v46, v46")
    a("v_lshlrev_b32 v32, 16, v14\nv_and_b32 v33, s54, v14\nv_lshlrev_b32 v34, 16, v15\nv_and_b32 v35, s54, v15")
    for k in range(4): a(f"v_sub_f32 v{32+k}, v{32+k}, v44")
    a("v_cvt_pk_bf16_f32 v14, v32, v33\nv_cvt_pk_bf16_f32 v15, v34, v35")
    a("v_lshlrev_b32 v32, 16, v14\nv_and_b32 v33, s54, v14\nv_lshlrev_b32 v34, 16, v15\nv_and_b32 v35, s54, v15")
    for k in range(4): a(f"v_mul_f32 v{32+k}, v{32+k}, v46")
    a("v_cvt_pk_bf16_f32 v14, v32, v33\nv_cvt_pk_bf16_f32 v15, v34, v35")
    a("s_mov_b32 exec_lo, 0x000fffff\ns_mov_b32 exec_hi, 0xffff\nds_write_b64 v27, v[14:15]\ns_mov_b64 exec, -1")
    sig("V1A")
    stamp(2)
    tag_finish()
    if P["thrG2"]: a(f"s_movk_i32 s43, {P['thrG2']+CB}\ns_branch L_ga")
    a("L_w6b:\ns_mov_b32 s54, 0xffff0000")
    if P.get("spf6"):
        if P.get("spf6w"): wait_flag(*P["spf6w"])
        sprefetch(*P["spf6"])
        stamp(6)
    if P.get("wb6"):
        a(f"s_cmp_eq_u32 {sY}, 3\ns_cbranch_scc0 L_nwb")
        for fl in P["wb6"]:
            wait_flag(*fl)
            a("buffer_wbl2 sc1\ns_waitcnt vmcnt(0)")
        a("s_branch L_fin\nL_nwb:")
    a(f"s_cmp_lt_u32 s2, 20\ns_cbranch_scc1 L_final")
    if P["ge2"]: a(f"s_mov_b32 s40, 1\ns_cmp_lt_u32 {sJ}, 5\ns_cbranch_scc1 L_ge2")
    a(f"s_cmp_lt_u32 {sV}, 10\ns_cbranch_scc0 L_fin")
    masks()
    srd(44, 20, 3072)
    a(f"v_lshlrev_b32 v8, 7, {vGl}\nv_and_b32 v6, 3, {vN}\nv_lshl_add_u32 v8, v6, 5, v8\nv_lshrrev_b32 v6, 2, {vN}\nv_lshl_add_u32 v8, v6, 3, v8\ns_mul_i32 s52, {sX}, 384")
    a("v_add_u32 v86, s52, v8")
    if not P["latesmall"]: a(f"buffer_load_dwordx2 v[22:23], v86, {SA}, 0 offen")
    gather_setup("v24",8*RS); vec2b_addr("v26")
    a(f"v_lshlrev_b32 v28, 4, {vLane}\ns_mul_i32 s40, {sB}, {RS}\ns_add_u32 s40, s40, {REC+RP}\ns_mov_b32 s48, s32\ns_xor_b32 s49, s33, 1")
    a("s_getreg_b32 s50, hwreg(HW_REG_XCC_ID, 0, 4)\ns_xor_b32 s50, s50, s32")
    trcore("v80", vTmp)
    a(f"v_lshrrev_b32 v6, 5, {vLane}\nv_mul_u32_u24 v6, 3072, v6\nv_add_u32 v80, v80, v6\nv_add_u32 v80, {R3 if FF else R1}, v80")
    for t in range(1,4): a(f"v_xor_b32 v{80+t}, {32*t}, v80")
    a(f"v_lshlrev_b32 v84, 6, {vGl}\nv_lshl_add_u32 v84, {vN}, 4, v84\nv_lshlrev_b32 v85, 4, {vGl}\nv_add_u32 v85, {VEC1F}, v85")
    a(f"ds_read_b128 v[88:91], v85\nds_read_b128 v[92:95], v85 offset:64\nv_mov_b32 v78, s50\nv_mov_b32 v79, s49")
    for u in range(3): a(f"v_mov_b32 v{GD+24+4*u}, 0\nv_mov_b32 v{GD+25+4*u}, 0\nv_mov_b32 v{GD+27+4*u}, s49")
    a(f"s_mul_i32 s52, {sX}, {32*RS}\ns_add_u32 s52, s52, {REC+5*RS+RQ}\ns_add_u32 s53, s52, {RS}\ns_add_u32 s51, s53, {RS}\ns_add_u32 s55, s40, {RQ-RP}\ns_mov_b32 s43, 0")
    wait_flag("PUBC",2)
    if P["latesmall"]: a(f"buffer_load_dwordx2 v[22:23], v86, {SA}, 0 offen")
    wait_flag("CNT",186 if FF else 222)
    stamp(3)
    def f1reads():
        for t in range(4):
            for h in range(4): a(f"ds_read_b64_tr_b16 {vr(96+8*t+2*h,2)}, v{80+t} offset:{2*h*3072}")
    f1reads()
    l=a.lab("F1")
    a(f"{l}:")
    for t in range(4):
        a(f"v_add_u32 v{80+t}, 1024, v{80+t}\ns_waitcnt lgkmcnt({12-4*t})")
        a(f"v_mfma_f32_16x16x32_bf16 {vr(128+4*t,4)}, {vr(96+8*t,4)}, v[88:91], 0\nv_mfma_f32_16x16x32_bf16 {vr(128+4*t,4)}, {vr(100+8*t,4)}, v[92:95], {vr(128+4*t,4)}")
    f1reads()
    publish4(128, 76, "v84", "s55", mode="plain")
    a(f"s_add_u32 s55, s55, 256\ns_add_u32 s43, s43, 1\ns_cmp_lt_u32 s43, 3\ns_cbranch_scc1 {l}")
    stamp(4)
    a("s_mov_b32 s58, s50\ns_mov_b32 s59, s49\ns_mov_b32 s61, s40")
    gather(3,"v24",["s52","s53","s51"],"GH", xcc="h", tag="s[48:49]")
    stamp(5)
    a("v_lshlrev_b32 v8, 16, v22\nv_and_b32 v9, s54, v22\nv_lshlrev_b32 v10, 16, v23\nv_and_b32 v11, s54, v23")
    c1 = -2*math.sqrt(2/math.pi)*math.log2(math.e)
    a(f"s_mov_b32 s56, {f2u(c1*0.044715)}\nv_mov_b32 v7, {hex(f2u(c1))}")
    for k in range(4): a(f"v_add_f32 v{GX+k}, v{GX+k}, v{8+k}")
    for k in range(4): a(f"v_mul_f32 v{8+k}, v{GX+k}, v{GX+k}")
    for k in range(4): a(f"v_fma_f32 v{8+k}, v{8+k}, s56, v7")
    for k in range(4): a(f"v_mul_f32 v{8+k}, v{8+k}, v{GX+k}")
    for k in range(4): a(f"v_exp_f32 v{8+k}, v{8+k}")
    for k in range(4): a(f"v_add_f32 v{8+k}, 1.0, v{8+k}")
    for k in range(4): a(f"v_rcp_f32 v{8+k}, v{8+k}")
    for k in range(4): a(f"v_mul_f32 v{GX+k}, v{GX+k}, v{8+k}")
    vec2_write("v26","V2B")
    a("s_branch L_ffn2")

    a('; ======== final reducer: workgroups 0..19, 32 output columns each')
    a("L_final:")
    a(f"s_mov_b32 s40, s2")
    a(f"v_and_b32 v6, 7, {vLane}\nv_lshlrev_b32 v8, 3, v6\nv_bfe_u32 v7, {vLane}, 4, 1\nv_lshl_add_u32 v8, v7, 2, v8\nv_lshrrev_b32 v7, 5, {vLane}\nv_lshl_add_u32 v8, v7, 1, v8")
    a(f"s_lshl_b32 s52, s40, 6")
    srd(44,4,1280); srd(48,24,1280)
    if P["latesmall"]: wait_flag("QISS",4)
    a(f"buffer_load_ushort v10, v8, {SA}, s52 offen\nbuffer_load_ushort v11, v8, {SB}, s52 offen")
    a(f"v_lshrrev_b32 v7, 3, {vLane}\nv_mul_u32_u24 v7, 2560, v7\nv_lshl_add_u32 v9, v6, 4, v7")
    a(f"s_lshl_b32 s53, s40, 7\ns_add_u32 s56, s53, {OP}\ns_add_u32 s57, s56, 20480\ns_add_u32 s58, s57, 20480\ns_add_u32 s59, s58, 20480\ns_add_u32 s53, s53, {YP}")
    a("s_waitcnt vmcnt(0)\nv_lshlrev_b32 v10, 16, v10\nv_lshlrev_b32 v11, 16, v11")
    srd(44,26,1280)
    if P["warmout"]: a(f"s_mov_b64 exec, 1\nbuffer_load_ushort v33, v8, {SA}, s52 offen nt\ns_mov_b64 exec, -1")
    def red4(b):
        a(f"v_permlane32_swap_b32 v{b}, v{b+1}\nv_permlane32_swap_b32 v{b+2}, v{b+3}\nv_add_f32 v{b}, v{b}, v{b+1}\nv_add_f32 v{b+2}, v{b+2}, v{b+3}")
        a(f"v_permlane16_swap_b32 v{b}, v{b+2}\nv_add_f32 v{b}, v{b}, v{b+2}\nv_add_f32_dpp v{b}, v{b}, v{b} row_ror:8 {DP}")
    def epoch(skip):
        a(f"s_cmp_eq_u32 s40, 0\ns_cbranch_scc0 {skip}\ns_mov_b64 exec, 0xff\nv_mov_b32 v14, s32\nv_mov_b32 v15, s33\nv_lshlrev_b32 v6, 3, {vLane}\nbuffer_store_dwordx2 v[14:15], v6, {WS}, 0 offen offset:{EPOCH} sc1\ns_mov_b64 exec, -1")
    if P["ge2"]:
        assert P["epochearly"]
        a("s_mov_b32 s60, s52\ns_mov_b32 s61, s53\nL_ge2:")
        gather_setup("v24", RS); vec2b_addr("v26")
        a(f"s_mul_i32 s52, {sG}, {8*RS}\ns_add_u32 s52, s52, {REC+RE}\ns_add_u32 s53, s52, {4*RS}")
    if P["epochearly"]:
        wait_flag("V1B",1)
        epoch("L_nep"); a("L_nep:")
    if P["ge2"]: a("s_branch L_ge\nL_fin2:\ns_mov_b32 s52, s60\ns_mov_b32 s53, s61")
    wait_flag("PUBF",4)
    stamp(9)
    l,ok=loop_head("FS")
    a(f"buffer_load_dwordx4 v[28:31], v9, {WS}, s53 offen sc1")
    for k in range(4): a(f"buffer_load_dwordx4 {vr(12+4*k,4)}, v9, {WS}, s{56+k} offen sc1")
    a(f"""s_waitcnt vmcnt(4)
v_permlane32_swap_b32 v28, v29
v_permlane32_swap_b32 v30, v31
v_add_f32 v28, v28, v29
v_add_f32 v30, v30, v31
s_waitcnt vmcnt(2)
v_pk_add_f32 v[12:13], v[12:13], v[16:17]
v_permlane16_swap_b32 v28, v30
v_add_f32 v28, v28, v30
v_pk_add_f32 v[14:15], v[14:15], v[18:19]
s_waitcnt vmcnt(0)
v_add_f32_dpp v28, v28, v28 row_ror:8 {DP}
v_pk_add_f32 v[20:21], v[20:21], v[24:25]
v_add_f32 v28, v28, v11
v_pk_add_f32 v[22:23], v[22:23], v[26:27]
v_mul_f32 v29, {hex(f2u(-math.log2(math.e)))}, v28
v_pk_add_f32 v[12:13], v[12:13], v[20:21]
v_pk_add_f32 v[14:15], v[14:15], v[22:23]
v_exp_f32 v29, v29
v_permlane32_swap_b32 v12, v13
v_permlane32_swap_b32 v14, v15
v_add_f32 v12, v12, v13
v_add_f32 v14, v14, v15
v_add_f32 v29, 1.0, v29
v_rcp_f32 v29, v29
v_permlane16_swap_b32 v12, v14
v_add_f32 v12, v12, v14
v_mul_f32 v28, v28, v29
v_add_f32_dpp v12, v12, v12 row_ror:8 {DP}
v_cmp_u_f32 vcc, v12, v28
v_fma_f32 v13, v12, v28, v10
s_cbranch_vccnz {l}
{ok}:""")
    a(f"v_cvt_pk_bf16_f32 v13, v13, v13\ns_mov_b32 exec_lo, 0x00ff00ff\ns_mov_b32 exec_hi, 0x00ff00ff\nbuffer_store_short v13, v8, {SA}, s52 offen {P['outf']}")
    stamp(10)
    if not P["epochearly"]: epoch("L_fin")
    if P.get("dbgdelay"):
        a(f"s_memrealtime s[8:9]\ns_waitcnt lgkmcnt(0)\nL_dd:\ns_memrealtime s[10:11]\ns_waitcnt lgkmcnt(0)\ns_sub_u32 s10, s10, s8\ns_cmp_lt_u32 s10, {P['dbgdelay']}\ns_cbranch_scc1 L_dd")
    if P.get("trace"):
        L2=[]
        for x in a.L:
            L2.append(x)
            if x.startswith(("ds_max_u32","ds_write_b32")) and x.endswith(f"v10 offset:{F['CNT']}"):
                L2+=["s_memrealtime s[62:63]","v_readfirstlane_b32 s97, v10","s_waitcnt lgkmcnt(0)","s_lshl_b32 s62, s62, 12","s_or_b32 s62, s62, s97","s_and_b32 s98, s96, 63","s_cmp_lt_u32 s96, 64","s_cselect_b64 vcc, -1, 0","v_mov_b32 v32, s62","v_cmp_eq_u32 s[62:63], s98, v0","s_add_u32 s96, s96, 1","s_and_b64 vcc, vcc, s[62:63]","v_cndmask_b32 v30, v30, v32, vcc","v_cndmask_b32 v31, v31, v32, s[62:63]"]
            if x=="L_ld2:": L2+=["s_mov_b32 s96, 0","v_mov_b32 v30, 0","v_mov_b32 v31, 0"]
        a.L=L2
    if P.get("allsc1"): a.L=[(x+" sc1" if (x.startswith("buffer_store") and "sc1" not in x) else x) for x in a.L]
    if P.get("nostores"):
        L2=[]; n_=0
        for x in a.L:
            if x.startswith("buffer_store") and WS in x:
                if n_ in P.get("keep",()): L2.append(x)
                n_+=1
            else: L2.append(x)
        a.L=L2
    a("L_fin:")
    if diag:
        stamp(15)
        if P.get("mind"): a(f"s_cmp_eq_u32 {sW}, 4\ns_cbranch_scc1 L_dump\ns_cmp_eq_u32 {sW}, 6\ns_cbranch_scc0 L_end\nL_dump:")
        a("s_load_dwordx2 s[28:29], s[0:1], 104")
        a(f"s_waitcnt lgkmcnt(0) vmcnt(0)\ns_mov_b32 s30, {WSSIZE}\ns_mov_b32 s31, 0x20000\ns_mov_b64 exec, 1")
        if P["wsb"]: a(f"s_add_u32 s28, s28, {P['wsb']}\ns_addc_u32 s29, s29, 0")
        for i in range(16): a(f"v_mov_b32 v{8+i}, s{64+2*i}")
        a(f"v_mov_b32 v24, {sBud}\nv_mov_b32 v6, 0\ns_lshl_b32 s52, {sB}, 3\ns_add_u32 s52, s52, {sW}\ns_lshl_b32 s52, s52, 7\ns_add_u32 s52, s52, {DBG}")
        dfl=P.get("dfl","")
        for i in range(4): a(f"buffer_store_dwordx4 {vr(8+4*i,4)}, v6, {WS}, s52 offen offset:{16*i} {dfl}")
        a(f"buffer_store_dword v24, v6, {WS}, s52 offen offset:64 {dfl}")
        if P.get("trace"):
            a(f"s_cmp_eq_u32 {sW}, 4\ns_cbranch_scc0 L_ntr\ns_mov_b64 exec, -1\nv_lshlrev_b32 v6, 2, v0\ns_lshl_b32 s52, {sB}, 9\ns_add_u32 s52, s52, {DBG+0x40000}\nbuffer_store_dword v30, v6, {WS}, s52 offen\nbuffer_store_dword v31, v6, {WS}, s52 offen offset:256\nL_ntr:")
    a("s_endpgm")
    a("; ======== out of line: poll give-up exits, write-through variants for groups that span dies")
    for f_ in far: a(f_)
    a("L_end:\ns_endpgm")
    body = a.finish(verbose=P.get("verbose",False))
    hdr = open("cdna_kernels/"+NAME+".s.ref").read().split("; Override launch")[0] if P.get("hdr",True) else ""
    return hdr + f"""; Single persistent launch: 256 workgroups (one per CU) x 8 waves. Written with my own generator script.
; Math (absorbed form of the reference, exact reordering): xn = LN(x); q = xn.Wq; qa[h,c] = q[h,:].Wuk[c,h,:] * D^-0.5 * log2e;
;   S = qa.ckv^T; p = 2^(S - ceil(block max)) per 32-key block, blocks rescaled by exact powers of two against the true row max;
;   cl = (p.ckv)/sum p; ctx = cl.Wuv; s = ctx.Wo; out = x + s * silu(gelu(xn.W1 + b1).W2 + b2).
; Workgroup b: x = b&7, y = b>>3, group g = 4x + (y>>3) (head g, keys 256g..256g+255), j = y&7 (row / column slice).
; Waves (role = hardware wave ^ 4): 0-3 matrix stages, 4 LDS-DMA stream of all weights and c_kv tiles, 5 sentinel fill / statistics
;   store / weighted combine, 6 layernorm / FFN / final reduce, 7 gathers and softmax statistics. Waves meet through LDS counters.
; Hand-offs between workgroups go through d_ws. Every handed-off word is validated by the reader: either it carries this launch's tag
;   (tag = epoch word found in d_ws on entry + constant; the tag becomes the next epoch), or its slot was filled with a NaN sentinel in
;   this launch before anyone may write or read it. Write-through stores are used across groups. Inside a group plain stores are used
;   only while they are known or re-published: tags carry the writer's XCC id, and a group found (or suspected) to span dies
;   switches to write-through stores, so any placement is correct. Every global poll is bounded.
; @launch grid=(256,1,1) block=(512,1,1) lds={LDS_BYTES}
.amdgcn_target "amdgcn-amd-amdhsa--gfx950"
.text
.globl {NAME}_kernel
.p2align 8
.type {NAME}_kernel,@function
{NAME}_kernel:
{body}
.section .rodata,"a"
.p2align 6
.amdhsa_kernel {NAME}_kernel
  .amdhsa_next_free_vgpr 220
  .amdhsa_next_free_sgpr 100
  .amdhsa_accum_offset 220
  .amdhsa_group_segment_fixed_size 0
  .amdhsa_kernarg_size 112
  .amdhsa_user_sgpr_count 2
  .amdhsa_user_sgpr_kernarg_segment_ptr 1
  .amdhsa_system_sgpr_workgroup_id_x 1
.end_amdhsa_kernel
"""
if __name__=="__main__":
    kw={}
    out="cdna_kernels/"+NAME+".s"
    for arg in sys.argv[1:]:
        k,v=arg.split("=",1)
        if k=="out": out=v
        else:
            try: kw[k]=eval(v)
            except Exception: kw[k]=v
    open(out,"w").write(gen(verbose=True, **kw))
    print("wrote",out,"LDS",LDS_BYTES)
```

```python
import sys, math, struct
from asmlib import Asm
NAME = "recurrent_scan__compressed_kv_cla__dense_activation_gelu__decode"
def f2u(x): return struct.unpack("<I", struct.pack("<f", x))[0]

EPOCH=0; FLG=0x1000; QA=0x4000; HT=0x10000; G=0x24000; OP=G; YP=G+81920; ST=0x40000
REC=0x60000; RP=8192; RM=RP+2048; RE=RM+256; RQ=RE+768; RS=RQ+768; DBG=0x380000; WSSIZE=0x400000
assert REC+256*RS<=DBG
R1=0; R2=49152; R3=R2+51200; SCR=R3+36864
XB=SCR; VEC1A=XB+4096; VEC1F=VEC1A+192; VEC1B=VEC1F+128; VEC2A=VEC1B+192; VEC2B=VEC2A+384; MLB=VEC2B+384
FLAGS=(MLB+2048+255)//256*256
FN = ["CNT","RDB","V1A","V2A","CLR","X0","X1","V1B","V2B","S4M","RDUK","RDA","PUBA","PUBC","PUBD","PUBE","PUBF","PUBB","QISS","DST","CDI","STOK","GISS","S4K","H0","S3K","STR","GOK"]
F = {n:256*i for i,n in enumerate(FN)}
LDS_BYTES = FLAGS+256*len(FN)

Q_=('QISS',4); M_=('S4M',4); K_=('S4K',4); D_=('DST',4); C_=('CDI',1); V_=('V1B',1); S_=('S3K',4)
DEF = dict(sched=[(0,Q_,18),(36,M_,12),(48,K_,24),(66,C_,24)], holdA=21, gA=False, tlb=False, latesmall=False, warmout=False, mshare=False, psplit=(8,0), ge2=False, sttrig=('PUBC',2), lateG=0, s1pipe=True, holdP=0, gateA=0, wb=None, outf='', blate=True, prio=(0,2,3), epochearly=True, latetouch=30, gC=False, fsched=None, T=24, TA=30, TL=24, thrG=60, pauseQ=True, ntA='nt', ntB='nt', nt="nt", diag=False, wsb=0, thrF=30, clrstep=8, gate=True, n1=18, n2=66, thrG2=0, incC=False, mfirst=True, hintA=False, hintC=False, holdG=False, n0=0, ackA=False, ackC=False, s4late=True, ffnfirst=True, fg=(24,84), dtrig=[('STOK',1)], thrQ=150, adual=True,  local=True, stattrig="DST", pref='s', budget=400000, safe=False)

def gen(**kw):
    P = dict(DEF); P.update(kw)
    T=P["T"]; TL=P["TL"]; NT=P["nt"]; diag=P["diag"]
    a = Asm()
    far=[]
    sW,sX,sY,sG,sJ,sB,sV = "s34","s35","s36","s37","s38","s39","s41"
    sBud="s42"; WS="s[28:31]"; SA="s[44:47]"; SB="s[48:51]"
    nst=[0]
    def stamp(i):
        if diag: a(f"s_memrealtime s[{64+2*i}:{65+2*i}]")
    def srd(base, ptr, size):
        a(f"s_mov_b32 s{base}, s{ptr}\ns_mov_b32 s{base+1}, s{ptr+1}\ns_mov_b32 s{base+2}, {size}\ns_mov_b32 s{base+3}, 0x20000")
    vLane="v0"; vL4="v1"; vOne="v2"; vTmp="v3"; vN="v4"; vGl="v5"
    CB=64
    def spin(l):
        a(f"{l}:")
        if P["safe"]: a("s_sub_u32 s99, s99, 1\ns_cbranch_scc1 L_fin")
        if P.get("slp") is not None and l.startswith("WF"): a(f"s_sleep {P['slp']}")
    def wait_flag(name, thr):
        if name=="CNT" and isinstance(thr,int): thr+=CB
        l=a.lab("WF")
        spin(l)
        a(f"ds_read_b32 {vTmp}, {vL4} offset:{F[name]}\ns_waitcnt lgkmcnt(0)\nv_cmp_gt_u32 vcc, {thr}, {vTmp}\ns_cbranch_vccnz {l}")
    def sig(name, v=vOne):
        a(f"ds_add_u32 {vL4}, {v} offset:{F[name]}")
    def loop_head(base, sigs=()):
        l=a.lab(base); g=a.lab("GU"); ok=a.lab("OK")
        a(f"{l}:\ns_sub_u32 {sBud}, {sBud}, 1\ns_cbranch_scc1 {g}")
        far.append(f"{g}:\ns_mov_b32 {sBud}, 0\ns_mov_b64 exec, -1\n"+"".join(f"ds_add_u32 {vL4}, {vOne} offset:{F[n]}\n" for n in sigs)+f"s_nop 7\ns_branch {ok}")
        return l, ok
    def vr(b,n): return f"v[{b}:{b+n-1}]"
    def tag_finish():
        a("s_waitcnt lgkmcnt(0)\ns_add_u32 s32, s32, 0x7f4a7c10\ns_addc_u32 s33, s33, 0x9e3779b9\ns_or_b32 s32, s32, 15")
    def hint_wait(off, base, tp):
        l=a.lab("HW"); ok=a.lab("HK")
        r=lambda i: f"s[{base+2*i}:{base+2*i+1}]"
        a(f"{l}:\ns_load_dwordx8 s[{base}:{base+7}], s[28:29], {off}\ns_add_u32 {off}, {off}, 64\ns_waitcnt lgkmcnt(0)")
        a("\n".join(f"s_xor_b64 {r(i)}, {r(i)}, {tp}" for i in range(4)))
        a(f"s_or_b64 {r(0)}, {r(0)}, {r(1)}\ns_or_b64 {r(2)}, {r(2)}, {r(3)}\ns_or_b64 {r(0)}, {r(0)}, {r(2)}\ns_cbranch_scc0 {ok}")
        a(f"s_and_b32 s{base}, {off}, 0x3c0\ns_cbranch_scc1 {l}\n{ok}:")
    def ghint(pair, stride, base, test):
        l=a.lab("GW"); ok=a.lab("GK")
        r=lambda i: f"s[{base+2*i}:{base+2*i+1}]"
        a(f"s_movk_i32 s98, 200\n{l}:")
        for k in range(8): a(f"s_load_dword s{base+k}, {pair}, {k*stride} glc")
        a(f"s_sub_u32 s98, s98, 1\ns_cbranch_scc1 {ok}\ns_waitcnt lgkmcnt(0)")
        if test=="sentinel":
            a("\n".join(f"s_max_u32 s{base}, s{base}, s{base+k}" for k in range(1,8))+f"\ns_cmp_eq_u32 s{base}, -1\ns_cbranch_scc1 {l}")
        else:
            a("\n".join(f"s_xor_b64 {r(i)}, {r(i)}, {test}" for i in range(4)))
            a(f"s_or_b64 {r(0)}, {r(0)}, {r(1)}\ns_or_b64 {r(2)}, {r(2)}, {r(3)}\ns_or_b64 {r(0)}, {r(0)}, {r(2)}\ns_cbranch_scc1 {l}")
        a(f"{ok}:\ns_waitcnt lgkmcnt(0)")
    def sprefetch(end_o, kb_o, end_f, kb_f):
        nf=a.lab("PN"); dn=a.lab("PD")
        a(f"s_cmp_lt_u32 {sJ}, 5\ns_cbranch_scc0 {nf}")
        for lab,ptr,base,rows_kb,sec,end,kb in ((None,14,f"s_mul_i32 s96, {sG}, 245760\ns_lshl_b32 s97, {sJ}, 8",4,4,end_o,kb_o),(nf,22,f"s_mul_i32 s96, {sX}, 245760\ns_lshl_b32 s97, {sV}, 7",8,2,end_f,kb_f)):
            if lab: a(f"{lab}:\ns_cmp_lt_u32 {sV}, 10\ns_cbranch_scc0 {dn}")
            if kb:
                assert kb%3==0 and 0<=end-kb and end*rows_kb<=192
                l=a.lab("PL"); rpi=12//sec
                a(f"{base}\ns_add_u32 s96, s96, s97\ns_add_u32 s96, s96, {(end-kb)*rows_kb*1280}\ns_add_u32 s96, s96, s{ptr}\ns_addc_u32 s97, s{ptr+1}, 0\ns_movk_i32 s98, {kb*rows_kb//rpi}\n{l}:")
                for r_ in range(rpi):
                    for c_ in range(sec): a(f"s_load_dword s43, s[96:97], {r_*1280+c_*64}")
                a(f"s_add_u32 s96, s96, {rpi*1280}\ns_addc_u32 s97, s97, 0\ns_sub_u32 s98, s98, 1\ns_cmp_lg_u32 s98, 0\ns_cbranch_scc1 {l}")
            if not lab: a(f"s_branch {dn}")
        a(f"{dn}:\ns_waitcnt lgkmcnt(0)")
    def xreduce(op, v, t):
        a(f"v_mov_b32 {t}, {v}\nv_permlane16_swap_b32 {v}, {t}\n{op} {v}, {v}, {t}")
        a(f"v_mov_b32 {t}, {v}\nv_permlane32_swap_b32 {v}, {t}\n{op} {v}, {v}, {t}")
    DP="row_mask:0xf bank_mask:0xf"
    def rowreduce(op, v, steps=("quad_perm:[1,0,3,2]","quad_perm:[2,3,0,1]","row_half_mirror","row_mirror")):
        for s in steps: a(f"{op}_dpp {v}, {v}, {v} {s} {DP}")

    vW,vK,vF,vO,vC,vT,vA0,vA1,vA2,vP,vTR = "v6","v7","v8","v9","v10","v11","v12","v13","v14","v15","v16"
    CS=P["clrstep"]
    def ids():
        a(f"s_and_b32 {sX}, s2, 7\ns_lshr_b32 {sY}, s2, 3\ns_lshl_b32 {sB}, {sX}, 5\ns_or_b32 {sB}, {sB}, {sY}\ns_lshr_b32 {sG}, {sB}, 3\ns_and_b32 {sJ}, {sY}, 7")
    def ids2():
        if diag:
            for i in range(1,16):
                if i not in (8,9) : a(f"s_mov_b32 s{64+2*i}, 0")
        if P["safe"]: a("s_mov_b32 s99, 2000000")
        a(f"s_and_b32 {sV}, {sG}, 3\ns_lshl2_add_u32 {sV}, {sJ}, {sV}\ns_sub_u32 {sV}, {sV}, 20")
        a(f"v_lshlrev_b32 {vL4}, 2, {vLane}\nv_add_u32 {vL4}, {FLAGS}, {vL4}")
    if P.get("skewinj"):
        a(f"s_and_b32 s52, s2, 6\ns_cmp_eq_u32 s52, 4\ns_cbranch_scc0 L_nsk\ns_sleep {P['skewinj']}\nL_nsk:")
    a("s_load_dwordx16 s[4:19], s[0:1], 0")
    stamp(0)
    a(f"v_readfirstlane_b32 {sW}, v0\ns_cmp_ge_u32 s2, 256\ns_cbranch_scc1 L_end")
    if P["pref"]=="v":
        a(f"s_getpc_b64 s[52:53]\nL_pc:\nv_lshlrev_b32 v1, 7, v0\nv_subrev_u32 v1, 8192, v1\nv_cmp_gt_u32 vcc, L_end-L_pc, v1\ns_and_saveexec_b64 s[54:55], vcc\ns_cbranch_execz L_np\nglobal_load_dword v207, v1, s[52:53]\nL_np:\ns_mov_b64 exec, -1")
    ids()
    if P["pref"]=="s":
        a(f"s_lshr_b32 {sW}, {sW}, 6\ns_cbranch_scc0 L_loader\ns_load_dwordx2 s[28:29], s[0:1], 104\ns_and_b32 s62, s2, {(~(7*CS))&0xff}\ns_xor_b32 s63, {sW}, 7\ns_or_b32 s40, s62, s63\ns_cbranch_scc0 L_qa\ns_cmp_lt_u32 {sW}, 4\ns_cbranch_scc1 L_z\nL_nqa:\ns_getpc_b64 s[52:53]\nL_pc:\ns_lshl2_add_u32 s54, {sY}, {sW}\ns_lshl_b32 s54, s54, 7\ns_min_u32 s54, s54, L_end-L_pc-64")
        a("s_load_dword s56, s[52:53], s54\ns_add_u32 s54, s54, 64\ns_load_dword s57, s[52:53], s54\nL_bar:\ns_load_dwordx8 s[20:27], s[0:1], 64\ns_barrier\ns_branch L_notloader\nL_loader:")
    else: a(f"s_lshr_b32 {sW}, {sW}, 6\ns_cbranch_scc1 L_notloader")

    a(f"v_lshrrev_b32 {vP}, 3, {vLane}\nv_and_b32 {vT}, 6, {vP}\nv_xor_b32 {vTR}, {vT}, {vLane}\nv_and_b32 {vTR}, 7, {vTR}\nv_lshlrev_b32 {vTR}, 4, {vTR}")
    a(f"v_mul_u32_u24 {vK}, 12288, {vP}\nv_add_u32 {vW}, {vK}, {vTR}\nv_lshlrev_b32 {vA0}, 4, {vLane}")
    a(f"s_mul_i32 s52, {sJ}, {80*12288}\ns_mul_i32 s53, {sG}, 384\ns_add_u32 s52, s52, s53")
    a(f"s_mov_b32 m0, {XB}\ns_mov_b32 s46, {640*12288}\ns_mov_b32 s47, 0x20000\ns_mov_b32 s51, 0x20000\ns_movk_i32 s50, 1280")
    a(f"s_movk_i32 s56, 896\ns_movk_i32 s57, 1280")
    assert P["lateG"]!=-1 and not P["mshare"]
    if P["lateG"]==-1:
        assert not P["wsb"]
        a(f"v_mov_b64 v[24:25], -1\nv_mov_b64 v[26:27], -1\ns_mov_b32 s30, {G+102400}\ns_mov_b32 s31, 0x20000\ns_lshl_b32 s54, s2, 10\ns_add_u32 s54, s54, {G}\ns_cmp_lg_u32 s62, 0")
    a("s_waitcnt lgkmcnt(0)")
    if P["lateG"]==-1: a(f"buffer_store_dwordx4 v[24:27], {vA0}, {WS}, s54 offen sc1")
    stamp(8)
    a("s_mov_b64 s[48:49], s[4:5]\ns_mov_b64 s[44:45], s[8:9]")
    a(f"buffer_load_dwordx4 {vA0}, {SB}, 0 offen lds\nbuffer_load_dwordx4 {vA0}, {SB}, 0 offen offset:1024 lds\ns_mov_b32 m0, {R2}")
    stamp(9)
    def pub(iss='s61'):
        a(f"s_getreg_b32 s63, hwreg(HW_REG_IB_STS)\ns_bfe_u32 s62, s63, 0x20016\ns_and_b32 s63, s63, 15\ns_lshl4_add_u32 s63, s62, s63\ns_sub_u32 s63, {iss}, s63\nv_mov_b32 v23, s63\nds_max_u32 {vL4}, v23 offset:{F['CNT']}")
    def cpub(k):
        if P.get("exact"): pub()
        else: a(f"s_sub_u32 s63, s61, {k}\nv_mov_b32 v23, s63\nds_max_u32 {vL4}, v23 offset:{F['CNT']}")
    def wait_pub(name, thr):
        l=a.lab("WP")
        spin(l); a(f"ds_read_b32 {vTmp}, {vL4} offset:{F[name]}"); pub()
        a(f"s_waitcnt lgkmcnt({0 if diag else 1})\nv_cmp_gt_u32 vcc, {thr}, {vTmp}\ns_cbranch_vccnz {l}")
    def seg384(srdq, vaddr, soff, step, m0end, thr, xor=False, d1="s56", d2="s57"):
        l=a.lab("SG")
        a(f"{l}:")
        v=vaddr
        if xor:
            a(f"v_xor_b32 {vT}, s55, {vaddr}\ns_add_u32 s55, s55, 32\ns_and_b32 s55, s55, 0x60"); v=vT
        if thr:
            a(f"s_waitcnt vmcnt({thr-3})"); cpub(thr-3)
        a(f"buffer_load_dwordx4 {v}, {srdq}, {soff} offen {NT} lds\ns_add_u32 m0, m0, {d1}")
        if thr: a(f"s_add_u32 s61, s61, 3")
        a(f"buffer_load_dwordx4 {v}, {srdq}, {soff} offen offset:128 {NT} lds\ns_add_u32 m0, m0, {d1}")
        a(f"buffer_load_dwordx4 {v}, {srdq}, {soff} offen offset:256 {NT} lds\ns_add_u32 m0, m0, {d2}")
        a(f"s_add_u32 {soff}, {soff}, {step}\ns_cmp_lg_u32 m0, {m0end}\ns_cbranch_scc1 {l}")
    if P.get("unrollq",True):
        a("s_mov_b32 s55, 98304")
        for r_ in range(10):
            a(f"buffer_load_dwordx4 {vW}, {SA}, s52 offen {NT} lds\ns_add_u32 m0, m0, s56\ns_nop 0\nbuffer_load_dwordx4 {vW}, {SA}, s52 offen offset:128 {NT} lds\ns_add_u32 m0, m0, s56\ns_nop 0\nbuffer_load_dwordx4 {vW}, {SA}, s52 offen offset:256 {NT} lds")
            if r_<9: a("s_add_u32 m0, m0, s57\ns_add_u32 s52, s52, s55")
            if r_==P.get("barat",8): a("s_barrier")
    else: seg384(SA, vW, "s52", 98304, R2+30720, None)
    a("s_branch L_ld2")
    a("; wave role 3 of eight workgroups: sentinel fill of the q_abs array (its flag follows once these stores are acknowledged)")
    assert not P["wsb"] and P["pref"]=="s"
    a(f"L_qa:\ns_mov_b32 s30, {WSSIZE}\ns_mov_b32 s31, 0x20000\nv_mov_b64 v[24:25], -1\nv_mov_b64 v[26:27], -1\nv_and_b32 v28, 63, v0\nv_lshlrev_b32 v28, 4, v28")
    a(f"s_mul_i32 s54, s2, {6144//CS}\ns_add_u32 s54, s54, {QA}\ns_add_u32 s55, s54, 4096\ns_waitcnt lgkmcnt(0)")
    for k in range(6): a(f"buffer_store_dwordx4 v[24:27], v28, {WS}, s{54+(k>>2)} offen offset:{1024*(k&3)} sc1")
    a("s_branch L_nqa")
    a(f"L_z:\nv_lshlrev_b32 v28, 4, v0\nv_add_u32 v28, {FLAGS-1024}, v28\nv_mov_b64 v[24:25], 0\nv_mov_b64 v[26:27], 0")
    extra = P["gC"] or P["lateG"]==3 or ("STR",1) in P["dtrig"] or any(x[1]==S_ for x in P["sched"])
    for o_ in ((0,3072,4096) if extra else (0,3072)): a(f"ds_write_b128 v28, v[24:27] offset:{o_}")
    a(f"s_waitcnt lgkmcnt(0)\ns_load_dwordx2 s[32:33], s[28:29], {EPOCH}\ns_branch L_bar")
    a(f"L_ld2:\ns_setprio {P['prio'][2]}\ns_load_dwordx8 s[20:27], s[0:1], 64\ns_mov_b32 {sW}, 4")
    ids2()
    stamp(1)
    a(f"v_bfe_u32 {vT}, {vLane}, 4, 1\nv_xor_b32 {vT}, {vT}, {vLane}\nv_and_b32 {vT}, 7, {vT}\nv_lshl_add_u32 {vK}, {vT}, 4, {vK}")
    a(f"s_mul_i32 s52, {sJ}, {96*12288}\ns_add_u32 s52, s52, s53\ns_mov_b32 s54, s52\ns_mov_b32 s55, 0")
    a(f"s_mov_b32 s44, s10\ns_mov_b32 s45, s11\ns_mov_b32 s46, {768*12288}\ns_mov_b32 m0, {R3}")
    a(f"s_movk_i32 s61, {CB+30}")
    a(f"v_lshrrev_b32 {vT}, 5, {vLane}\nv_lshlrev_b32 {vT}, 4, {vT}\nv_xor_b32 {vA1}, {vA0}, {vT}\nv_xor_b32 {vA2}, 16, {vA0}")
    for t in range(3):
        a(f"v_add_u32 v17, {64*t}, {vLane}\nv_mul_u32_u24 v18, 0x5556, v17\nv_lshrrev_b32 v18, 18, v18\nv_mul_u32_u24 v19, 12, v18\nv_sub_u32 v17, v17, v19")
        a(f"v_lshrrev_b32 v19, 1, v18\nv_and_b32 v18, 1, v18\nv_lshl_add_u32 v18, v19, 5, v18\nv_and_b32 v19, 2, v19\nv_xor_b32 v17, v17, v19\nv_mul_u32_u24 v18, 1536, v18\nv_lshl_add_u32 v{20+t}, v17, 4, v18")
        if P.get("b16"):
            a(f"v_add_u32 v17, {64*t}, {vLane}\nv_mul_u32_u24 v18, 0xaaab, v17\nv_lshrrev_b32 v18, 18, v18\nv_mul_u32_u24 v19, 6, v18\nv_sub_u32 v17, v17, v19")
            a(f"v_lshrrev_b32 v19, 1, v18\nv_and_b32 v18, 1, v18\nv_lshl_add_u32 v18, v19, 5, v18\nv_mul_u32_u24 v18, 1536, v18\nv_lshl_add_u32 v{20+t}, v17, 4, v18")
        if P.get("bfull"):
            a(f"v_lshrrev_b32 v18, 3, {vLane}\nv_lshrrev_b32 v19, 1, v18\nv_and_b32 v18, 1, v18\nv_lshl_add_u32 v18, v19, 5, v18\nv_mul_u32_u24 v18, 1536, v18\nv_and_b32 v17, 7, {vLane}\nv_lshl_add_u32 v{20+t}, v17, 4, v18")
            a(f"s_and_b32 s63, {sJ}, 1")
            if t<2: a(f"s_lshl_b32 s63, s63, 8\ns_add_u32 s63, s63, {t*128*1536+2048}")
            else: a(f"s_mul_i32 s63, s63, {128*1536}\ns_add_u32 s63, s63, {128+2048}")
            a(f"v_add_u32 v{20+t}, s63, v{20+t}")
        if t: a(f"v_subrev_u32 v{20+t}, {1024*t}, v{20+t}")
    a(f"v_mul_u32_u24 {vO}, 1280, {vP}\nv_add_u32 {vO}, {vO}, {vTR}\nv_mul_u32_u24 {vF}, 3072, {vP}\nv_add_u32 {vF}, {vF}, {vTR}")
    a(f"s_mov_b32 s48, s6\ns_mov_b32 s49, s7\ns_mov_b32 s50, {8192*1536}")
    a(f"s_mul_i32 s58, {sG}, {256*1536}\ns_mul_i32 s53, {sJ}, 192\ns_add_u32 s58, s58, s53\ns_mov_b32 s59, {R1}\ns_mov_b32 s60, {R2}")
    if P.get("bfull"): a(f"s_mul_i32 s58, {sG}, {256*1536}\ns_lshr_b32 s53, {sJ}, 1\ns_mul_i32 s53, s53, 384\ns_add_u32 s58, s58, s53\ns_max_u32 s58, s58, 2048\ns_sub_u32 s58, s58, 2048")
    if P.get("b16"): a(f"s_lshr_b32 s58, {sB}, 4\ns_mul_i32 s58, s58, {512*1536}\ns_and_b32 s53, {sB}, 15\ns_mul_i32 s53, s53, 96\ns_add_u32 s58, s58, s53")
    a(f"v_mov_b32 v23, {CB}\ns_waitcnt vmcnt(30) lgkmcnt(0)\nds_max_u32 {vL4}, v23 offset:{F['CNT']}")
    if P["holdP"]:
        assert 0<P["holdP"]<36 and P["holdP"]%3==0
        seg384(SA, vK, "s52", 98304, R3+1024*P["holdP"], P.get("T0",T), xor=True)
        if not P.get("T0"): wait_pub("PUBA",3)
    seg384(SA, vK, "s52", 98304, R3+36864, T, xor=True)
    stamp(2)
    TA=P["TA"]; NA=P["ntA"]; NB=P["ntB"]
    def drain(tgt):
        l=a.lab("DR")
        spin(l); pub(); a(f"s_sub_u32 s63, s61, s63\ns_cmp_gt_u32 s63, {tgt}\ns_cbranch_scc1 {l}")
    a(f"s_mul_i32 s52, {sB}, 49152")
    if T>P.get("holdA",18): drain(P.get("holdA",18))
    wait_pub(*(("GISS",1) if P["holdG"] else ("PUBA",3)))
    def segAB(nst, ex, TA=TA):
        l=a.lab("SA")
        a(f"{l}:\nv_xor_b32 v17, s55, {vA0}\nv_xor_b32 v18, s55, {vA1}\nv_xor_b32 v19, s55, {vA2}\ns_mov_b32 m0, s59")
        a(f"s_waitcnt vmcnt({TA-6})")
        if ex: pub()
        else: cpub(TA-6)
        a(f"buffer_load_dwordx4 v17, {SB}, s52 offen {NA} lds\nbuffer_load_dwordx4 v18, {SB}, s52 offen offset:1024 {NA} lds\nbuffer_load_dwordx4 v19, {SB}, s52 offen offset:2048 {NA} lds")
        a(f"s_mov_b32 m0, s60\ns_add_u32 s61, s61, 6")
        for t in range(3): a(f"buffer_load_dwordx4 v{20+t}, {SB}, {'s58' if not P.get('bnone') else 's50'} offen offset:{1024*t} {NB} lds")
        a(f"s_add_u32 s55, s55, 32\ns_and_b32 s55, s55, 0xe0\ns_add_u32 s52, s52, 3072\ns_add_u32 s58, s58, 3072\ns_add_u32 s60, s60, 3200\ns_add_u32 s59, s59, 3072")
        a(f"s_cmp_lg_u32 s59, {R1+3072*nst}\ns_cbranch_scc1 {l}")
    if P["gateA"]:
        assert 0<P["gateA"]<16
        segAB(P["gateA"], True); wait_pub("V2A",1)
    if P.get("gateQ"):
        n_=P["gateQ"]
        assert P["gateA"]<n_<16 and P["thrQ"]<=66+6*n_ and not P.get("TA2")
        segAB(n_, P["holdG"] or P["gateA"]); wait_pub("QISS",4); segAB(16, False, P.get("TA3",TA))
    elif P.get("TA2"):
        n_,t_=P["TA2"]
        assert P["gateA"]<n_<16 and t_%6==0
        segAB(n_, P["holdG"] or P["gateA"]); segAB(16, P.get("exA",False), t_)
    else: segAB(16, P["holdG"] or P["gateA"])
    stamp(3)
    a(f"s_mov_b32 s44, s12\ns_mov_b32 s45, s13\ns_mov_b32 m0, {R3}")
    FF=True
    def check(sc):
        at=[x[0] for x in sc]
        assert at[0]==0 and at==sorted(set(at)) and all(x%3==0 for x in at) and all(3<x[2]<=60 and x[2]%3==0 for x in sc)
        return sc
    sched=check(P["sched"]); fsched=check(P.get("fsched") or P["sched"])
    if sched[0][1]!=("QISS",4):
        drain(sched[0][2]-3); wait_pub("RDUK",3)
    stamp(4)
    def late(sc, done, n, emit):
        tl=[x[2] for x in sc if x[0]<=done][-1]
        for at,fl,t_ in sc:
            if done<at<done+n: emit(at-done, tl)
            if done<=at<done+n:
                if fl: wait_pub(*fl)
                tl=t_
        emit(n, tl)
    def seg_wo(k, TL):
        assert k%6==0
        l=a.lab("SO")
        a(f"{l}:")
        for i in range(6):
            if i%3==0: a(f"s_waitcnt vmcnt({TL-3})"); cpub(TL-3)
            if i%2==0:
                a(f"buffer_load_dwordx4 {vO}, {SB}, s52 offen {NT} lds\ns_add_u32 m0, m0, s56")
            else:
                a(f"buffer_load_dwordx4 {vO}, {SB}, s52 offen offset:128 {NT} lds\ns_add_u32 m0, m0, 1152\ns_add_u32 s52, s52, 10240")
            if i%3==0: a(f"s_add_u32 s61, s61, 3")
        a(f"s_cmp_lg_u32 m0, {R1+1024*k}\ns_cbranch_scc1 {l}")
    def seg_w2(k, TL):
        l=a.lab("S2")
        a(f"{l}:\ns_waitcnt vmcnt({TL-3})"); cpub(TL-3)
        for i in range(3):
            a(f"buffer_load_dwordx4 {vO}, {SB}, s52 offen {NT} lds\ns_add_u32 m0, m0, 2048\ns_add_u32 s52, s52, 10240")
        a(f"s_add_u32 s61, s61, 3\ns_cmp_lg_u32 m0, {R2+2048*k}\ns_cbranch_scc1 {l}")
    a(f"s_cmp_lt_u32 {sV}, 10\ns_cbranch_scc0 L_noff")
    a(f"s_mul_i32 s52, {sV}, {64*3072}\ns_mul_i32 s53, {sX}, 384\ns_add_u32 s52, s52, s53")
    a(f"s_mov_b32 s48, s18\ns_mov_b32 s49, s19\ns_mov_b32 s50, {640*3072}")
    late(fsched, 0, 24, lambda k,t_: seg384(SB, vF, "s52", 24576, R3+1024*k, t_))
    a(f"s_mul_i32 s52, {sX}, 245760\ns_lshl_b32 s53, {sV}, 7\ns_add_u32 s52, s52, s53")
    a(f"s_mov_b32 s48, s22\ns_mov_b32 s49, s23\ns_mov_b32 s50, {1536*1280}\ns_mov_b32 m0, {R1}")
    wait_pub("RDA",4)
    late(fsched, 24, 36, lambda k,t_: seg384(SA, vW, "s54", 98304, R1+1024*k, t_))
    a(f"s_mov_b32 m0, {R2}")
    if not any(at<=60 and fl in (M_,K_,D_,C_,V_) for at,fl,_ in fsched): wait_pub("RDB",4)
    late(fsched, 60, 24, seg_w2)
    a("s_branch L_drain\nL_noff:")
    a(f"s_mul_i32 s52, {sG}, 245760\ns_lshl_b32 s53, {sJ}, 8\ns_add_u32 s52, s52, s53")
    a(f"s_mov_b32 s48, s14\ns_mov_b32 s49, s15\ns_mov_b32 s50, {6144*1280}")
    late(sched, 0, 36, lambda k,t_: seg384(SA, vW, "s54", 98304, R3+1024*k, t_))
    stamp(5)
    a(f"s_mov_b32 m0, {R1}\ns_cmp_lt_u32 {sJ}, 5\ns_cbranch_scc0 L_drain")
    if not any(at<=36 and fl in (M_,K_,D_,C_,V_) for at,fl,_ in sched): wait_pub("RDA",4)
    late(sched, 36, 48, seg_wo)
    a("L_drain:")
    stamp(6)
    drain(6)
    a(f"v_mov_b32 {vC}, s61\ns_waitcnt vmcnt(0)\nds_write_b32 {vL4}, {vC} offset:{F['CNT']}")
    stamp(7)
    if P.get("wb"):
        n_,fl=P["wb"]
        a(f"s_cmp_lt_u32 s2, {n_}\ns_cbranch_scc0 L_fin")
        wait_flag(*fl)
        a("buffer_wbl2 sc1\ns_waitcnt vmcnt(0)")
        stamp(10)
    a("s_branch L_fin")

    a("L_notloader:")
    a(f"s_xor_b32 {sW}, {sW}, 4\nv_and_b32 v0, 63, v0")
    if diag: a("s_mov_b32 s80, 0\ns_mov_b32 s82, 0")
    ids2()
    a(f"v_and_b32 {vN}, 15, {vLane}\nv_lshrrev_b32 {vGl}, 4, {vLane}\nv_mov_b32 {vOne}, 1\ns_mov_b32 {sBud}, {P['budget']}")
    a(f"s_mov_b32 s30, {WSSIZE}\ns_mov_b32 s31, 0x20000")
    a(f"s_cmp_eq_u32 {sW}, 6\ns_cbranch_scc1 L_w6\ns_cmp_eq_u32 {sW}, 5\ns_cbranch_scc1 L_w5\ns_cmp_eq_u32 {sW}, 7\ns_cbranch_scc1 L_w7\ns_waitcnt lgkmcnt(0)")
    if P["wsb"]: a(f"s_add_u32 s28, s28, {P['wsb']}\ns_addc_u32 s29, s29, 0")
    a(f"s_load_dwordx2 s[32:33], s[28:29], {EPOCH}")

    def trcore(dst, t):
        a(f"v_bfe_u32 {t}, {vLane}, 2, 3\nv_lshlrev_b32 {dst}, 7, {t}\nv_lshrrev_b32 {t}, 1, {t}\nv_lshl_add_u32 {dst}, {t}, 5, {dst}\nv_and_b32 {t}, 3, {vLane}\nv_lshl_add_u32 {dst}, {t}, 3, {dst}")
    MASKT=[f"s[{56+2*t}:{57+2*t}]" for t in range(4)]
    def masks():
        for t in range(4): a(f"s_mov_b32 s{56+2*t}, {0x00010001<<t}\ns_mov_b32 s{57+2*t}, {0x00010001<<t}")
    def mstore(txt):
        wt="\n".join(x+" sc1" if x.startswith("buffer_store") else x for x in txt.split("\n"))
        if not P["local"]:
            a(wt); return
        r=a.lab("RM"); bk=a.lab("BK")
        a(f"s_cbranch_scc0 {r}\n{txt}\n{bk}:")
        far.append(f"{r}:\ns_nop 7\n{wt}\ns_nop 1\ns_branch {bk}")
    def publish4(acc, vS, vAddr, soff, imm=0, mode=False):
        for t in range(4):
            a(f"s_mov_b64 exec, {MASKT[t]}\nv_cvt_pk_bf16_f32 v{vS}, v{acc+4*t}, v{acc+4*t+1}\nv_cvt_pk_bf16_f32 v{vS+1}, v{acc+4*t+2}, v{acc+4*t+3}")
        a(f"s_mov_b32 exec_lo, 0x000f000f\ns_mov_b32 exec_hi, 0x000f000f")
        txt=f"buffer_store_dwordx4 {vr(vS,4)}, {vAddr}, {WS}, {soff} offen offset:{imm}"
        if mode=="plain": a(txt)
        elif mode: mstore(txt)
        else: a(txt+" sc1")
        a("s_mov_b64 exec, -1")

    a('; ======== W0..W3 main')
    FR=64; QR=16; AC=160; vS=176
    vT1=[f"v{180+t}" for t in range(4)]; vVec="v184"; vPub="v185"; vU=["v186","v187"]; vA=[f"v{188+t}" for t in range(4)]
    vLin="v192"; vB=["v193","v194","v199"]; vPl="v195"; vMl="v196"; vBp="v197"; vC4="v198"; vT6=["v200","v201"]; vCore="v202"; vSt="v203"; vXa="v204"; vM0="v205"; vQa="v208"
    sHH="s52"; sKH="s53"
    if P['prio'][0]: a(f"s_setprio {P['prio'][0]}")
    a(f"s_and_b32 {sHH}, {sW}, 1\ns_lshr_b32 {sKH}, {sW}, 1")
    masks()
    trcore(vCore, vTmp)
    a(f"v_lshrrev_b32 v6, 5, {vLane}")
    a(f"s_lshl_b32 s54, {sW}, 10\ns_add_u32 s54, s54, {R2}\nv_mul_u32_u24 v7, 3072, v6\nv_add3_u32 {vT1[0]}, {vCore}, v7, s54")
    for t in range(1,4): a(f"v_xor_b32 {vT1[t]}, {32*t}, {vT1[0]}")
    a(f"s_lshl_b32 s54, {sKH}, 10\ns_lshl_b32 s55, {sHH}, 6\nv_lshlrev_b32 v7, 11, v6\nv_add3_u32 {vT6[0]}, {vCore}, v7, s54\nv_xor_b32 {vT6[0]}, s55, {vT6[0]}\nv_xor_b32 {vT6[1]}, 32, {vT6[0]}")
    a(f"v_lshlrev_b32 {vVec}, 4, {vGl}\nv_add_u32 {vVec}, {VEC1A}, {vVec}")
    a(f"v_lshlrev_b32 {vPub}, 6, {vGl}\nv_lshl_add_u32 {vPub}, {vN}, 4, {vPub}")
    a(f"v_lshlrev_b32 {vLin}, 4, {vLane}")
    a(f"v_lshrrev_b32 v7, 1, {vN}\nv_lshlrev_b32 {vQa}, 6, v7\nv_and_b32 v7, 1, {vN}\nv_lshl_add_u32 {vQa}, v7, 4, {vQa}\nv_and_b32 v7, 1, {vGl}\nv_lshl_add_u32 {vQa}, v7, 5, {vQa}\nv_lshl_add_u32 {vQa}, v6, 10, {vQa}")
    a(f"s_mul_i32 s54, {sW}, 12288\ns_add_u32 s54, s54, {R3}\nv_lshrrev_b32 v7, 2, {vN}\nv_mul_u32_u24 v7, 3072, v7\nv_and_b32 v8, 3, {vN}\nv_lshl_add_u32 v7, v8, 7, v7")
    a(f"v_lshrrev_b32 v8, 1, {vN}\nv_xor_b32 v8, v8, {vGl}\nv_lshlrev_b32 v8, 4, v8\nv_add3_u32 {vU[0]}, v7, v8, s54\nv_xor_b32 {vU[1]}, 64, {vU[0]}")
    a(f"s_mul_i32 s54, {sKH}, 768\nv_mul_u32_u24 v7, 1536, {vN}\nv_lshlrev_b32 v8, 1, {vGl}\nv_xor_b32 v8, {vN}, v8\nv_lshlrev_b32 v8, 4, v8\nv_add3_u32 {vA[0]}, v7, v8, s54")
    for t in range(1,4): a(f"v_xor_b32 {vA[t]}, {128*(t>>1)+16*(t&1)}, {vA[0]}")
    a(f"v_bfe_u32 v7, {vN}, 3, 1\nv_mul_u32_u24 v7, 3200, v7\nv_bfe_u32 v8, {vN}, 2, 1\nv_mul_u32_u24 v8, 192, v8\nv_mul_u32_u24 v9, 768, {vGl}\nv_add3_u32 v7, v7, v8, v9")
    a(f"v_and_b32 v8, 3, {vN}\nv_lshl_add_u32 v7, v8, 3, v7\nv_add_u32 v7, {R2}, v7\nv_and_b32 v9, 1, {vGl}\nv_lshlrev_b32 v9, 5, v9")
    a(f"s_lshl_b32 s54, {sKH}, 6\nv_add3_u32 {vB[0]}, v7, v9, s54\nv_xor_b32 v10, 32, v9\nv_add3_u32 {vB[1]}, v7, v10, s54")
    a(f"s_lshl_b32 s54, {sKH}, 5\nv_xor_b32 v10, s54, v9\nv_add_u32 v10, 128, v10\nv_add_u32 {vB[2]}, v7, v10")
    a(f"v_mul_u32_u24 v7, {2*RS}, {vGl}\nv_lshl_add_u32 {vPl}, {vN}, 4, v7\nv_lshlrev_b32 {vM0}, 2, {vN}\nv_add_u32 {vMl}, {vM0}, v7")
    a(f"v_lshrrev_b32 v7, 2, {vLane}\nv_lshl_add_u32 {vBp}, v8, 4, v7\nv_lshlrev_b32 {vBp}, 2, {vBp}")
    a(f"v_mul_u32_u24 v7, {8*RS}, v7\nv_lshl_add_u32 {vC4}, v8, 4, v7")
    a(f"s_lshl_b32 s54, {sHH}, 11\ns_add_u32 s54, s54, {XB}\nv_add_u32 {vXa}, s54, {vLin}")
    if P.get("spf3"): a("s_mov_b64 s[26:27], s[14:15]\ns_mov_b64 s[24:25], s[22:23]")
    oQ,oQA,oQL,oP,oM,oPL,oML,oCL,oE,oUV,tUV,oF,t6 = "s4","s5",("s6","s7","s8"),"s9","s10",("s11","s12"),("s13","s14"),"s15","s16","s17","s18","s54","s19"
    a(f"s_mul_i32 s20, {sB}, {RS}\ns_add_u32 s20, s20, {REC}\ns_lshl_b32 s55, {sW}, 8\ns_add_u32 s21, s20, s55\ns_add_u32 {oQ}, s21, {RQ}\ns_add_u32 {oE}, s21, {RE}")
    a(f"s_lshl_b32 s22, {sHH}, 10\ns_add_u32 s22, s22, {RP}\ns_lshl_b32 s23, {sHH}, 7\ns_add_u32 s23, s23, {RM}\ns_add_u32 {oP}, s20, s22\ns_add_u32 {oM}, s20, s23")
    a(f"s_mul_i32 s20, {sG}, {8*RS}\ns_add_u32 s20, s20, {REC}\ns_add_u32 {oPL[0]}, s20, s22\ns_add_u32 {oPL[1]}, {oPL[0]}, {RS}\ns_add_u32 {oML[0]}, s20, s23\ns_add_u32 {oML[1]}, {oML[0]}, {RS}")
    a(f"s_lshr_b32 s20, {sG}, 4\ns_mul_i32 s20, s20, 24\ns_mul_i32 s55, {sJ}, 3\ns_add_u32 s55, s55, {sW}\ns_add_u32 s20, s20, s55\ns_lshl_b32 s20, s20, 10")
    a(f"s_bfe_u32 s55, {sG}, 0x30001\ns_and_b32 s21, {sG}, 1\ns_lshl3_add_u32 s55, s21, s55\ns_lshl_b32 s55, s55, 6\ns_add_u32 s20, s20, s55\ns_add_u32 {oQA}, s20, {QA}")
    a(f"s_lshl1_add_u32 s20, {sHH}, {sKH}\ns_mul_i32 s20, s20, 12288\ns_add_u32 {oQL[0]}, s20, {QA}\ns_add_u32 {oQL[1]}, {oQL[0]}, 4096\ns_add_u32 {oQL[2]}, {oQL[0]}, 8192")
    a(f"s_lshl_b32 s20, {sHH}, 7\ns_add_u32 s20, s20, {sJ}\ns_mul_i32 s20, s20, {RS}\ns_lshl_b32 s55, {sKH}, 7\ns_add_u32 s20, s20, s55\ns_add_u32 s20, s20, {REC}")
    a(f"s_and_b32 s55, {sG}, 24\ns_bfe_u32 s21, {sG}, 0x20001\ns_or_b32 s55, s55, s21\ns_and_b32 s21, {sG}, 1\ns_lshl2_add_u32 s55, s21, s55\ns_lshl_b32 s55, s55, 8\ns_add_u32 {oCL}, s20, s55")
    a(f"s_mul_i32 {oF}, {sG}, 2560\ns_lshl_b32 s55, {sJ}, 9\ns_add_u32 {oF}, {oF}, s55\ns_lshl_b32 s55, {sW}, 7\ns_add_u32 {oF}, {oF}, s55\ns_add_u32 {oF}, {oF}, {OP}\ns_movk_i32 {t6}, {222+CB}")
    a(f"s_mov_b32 s48, 0x00800080\ns_mov_b32 s49, 0x437f0000\ns_lshl_b32 s55, {sHH}, 8\nv_add_u32 v6, s55, {vL4}")
    a(f"s_lshl_b32 s55, {sHH}, 9\ns_add_u32 s55, s55, {MLB}\nv_lshl_add_u32 {vSt}, {vLane}, 3, s55")
    if P["mshare"]: a(f"v_mov_b64 v[8:9], -1\nds_write_b64 {vSt}, v[8:9] offset:1024")
    tag_finish()
    CT=212
    a(f"s_getreg_b32 s55, hwreg(HW_REG_XCC_ID, 0, 4)\ns_xor_b32 s55, s55, s32\nv_mov_b32 v{vS+2}, s55\nv_mov_b32 v{vS+3}, s33")
    a(f"s_and_b32 s55, s32, 0xbfffbfff\nv_mov_b32 v{CT+3}, s55\nv_mov_b32 v{CT+7}, s55")
    oH,oHW="s17","s18"
    if P["hintC"]: a(f"s_lshl_b32 {oH}, {sG}, 11\ns_lshl_b32 s55, {sHH}, 5\ns_add_u32 {oH}, {oH}, s55\ns_add_u32 {oH}, {oH}, {HT+1024}\ns_lshl2_add_u32 {oHW}, {sJ}, {oH}\nv_lshlrev_b32 v209, 6, {vLane}\ns_mov_b32 s44, s32\ns_mov_b32 s45, s32")
    a(f"s_cmp_eq_u32 {sW}, 3\ns_cbranch_scc0 L_s1\ns_cmp_eq_u32 s40, 0\ns_cbranch_scc0 L_s3")
    a(f"s_mul_i32 s55, s2, {128//CS}\ns_add_u32 s55, s55, {FLG}\ns_waitcnt vmcnt(0)\nv_mov_b32 v24, s32\nv_mov_b32 v25, s33\ns_mov_b64 exec, 15")
    a(f"buffer_store_dwordx4 v[24:27], {vLin}, {WS}, s55 offen sc1\ns_mov_b64 exec, -1\ns_waitcnt vmcnt(0)\ns_branch L_s3\nL_s1:")
    a('; ---- S1: q partial')
    if P.get("pretQA") is not None: a(f"s_mov_b64 exec, 1\nbuffer_load_dword v206, {vLin}, {WS}, {oQA} offen {P['pretQA']}\ns_mov_b64 exec, -1")
    wait_flag("V1A",1)
    for s in range(2): a(f"ds_read_b128 {vr(QR+4*s,4)}, {vVec} offset:{64*s}")
    a(f"ds_read_b64 {vr(QR+8,2)}, {vVec} offset:128\nv_mov_b64 {vr(QR+10,2)}, 0")
    for t in range(4): a(f"v_mov_b64 {vr(FR+12*t+10,2)}, 0")
    if P["s1pipe"]:
        wait_flag("CNT",24)
        for t in range(4):
            for h in range(4): a(f"ds_read_b64_tr_b16 {vr(FR+12*t+2*h,2)}, {vT1[t]} offset:{2*h*3072}")
        for t in range(4):
            a(f"s_waitcnt lgkmcnt({12-4*t})")
            for s in range(2): a(f"v_mfma_f32_16x16x32_bf16 {vr(AC+4*t,4)}, {vr(FR+12*t+4*s,4)}, {vr(QR+4*s,4)}, {vr(AC+4*t,4) if s else 0}")
        l=a.lab("W1")
        spin(l); a(f"ds_read_b32 {vTmp}, {vL4} offset:{F['CNT']}")
        for t in range(4): a(f"ds_read_b64_tr_b16 {vr(FR+12*t+8,2)}, {vT1[t]} offset:{8*3072}")
        a(f"s_waitcnt lgkmcnt(0)\nv_cmp_gt_u32 vcc, {30+CB}, {vTmp}\ns_cbranch_vccnz {l}")
        stamp(1)
        for t in range(4): a(f"v_mfma_f32_16x16x32_bf16 {vr(AC+4*t,4)}, {vr(FR+12*t+8,4)}, {vr(QR+8,4)}, {vr(AC+4*t,4)}")
    else:
        wait_flag("CNT",30)
        stamp(1)
        for t in range(4):
            for h in range(5): a(f"ds_read_b64_tr_b16 {vr(FR+12*t+2*h,2)}, {vT1[t]} offset:{2*h*3072}")
        for t in range(4):
            a(f"s_waitcnt lgkmcnt({15-5*t})")
            for s in range(3): a(f"v_mfma_f32_16x16x32_bf16 {vr(AC+4*t,4)}, {vr(FR+12*t+4*s,4)}, {vr(QR+4*s,4)}, {vr(AC+4*t,4) if s else 0}")
    publish4(AC, vS, vPub, oQ, mode=False if P["gA"] else "plain")
    if P["ackA"]: a("s_waitcnt vmcnt(0)")
    sig("PUBA")
    stamp(2)
    a(f"s_mov_b32 s46, {R3-R2}\ns_movk_i32 s47, {198+CB}")
    if FF: a(f"s_cmp_lt_u32 {sV}, 10\ns_cselect_b32 s46, {R1-R2}, s46\ns_cselect_b32 s47, {222+CB}, s47")
    for t in range(4): a(f"v_add_u32 {vT1[t]}, s46, {vT1[t]}")
    a(f"v_mov_b32 v{vS+2}, s32")
    wait_flag("CLR",1)
    wait_flag("CNT",66)
    for s in range(6):
        for t in range(2): a(f"ds_read_b128 {vr(FR+8*s+4*t,4)}, {vU[s&1]} offset:{1024*(s>>1)+512*t}")
    if P["sched"][0][1]!=Q_: sig("RDUK")
    def vec2_mfma(flag, thr, vec, wfirst, fr):
        l=a.lab("V2")
        spin(l); a(f"ds_read_b32 {vTmp}, {vL4} offset:{F[flag]}")
        for s in range(6): a(f"ds_read_b128 {vr(QR+4*s,4)}, {vVec} offset:{vec-VEC1A+64*s}")
        a(f"s_waitcnt lgkmcnt(6)\nv_cmp_gt_u32 vcc, {thr}, {vTmp}\ns_cbranch_vccnz {l}")
        for s in range(6):
            a(f"s_waitcnt lgkmcnt({5-s})")
            for t in range(2):
                w_,q_=vr(fr+8*s+4*t,4),vr(QR+4*s,4)
                A_,B_=(w_,q_) if wfirst else (q_,w_)
                a(f"v_mfma_f32_16x16x32_bf16 {vr(AC+4*t,4)}, {A_}, {B_}, {vr(AC+4*t,4) if s else 0}")
    vec2_mfma("V2A",1,VEC2A,True,FR)
    a(f"v_readfirstlane_b32 s50, {vTmp}\ns_lshr_b32 s50, s50, 1")
    stamp(3)
    for k in range(4): a(f"v_cvt_pk_bf16_f32 v{AC+8+k}, v{AC+2*k}, v{AC+2*k+1}\nds_bpermute_b32 v{AC+12+k}, {vBp}, v{AC+8+k}")
    if P.get("batom"):
        a(f"s_mov_b64 exec, 15\ns_waitcnt lgkmcnt(0)\nbuffer_atomic_{P['batom']}_x2 {vr(AC+12,2)}, {vLin}, {WS}, {oQA} offen sc1\nbuffer_atomic_{P['batom']}_x2 {vr(AC+14,2)}, {vLin}, {WS}, {oQA} offen offset:8 sc1\ns_mov_b64 exec, -1\ns_waitcnt vmcnt(0)")
    if P.get("bexp"):
        m_,sh=P["bexp"]
        a(f"s_sub_u32 {oQA}, {oQA}, {QA}\ns_mul_i32 {oQA}, {oQA}, {sh}\ns_add_u32 {oQA}, {oQA}, {QA if sh<=2 else REC}")
    if not P.get("batom"): a(f"s_mov_b64 exec, {P['bexp'][0] if P.get('bexp') else 15}\ns_waitcnt lgkmcnt(0)\nbuffer_store_dwordx4 {vr(AC+12,4)}, {vLin}, {WS}, {oQA} offen {P.get('bfl','sc1')}\ns_mov_b64 exec, -1\ns_waitcnt vmcnt(0)")
    sig("PUBB")
    a("L_s3:")
    def areads(kt):
        for s in range(12): a(f"ds_read_b128 {vr(FR+48*kt+4*s,4)}, {vA[s&3]} offset:{24576*kt+256*(s>>2)}")
    def qloads():
        if P.get("skipq"): return
        for s in range(12): a(f"buffer_load_dwordx4 {vr(QR+4*s,4)}, {vQa}, {WS}, {oQL[s>>2]} offen offset:{2048*((s>>1)&1)+512*(s&1)} sc1")
    if P["thrQ"]>=114:
        wait_flag("CNT",114)
        areads(0)
    wait_flag("PUBB",3)
    if P["thrQ"]!=114: wait_flag("CNT",P["thrQ"])
    stamp(4); qloads(); sig("QISS")
    if P["thrQ"]<114:
        wait_flag("CNT",114)
        areads(0)
    if P["thrQ"]<162: wait_flag("CNT",162)
    areads(1)
    sig("RDA")
    a("s_waitcnt lgkmcnt(0)\ns_branch L_s3m")
    l,ok=loop_head("S3")
    qloads()
    a("L_s3m:")
    BQ=lambda f: FR+4*f
    def breads():
        for f in range(24):
            s4,ct=divmod(f,3)
            for e2 in range(2): a(f"ds_read_b64_tr_b16 {vr(BQ(f)+2*e2,2)}, {vB[ct]} offset:{3200*(8*e2+2*(s4&3))+384*(s4>>2)}")
        if not any(at<=60 and fl in (M_,K_,D_,C_,V_) for at,fl,_ in fsched): sig("RDB")
    TQ=[8,12]
    def fix(sg):
        L0=QR+8*sg; L1=L0+4
        o=[f"s_waitcnt vmcnt({10-2*sg})"]
        o+=[f"v_cndmask_b32_dpp v{TQ[sg&1]+k}, v{L1+k}, v{L0+k}, vcc quad_perm:[0,0,2,2] {DP}" for k in range(4)]
        o+=["s_not_b64 vcc, vcc"]
        o+=[f"v_cndmask_b32_dpp v{L1+k}, v{L0+k}, v{L1+k}, vcc quad_perm:[1,1,3,3] {DP}" for k in range(4)]
        o+=["s_not_b64 vcc, vcc"]
        return o
    a("s_mov_b32 vcc_lo, 0x55555555\ns_mov_b32 vcc_hi, 0x55555555")
    a("\n".join(fix(0)))
    for sg in range(6):
        nx=fix(sg+1) if sg<5 else []
        cut=[3,6,8,11]; st_=0
        for i in range(4):
            pi,kt=i>>1,i&1
            qreg=TQ[sg&1] if pi==0 else QR+8*sg+4
            a(f"v_mfma_f32_16x16x32_bf16 {vr(AC+4*kt,4)}, {vr(FR+48*kt+4*(2*sg+pi),4)}, {vr(qreg,4)}, {vr(AC+4*kt,4) if 2*sg+pi else 0}")
            if nx: a("\n".join(nx[st_:cut[i]])); st_=cut[i]
    a(f"s_cmp_eq_u32 {sKH}, 0\nv_cmp_u_f32 vcc, v{AC}, v{AC+4}\ns_cbranch_vccnz {l}\n{ok}:")
    if any(x[1]==("S3K",4) for x in P["sched"]): sig("S3K")
    stamp(6)
    far[-1]=far[-1].replace("s_nop 7",f"s_cmp_eq_u32 {sKH}, 0\ns_nop 7")
    a(f"s_cbranch_scc1 {'L_soft' if P['blate'] else 'L_nox'}")
    a(f"ds_write_b128 {vXa}, {vr(AC,4)}\nds_write_b128 {vXa}, {vr(AC+4,4)} offset:1024\nds_add_u32 v6, {vOne} offset:{F['X0']}")
    if P["blate"]: a("s_branch L_s4\nL_soft:")
    else:
        a("L_nox:")
        breads()
        a("s_cbranch_scc0 L_s4\nL_soft:")
    l=a.lab("XW")
    spin(l); a(f"ds_read_b32 {vTmp}, v6 offset:{F['X0']}\nds_read_b128 {vr(AC+8,4)}, {vXa}\nds_read_b128 {vr(AC+12,4)}, {vXa} offset:1024")
    a(f"s_waitcnt lgkmcnt(0)\nv_cmp_gt_u32 vcc, 1, {vTmp}\ns_cbranch_vccnz {l}")
    for k in range(4): a(f"v_pk_add_f32 {vr(AC+2*k,2)}, {vr(AC+2*k,2)}, {vr(AC+8+2*k,2)}")
    a(f"v_max3_f32 v8, v{AC}, v{AC+1}, v{AC+2}\nv_max3_f32 v9, v{AC+3}, v{AC+4}, v{AC+5}\nv_max3_f32 v8, v8, v{AC+6}, v{AC+7}\nv_max_f32 v8, v8, v9")
    xreduce("v_max_f32","v8","v9")
    a("v_ceil_f32 v8, v8\ns_cmp_eq_u32 s50, 0")
    for k in range(4): a(f"v_pk_add_f32 {vr(AC+2*k,2)}, {vr(AC+2*k,2)}, v[8:9] op_sel_hi:[1,0] neg_lo:[0,1] neg_hi:[0,1]")
    for k in range(8): a(f"v_exp_f32 v{AC+k}, v{AC+k}")
    for k in range(4): a(f"v_cvt_pk_bf16_f32 v{AC+8+k}, v{AC+2*k}, v{AC+2*k+1}")
    (lambda t: a(t.replace("offen","offen sc1")) if P["gC"] else mstore(t))(f"buffer_store_dwordx4 {vr(AC+8,4)}, {vLin}, {WS}, {oP} offen\ns_mov_b64 exec, 0xffff\nbuffer_store_dword v8, {vM0}, {WS}, {oM} offen")
    if P["hintC"] and not P["ackC"] and not P.get("verC"): a(f"buffer_store_dword v{vS+2}, v209, {WS}, {oHW} offen")
    a("s_mov_b64 exec, -1")
    a(f"v_pk_add_f32 {vr(AC,2)}, {vr(AC,2)}, {vr(AC+2,2)}\nv_pk_add_f32 {vr(AC+4,2)}, {vr(AC+4,2)}, {vr(AC+6,2)}\nv_pk_add_f32 {vr(AC,2)}, {vr(AC,2)}, {vr(AC+4,2)}\nv_add_f32 v9, v{AC}, v{AC+1}")
    a(f"ds_write_b64 {vSt}, v[8:9]")
    sig("PUBC")
    if P["hintC"] and P.get("verC"):
        vk=a.lab("VK")
        for tr_ in range(2):
            a(f"s_add_u32 s96, s28, {oP}\ns_addc_u32 s97, s29, 0" if tr_==0 else "")
            for k in range(8): a(f"s_load_dword s{20+k}, s[96:97], {128*k+64*(1-tr_)}")
            a("s_waitcnt lgkmcnt(0)\ns_or_b64 s[20:21], s[20:21], s[22:23]\ns_or_b64 s[24:25], s[24:25], s[26:27]\ns_or_b64 s[20:21], s[20:21], s[24:25]\ns_or_b32 s20, s20, s21\ns_bitcmp0_b32 s20, 31")
            a(f"s_cbranch_scc1 {vk}")
        a(f"s_waitcnt vmcnt(0)\n{vk}:\ns_mov_b64 exec, 0xffff\nbuffer_store_dword v{vS+2}, v209, {WS}, {oHW} offen\ns_mov_b64 exec, -1")
    elif P["hintC"] and P["ackC"]: a(f"s_mov_b64 exec, 0xffff\ns_waitcnt vmcnt(0)\nbuffer_store_dword v{vS+2}, v209, {WS}, {oHW} offen\ns_mov_b64 exec, -1")
    a("L_s4:")
    stamp(7)
    if P["blate"]: breads()
    wait_flag("PUBC",2)
    stamp(8)
    a("v_mov_b32 v13, 1")
    if P["mshare"]: a(f"s_branch L_s4l\nL_s4f:\nds_read_b64 v[8:9], {vSt} offset:1024\ns_waitcnt lgkmcnt(0)\nv_cmp_u_f32 vcc, v8, v9\nv_max_f32 v10, v8, v9\ns_cbranch_vccz L_s4p\nL_s4l:")
    l,ok=loop_head("S4",("S4M",))
    a(f"buffer_load_dword v8, {vMl}, {WS}, {oML[0]} offen sc1\nbuffer_load_dword v9, {vMl}, {WS}, {oML[1]} offen sc1")
    a(f"s_waitcnt vmcnt(0)\nv_cmp_u_f32 vcc, v8, v9\nv_max_f32 v10, v8, v9\ns_cbranch_vccnz {'L_s4f' if P['mshare'] else l}")
    if P["mshare"]: a(f"ds_write_b64 {vSt}, v[8:9] offset:1024")
    a("L_s4p:")
    def ploads(lo,hi):
        for s in range(lo,hi): a(f"buffer_load_dwordx4 {vr(QR+4*s,4)}, {vPl}, {WS}, {oPL[s>>2]} offen offset:{256*(s&3)} sc1")
        if hi==8 and lo<8:
            sig("S4M","v13"); a("v_mov_b32 v13, 0"); stamp(5)
            if P["lateG"]==3: a(f"ds_read_b32 v14, {vL4} offset:{F['GOK']}")
    n1_,n2_=P["psplit"]
    ploads(0,n1_)
    xreduce("v_max_f32","v10","v11")
    ploads(n1_,n1_+n2_)
    a("v_sub_f32 v8, v10, v8\nv_sub_f32 v9, v10, v9\nv_min_f32 v8, s49, v8\nv_min_f32 v9, s49, v9\nv_cvt_u32_f32 v8, v8\nv_cvt_u32_f32 v9, v9\nv_mul_u32_u24 v8, s48, v8\nv_mul_u32_u24 v9, s48, v9")
    ploads(n1_+n2_,8)
    a(f"s_waitcnt vmcnt(7)")
    for k in range(4): a(f"v_pk_sub_u16 v{QR+k}, v{QR+k}, v8 clamp")
    for s in range(8):
        mf=lambda ct: a(f"v_mfma_f32_16x16x32_bf16 {vr(AC+4*ct,4)}, {vr(BQ(3*s+ct),4)}, {vr(QR+4*s,4)}, {vr(AC+4*ct,4) if s else 0}")
        q=QR+4*s
        if s==0: a(f"v_or3_b32 v12, v{q}, v{q+1}, v{q+2}\nv_or_b32 v12, v12, v{q+3}")
        mf(0)
        if s<7:
            a(f"s_waitcnt vmcnt({6-s})")
            a(f"v_pk_sub_u16 v{q+4}, v{q+4}, v{8+((s+1)>>2)} clamp\nv_pk_sub_u16 v{q+5}, v{q+5}, v{8+((s+1)>>2)} clamp")
        mf(1)
        if s<7: a(f"v_pk_sub_u16 v{q+6}, v{q+6}, v{8+((s+1)>>2)} clamp\nv_pk_sub_u16 v{q+7}, v{q+7}, v{8+((s+1)>>2)} clamp")
        mf(2)
        if s<7: a(f"v_or3_b32 v12, v12, v{q+4}, v{q+5}\nv_or3_b32 v12, v12, v{q+6}, v{q+7}")
    a(f"v_and_b32 v12, 0x80008000, v12\nv_cmp_ne_u32 vcc, 0, v12\ns_cbranch_vccnz {l}\n{ok}:")
    if P["lateG"]==3:
        gw=a.lab("GW"); gb=a.lab("GB")
        a(f"s_waitcnt lgkmcnt(0)\nv_cmp_ne_u32 vcc, 1, v14\ns_cbranch_vccnz {gw}\n{gb}:")
        far.append(f"{gw}:\nds_read_b32 v14, {vL4} offset:{F['GOK']}\ns_waitcnt lgkmcnt(0)\nv_cmp_ne_u32 vcc, 1, v14\ns_cbranch_vccnz {gw}\ns_nop 4\ns_branch {gb}")
    sig("S4K")
    stamp(9)
    for k in range(6): a(f"v_cvt_pk_bf16_f32 v{QR+k}, v{AC+2*k}, v{AC+2*k+1}\nds_bpermute_b32 v{CT+k+k//3}, {vBp}, v{QR+k}")
    if P.get("dhalf"): a(f"s_cmp_eq_u32 {sKH}, 0\ns_cbranch_scc0 L_nod")
    a(f"s_waitcnt lgkmcnt(3)\nbuffer_store_dwordx4 {vr(CT,4)}, {vC4}, {WS}, {oCL} offen sc1")
    a(f"s_waitcnt lgkmcnt(0)\nbuffer_store_dwordx4 {vr(CT+4,4)}, {vC4}, {WS}, {oCL} offen offset:64 sc1")
    if P.get("dhalf"): a("L_nod:")
    sig("DST")
    stamp(10)
    a(f"s_waitcnt vmcnt({P.get('dack',0)})")
    sig("PUBD")
    F6=FR+48
    def s6reads(half):
        for s in range(3*half,3*half+3):
            for t in range(2):
                for e2 in range(2): a(f"ds_read_b64_tr_b16 {vr(F6+8*s+4*t+2*e2,2)}, {vT6[t]} offset:{(4*s+2*e2)*2048}")
    a(f"s_cmp_eq_u32 {sW}, 3\ns_cbranch_scc1 L_s6")
    wait_flag("CNT","s47")
    for t in range(4):
        for h in range(6): a(f"ds_read_b64_tr_b16 {vr(FR+12*t+2*h,2)}, {vT1[t]} offset:{2*h*3072}")
    l=a.lab("V1")
    spin(l); a(f"ds_read_b32 {vTmp}, {vL4} offset:{F['V1B']}")
    for s in range(3): a(f"ds_read_b128 {vr(QR+4*s,4)}, {vVec} offset:{VEC1B-VEC1A+64*s}")
    a(f"s_waitcnt lgkmcnt(0)\nv_cmp_gt_u32 vcc, 1, {vTmp}\ns_cbranch_vccnz {l}")
    stamp(11)
    for t in range(4):
        for s in range(3):
            a(f"v_mfma_f32_16x16x32_bf16 {vr(AC+4*t,4)}, {vr(FR+12*t+4*s,4)}, {vr(QR+4*s,4)}, {vr(AC+4*t,4) if s else 0}")
    a("s_cmp_eq_u32 s50, 0")
    publish4(AC, vS, vPub, oE, mode=True)
    sig("PUBE")
    a('; ---- S6: output projection (w_o) or second FFN GEMV (w2)')
    a("L_s6:")
    stamp(12)
    a(f"s_cmp_lt_u32 {sJ}, 5\ns_cbranch_scc0 L_fin")
    a("L_s6go:")
    a(f"v_lshlrev_b32 v6, 2, {vLane}\ns_mov_b32 s56, 0xffff0000\ns_mov_b32 s57, 0")
    wait_flag("CNT",t6)
    s6reads(0)
    wait_flag("CNT",246)
    s6reads(1)
    stamp(13)
    vec2_mfma("V2B",1,VEC2B,False,F6)
    a(f"s_mov_b32 exec_hi, 0\nv_cndmask_b32 v7, v{AC}, v{AC+4}, s[56:57]\nbuffer_store_dword v7, v6, {WS}, {oF} offen sc1")
    stamp(14)
    a("s_mov_b64 exec, -1\ns_waitcnt vmcnt(0)")
    sig("PUBF")
    a("s_branch L_fin")
    if P["incC"]:
        i_=a.L.index("L_soft:"); a.L[i_:i_]=incstub.split("\n")

    if P.get("spf3"):
        a("L_w3p:")
        n0_=len(a.L)
        sprefetch(*P["spf3"])
        a.L[n0_:]=[x.replace("s96, s96, s14","s96, s96, s26").replace("s97, s15, 0","s97, s27, 0").replace("s96, s96, s22","s96, s96, s24").replace("s97, s23, 0","s97, s25, 0") for x in a.L[n0_:]]
        stamp(1)
        a("s_branch L_s3")
    GA=16; GD=32; GX=72
    def gather_setup(vOff, stride):
        a(f"v_mul_u32_u24 {vOff}, {stride}, {vGl}\nv_lshl_add_u32 {vOff}, {vN}, 4, {vOff}")
        a(f"v_and_b32 v6, 1, {vN}\nv_lshlrev_b32 v6, 4, v6\nv_mov_b32 v7, 0x3f80\nv_lshlrev_b32 v6, v6, v7\nv_lshrrev_b32 v7, 1, {vN}")
        for k in range(6): a(f"v_cmp_eq_u32 vcc, {k}, v7\nv_cndmask_b32 v{GA+k}, 0, v6, vcc")
    def gather(nq, vOff, soffs, name, xcc=False, tag="s[32:33]"):
        if xcc: a(f"s_andn2_b32 {sBud}, {sBud}, 15")
        l,ok=loop_head(name, ("GISS",) if xcc=="q" and P["holdG"] else ())
        if nq==3:
            for u in range(3): a(f"v_mov_b32 v{GD+26+4*u}, s58")
        for q in range(nq):
            if q==2: a("s_mov_b32 exec_hi, 0")
            for u in range(3):
                a(f"buffer_load_dwordx4 {vr(GD+4*(3*q+u),4)}, {vOff}, {WS}, {soffs[q]} offen offset:{256*u} sc1")
        if nq==3: a("s_mov_b64 exec, -1")
        if xcc=="q" and P["holdG"]: sig("GISS")
        n=3*nq
        for k in range(n):
            a(f"s_waitcnt vmcnt({n-1-k})\nv_mfma_f32_16x16x16_bf16 {vr(GX,4)}, {vr(GA+2*(k%3),2)}, {vr(GD+4*k,2)}, {vr(GX,4) if k else 0}")
        if not xcc:
            for k in range(n): a(f"v_cmpx_eq_u64 vcc, s[32:33], {vr(GD+4*k+2,2)}")
            a(f"s_cmp_eq_u64 exec, -1\ns_mov_b64 exec, -1\ns_cbranch_scc0 {l}\n{ok}:")
        else:
            sl=a.lab("SL")
            for k in range(n): a(f"v_cmpx_eq_u64 vcc, s[58:59], {vr(GD+4*k+2,2)}")
            a(f"s_cmp_eq_u64 exec, -1\ns_mov_b64 exec, -1\ns_cbranch_scc1 {ok}")
            if xcc=="q" and P["thrG2"]: a(f"ds_read_b32 {vTmp}, {vL4} offset:{F['V2A']}\ns_waitcnt lgkmcnt(0)\nv_cmp_lt_u32 vcc, 0, {vTmp}\ns_cbranch_vccnz L_gadone\ns_cmp_eq_u32 {sW}, 6\ns_cbranch_scc1 {l}")
            for k in range(n): a(f"v_or_b32 v{GD+4*k+2}, 15, v{GD+4*k+2}\nv_cmpx_eq_u64 vcc, {tag}, {vr(GD+4*k+2,2)}")
            a(f"s_cmp_eq_u64 exec, -1\ns_mov_b64 exec, -1\ns_cselect_b32 s60, 0, {sBud}\ns_cselect_b32 s63, 1, 0\ns_and_b32 s60, s60, 15\ns_cbranch_scc1 {l}\ns_branch {sl}\n{ok}:")
            far.append(f"""{sl}:
s_mov_b32 exec_hi, 0xffff
buffer_load_dwordx4 v[76:79], v28, {WS}, s61 offen offset:{RQ-RP} sc1
s_waitcnt vmcnt(0)
buffer_store_dwordx4 v[76:79], v28, {WS}, s61 offen offset:{RQ-RP} sc1
s_mov_b64 exec, -1
s_waitcnt vmcnt(0)
s_cmp_eq_u32 s63, 0
s_cbranch_scc1 {l}
"""+(f"s_branch {ok}" if xcc!="q" else f"""v_mov_b32 v76, -1
v_mov_b32 v77, -1
v_mov_b32 v78, -1
v_mov_b32 v79, -1
v_mov_b32 v27, 3
buffer_store_dwordx4 v[76:79], v28, {WS}, s61 offen sc1
buffer_store_dwordx4 v[76:79], v28, {WS}, s61 offen offset:1024 sc1
s_mov_b64 exec, 0xffff
buffer_store_dwordx4 v[76:79], v28, {WS}, s61 offen offset:2048 sc1
s_mov_b64 exec, -1
s_waitcnt vmcnt(0)
s_branch {ok}"""))
    def vec2_write(vAddr, flag, v=vOne, op="ds_add_u32"):
        a(f"s_mov_b32 exec_hi, 0xffff\nv_cvt_pk_bf16_f32 v{GX}, v{GX}, v{GX+1}\nv_cvt_pk_bf16_f32 v{GX+1}, v{GX+2}, v{GX+3}\nds_write_b64 {vAddr}, {vr(GX,2)}\ns_mov_b64 exec, -1")
        a(f"{op} {vL4}, {v} offset:{F[flag]}")
    def vec2b_addr(dst):
        a(f"v_lshlrev_b32 {dst}, 7, {vGl}\nv_bfe_u32 v6, {vN}, 1, 1\nv_lshl_add_u32 {dst}, v6, 6, {dst}\nv_lshrrev_b32 v6, 2, {vN}\nv_lshl_add_u32 {dst}, v6, 4, {dst}\nv_and_b32 v6, 1, {vN}\nv_lshl_add_u32 {dst}, v6, 3, {dst}\nv_add_u32 {dst}, {VEC2B}, {dst}")

    a("L_w7:")
    a(f"s_movk_i32 s43, {P['thrG']+CB}")
    tag_finish()
    if P["tlb"]:
        a("; first and last line of every tile this workgroup streams later: warms the address translation while w_q is in flight")
        a(f"s_mul_i32 s52, {sJ}, {96*12288}\ns_mul_i32 s53, {sG}, 384\ns_add_u32 s52, s52, s53\nv_mul_u32_u24 v8, {95*12288}, {vLane}\nv_add_u32 v8, s52, v8")
        a(f"s_mul_i32 s52, {sG}, 393216\nv_mul_u32_u24 v9, 393212, {vLane}\nv_add_u32 v9, s52, v9")
        a(f"s_min_u32 s54, {sV}, 9\ns_mul_i32 s52, {sG}, 245760\ns_mul_i32 s53, {sX}, 245760\ns_cmp_lt_u32 {sJ}, 5\ns_cselect_b32 s52, s52, s53\ns_cselect_b64 s[48:49], s[14:15], s[22:23]\nv_mul_u32_u24 v10, {191*1280}, {vLane}\nv_add_u32 v10, s52, v10")
        a(f"s_mul_i32 s52, s54, {64*3072}\nv_mul_u32_u24 v11, {63*3072}, {vLane}\nv_add_u32 v11, s52, v11\nv_mul_u32_u24 v12, {0x36e000}, {vLane}\nv_add_u32 v12, 0x2000, v12")
    if P["tlb"]:
        a(f"s_mov_b64 exec, 3\nglobal_load_dword v13, v8, s[10:11]\nglobal_load_dword v13, v9, s[6:7]\nglobal_load_dword v13, v12, s[28:29]\nglobal_load_dword v13, v8, s[12:13]\nglobal_load_dword v13, v10, s[48:49]")
        a(f"s_cmp_lt_u32 {sV}, 10\ns_cbranch_scc0 L_ntw\nglobal_load_dword v13, v11, s[18:19]\nL_ntw:\ns_mov_b64 exec, -1")
    a(f"L_ga:\ns_setprio {P['prio'][1]}")
    gather_setup("v24", RS)
    a(f"v_lshlrev_b32 v28, 4, {vLane}\ns_mul_i32 s61, {sB}, {RS}\ns_add_u32 s61, s61, {REC+RP}")
    a(f"v_lshlrev_b32 v25, 7, {vGl}\nv_and_b32 v6, 3, {vN}\nv_lshl_add_u32 v25, v6, 5, v25\nv_lshrrev_b32 v6, 2, {vN}\nv_lshl_add_u32 v25, v6, 3, v25\nv_add_u32 v25, {VEC2A}, v25")
    vec2b_addr("v26")
    a(f"s_mul_i32 s54, {sG}, {8*RS}\ns_add_u32 s52, s54, {REC+RE}\ns_add_u32 s53, s52, {4*RS}\ns_add_u32 s54, s54, {REC+RQ}\ns_add_u32 s55, s54, {4*RS}")
    a(f"s_mov_b32 s56, {f2u(192**-0.5*math.log2(math.e))}\ns_mov_b32 s57, s56")
    a("s_getreg_b32 s58, hwreg(HW_REG_XCC_ID, 0, 4)\ns_xor_b32 s58, s58, s32\ns_mov_b32 s59, s33\nv_mov_b32 v27, 1")
    if P["hintA"]:
        a(f"s_lshl_b32 s43, {sG}, 11\ns_add_u32 s43, s43, {HT}\ns_lshl2_add_u32 s51, {sJ}, s43\nv_lshlrev_b32 v6, 6, {vLane}\nv_mov_b32 v7, s32\ns_mov_b32 s48, s32\ns_mov_b32 s49, s32")
    if P["gA"]==1:
        a(f"s_lshl_b32 s43, {sG}, 11\ns_add_u32 s43, s43, {HT}\ns_add_u32 s96, s28, s43\ns_addc_u32 s97, s29, 0\ns_lshl_b32 s51, {sB}, 8\ns_add_u32 s51, s51, {HT}\ns_mov_b32 s48, s32\ns_mov_b32 s49, s32")
        a("v_mov_b32 v8, s32\nv_mov_b32 v9, s32\nv_mov_b32 v10, s32\nv_mov_b32 v11, s32")
    wait_flag("PUBA",3)
    if P["gA"]==1:
        a(f"s_mov_b64 exec, 15\nbuffer_store_dwordx4 v[8:11], v28, {WS}, s51 offen sc1\ns_mov_b64 exec, -1")
        ghint("s[96:97]", 256, 8, "s[48:49]")
    elif P["hintA"]:
        a(f"s_mov_b64 exec, 0xffff\nbuffer_store_dword v7, v6, {WS}, s51 offen\ns_mov_b64 exec, -1")
        hint_wait("s43", 8, "s[48:49]")
    else: wait_flag("CNT","s43")
    stamp(1)
    gather(2,"v24",["s54","s55"],"GA", xcc="q")
    stamp(2)
    a(f"v_pk_mul_f32 {vr(GX,2)}, {vr(GX,2)}, s[56:57]\nv_pk_mul_f32 {vr(GX+2,2)}, {vr(GX+2,2)}, s[56:57]")
    vec2_write("v25","V2A","v27","ds_max_u32")
    if P["thrG2"]: a(f"L_gadone:\ns_cmp_eq_u32 {sW}, 6\ns_cbranch_scc1 L_w6b")
    a(f"s_lshl_b32 s54, {sX}, 14\ns_and_b32 s55, {sG}, 3\ns_lshl_b32 s55, s55, 4\ns_add_u32 s54, s54, s55\ns_add_u32 s44, s54, {ST}\ns_add_u32 s45, s44, 4096\ns_add_u32 s46, s44, 8192\ns_add_u32 s47, s44, 12288\nv_lshlrev_b32 v22, 6, {vLane}\nv_add_u32 v23, {XB}, v28")
    wait_flag(*{"DST":("DST",4),"S4M":("S4M",1),"PUBC":("PUBC",2),"PUBD":("PUBD",4)}[P["stattrig"]])
    stamp(3)
    l,ok=loop_head("SS")
    SM=108
    for k in range(4): a(f"buffer_load_dwordx4 {vr(SM+4*k,4)}, v22, {WS}, s{44+k} offen sc1")
    a("s_waitcnt vmcnt(0)")
    for k in range(4): a(f"v_cmpx_eq_u64 vcc, s[32:33], {vr(SM+4*k+2,2)}")
    a(f"s_cmp_eq_u64 exec, -1\ns_mov_b64 exec, -1\ns_cbranch_scc0 {l}\n{ok}:")
    if ("STR",1) in P["dtrig"]: sig("STR")
    stamp(4)
    st3=("quad_perm:[1,0,3,2]","quad_perm:[2,3,0,1]","row_half_mirror")
    for i,s in enumerate(st3):
        for k in range(4):
            src = f"v{SM+4*k}" if i==0 else f"v{32+k}"
            a(f"v_max_f32_dpp v{32+k}, {src}, {src} {s} {DP}")
    a("v_max3_f32 v36, v32, v33, v34\nv_max_f32 v36, v36, v35")
    rowreduce("v_max_f32","v36",("row_mirror",))
    xreduce("v_max_f32","v36","v37")
    for k in range(4): a(f"v_sub_f32 v{SM+4*k}, v{SM+4*k}, v36\nv_sub_f32 v{32+k}, v{32+k}, v36")
    for k in range(4): a(f"v_exp_f32 v{SM+4*k}, v{SM+4*k}\nv_exp_f32 v{32+k}, v{32+k}")
    a(f"v_mul_f32 v38, v{SM}, v{SM+1}\nv_fmac_f32 v38, v{SM+4}, v{SM+5}\nv_fmac_f32 v38, v{SM+8}, v{SM+9}\nv_fmac_f32 v38, v{SM+12}, v{SM+13}")
    for k in range(4): a(f"v_cvt_pk_bf16_f32 v{32+k}, v{32+k}, v{32+k}")
    rowreduce("v_add_f32","v38")
    xreduce("v_add_f32","v38","v37")
    a("v_rcp_f32 v38, v38")
    a("ds_write_b128 v23, v[32:35]\nds_write_b32 v23, v38 offset:1024")
    sig("STOK")
    stamp(5)
    a(f"s_cmp_lt_u32 {sJ}, 5\ns_cbranch_scc1 L_w7e\ns_cmp_lt_u32 {sV}, 10\ns_cbranch_scc0 L_fin")
    a("L_ffn2:")
    trcore("v8", vTmp)
    a(f"s_and_b32 s52, {sW}, 1\ns_lshl_b32 s55, s52, 6\nv_lshrrev_b32 v6, 5, {vLane}\nv_lshl_add_u32 v8, v6, 11, v8\nv_xor_b32 v8, s55, v8\nv_add_u32 {vT6[0]}, {R2}, v8\nv_xor_b32 {vT6[1]}, 32, {vT6[0]}")
    a(f"v_lshlrev_b32 {vVec}, 4, {vGl}\nv_add_u32 {vVec}, {VEC1A}, {vVec}")
    a(f"s_mul_i32 s54, {sX}, 2560\ns_lshl_b32 s55, {sV}, 8\ns_add_u32 s54, s54, s55\ns_lshl_b32 s55, s52, 7\ns_add_u32 s54, s54, s55\ns_add_u32 s54, s54, {YP}\ns_movk_i32 {t6}, {234+CB}")
    wait_flag(*(("GOK",1) if P["lateG"]==3 else ("PUBC",2)))
    a("s_branch L_s6go")
    a("L_w7e:")
    wait_flag("PUBE",3)
    a("L_ge:")
    stamp(6)
    gather(2,"v24",["s52","s53"],"GE")
    stamp(7)
    vec2_write("v26","V2B")
    if P["ge2"]: a(f"s_cmp_eq_u32 {sW}, 6\ns_cbranch_scc0 L_fin\ns_cmp_lt_u32 s2, 20\ns_cbranch_scc1 L_fin2")
    a("s_branch L_fin")

    a('; ======== W5: sentinel fill, fill flags, statistics store, weighted combine of the 32 key-group partials')
    a("L_w5:")
    a(f"v_lshlrev_b32 v6, 4, {vLane}\nv_mov_b32 v8, -1\nv_mov_b32 v9, -1\nv_mov_b32 v10, -1\nv_mov_b32 v11, -1")
    a(f"s_mul_i32 s52, {sB}, {RS}\ns_add_u32 s52, s52, {REC}\ns_add_u32 s53, s52, {RP}")
    if P["hintA"] or P["hintC"]: a(f"s_lshl_b32 s54, {sB}, 8\ns_add_u32 s54, s54, {HT-60*64}\nv_mov_b32 v7, s54\nv_mov_b32 v23, s53\nv_cmp_gt_u32 vcc, 60, {vLane}\nv_lshlrev_b32 v22, 6, {vLane}\nv_cndmask_b32 v7, v7, v23, vcc\nv_add_u32 v7, v7, v22")
    else: a(f"v_lshlrev_b32 v22, 6, {vLane}\nv_add_u32 v7, s53, v22")
    pm=((1<<64)-1)
    if P["gC"]: pm&=~((1<<36)-1)
    if P["gA"]: pm&=~(0xffff<<48)
    if not (P["hintA"] or P["hintC"]): pm&=~(0xf<<60)
    pm2=0
    if P.get("latetouch"): pm2=pm&((1<<48)-1); pm&=~pm2
    if pm: a(f"s_mov_b32 exec_lo, {pm&0xffffffff}\ns_mov_b32 exec_hi, {pm>>32}\nbuffer_load_dword v23, v7, {WS}, 0 offen sc1\ns_mov_b64 exec, -1")
    def gclear():
        a(f"s_cmp_lt_u32 s2, 100\ns_cbranch_scc0 L_ng\ns_lshl_b32 s54, s2, 10\ns_add_u32 s54, s54, {G}\nbuffer_store_dwordx4 v[8:11], v6, {WS}, s54 offen sc1\nL_ng:")
    if not P.get("lateG"): gclear()
    a(f"s_setprio {P['prio'][1]}")
    MK=12
    a(f"v_and_b32 v7, 1, {vN}\nv_lshlrev_b32 v7, 4, v7\nv_mov_b32 v16, 0xffff\nv_lshlrev_b32 v7, v7, v16\nv_lshrrev_b32 v16, 1, {vN}")
    for k in range(3): a(f"v_cmp_eq_u32 vcc, {2*k}, v16\nv_cndmask_b32 v{MK+k}, 0, v7, vcc")
    for k in range(8): a(f"v_mov_b32 v{43+4*k}, 0")
    a(f"v_bfe_u32 v7, {vN}, 2, 1\nv_mad_u32_u24 v7, v7, 3, {vGl}\nv_lshrrev_b32 v17, 3, {vN}\nv_lshlrev_b32 v18, 6, v17\nv_lshl_add_u32 v18, v7, 2, v18")
    a(f"v_lshlrev_b32 v19, 3, v17\nv_lshl_add_u32 v19, v7, 2, v19\nv_add_u32 v19, 112, v19\nv_cmp_gt_u32 vcc, 4, v7\nv_cndmask_b32 v18, v19, v18, vcc")
    a(f"v_and_b32 v7, 3, {vN}\nv_lshl_add_u32 v18, v7, 4, v18\nv_add_u32 v18, {VEC1B}, v18")
    a(f"s_movk_i32 s55, {FLG}\nv_lshlrev_b32 v16, 7, {vLane}")
    tag_finish()
    if pm2:
        wait_flag("CNT",P["latetouch"])
        a(f"s_mov_b32 exec_lo, {pm2&0xffffffff}\ns_mov_b32 exec_hi, {pm2>>32}\nbuffer_load_dword v23, v22, {WS}, s53 offen sc1\ns_mov_b64 exec, -1")
    if P.get("lateG")==1: gclear()
    a("s_waitcnt vmcnt(0)")
    if P.get("lateG")==2: gclear()
    cf="sc1" if P["gC"] else ""
    a(f"buffer_store_dwordx4 v[8:11], v6, {WS}, s53 offen {cf}\nbuffer_store_dwordx4 v[8:11], v6, {WS}, s53 offen offset:1024 {cf}\ns_mov_b64 exec, 0xffff\nbuffer_store_dwordx4 v[8:11], v6, {WS}, s53 offen offset:2048 {cf}\ns_mov_b64 exec, -1")
    stamp(1)
    wait_flag("CNT",P["thrF"])
    l,ok=loop_head("FL")
    a(f"s_mov_b64 exec, 0xff\nbuffer_load_dwordx2 v[24:25], v16, {WS}, s55 offen sc1\ns_waitcnt vmcnt(0)\nv_cmp_ne_u64 vcc, s[32:33], v[24:25]\ns_mov_b64 exec, -1\ns_cbranch_vccnz {l}\n{ok}:")
    sig("CLR")
    stamp(2)
    if P.get("retouch"):
        wait_flag(*P["retouch"])
        a(f"s_mov_b32 exec_hi, 0x0000ffff\nbuffer_load_dword v23, v22, {WS}, s53 offen sc1\ns_mov_b64 exec, -1")
    a(f"s_add_u32 s53, s52, 4096\nv_add_u32 v20, {XB}, v6\ns_and_b32 s56, s32, 0xbfffbfff")
    a(f"v_lshlrev_b32 v7, 9, {vGl}\nv_lshl_add_u32 v7, {vN}, 3, v7\nv_add_u32 v7, {MLB}, v7\nv_lshrrev_b32 v17, 2, {vLane}\nv_lshlrev_b32 v17, 14, v17\nv_and_b32 v19, 3, {vLane}\nv_lshl_add_u32 v17, v19, 4, v17")
    a(f"s_lshl_b32 s54, {sB}, 6\ns_add_u32 s54, s54, {ST}\nv_mov_b32 v26, s32\nv_mov_b32 v27, s33")
    if P["lateG"]==3:
        a(f"s_mul_i32 s57, {sG}, 2560\ns_lshl_b32 s55, {sJ}, 9\ns_add_u32 s57, s57, s55\ns_add_u32 s57, s57, {OP}\ns_mov_b32 s58, -1")
        a(f"s_cmp_lt_u32 {sJ}, 5\ns_cbranch_scc1 L_g3\ns_mul_i32 s57, {sX}, 2560\ns_lshl_b32 s55, {sV}, 8\ns_add_u32 s57, s57, s55\ns_add_u32 s57, s57, {YP}\ns_mov_b32 s58, 0xffff\ns_cmp_lt_u32 {sV}, 10\ns_cselect_b32 s57, s57, {WSSIZE}\nL_g3:")
    wait_flag(*P["sttrig"])
    a(f"s_mov_b32 exec_hi, 0\nds_read_b64 v[24:25], v7\nds_read_b32 v28, v7 offset:132\nds_read_b32 v29, v7 offset:260\nds_read_b32 v30, v7 offset:388\ns_waitcnt lgkmcnt(0)")
    a(f"v_add_f32 v25, v25, v28\nv_add_f32 v29, v29, v30\nv_add_f32 v25, v25, v29\nbuffer_store_dwordx4 v[24:27], v17, {WS}, s54 offen sc1")
    if P["lateG"]==3: a(f"s_mov_b32 exec_lo, s58\nbuffer_store_dwordx4 v[8:11], v6, {WS}, s57 offen sc1")
    a("s_mov_b64 exec, -1")
    if P["lateG"]==3:
        a("s_waitcnt vmcnt(0)"); sig("GOK")
    SAa=40; SD=72; SX=104
    def clloads():
        if P.get("dhalf"):
            a("s_mov_b32 exec_lo, 0x00ff00ff\ns_mov_b32 exec_hi, 0x00ff00ff")
            for s in range(8): a(f"buffer_load_dwordx4 {vr(SD+4*s,4)}, v6, {WS}, s{52+(s>>2)} offen offset:{1024*(s&3)} sc1")
            a("s_mov_b64 exec, -1")
            return
        for s in range(8): a(f"buffer_load_dwordx4 {vr(SD+4*s,4)}, v6, {WS}, s{52+(s>>2)} offen offset:{1024*(s&3)} sc1")
    if P.get("dhalf"):
        for s in range(8): a(f"v_mov_b64 {vr(SD+4*s,2)}, 0\nv_mov_b32 v{SD+4*s+2}, 0\nv_mov_b32 v{SD+4*s+3}, s56")
    if P.get("probe"):
        nr,skip=P["probe"]
        R_=list(range(4,28))+list(range(44,52))
        a("s_add_u32 s96, s28, s52\ns_addc_u32 s97, s29, 0\ns_mov_b32 s57, s56")
        wait_flag("DST",4)
        for r_ in range(skip): a("s_load_dword s4, s[96:97], 252 glc\ns_waitcnt lgkmcnt(0)")
        a(f"s_movk_i32 s98, {nr}\nL_pr:")
        NPB=P.get("npb",32)
        for p_ in range(NPB): a(f"s_load_dword s{R_[p_]}, s[96:97], {256*(p_*32//NPB)+252} glc")
        a("s_waitcnt lgkmcnt(0)")
        pr=[f"s[{R_[2*i]}:{R_[2*i]+1}]" for i in range(16)]
        a(f"s_and_b64 s[58:59], {pr[0]}, {pr[1]}\ns_or_b64 s[60:61], {pr[0]}, {pr[1]}")
        for i in range(2,NPB//2): a(f"s_and_b64 s[58:59], s[58:59], {pr[i]}\ns_or_b64 s[60:61], s[60:61], {pr[i]}")
        a("s_xor_b64 s[58:59], s[58:59], s[56:57]\ns_xor_b64 s[60:61], s[60:61], s[56:57]\ns_or_b64 s[58:59], s[58:59], s[60:61]\ns_cbranch_scc0 L_cdgo")
        a("s_sub_u32 s98, s98, 1\ns_cmp_lg_u32 s98, 0\ns_cbranch_scc1 L_pr")
    wait_flag("PUBD",4)
    for w_ in P.get("dtrig",()): wait_flag(*w_)
    a("L_cdgo:")
    stamp(5)
    clloads()
    sig("CDI")
    l=a.lab("SW")
    spin(l); a(f"ds_read_b32 {vTmp}, {vL4} offset:{F['STOK']}\nds_read_b128 v[32:35], v20\nds_read_b32 v38, v20 offset:1024\ns_waitcnt lgkmcnt(0)\nv_cmp_gt_u32 vcc, 1, {vTmp}\ns_cbranch_vccnz {l}")
    stamp(4)
    for s in range(8):
        for r in range(3): a(f"v_and_b32_dpp v{SAa+4*s+r}, v{32+(s>>1)}, v{MK+r} row_newbcast:{8*(s&1)} {DP}")
    a("v_mov_b32 v39, v38\ns_branch L_cdm")
    l,ok=loop_head("CD")
    clloads()
    a("L_cdm:")
    for s in range(8):
        a(f"s_waitcnt vmcnt({7-s})\nv_mfma_f32_16x16x32_bf16 {vr(SX,4)}, {vr(SAa+4*s,4)}, {vr(SD+4*s,4)}, {vr(SX,4) if s else 0}")
    for s in range(8): a(f"v_cmpx_eq_u32 vcc, s56, v{SD+4*s+3}")
    a(f"s_cmp_eq_u64 exec, -1\ns_mov_b64 exec, -1\ns_cbranch_scc0 {l}\n{ok}:")
    stamp(6)
    a(f"s_mov_b32 exec_hi, 0xffff\nv_pk_mul_f32 {vr(SX,2)}, {vr(SX,2)}, v[38:39]\nv_cvt_pk_bf16_f32 v{SX}, v{SX}, v{SX+1}")
    a(f"ds_write_b32 v18, v{SX}\ns_mov_b64 exec, -1")
    sig("V1B")
    a("s_branch L_fin")

    a("L_w6:")
    a(f"v_lshlrev_b32 v6, 2, {vLane}\nv_add_u32 v6, {XB}, v6")
    a(f"s_mul_i32 s52, {sJ}, 160\ns_min_u32 s53, {sV}, 9\ns_lshl_b32 s53, s53, 7\ns_sub_u32 s53, s53, 256\nv_mov_b32 v16, s52\nv_mov_b32 v13, s53\nv_cmp_gt_u32 vcc, 32, {vLane}\nv_cndmask_b32 v16, v13, v16, vcc\nv_lshl_add_u32 v16, {vLane}, 3, v16\nv_add_u32 v16, {XB}, v16")
    a(f"v_bfe_u32 v7, {vLane}, 3, 2\nv_lshlrev_b32 v27, 6, v7\nv_and_b32 v7, 3, {vLane}\nv_lshl_add_u32 v27, v7, 4, v27\nv_bfe_u32 v7, {vLane}, 2, 1\nv_lshl_add_u32 v27, v7, 3, v27\nv_lshrrev_b32 v7, 5, {vLane}\nv_mul_u32_u24 v7, {VEC1F-VEC1A}, v7\nv_add_u32 v27, v27, v7\nv_add_u32 v27, {VEC1A}, v27")
    a("s_mov_b32 s54, 0xffff0000")
    wait_flag("CNT",0)
    for k in range(5): a(f"ds_read_b32 v{8+k}, v6 offset:{256*k}")
    a("ds_read_b64 v[14:15], v16\ns_waitcnt lgkmcnt(0)")
    stamp(1)
    for k in range(5): a(f"v_lshlrev_b32 v{32+2*k}, 16, v{8+k}\nv_and_b32 v{33+2*k}, s54, v{8+k}")
    a("v_pk_add_f32 v[44:45], v[32:33], v[34:35]\nv_pk_add_f32 v[46:47], v[36:37], v[38:39]\nv_pk_add_f32 v[44:45], v[44:45], v[40:41]\nv_pk_add_f32 v[44:45], v[44:45], v[46:47]\nv_add_f32 v44, v44, v45")
    rowreduce("v_add_f32","v44"); xreduce("v_add_f32","v44","v45")
    a(f"v_mul_f32 v44, {hex(f2u(1/640))}, v44")
    for k in range(10): a(f"v_sub_f32 v{32+k}, v{32+k}, v44")
    a("v_mul_f32 v46, v32, v32")
    for k in range(1,10): a(f"v_fmac_f32 v46, v{32+k}, v{32+k}")
    rowreduce("v_add_f32","v46"); xreduce("v_add_f32","v46","v45")
    def rbf(v): a(f"v_cvt_pk_bf16_f32 {v}, {v}, {v}\nv_and_b32 {v}, s54, {v}")
    a(f"v_mul_f32 v46, {hex(f2u(1/640))}, v46"); rbf("v46"); rbf("v44")
    a(f"v_add_f32 v46, {hex(f2u(1e-5))}, v46"); rbf("v46")
    a("v_sqrt_f32 v46, v46"); rbf("v46")
    a("v_rcp_f32 v46, v46")
    a("v_lshlrev_b32 v32, 16, v14\nv_and_b32 v33, s54, v14\nv_lshlrev_b32 v34, 16, v15\nv_and_b32 v35, s54, v15")
    for k in range(4): a(f"v_sub_f32 v{32+k}, v{32+k}, v44")
    a("v_cvt_pk_bf16_f32 v14, v32, v33\nv_cvt_pk_bf16_f32 v15, v34, v35")
    a("v_lshlrev_b32 v32, 16, v14\nv_and_b32 v33, s54, v14\nv_lshlrev_b32 v34, 16, v15\nv_and_b32 v35, s54, v15")
    for k in range(4): a(f"v_mul_f32 v{32+k}, v{32+k}, v46")
    a("v_cvt_pk_bf16_f32 v14, v32, v33\nv_cvt_pk_bf16_f32 v15, v34, v35")
    a("s_mov_b32 exec_lo, 0x000fffff\ns_mov_b32 exec_hi, 0xffff\nds_write_b64 v27, v[14:15]\ns_mov_b64 exec, -1")
    sig("V1A")
    stamp(2)
    tag_finish()
    if P["thrG2"]: a(f"s_movk_i32 s43, {P['thrG2']+CB}\ns_branch L_ga")
    a("L_w6b:\ns_mov_b32 s54, 0xffff0000")
    if P.get("spf6"):
        if P.get("spf6w"): wait_flag(*P["spf6w"])
        sprefetch(*P["spf6"])
        stamp(6)
    if P.get("wb6"):
        a(f"s_cmp_eq_u32 {sY}, 3\ns_cbranch_scc0 L_nwb")
        for fl in P["wb6"]:
            wait_flag(*fl)
            a("buffer_wbl2 sc1\ns_waitcnt vmcnt(0)")
        a("s_branch L_fin\nL_nwb:")
    a(f"s_cmp_lt_u32 s2, 20\ns_cbranch_scc1 L_final")
    if P["ge2"]: a(f"s_mov_b32 s40, 1\ns_cmp_lt_u32 {sJ}, 5\ns_cbranch_scc1 L_ge2")
    a(f"s_cmp_lt_u32 {sV}, 10\ns_cbranch_scc0 L_fin")
    masks()
    srd(44, 20, 3072)
    a(f"v_lshlrev_b32 v8, 7, {vGl}\nv_and_b32 v6, 3, {vN}\nv_lshl_add_u32 v8, v6, 5, v8\nv_lshrrev_b32 v6, 2, {vN}\nv_lshl_add_u32 v8, v6, 3, v8\ns_mul_i32 s52, {sX}, 384")
    a("v_add_u32 v86, s52, v8")
    if not P["latesmall"]: a(f"buffer_load_dwordx2 v[22:23], v86, {SA}, 0 offen")
    gather_setup("v24",8*RS); vec2b_addr("v26")
    a(f"v_lshlrev_b32 v28, 4, {vLane}\ns_mul_i32 s40, {sB}, {RS}\ns_add_u32 s40, s40, {REC+RP}\ns_mov_b32 s48, s32\ns_xor_b32 s49, s33, 1")
    a("s_getreg_b32 s50, hwreg(HW_REG_XCC_ID, 0, 4)\ns_xor_b32 s50, s50, s32")
    trcore("v80", vTmp)
    a(f"v_lshrrev_b32 v6, 5, {vLane}\nv_mul_u32_u24 v6, 3072, v6\nv_add_u32 v80, v80, v6\nv_add_u32 v80, {R3 if FF else R1}, v80")
    for t in range(1,4): a(f"v_xor_b32 v{80+t}, {32*t}, v80")
    a(f"v_lshlrev_b32 v84, 6, {vGl}\nv_lshl_add_u32 v84, {vN}, 4, v84\nv_lshlrev_b32 v85, 4, {vGl}\nv_add_u32 v85, {VEC1F}, v85")
    a(f"ds_read_b128 v[88:91], v85\nds_read_b128 v[92:95], v85 offset:64\nv_mov_b32 v78, s50\nv_mov_b32 v79, s49")
    for u in range(3): a(f"v_mov_b32 v{GD+24+4*u}, 0\nv_mov_b32 v{GD+25+4*u}, 0\nv_mov_b32 v{GD+27+4*u}, s49")
    a(f"s_mul_i32 s52, {sX}, {32*RS}\ns_add_u32 s52, s52, {REC+5*RS+RQ}\ns_add_u32 s53, s52, {RS}\ns_add_u32 s51, s53, {RS}\ns_add_u32 s55, s40, {RQ-RP}\ns_mov_b32 s43, 0")
    wait_flag("PUBC",2)
    if P["latesmall"]: a(f"buffer_load_dwordx2 v[22:23], v86, {SA}, 0 offen")
    wait_flag("CNT",186 if FF else 222)
    stamp(3)
    def f1reads():
        for t in range(4):
            for h in range(4): a(f"ds_read_b64_tr_b16 {vr(96+8*t+2*h,2)}, v{80+t} offset:{2*h*3072}")
    f1reads()
    l=a.lab("F1")
    a(f"{l}:")
    for t in range(4):
        a(f"v_add_u32 v{80+t}, 1024, v{80+t}\ns_waitcnt lgkmcnt({12-4*t})")
        a(f"v_mfma_f32_16x16x32_bf16 {vr(128+4*t,4)}, {vr(96+8*t,4)}, v[88:91], 0\nv_mfma_f32_16x16x32_bf16 {vr(128+4*t,4)}, {vr(100+8*t,4)}, v[92:95], {vr(128+4*t,4)}")
    f1reads()
    publish4(128, 76, "v84", "s55", mode="plain")
    a(f"s_add_u32 s55, s55, 256\ns_add_u32 s43, s43, 1\ns_cmp_lt_u32 s43, 3\ns_cbranch_scc1 {l}")
    stamp(4)
    a("s_mov_b32 s58, s50\ns_mov_b32 s59, s49\ns_mov_b32 s61, s40")
    gather(3,"v24",["s52","s53","s51"],"GH", xcc="h", tag="s[48:49]")
    stamp(5)
    a("v_lshlrev_b32 v8, 16, v22\nv_and_b32 v9, s54, v22\nv_lshlrev_b32 v10, 16, v23\nv_and_b32 v11, s54, v23")
    c1 = -2*math.sqrt(2/math.pi)*math.log2(math.e)
    a(f"s_mov_b32 s56, {f2u(c1*0.044715)}\nv_mov_b32 v7, {hex(f2u(c1))}")
    for k in range(4): a(f"v_add_f32 v{GX+k}, v{GX+k}, v{8+k}")
    for k in range(4): a(f"v_mul_f32 v{8+k}, v{GX+k}, v{GX+k}")
    for k in range(4): a(f"v_fma_f32 v{8+k}, v{8+k}, s56, v7")
    for k in range(4): a(f"v_mul_f32 v{8+k}, v{8+k}, v{GX+k}")
    for k in range(4): a(f"v_exp_f32 v{8+k}, v{8+k}")
    for k in range(4): a(f"v_add_f32 v{8+k}, 1.0, v{8+k}")
    for k in range(4): a(f"v_rcp_f32 v{8+k}, v{8+k}")
    for k in range(4): a(f"v_mul_f32 v{GX+k}, v{GX+k}, v{8+k}")
    vec2_write("v26","V2B")
    a("s_branch L_ffn2")

    a('; ======== final reducer: workgroups 0..19, 32 output columns each')
    a("L_final:")
    a(f"s_mov_b32 s40, s2")
    a(f"v_and_b32 v6, 7, {vLane}\nv_lshlrev_b32 v8, 3, v6\nv_bfe_u32 v7, {vLane}, 4, 1\nv_lshl_add_u32 v8, v7, 2, v8\nv_lshrrev_b32 v7, 5, {vLane}\nv_lshl_add_u32 v8, v7, 1, v8")
    a(f"s_lshl_b32 s52, s40, 6")
    srd(44,4,1280); srd(48,24,1280)
    if P["latesmall"]: wait_flag("QISS",4)
    a(f"buffer_load_ushort v10, v8, {SA}, s52 offen\nbuffer_load_ushort v11, v8, {SB}, s52 offen")
    a(f"v_lshrrev_b32 v7, 3, {vLane}\nv_mul_u32_u24 v7, 2560, v7\nv_lshl_add_u32 v9, v6, 4, v7")
    a(f"s_lshl_b32 s53, s40, 7\ns_add_u32 s56, s53, {OP}\ns_add_u32 s57, s56, 20480\ns_add_u32 s58, s57, 20480\ns_add_u32 s59, s58, 20480\ns_add_u32 s53, s53, {YP}")
    a("s_waitcnt vmcnt(0)\nv_lshlrev_b32 v10, 16, v10\nv_lshlrev_b32 v11, 16, v11")
    srd(44,26,1280)
    if P["warmout"]: a(f"s_mov_b64 exec, 1\nbuffer_load_ushort v33, v8, {SA}, s52 offen nt\ns_mov_b64 exec, -1")
    def red4(b):
        a(f"v_permlane32_swap_b32 v{b}, v{b+1}\nv_permlane32_swap_b32 v{b+2}, v{b+3}\nv_add_f32 v{b}, v{b}, v{b+1}\nv_add_f32 v{b+2}, v{b+2}, v{b+3}")
        a(f"v_permlane16_swap_b32 v{b}, v{b+2}\nv_add_f32 v{b}, v{b}, v{b+2}\nv_add_f32_dpp v{b}, v{b}, v{b} row_ror:8 {DP}")
    def epoch(skip):
        a(f"s_cmp_eq_u32 s40, 0\ns_cbranch_scc0 {skip}\ns_mov_b64 exec, 0xff\nv_mov_b32 v14, s32\nv_mov_b32 v15, s33\nv_lshlrev_b32 v6, 3, {vLane}\nbuffer_store_dwordx2 v[14:15], v6, {WS}, 0 offen offset:{EPOCH} sc1\ns_mov_b64 exec, -1")
    if P["ge2"]:
        assert P["epochearly"]
        a("s_mov_b32 s60, s52\ns_mov_b32 s61, s53\nL_ge2:")
        gather_setup("v24", RS); vec2b_addr("v26")
        a(f"s_mul_i32 s52, {sG}, {8*RS}\ns_add_u32 s52, s52, {REC+RE}\ns_add_u32 s53, s52, {4*RS}")
    if P["epochearly"]:
        wait_flag("V1B",1)
        epoch("L_nep"); a("L_nep:")
    if P["ge2"]: a("s_branch L_ge\nL_fin2:\ns_mov_b32 s52, s60\ns_mov_b32 s53, s61")
    wait_flag("PUBF",4)
    stamp(9)
    l,ok=loop_head("FS")
    a(f"buffer_load_dwordx4 v[28:31], v9, {WS}, s53 offen sc1")
    for k in range(4): a(f"buffer_load_dwordx4 {vr(12+4*k,4)}, v9, {WS}, s{56+k} offen sc1")
    a(f"""s_waitcnt vmcnt(4)
v_permlane32_swap_b32 v28, v29
v_permlane32_swap_b32 v30, v31
v_add_f32 v28, v28, v29
v_add_f32 v30, v30, v31
s_waitcnt vmcnt(2)
v_pk_add_f32 v[12:13], v[12:13], v[16:17]
v_permlane16_swap_b32 v28, v30
v_add_f32 v28, v28, v30
v_pk_add_f32 v[14:15], v[14:15], v[18:19]
s_waitcnt vmcnt(0)
v_add_f32_dpp v28, v28, v28 row_ror:8 {DP}
v_pk_add_f32 v[20:21], v[20:21], v[24:25]
v_add_f32 v28, v28, v11
v_pk_add_f32 v[22:23], v[22:23], v[26:27]
v_mul_f32 v29, {hex(f2u(-math.log2(math.e)))}, v28
v_pk_add_f32 v[12:13], v[12:13], v[20:21]
v_pk_add_f32 v[14:15], v[14:15], v[22:23]
v_exp_f32 v29, v29
v_permlane32_swap_b32 v12, v13
v_permlane32_swap_b32 v14, v15
v_add_f32 v12, v12, v13
v_add_f32 v14, v14, v15
v_add_f32 v29, 1.0, v29
v_rcp_f32 v29, v29
v_permlane16_swap_b32 v12, v14
v_add_f32 v12, v12, v14
v_mul_f32 v28, v28, v29
v_add_f32_dpp v12, v12, v12 row_ror:8 {DP}
v_cmp_u_f32 vcc, v12, v28
v_fma_f32 v13, v12, v28, v10
s_cbranch_vccnz {l}
{ok}:""")
    a(f"v_cvt_pk_bf16_f32 v13, v13, v13\ns_mov_b32 exec_lo, 0x00ff00ff\ns_mov_b32 exec_hi, 0x00ff00ff\nbuffer_store_short v13, v8, {SA}, s52 offen {P['outf']}")
    stamp(10)
    if not P["epochearly"]: epoch("L_fin")
    if P.get("dbgdelay"):
        a(f"s_memrealtime s[8:9]\ns_waitcnt lgkmcnt(0)\nL_dd:\ns_memrealtime s[10:11]\ns_waitcnt lgkmcnt(0)\ns_sub_u32 s10, s10, s8\ns_cmp_lt_u32 s10, {P['dbgdelay']}\ns_cbranch_scc1 L_dd")
    if P.get("trace"):
        L2=[]
        for x in a.L:
            L2.append(x)
            if x.startswith(("ds_max_u32","ds_write_b32")) and x.endswith(f"v10 offset:{F['CNT']}"):
                L2+=["s_memrealtime s[62:63]","v_readfirstlane_b32 s97, v10","s_waitcnt lgkmcnt(0)","s_lshl_b32 s62, s62, 12","s_or_b32 s62, s62, s97","s_and_b32 s98, s96, 63","s_cmp_lt_u32 s96, 64","s_cselect_b64 vcc, -1, 0","v_mov_b32 v32, s62","v_cmp_eq_u32 s[62:63], s98, v0","s_add_u32 s96, s96, 1","s_and_b64 vcc, vcc, s[62:63]","v_cndmask_b32 v30, v30, v32, vcc","v_cndmask_b32 v31, v31, v32, s[62:63]"]
            if x=="L_ld2:": L2+=["s_mov_b32 s96, 0","v_mov_b32 v30, 0","v_mov_b32 v31, 0"]
        a.L=L2
    if P.get("allsc1"): a.L=[(x+" sc1" if (x.startswith("buffer_store") and "sc1" not in x) else x) for x in a.L]
    if P.get("nostores"):
        L2=[]; n_=0
        for x in a.L:
            if x.startswith("buffer_store") and WS in x:
                if n_ in P.get("keep",()): L2.append(x)
                n_+=1
            else: L2.append(x)
        a.L=L2
    a("L_fin:")
    if diag:
        stamp(15)
        if P.get("mind"): a(f"s_cmp_eq_u32 {sW}, 4\ns_cbranch_scc1 L_dump\ns_cmp_eq_u32 {sW}, 6\ns_cbranch_scc0 L_end\nL_dump:")
        a("s_load_dwordx2 s[28:29], s[0:1], 104")
        a(f"s_waitcnt lgkmcnt(0) vmcnt(0)\ns_mov_b32 s30, {WSSIZE}\ns_mov_b32 s31, 0x20000\ns_mov_b64 exec, 1")
        if P["wsb"]: a(f"s_add_u32 s28, s28, {P['wsb']}\ns_addc_u32 s29, s29, 0")
        for i in range(16): a(f"v_mov_b32 v{8+i}, s{64+2*i}")
        a(f"v_mov_b32 v24, {sBud}\nv_mov_b32 v6, 0\ns_lshl_b32 s52, {sB}, 3\ns_add_u32 s52, s52, {sW}\ns_lshl_b32 s52, s52, 7\ns_add_u32 s52, s52, {DBG}")
        dfl=P.get("dfl","")
        for i in range(4): a(f"buffer_store_dwordx4 {vr(8+4*i,4)}, v6, {WS}, s52 offen offset:{16*i} {dfl}")
        a(f"buffer_store_dword v24, v6, {WS}, s52 offen offset:64 {dfl}")
        if P.get("trace"):
            a(f"s_cmp_eq_u32 {sW}, 4\ns_cbranch_scc0 L_ntr\ns_mov_b64 exec, -1\nv_lshlrev_b32 v6, 2, v0\ns_lshl_b32 s52, {sB}, 9\ns_add_u32 s52, s52, {DBG+0x40000}\nbuffer_store_dword v30, v6, {WS}, s52 offen\nbuffer_store_dword v31, v6, {WS}, s52 offen offset:256\nL_ntr:")
    a("s_endpgm")
    a("; ======== out of line: poll give-up exits, write-through variants for groups that span dies")
    for f_ in far: a(f_)
    a("L_end:\ns_endpgm")
    body = a.finish(verbose=P.get("verbose",False))
    hdr = open("cdna_kernels/"+NAME+".s.ref").read().split("; Override launch")[0] if P.get("hdr",True) else ""
    return hdr + f"""; Single persistent launch: 256 workgroups (one per CU) x 8 waves. Written with my own generator script.
; Math (absorbed form of the reference, exact reordering): xn = LN(x); q = xn.Wq; qa[h,c] = q[h,:].Wuk[c,h,:] * D^-0.5 * log2e;
;   S = qa.ckv^T; p = 2^(S - ceil(block max)) per 32-key block, blocks rescaled by exact powers of two against the true row max;
;   cl = (p.ckv)/sum p; ctx = cl.Wuv; s = ctx.Wo; out = x + s * silu(gelu(xn.W1 + b1).W2 + b2).
; Workgroup b: x = b&7, y = b>>3, group g = 4x + (y>>3) (head g, keys 256g..256g+255), j = y&7 (row / column slice).
; Waves (role = hardware wave ^ 4): 0-3 matrix stages, 4 LDS-DMA stream of all weights and c_kv tiles, 5 sentinel fill / statistics
;   store / weighted combine, 6 layernorm / FFN / final reduce, 7 gathers and softmax statistics. Waves meet through LDS counters.
; Hand-offs between workgroups go through d_ws. Every handed-off word is validated by the reader: either it carries this launch's tag
;   (tag = epoch word found in d_ws on entry + constant; the tag becomes the next epoch), or its slot was filled with a NaN sentinel in
;   this launch before anyone may write or read it. Write-through stores are used across groups. Inside a group plain stores are used
;   only while they are known or re-published: tags carry the writer's XCC id, and a group found (or suspected) to span dies
;   switches to write-through stores, so any placement is correct. Every global poll is bounded.
; @launch grid=(256,1,1) block=(512,1,1) lds={LDS_BYTES}
.amdgcn_target "amdgcn-amd-amdhsa--gfx950"
.text
.globl {NAME}_kernel
.p2align 8
.type {NAME}_kernel,@function
{NAME}_kernel:
{body}
.section .rodata,"a"
.p2align 6
.amdhsa_kernel {NAME}_kernel
  .amdhsa_next_free_vgpr 220
  .amdhsa_next_free_sgpr 100
  .amdhsa_accum_offset 220
  .amdhsa_group_segment_fixed_size 0
  .amdhsa_kernarg_size 112
  .amdhsa_user_sgpr_count 2
  .amdhsa_user_sgpr_kernarg_segment_ptr 1
  .amdhsa_system_sgpr_workgroup_id_x 1
.end_amdhsa_kernel
"""
if __name__=="__main__":
    kw={}
    out="cdna_kernels/"+NAME+".s"
    for arg in sys.argv[1:]:
        k,v=arg.split("=",1)
        if k=="out": out=v
        else:
            try: kw[k]=eval(v)
            except Exception: kw[k]=v
    open(out,"w").write(gen(verbose=True, **kw))
    print("wrote",out,"LDS",LDS_BYTES)
```

```python
import sys, math, struct
from asmlib import Asm
NAME = "recurrent_scan__compressed_kv_cla__dense_activation_gelu__decode"
def f2u(x): return struct.unpack("<I", struct.pack("<f", x))[0]

EPOCH=0; FLG=0x1000; QA=0x4000; HT=0x10000; G=0x24000; OP=G; YP=G+81920; ST=0x40000
REC=0x60000; RP=8192; RM=RP+2048; RE=RM+256; RQ=RE+768; RS=RQ+768; DBG=0x380000; WSSIZE=0x400000
assert REC+256*RS<=DBG
R1=0; R2=49152; R3=R2+51200; SCR=R3+36864
XB=SCR; VEC1A=XB+4096; VEC1F=VEC1A+192; VEC1B=VEC1F+128; VEC2A=VEC1B+192; VEC2B=VEC2A+384; MLB=VEC2B+384
FLAGS=(MLB+2048+255)//256*256
FN = ["CNT","RDB","V1A","V2A","CLR","X0","X1","V1B","V2B","S4M","RDUK","RDA","PUBA","PUBC","PUBD","PUBE","PUBF","PUBB","QISS","DST","CDI","STOK","GISS","S4K","H0","S3K","STR","GOK"]
F = {n:256*i for i,n in enumerate(FN)}
LDS_BYTES = FLAGS+256*len(FN)

Q_=('QISS',4); M_=('S4M',4); K_=('S4K',4); D_=('DST',4); C_=('CDI',1); V_=('V1B',1); S_=('S3K',4)
DEF = dict(sched=[(0,Q_,18),(36,M_,12),(48,K_,24),(66,C_,24)], holdA=21, gA=False, tlb=False, latesmall=False, warmout=False, mshare=False, psplit=(8,0), ge2=False, sttrig=('PUBC',2), lateG=0, s1pipe=True, holdP=0, gateA=0, wb=None, outf='', blate=True, prio=(0,2,3), epochearly=True, latetouch=30, gC=False, fsched=None, T=24, TA=30, TL=24, thrG=60, pauseQ=True, ntA='nt', ntB='nt', nt="nt", diag=False, wsb=0, thrF=30, clrstep=8, gate=True, n1=18, n2=66, thrG2=0, incC=False, mfirst=True, hintA=False, hintC=False, holdG=False, n0=0, ackA=False, ackC=False, s4late=True, ffnfirst=True, fg=(24,84), dtrig=[('STOK',1)], thrQ=150, adual=True,  local=True, stattrig="DST", pref='s', budget=400000, safe=False)

def gen(**kw):
    P = dict(DEF); P.update(kw)
    T=P["T"]; TL=P["TL"]; NT=P["nt"]; diag=P["diag"]
    a = Asm()
    far=[]
    sW,sX,sY,sG,sJ,sB,sV = "s34","s35","s36","s37","s38","s39","s41"
    sBud="s42"; WS="s[28:31]"; SA="s[44:47]"; SB="s[48:51]"
    nst=[0]
    def stamp(i):
        if diag: a(f"s_memrealtime s[{64+2*i}:{65+2*i}]")
    def srd(base, ptr, size):
        a(f"s_mov_b32 s{base}, s{ptr}\ns_mov_b32 s{base+1}, s{ptr+1}\ns_mov_b32 s{base+2}, {size}\ns_mov_b32 s{base+3}, 0x20000")
    vLane="v0"; vL4="v1"; vOne="v2"; vTmp="v3"; vN="v4"; vGl="v5"
    CB=64
    def spin(l):
        a(f"{l}:")
        if P["safe"]: a("s_sub_u32 s99, s99, 1\ns_cbranch_scc1 L_fin")
        if P.get("slp") is not None and l.startswith("WF"): a(f"s_sleep {P['slp']}")
    def wait_flag(name, thr):
        if name=="CNT" and isinstance(thr,int): thr+=CB
        l=a.lab("WF")
        spin(l)
        a(f"ds_read_b32 {vTmp}, {vL4} offset:{F[name]}\ns_waitcnt lgkmcnt(0)\nv_cmp_gt_u32 vcc, {thr}, {vTmp}\ns_cbranch_vccnz {l}")
    def sig(name, v=vOne):
        a(f"ds_add_u32 {vL4}, {v} offset:{F[name]}")
    def loop_head(base, sigs=()):
        l=a.lab(base); g=a.lab("GU"); ok=a.lab("OK")
        a(f"{l}:\ns_sub_u32 {sBud}, {sBud}, 1\ns_cbranch_scc1 {g}")
        far.append(f"{g}:\ns_mov_b32 {sBud}, 0\ns_mov_b64 exec, -1\n"+"".join(f"ds_add_u32 {vL4}, {vOne} offset:{F[n]}\n" for n in sigs)+f"s_nop 7\ns_branch {ok}")
        return l, ok
    def vr(b,n): return f"v[{b}:{b+n-1}]"
    def tag_finish():
        a("s_waitcnt lgkmcnt(0)\ns_add_u32 s32, s32, 0x7f4a7c10\ns_addc_u32 s33, s33, 0x9e3779b9\ns_or_b32 s32, s32, 15")
    def hint_wait(off, base, tp):
        l=a.lab("HW"); ok=a.lab("HK")
        r=lambda i: f"s[{base+2*i}:{base+2*i+1}]"
        a(f"{l}:\ns_load_dwordx8 s[{base}:{base+7}], s[28:29], {off}\ns_add_u32 {off}, {off}, 64\ns_waitcnt lgkmcnt(0)")
        a("\n".join(f"s_xor_b64 {r(i)}, {r(i)}, {tp}" for i in range(4)))
        a(f"s_or_b64 {r(0)}, {r(0)}, {r(1)}\ns_or_b64 {r(2)}, {r(2)}, {r(3)}\ns_or_b64 {r(0)}, {r(0)}, {r(2)}\ns_cbranch_scc0 {ok}")
        a(f"s_and_b32 s{base}, {off}, 0x3c0\ns_cbranch_scc1 {l}\n{ok}:")
    def ghint(pair, stride, base, test):
        l=a.lab("GW"); ok=a.lab("GK")
        r=lambda i: f"s[{base+2*i}:{base+2*i+1}]"
        a(f"s_movk_i32 s98, 200\n{l}:")
        for k in range(8): a(f"s_load_dword s{base+k}, {pair}, {k*stride} glc")
        a(f"s_sub_u32 s98, s98, 1\ns_cbranch_scc1 {ok}\ns_waitcnt lgkmcnt(0)")
        if test=="sentinel":
            a("\n".join(f"s_max_u32 s{base}, s{base}, s{base+k}" for k in range(1,8))+f"\ns_cmp_eq_u32 s{base}, -1\ns_cbranch_scc1 {l}")
        else:
            a("\n".join(f"s_xor_b64 {r(i)}, {r(i)}, {test}" for i in range(4)))
            a(f"s_or_b64 {r(0)}, {r(0)}, {r(1)}\ns_or_b64 {r(2)}, {r(2)}, {r(3)}\ns_or_b64 {r(0)}, {r(0)}, {r(2)}\ns_cbranch_scc1 {l}")
        a(f"{ok}:\ns_waitcnt lgkmcnt(0)")
    def sprefetch(end_o, kb_o, end_f, kb_f):
        nf=a.lab("PN"); dn=a.lab("PD")
        a(f"s_cmp_lt_u32 {sJ}, 5\ns_cbranch_scc0 {nf}")
        for lab,ptr,base,rows_kb,sec,end,kb in ((None,14,f"s_mul_i32 s96, {sG}, 245760\ns_lshl_b32 s97, {sJ}, 8",4,4,end_o,kb_o),(nf,22,f"s_mul_i32 s96, {sX}, 245760\ns_lshl_b32 s97, {sV}, 7",8,2,end_f,kb_f)):
            if lab: a(f"{lab}:\ns_cmp_lt_u32 {sV}, 10\ns_cbranch_scc0 {dn}")
            if kb:
                assert kb%3==0 and 0<=end-kb and end*rows_kb<=192
                l=a.lab("PL"); rpi=12//sec
                a(f"{base}\ns_add_u32 s96, s96, s97\ns_add_u32 s96, s96, {(end-kb)*rows_kb*1280}\ns_add_u32 s96, s96, s{ptr}\ns_addc_u32 s97, s{ptr+1}, 0\ns_movk_i32 s98, {kb*rows_kb//rpi}\n{l}:")
                for r_ in range(rpi):
                    for c_ in range(sec): a(f"s_load_dword s43, s[96:97], {r_*1280+c_*64}")
                a(f"s_add_u32 s96, s96, {rpi*1280}\ns_addc_u32 s97, s97, 0\ns_sub_u32 s98, s98, 1\ns_cmp_lg_u32 s98, 0\ns_cbranch_scc1 {l}")
            if not lab: a(f"s_branch {dn}")
        a(f"{dn}:\ns_waitcnt lgkmcnt(0)")
    def xreduce(op, v, t):
        a(f"v_mov_b32 {t}, {v}\nv_permlane16_swap_b32 {v}, {t}\n{op} {v}, {v}, {t}")
        a(f"v_mov_b32 {t}, {v}\nv_permlane32_swap_b32 {v}, {t}\n{op} {v}, {v}, {t}")
    DP="row_mask:0xf bank_mask:0xf"
    def rowreduce(op, v, steps=("quad_perm:[1,0,3,2]","quad_perm:[2,3,0,1]","row_half_mirror","row_mirror")):
        for s in steps: a(f"{op}_dpp {v}, {v}, {v} {s} {DP}")

    vW,vK,vF,vO,vC,vT,vA0,vA1,vA2,vP,vTR = "v6","v7","v8","v9","v10","v11","v12","v13","v14","v15","v16"
    CS=P["clrstep"]
    def ids():
        a(f"s_and_b32 {sX}, s2, 7\ns_lshr_b32 {sY}, s2, 3\ns_lshl_b32 {sB}, {sX}, 5\ns_or_b32 {sB}, {sB}, {sY}\ns_lshr_b32 {sG}, {sB}, 3\ns_and_b32 {sJ}, {sY}, 7")
    def ids2():
        if diag:
            for i in range(1,16):
                if i not in (8,9) : a(f"s_mov_b32 s{64+2*i}, 0")
        if P["safe"]: a("s_mov_b32 s99, 2000000")
        a(f"s_and_b32 {sV}, {sG}, 3\ns_lshl2_add_u32 {sV}, {sJ}, {sV}\ns_sub_u32 {sV}, {sV}, 20")
        a(f"v_lshlrev_b32 {vL4}, 2, {vLane}\nv_add_u32 {vL4}, {FLAGS}, {vL4}")
    if P.get("skewinj"):
        a(f"s_and_b32 s52, s2, 6\ns_cmp_eq_u32 s52, 4\ns_cbranch_scc0 L_nsk\ns_sleep {P['skewinj']}\nL_nsk:")
    a("s_load_dwordx16 s[4:19], s[0:1], 0")
    stamp(0)
    a(f"v_readfirstlane_b32 {sW}, v0\ns_cmp_ge_u32 s2, 256\ns_cbranch_scc1 L_end")
    if P["pref"]=="v":
        a(f"s_getpc_b64 s[52:53]\nL_pc:\nv_lshlrev_b32 v1, 7, v0\nv_subrev_u32 v1, 8192, v1\nv_cmp_gt_u32 vcc, L_end-L_pc, v1\ns_and_saveexec_b64 s[54:55], vcc\ns_cbranch_execz L_np\nglobal_load_dword v207, v1, s[52:53]\nL_np:\ns_mov_b64 exec, -1")
    ids()
    if P["pref"]=="s":
        a(f"s_lshr_b32 {sW}, {sW}, 6\ns_cbranch_scc0 L_loader\ns_load_dwordx2 s[28:29], s[0:1], 104\ns_and_b32 s62, s2, {(~(7*CS))&0xff}\ns_xor_b32 s63, {sW}, 7\ns_or_b32 s40, s62, s63\ns_cbranch_scc0 L_qa\ns_cmp_lt_u32 {sW}, 4\ns_cbranch_scc1 L_z\nL_nqa:\ns_getpc_b64 s[52:53]\nL_pc:\ns_lshl2_add_u32 s54, {sY}, {sW}\ns_lshl_b32 s54, s54, 7\ns_min_u32 s54, s54, L_end-L_pc-64")
        a("s_load_dword s56, s[52:53], s54\ns_add_u32 s54, s54, 64\ns_load_dword s57, s[52:53], s54\nL_bar:\ns_load_dwordx8 s[20:27], s[0:1], 64\ns_barrier\ns_branch L_notloader\nL_loader:")
    else: a(f"s_lshr_b32 {sW}, {sW}, 6\ns_cbranch_scc1 L_notloader")

    a(f"v_lshrrev_b32 {vP}, 3, {vLane}\nv_and_b32 {vT}, 6, {vP}\nv_xor_b32 {vTR}, {vT}, {vLane}\nv_and_b32 {vTR}, 7, {vTR}\nv_lshlrev_b32 {vTR}, 4, {vTR}")
    a(f"v_mul_u32_u24 {vK}, 12288, {vP}\nv_add_u32 {vW}, {vK}, {vTR}\nv_lshlrev_b32 {vA0}, 4, {vLane}")
    a(f"s_mul_i32 s52, {sJ}, {80*12288}\ns_mul_i32 s53, {sG}, 384\ns_add_u32 s52, s52, s53")
    a(f"s_mov_b32 m0, {XB}\ns_mov_b32 s46, {640*12288}\ns_mov_b32 s47, 0x20000\ns_mov_b32 s51, 0x20000\ns_movk_i32 s50, 1280")
    a(f"s_movk_i32 s56, 896\ns_movk_i32 s57, 1280")
    assert P["lateG"]!=-1 and not P["mshare"]
    if P["lateG"]==-1:
        assert not P["wsb"]
        a(f"v_mov_b64 v[24:25], -1\nv_mov_b64 v[26:27], -1\ns_mov_b32 s30, {G+102400}\ns_mov_b32 s31, 0x20000\ns_lshl_b32 s54, s2, 10\ns_add_u32 s54, s54, {G}\ns_cmp_lg_u32 s62, 0")
    a("s_waitcnt lgkmcnt(0)")
    if P["lateG"]==-1: a(f"buffer_store_dwordx4 v[24:27], {vA0}, {WS}, s54 offen sc1")
    stamp(8)
    a("s_mov_b64 s[48:49], s[4:5]\ns_mov_b64 s[44:45], s[8:9]")
    a(f"buffer_load_dwordx4 {vA0}, {SB}, 0 offen lds\nbuffer_load_dwordx4 {vA0}, {SB}, 0 offen offset:1024 lds\ns_mov_b32 m0, {R2}")
    stamp(9)
    def pub(iss='s61'):
        a(f"s_getreg_b32 s63, hwreg(HW_REG_IB_STS)\ns_bfe_u32 s62, s63, 0x20016\ns_and_b32 s63, s63, 15\ns_lshl4_add_u32 s63, s62, s63\ns_sub_u32 s63, {iss}, s63\nv_mov_b32 v23, s63\nds_max_u32 {vL4}, v23 offset:{F['CNT']}")
    def cpub(k):
        if P.get("exact"): pub()
        else: a(f"s_sub_u32 s63, s61, {k}\nv_mov_b32 v23, s63\nds_max_u32 {vL4}, v23 offset:{F['CNT']}")
    def wait_pub(name, thr):
        l=a.lab("WP")
        spin(l); a(f"ds_read_b32 {vTmp}, {vL4} offset:{F[name]}"); pub()
        a(f"s_waitcnt lgkmcnt({0 if diag else 1})\nv_cmp_gt_u32 vcc, {thr}, {vTmp}\ns_cbranch_vccnz {l}")
    def seg384(srdq, vaddr, soff, step, m0end, thr, xor=False, d1="s56", d2="s57"):
        l=a.lab("SG")
        a(f"{l}:")
        v=vaddr
        if xor:
            a(f"v_xor_b32 {vT}, s55, {vaddr}\ns_add_u32 s55, s55, 32\ns_and_b32 s55, s55, 0x60"); v=vT
        if thr:
            a(f"s_waitcnt vmcnt({thr-3})"); cpub(thr-3)
        a(f"buffer_load_dwordx4 {v}, {srdq}, {soff} offen {NT} lds\ns_add_u32 m0, m0, {d1}")
        if thr: a(f"s_add_u32 s61, s61, 3")
        a(f"buffer_load_dwordx4 {v}, {srdq}, {soff} offen offset:128 {NT} lds\ns_add_u32 m0, m0, {d1}")
        a(f"buffer_load_dwordx4 {v}, {srdq}, {soff} offen offset:256 {NT} lds\ns_add_u32 m0, m0, {d2}")
        a(f"s_add_u32 {soff}, {soff}, {step}\ns_cmp_lg_u32 m0, {m0end}\ns_cbranch_scc1 {l}")
    if P.get("unrollq",True):
        a("s_mov_b32 s55, 98304")
        for r_ in range(10):
            a(f"buffer_load_dwordx4 {vW}, {SA}, s52 offen {NT} lds\ns_add_u32 m0, m0, s56\ns_nop 0\nbuffer_load_dwordx4 {vW}, {SA}, s52 offen offset:128 {NT} lds\ns_add_u32 m0, m0, s56\ns_nop 0\nbuffer_load_dwordx4 {vW}, {SA}, s52 offen offset:256 {NT} lds")
            if r_<9: a("s_add_u32 m0, m0, s57\ns_add_u32 s52, s52, s55")
            if r_==P.get("barat",8): a("s_barrier")
    else: seg384(SA, vW, "s52", 98304, R2+30720, None)
    a("s_branch L_ld2")
    a("; wave role 3 of eight workgroups: sentinel fill of the q_abs array (its flag follows once these stores are acknowledged)")
    assert not P["wsb"] and P["pref"]=="s"
    a(f"L_qa:\ns_mov_b32 s30, {WSSIZE}\ns_mov_b32 s31, 0x20000\nv_mov_b64 v[24:25], -1\nv_mov_b64 v[26:27], -1\nv_and_b32 v28, 63, v0\nv_lshlrev_b32 v28, 4, v28")
    a(f"s_mul_i32 s54, s2, {6144//CS}\ns_add_u32 s54, s54, {QA}\ns_add_u32 s55, s54, 4096\ns_waitcnt lgkmcnt(0)")
    for k in range(6): a(f"buffer_store_dwordx4 v[24:27], v28, {WS}, s{54+(k>>2)} offen offset:{1024*(k&3)} sc1")
    a("s_branch L_nqa")
    a(f"L_z:\nv_lshlrev_b32 v28, 4, v0\nv_add_u32 v28, {FLAGS-1024}, v28\nv_mov_b64 v[24:25], 0\nv_mov_b64 v[26:27], 0")
    extra = P["gC"] or P["lateG"]==3 or ("STR",1) in P["dtrig"] or any(x[1]==S_ for x in P["sched"])
    for o_ in ((0,3072,4096) if extra else (0,3072)): a(f"ds_write_b128 v28, v[24:27] offset:{o_}")
    a(f"s_waitcnt lgkmcnt(0)\ns_load_dwordx2 s[32:33], s[28:29], {EPOCH}\ns_branch L_bar")
    a(f"L_ld2:\ns_setprio {P['prio'][2]}\ns_load_dwordx8 s[20:27], s[0:1], 64\ns_mov_b32 {sW}, 4")
    ids2()
    stamp(1)
    a(f"v_bfe_u32 {vT}, {vLane}, 4, 1\nv_xor_b32 {vT}, {vT}, {vLane}\nv_and_b32 {vT}, 7, {vT}\nv_lshl_add_u32 {vK}, {vT}, 4, {vK}")
    a(f"s_mul_i32 s52, {sJ}, {96*12288}\ns_add_u32 s52, s52, s53\ns_mov_b32 s54, s52\ns_mov_b32 s55, 0")
    a(f"s_mov_b32 s44, s10\ns_mov_b32 s45, s11\ns_mov_b32 s46, {768*12288}\ns_mov_b32 m0, {R3}")
    a(f"s_movk_i32 s61, {CB+30}")
    a(f"v_lshrrev_b32 {vT}, 5, {vLane}\nv_lshlrev_b32 {vT}, 4, {vT}\nv_xor_b32 {vA1}, {vA0}, {vT}\nv_xor_b32 {vA2}, 16, {vA0}")
    for t in range(3):
        a(f"v_add_u32 v17, {64*t}, {vLane}\nv_mul_u32_u24 v18, 0x5556, v17\nv_lshrrev_b32 v18, 18, v18\nv_mul_u32_u24 v19, 12, v18\nv_sub_u32 v17, v17, v19")
        a(f"v_lshrrev_b32 v19, 1, v18\nv_and_b32 v18, 1, v18\nv_lshl_add_u32 v18, v19, 5, v18\nv_and_b32 v19, 2, v19\nv_xor_b32 v17, v17, v19\nv_mul_u32_u24 v18, 1536, v18\nv_lshl_add_u32 v{20+t}, v17, 4, v18")
        if P.get("b16"):
            a(f"v_add_u32 v17, {64*t}, {vLane}\nv_mul_u32_u24 v18, 0xaaab, v17\nv_lshrrev_b32 v18, 18, v18\nv_mul_u32_u24 v19, 6, v18\nv_sub_u32 v17, v17, v19")
            a(f"v_lshrrev_b32 v19, 1, v18\nv_and_b32 v18, 1, v18\nv_lshl_add_u32 v18, v19, 5, v18\nv_mul_u32_u24 v18, 1536, v18\nv_lshl_add_u32 v{20+t}, v17, 4, v18")
        if P.get("bfull"):
            a(f"v_lshrrev_b32 v18, 3, {vLane}\nv_lshrrev_b32 v19, 1, v18\nv_and_b32 v18, 1, v18\nv_lshl_add_u32 v18, v19, 5, v18\nv_mul_u32_u24 v18, 1536, v18\nv_and_b32 v17, 7, {vLane}\nv_lshl_add_u32 v{20+t}, v17, 4, v18")
            a(f"s_and_b32 s63, {sJ}, 1")
            if t<2: a(f"s_lshl_b32 s63, s63, 8\ns_add_u32 s63, s63, {t*128*1536+2048}")
            else: a(f"s_mul_i32 s63, s63, {128*1536}\ns_add_u32 s63, s63, {128+2048}")
            a(f"v_add_u32 v{20+t}, s63, v{20+t}")
        if t: a(f"v_subrev_u32 v{20+t}, {1024*t}, v{20+t}")
    a(f"v_mul_u32_u24 {vO}, 1280, {vP}\nv_add_u32 {vO}, {vO}, {vTR}\nv_mul_u32_u24 {vF}, 3072, {vP}\nv_add_u32 {vF}, {vF}, {vTR}")
    a(f"s_mov_b32 s48, s6\ns_mov_b32 s49, s7\ns_mov_b32 s50, {8192*1536}")
    a(f"s_mul_i32 s58, {sG}, {256*1536}\ns_mul_i32 s53, {sJ}, 192\ns_add_u32 s58, s58, s53\ns_mov_b32 s59, {R1}\ns_mov_b32 s60, {R2}")
    if P.get("bfull"): a(f"s_mul_i32 s58, {sG}, {256*1536}\ns_lshr_b32 s53, {sJ}, 1\ns_mul_i32 s53, s53, 384\ns_add_u32 s58, s58, s53\ns_max_u32 s58, s58, 2048\ns_sub_u32 s58, s58, 2048")
    if P.get("b16"): a(f"s_lshr_b32 s58, {sB}, 4\ns_mul_i32 s58, s58, {512*1536}\ns_and_b32 s53, {sB}, 15\ns_mul_i32 s53, s53, 96\ns_add_u32 s58, s58, s53")
    a(f"v_mov_b32 v23, {CB}\ns_waitcnt vmcnt(30) lgkmcnt(0)\nds_max_u32 {vL4}, v23 offset:{F['CNT']}")
    if P["holdP"]:
        assert 0<P["holdP"]<36 and P["holdP"]%3==0
        seg384(SA, vK, "s52", 98304, R3+1024*P["holdP"], P.get("T0",T), xor=True)
        if not P.get("T0"): wait_pub("PUBA",3)
    seg384(SA, vK, "s52", 98304, R3+36864, T, xor=True)
    stamp(2)
    TA=P["TA"]; NA=P["ntA"]; NB=P["ntB"]
    def drain(tgt):
        l=a.lab("DR")
        spin(l); pub(); a(f"s_sub_u32 s63, s61, s63\ns_cmp_gt_u32 s63, {tgt}\ns_cbranch_scc1 {l}")
    a(f"s_mul_i32 s52, {sB}, 49152")
    if T>P.get("holdA",18): drain(P.get("holdA",18))
    wait_pub(*(("GISS",1) if P["holdG"] else ("PUBA",3)))
    def segAB(nst, ex, TA=TA):
        l=a.lab("SA")
        a(f"{l}:\nv_xor_b32 v17, s55, {vA0}\nv_xor_b32 v18, s55, {vA1}\nv_xor_b32 v19, s55, {vA2}\ns_mov_b32 m0, s59")
        a(f"s_waitcnt vmcnt({TA-6})")
        if ex: pub()
        else: cpub(TA-6)
        a(f"buffer_load_dwordx4 v17, {SB}, s52 offen {NA} lds\nbuffer_load_dwordx4 v18, {SB}, s52 offen offset:1024 {NA} lds\nbuffer_load_dwordx4 v19, {SB}, s52 offen offset:2048 {NA} lds")
        a(f"s_mov_b32 m0, s60\ns_add_u32 s61, s61, 6")
        for t in range(3): a(f"buffer_load_dwordx4 v{20+t}, {SB}, {'s58' if not P.get('bnone') else 's50'} offen offset:{1024*t} {NB} lds")
        a(f"s_add_u32 s55, s55, 32\ns_and_b32 s55, s55, 0xe0\ns_add_u32 s52, s52, 3072\ns_add_u32 s58, s58, 3072\ns_add_u32 s60, s60, 3200\ns_add_u32 s59, s59, 3072")
        a(f"s_cmp_lg_u32 s59, {R1+3072*nst}\ns_cbranch_scc1 {l}")
    if P["gateA"]:
        assert 0<P["gateA"]<16
        segAB(P["gateA"], True); wait_pub("V2A",1)
    if P.get("gateQ"):
        n_=P["gateQ"]
        assert P["gateA"]<n_<16 and P["thrQ"]<=66+6*n_ and not P.get("TA2")
        segAB(n_, P["holdG"] or P["gateA"]); wait_pub("QISS",4); segAB(16, False, P.get("TA3",TA))
    elif P.get("TA2"):
        n_,t_=P["TA2"]
        assert P["gateA"]<n_<16 and t_%6==0
        segAB(n_, P["holdG"] or P["gateA"]); segAB(16, P.get("exA",False), t_)
    else: segAB(16, P["holdG"] or P["gateA"])
    stamp(3)
    a(f"s_mov_b32 s44, s12\ns_mov_b32 s45, s13\ns_mov_b32 m0, {R3}")
    FF=True
    def check(sc):
        at=[x[0] for x in sc]
        assert at[0]==0 and at==sorted(set(at)) and all(x%3==0 for x in at) and all(3<x[2]<=60 and x[2]%3==0 for x in sc)
        return sc
    sched=check(P["sched"]); fsched=check(P.get("fsched") or P["sched"])
    if sched[0][1]!=("QISS",4):
        drain(sched[0][2]-3); wait_pub("RDUK",3)
    stamp(4)
    def late(sc, done, n, emit):
        tl=[x[2] for x in sc if x[0]<=done][-1]
        for at,fl,t_ in sc:
            if done<at<done+n: emit(at-done, tl)
            if done<=at<done+n:
                if fl: wait_pub(*fl)
                tl=t_
        emit(n, tl)
    def seg_wo(k, TL):
        assert k%6==0
        l=a.lab("SO")
        a(f"{l}:")
        for i in range(6):
            if i%3==0: a(f"s_waitcnt vmcnt({TL-3})"); cpub(TL-3)
            if i%2==0:
                a(f"buffer_load_dwordx4 {vO}, {SB}, s52 offen {NT} lds\ns_add_u32 m0, m0, s56")
            else:
                a(f"buffer_load_dwordx4 {vO}, {SB}, s52 offen offset:128 {NT} lds\ns_add_u32 m0, m0, 1152\ns_add_u32 s52, s52, 10240")
            if i%3==0: a(f"s_add_u32 s61, s61, 3")
        a(f"s_cmp_lg_u32 m0, {R1+1024*k}\ns_cbranch_scc1 {l}")
    def seg_w2(k, TL):
        l=a.lab("S2")
        a(f"{l}:\ns_waitcnt vmcnt({TL-3})"); cpub(TL-3)
        for i in range(3):
            a(f"buffer_load_dwordx4 {vO}, {SB}, s52 offen {NT} lds\ns_add_u32 m0, m0, 2048\ns_add_u32 s52, s52, 10240")
        a(f"s_add_u32 s61, s61, 3\ns_cmp_lg_u32 m0, {R2+2048*k}\ns_cbranch_scc1 {l}")
    a(f"s_cmp_lt_u32 {sV}, 10\ns_cbranch_scc0 L_noff")
    a(f"s_mul_i32 s52, {sV}, {64*3072}\ns_mul_i32 s53, {sX}, 384\ns_add_u32 s52, s52, s53")
    a(f"s_mov_b32 s48, s18\ns_mov_b32 s49, s19\ns_mov_b32 s50, {640*3072}")
    late(fsched, 0, 24, lambda k,t_: seg384(SB, vF, "s52", 24576, R3+1024*k, t_))
    a(f"s_mul_i32 s52, {sX}, 245760\ns_lshl_b32 s53, {sV}, 7\ns_add_u32 s52, s52, s53")
    a(f"s_mov_b32 s48, s22\ns_mov_b32 s49, s23\ns_mov_b32 s50, {1536*1280}\ns_mov_b32 m0, {R1}")
    wait_pub("RDA",4)
    late(fsched, 24, 36, lambda k,t_: seg384(SA, vW, "s54", 98304, R1+1024*k, t_))
    a(f"s_mov_b32 m0, {R2}")
    if not any(at<=60 and fl in (M_,K_,D_,C_,V_) for at,fl,_ in fsched): wait_pub("RDB",4)
    late(fsched, 60, 24, seg_w2)
    a("s_branch L_drain\nL_noff:")
    a(f"s_mul_i32 s52, {sG}, 245760\ns_lshl_b32 s53, {sJ}, 8\ns_add_u32 s52, s52, s53")
    a(f"s_mov_b32 s48, s14\ns_mov_b32 s49, s15\ns_mov_b32 s50, {6144*1280}")
    late(sched, 0, 36, lambda k,t_: seg384(SA, vW, "s54", 98304, R3+1024*k, t_))
    stamp(5)
    a(f"s_mov_b32 m0, {R1}\ns_cmp_lt_u32 {sJ}, 5\ns_cbranch_scc0 L_drain")
    if not any(at<=36 and fl in (M_,K_,D_,C_,V_) for at,fl,_ in sched): wait_pub("RDA",4)
    late(sched, 36, 48, seg_wo)
    a("L_drain:")
    stamp(6)
    drain(6)
    a(f"v_mov_b32 {vC}, s61\ns_waitcnt vmcnt(0)\nds_write_b32 {vL4}, {vC} offset:{F['CNT']}")
    stamp(7)
    if P.get("wb"):
        n_,fl=P["wb"]
        a(f"s_cmp_lt_u32 s2, {n_}\ns_cbranch_scc0 L_fin")
        wait_flag(*fl)
        a("buffer_wbl2 sc1\ns_waitcnt vmcnt(0)")
        stamp(10)
    a("s_branch L_fin")

    a("L_notloader:")
    a(f"s_xor_b32 {sW}, {sW}, 4\nv_and_b32 v0, 63, v0")
    if diag: a("s_mov_b32 s80, 0\ns_mov_b32 s82, 0")
    ids2()
    a(f"v_and_b32 {vN}, 15, {vLane}\nv_lshrrev_b32 {vGl}, 4, {vLane}\nv_mov_b32 {vOne}, 1\ns_mov_b32 {sBud}, {P['budget']}")
    a(f"s_mov_b32 s30, {WSSIZE}\ns_mov_b32 s31, 0x20000")
    a(f"s_cmp_eq_u32 {sW}, 6\ns_cbranch_scc1 L_w6\ns_cmp_eq_u32 {sW}, 5\ns_cbranch_scc1 L_w5\ns_cmp_eq_u32 {sW}, 7\ns_cbranch_scc1 L_w7\ns_waitcnt lgkmcnt(0)")
    if P["wsb"]: a(f"s_add_u32 s28, s28, {P['wsb']}\ns_addc_u32 s29, s29, 0")
    a(f"s_load_dwordx2 s[32:33], s[28:29], {EPOCH}")

    def trcore(dst, t):
        a(f"v_bfe_u32 {t}, {vLane}, 2, 3\nv_lshlrev_b32 {dst}, 7, {t}\nv_lshrrev_b32 {t}, 1, {t}\nv_lshl_add_u32 {dst}, {t}, 5, {dst}\nv_and_b32 {t}, 3, {vLane}\nv_lshl_add_u32 {dst}, {t}, 3, {dst}")
    MASKT=[f"s[{56+2*t}:{57+2*t}]" for t in range(4)]
    def masks():
        for t in range(4): a(f"s_mov_b32 s{56+2*t}, {0x00010001<<t}\ns_mov_b32 s{57+2*t}, {0x00010001<<t}")
    def mstore(txt):
        wt="\n".join(x+" sc1" if x.startswith("buffer_store") else x for x in txt.split("\n"))
        if not P["local"]:
            a(wt); return
        r=a.lab("RM"); bk=a.lab("BK")
        a(f"s_cbranch_scc0 {r}\n{txt}\n{bk}:")
        far.append(f"{r}:\ns_nop 7\n{wt}\ns_nop 1\ns_branch {bk}")
    def publish4(acc, vS, vAddr, soff, imm=0, mode=False):
        for t in range(4):
            a(f"s_mov_b64 exec, {MASKT[t]}\nv_cvt_pk_bf16_f32 v{vS}, v{acc+4*t}, v{acc+4*t+1}\nv_cvt_pk_bf16_f32 v{vS+1}, v{acc+4*t+2}, v{acc+4*t+3}")
        a(f"s_mov_b32 exec_lo, 0x000f000f\ns_mov_b32 exec_hi, 0x000f000f")
        txt=f"buffer_store_dwordx4 {vr(vS,4)}, {vAddr}, {WS}, {soff} offen offset:{imm}"
        if mode=="plain": a(txt)
        elif mode: mstore(txt)
        else: a(txt+" sc1")
        a("s_mov_b64 exec, -1")

    a('; ======== W0..W3 main')
    FR=64; QR=16; AC=160; vS=176
    vT1=[f"v{180+t}" for t in range(4)]; vVec="v184"; vPub="v185"; vU=["v186","v187"]; vA=[f"v{188+t}" for t in range(4)]
    vLin="v192"; vB=["v193","v194","v199"]; vPl="v195"; vMl="v196"; vBp="v197"; vC4="v198"; vT6=["v200","v201"]; vCore="v202"; vSt="v203"; vXa="v204"; vM0="v205"; vQa="v208"
    sHH="s52"; sKH="s53"
    if P['prio'][0]: a(f"s_setprio {P['prio'][0]}")
    a(f"s_and_b32 {sHH}, {sW}, 1\ns_lshr_b32 {sKH}, {sW}, 1")
    masks()
    trcore(vCore, vTmp)
    a(f"v_lshrrev_b32 v6, 5, {vLane}")
    a(f"s_lshl_b32 s54, {sW}, 10\ns_add_u32 s54, s54, {R2}\nv_mul_u32_u24 v7, 3072, v6\nv_add3_u32 {vT1[0]}, {vCore}, v7, s54")
    for t in range(1,4): a(f"v_xor_b32 {vT1[t]}, {32*t}, {vT1[0]}")
    a(f"s_lshl_b32 s54, {sKH}, 10\ns_lshl_b32 s55, {sHH}, 6\nv_lshlrev_b32 v7, 11, v6\nv_add3_u32 {vT6[0]}, {vCore}, v7, s54\nv_xor_b32 {vT6[0]}, s55, {vT6[0]}\nv_xor_b32 {vT6[1]}, 32, {vT6[0]}")
    a(f"v_lshlrev_b32 {vVec}, 4, {vGl}\nv_add_u32 {vVec}, {VEC1A}, {vVec}")
    a(f"v_lshlrev_b32 {vPub}, 6, {vGl}\nv_lshl_add_u32 {vPub}, {vN}, 4, {vPub}")
    a(f"v_lshlrev_b32 {vLin}, 4, {vLane}")
    a(f"v_lshrrev_b32 v7, 1, {vN}\nv_lshlrev_b32 {vQa}, 6, v7\nv_and_b32 v7, 1, {vN}\nv_lshl_add_u32 {vQa}, v7, 4, {vQa}\nv_and_b32 v7, 1, {vGl}\nv_lshl_add_u32 {vQa}, v7, 5, {vQa}\nv_lshl_add_u32 {vQa}, v6, 10, {vQa}")
    a(f"s_mul_i32 s54, {sW}, 12288\ns_add_u32 s54, s54, {R3}\nv_lshrrev_b32 v7, 2, {vN}\nv_mul_u32_u24 v7, 3072, v7\nv_and_b32 v8, 3, {vN}\nv_lshl_add_u32 v7, v8, 7, v7")
    a(f"v_lshrrev_b32 v8, 1, {vN}\nv_xor_b32 v8, v8, {vGl}\nv_lshlrev_b32 v8, 4, v8\nv_add3_u32 {vU[0]}, v7, v8, s54\nv_xor_b32 {vU[1]}, 64, {vU[0]}")
    a(f"s_mul_i32 s54, {sKH}, 768\nv_mul_u32_u24 v7, 1536, {vN}\nv_lshlrev_b32 v8, 1, {vGl}\nv_xor_b32 v8, {vN}, v8\nv_lshlrev_b32 v8, 4, v8\nv_add3_u32 {vA[0]}, v7, v8, s54")
    for t in range(1,4): a(f"v_xor_b32 {vA[t]}, {128*(t>>1)+16*(t&1)}, {vA[0]}")
    a(f"v_bfe_u32 v7, {vN}, 3, 1\nv_mul_u32_u24 v7, 3200, v7\nv_bfe_u32 v8, {vN}, 2, 1\nv_mul_u32_u24 v8, 192, v8\nv_mul_u32_u24 v9, 768, {vGl}\nv_add3_u32 v7, v7, v8, v9")
    a(f"v_and_b32 v8, 3, {vN}\nv_lshl_add_u32 v7, v8, 3, v7\nv_add_u32 v7, {R2}, v7\nv_and_b32 v9, 1, {vGl}\nv_lshlrev_b32 v9, 5, v9")
    a(f"s_lshl_b32 s54, {sKH}, 6\nv_add3_u32 {vB[0]}, v7, v9, s54\nv_xor_b32 v10, 32, v9\nv_add3_u32 {vB[1]}, v7, v10, s54")
    a(f"s_lshl_b32 s54, {sKH}, 5\nv_xor_b32 v10, s54, v9\nv_add_u32 v10, 128, v10\nv_add_u32 {vB[2]}, v7, v10")
    a(f"v_mul_u32_u24 v7, {2*RS}, {vGl}\nv_lshl_add_u32 {vPl}, {vN}, 4, v7\nv_lshlrev_b32 {vM0}, 2, {vN}\nv_add_u32 {vMl}, {vM0}, v7")
    a(f"v_lshrrev_b32 v7, 2, {vLane}\nv_lshl_add_u32 {vBp}, v8, 4, v7\nv_lshlrev_b32 {vBp}, 2, {vBp}")
    a(f"v_mul_u32_u24 v7, {8*RS}, v7\nv_lshl_add_u32 {vC4}, v8, 4, v7")
    a(f"s_lshl_b32 s54, {sHH}, 11\ns_add_u32 s54, s54, {XB}\nv_add_u32 {vXa}, s54, {vLin}")
    if P.get("spf3"): a("s_mov_b64 s[26:27], s[14:15]\ns_mov_b64 s[24:25], s[22:23]")
    oQ,oQA,oQL,oP,oM,oPL,oML,oCL,oE,oUV,tUV,oF,t6 = "s4","s5",("s6","s7","s8"),"s9","s10",("s11","s12"),("s13","s14"),"s15","s16","s17","s18","s54","s19"
    a(f"s_mul_i32 s20, {sB}, {RS}\ns_add_u32 s20, s20, {REC}\ns_lshl_b32 s55, {sW}, 8\ns_add_u32 s21, s20, s55\ns_add_u32 {oQ}, s21, {RQ}\ns_add_u32 {oE}, s21, {RQ}")
    a(f"s_lshl_b32 s22, {sHH}, 10\ns_add_u32 s22, s22, {RP}\ns_lshl_b32 s23, {sHH}, 6\ns_add_u32 s23, s23, {RM}\ns_add_u32 {oP}, s20, s22\ns_add_u32 {oM}, s20, s23")
    a(f"s_mul_i32 s20, {sG}, {8*RS}\ns_add_u32 s20, s20, {REC}\ns_add_u32 {oPL[0]}, s20, s22\ns_add_u32 {oPL[1]}, {oPL[0]}, {RS}\ns_add_u32 {oML[0]}, s20, s23\ns_add_u32 {oML[1]}, {oML[0]}, {RS}")
    a(f"s_lshr_b32 s20, {sG}, 4\ns_mul_i32 s20, s20, 24\ns_mul_i32 s55, {sJ}, 3\ns_add_u32 s55, s55, {sW}\ns_add_u32 s20, s20, s55\ns_lshl_b32 s20, s20, 10")
    a(f"s_bfe_u32 s55, {sG}, 0x30001\ns_and_b32 s21, {sG}, 1\ns_lshl3_add_u32 s55, s21, s55\ns_lshl_b32 s55, s55, 6\ns_add_u32 s20, s20, s55\ns_add_u32 {oQA}, s20, {QA}")
    a(f"s_lshl1_add_u32 s20, {sHH}, {sKH}\ns_mul_i32 s20, s20, 12288\ns_add_u32 {oQL[0]}, s20, {QA}\ns_add_u32 {oQL[1]}, {oQL[0]}, 4096\ns_add_u32 {oQL[2]}, {oQL[0]}, 8192")
    a(f"s_lshl_b32 s20, {sHH}, 7\ns_add_u32 s20, s20, {sJ}\ns_mul_i32 s20, s20, {RS}\ns_lshl_b32 s55, {sKH}, 7\ns_add_u32 s20, s20, s55\ns_add_u32 s20, s20, {REC}")
    a(f"s_and_b32 s55, {sG}, 24\ns_bfe_u32 s21, {sG}, 0x20001\ns_or_b32 s55, s55, s21\ns_and_b32 s21, {sG}, 1\ns_lshl2_add_u32 s55, s21, s55\ns_lshl_b32 s55, s55, 8\ns_add_u32 {oCL}, s20, s55")
    a(f"s_mul_i32 {oF}, {sG}, 2560\ns_lshl_b32 s55, {sJ}, 9\ns_add_u32 {oF}, {oF}, s55\ns_lshl_b32 s55, {sW}, 7\ns_add_u32 {oF}, {oF}, s55\ns_add_u32 {oF}, {oF}, {OP}\ns_movk_i32 {t6}, {222+CB}")
    a(f"s_mov_b32 s48, 0x00800080\ns_mov_b32 s49, 0x437f0000\ns_lshl_b32 s55, {sHH}, 8\nv_add_u32 v6, s55, {vL4}")
    a(f"s_lshl_b32 s55, {sHH}, 9\ns_add_u32 s55, s55, {MLB}\nv_lshl_add_u32 {vSt}, {vLane}, 3, s55")
    if P["mshare"]: a(f"v_mov_b64 v[8:9], -1\nds_write_b64 {vSt}, v[8:9] offset:1024")
    tag_finish()
    CT=212
    a(f"s_getreg_b32 s55, hwreg(HW_REG_XCC_ID, 0, 4)\ns_xor_b32 s55, s55, s32\nv_mov_b32 v{vS+2}, s55\nv_mov_b32 v{vS+3}, s33")
    a(f"s_and_b32 s55, s32, 0xbfffbfff\nv_mov_b32 v{CT+3}, s55\nv_mov_b32 v{CT+7}, s55")
    oH,oHW="s17","s18"
    if P["hintC"]: a(f"s_lshl_b32 {oH}, {sG}, 11\ns_lshl_b32 s55, {sHH}, 5\ns_add_u32 {oH}, {oH}, s55\ns_add_u32 {oH}, {oH}, {HT+1024}\ns_lshl2_add_u32 {oHW}, {sJ}, {oH}\nv_lshlrev_b32 v209, 6, {vLane}\ns_mov_b32 s44, s32\ns_mov_b32 s45, s32")
    a(f"s_cmp_eq_u32 {sW}, 3\ns_cbranch_scc0 L_s1\ns_cmp_eq_u32 s40, 0\ns_cbranch_scc0 L_s3")
    a(f"s_mul_i32 s55, s2, {128//CS}\ns_add_u32 s55, s55, {FLG}\ns_waitcnt vmcnt(0)\nv_mov_b32 v24, s32\nv_mov_b32 v25, s33\ns_mov_b64 exec, 15")
    a(f"buffer_store_dwordx4 v[24:27], {vLin}, {WS}, s55 offen sc1\ns_mov_b64 exec, -1\ns_waitcnt vmcnt(0)\ns_branch L_s3\nL_s1:")
    a('; ---- S1: q partial')
    if P.get("pretQA") is not None: a(f"s_mov_b64 exec, 1\nbuffer_load_dword v206, {vLin}, {WS}, {oQA} offen {P['pretQA']}\ns_mov_b64 exec, -1")
    wait_flag("V1A",1)
    for s in range(2): a(f"ds_read_b128 {vr(QR+4*s,4)}, {vVec} offset:{64*s}")
    a(f"ds_read_b64 {vr(QR+8,2)}, {vVec} offset:128\nv_mov_b64 {vr(QR+10,2)}, 0")
    for t in range(4): a(f"v_mov_b64 {vr(FR+12*t+10,2)}, 0")
    if P["s1pipe"]:
        wait_flag("CNT",24)
        for t in range(4):
            for h in range(4): a(f"ds_read_b64_tr_b16 {vr(FR+12*t+2*h,2)}, {vT1[t]} offset:{2*h*3072}")
        for t in range(4):
            a(f"s_waitcnt lgkmcnt({12-4*t})")
            for s in range(2): a(f"v_mfma_f32_16x16x32_bf16 {vr(AC+4*t,4)}, {vr(FR+12*t+4*s,4)}, {vr(QR+4*s,4)}, {vr(AC+4*t,4) if s else 0}")
        l=a.lab("W1")
        spin(l); a(f"ds_read_b32 {vTmp}, {vL4} offset:{F['CNT']}")
        for t in range(4): a(f"ds_read_b64_tr_b16 {vr(FR+12*t+8,2)}, {vT1[t]} offset:{8*3072}")
        a(f"s_waitcnt lgkmcnt(0)\nv_cmp_gt_u32 vcc, {30+CB}, {vTmp}\ns_cbranch_vccnz {l}")
        stamp(1)
        for t in range(4): a(f"v_mfma_f32_16x16x32_bf16 {vr(AC+4*t,4)}, {vr(FR+12*t+8,4)}, {vr(QR+8,4)}, {vr(AC+4*t,4)}")
    else:
        wait_flag("CNT",30)
        stamp(1)
        for t in range(4):
            for h in range(5): a(f"ds_read_b64_tr_b16 {vr(FR+12*t+2*h,2)}, {vT1[t]} offset:{2*h*3072}")
        for t in range(4):
            a(f"s_waitcnt lgkmcnt({15-5*t})")
            for s in range(3): a(f"v_mfma_f32_16x16x32_bf16 {vr(AC+4*t,4)}, {vr(FR+12*t+4*s,4)}, {vr(QR+4*s,4)}, {vr(AC+4*t,4) if s else 0}")
    publish4(AC, vS, vPub, oQ, mode=False if P["gA"] else "plain")
    if P["ackA"]: a("s_waitcnt vmcnt(0)")
    sig("PUBA")
    stamp(2)
    a(f"s_mov_b32 s46, {R3-R2}\ns_movk_i32 s47, {198+CB}")
    if FF: a(f"s_cmp_lt_u32 {sV}, 10\ns_cselect_b32 s46, {R1-R2}, s46\ns_cselect_b32 s47, {222+CB}, s47")
    for t in range(4): a(f"v_add_u32 {vT1[t]}, s46, {vT1[t]}")
    a(f"v_mov_b32 v{vS+2}, s32\nv_xor_b32 v{vS+3}, 1, v{vS+3}")
    wait_flag("CLR",1)
    wait_flag("CNT",66)
    for s in range(6):
        for t in range(2): a(f"ds_read_b128 {vr(FR+8*s+4*t,4)}, {vU[s&1]} offset:{1024*(s>>1)+512*t}")
    if P["sched"][0][1]!=Q_: sig("RDUK")
    def vec2_mfma(flag, thr, vec, wfirst, fr):
        l=a.lab("V2")
        spin(l); a(f"ds_read_b32 {vTmp}, {vL4} offset:{F[flag]}")
        for s in range(6): a(f"ds_read_b128 {vr(QR+4*s,4)}, {vVec} offset:{vec-VEC1A+64*s}")
        a(f"s_waitcnt lgkmcnt(6)\nv_cmp_gt_u32 vcc, {thr}, {vTmp}\ns_cbranch_vccnz {l}")
        for s in range(6):
            a(f"s_waitcnt lgkmcnt({5-s})")
            for t in range(2):
                w_,q_=vr(fr+8*s+4*t,4),vr(QR+4*s,4)
                A_,B_=(w_,q_) if wfirst else (q_,w_)
                a(f"v_mfma_f32_16x16x32_bf16 {vr(AC+4*t,4)}, {A_}, {B_}, {vr(AC+4*t,4) if s else 0}")
    vec2_mfma("V2A",1,VEC2A,True,FR)
    a(f"v_readfirstlane_b32 s50, {vTmp}\ns_lshr_b32 s50, s50, 1")
    stamp(3)
    for k in range(4): a(f"v_cvt_pk_bf16_f32 v{AC+8+k}, v{AC+2*k}, v{AC+2*k+1}\nds_bpermute_b32 v{AC+12+k}, {vBp}, v{AC+8+k}")
    if P.get("batom"):
        a(f"s_mov_b64 exec, 15\ns_waitcnt lgkmcnt(0)\nbuffer_atomic_{P['batom']}_x2 {vr(AC+12,2)}, {vLin}, {WS}, {oQA} offen sc1\nbuffer_atomic_{P['batom']}_x2 {vr(AC+14,2)}, {vLin}, {WS}, {oQA} offen offset:8 sc1\ns_mov_b64 exec, -1\ns_waitcnt vmcnt(0)")
    if P.get("bexp"):
        m_,sh=P["bexp"]
        a(f"s_sub_u32 {oQA}, {oQA}, {QA}\ns_mul_i32 {oQA}, {oQA}, {sh}\ns_add_u32 {oQA}, {oQA}, {QA if sh<=2 else REC}")
    if not P.get("batom"): a(f"s_mov_b64 exec, {P['bexp'][0] if P.get('bexp') else 15}\ns_waitcnt lgkmcnt(0)\nbuffer_store_dwordx4 {vr(AC+12,4)}, {vLin}, {WS}, {oQA} offen {P.get('bfl','sc1')}\ns_mov_b64 exec, -1\ns_waitcnt vmcnt(0)")
    sig("PUBB")
    a("L_s3:")
    def areads(kt):
        for s in range(12): a(f"ds_read_b128 {vr(FR+48*kt+4*s,4)}, {vA[s&3]} offset:{24576*kt+256*(s>>2)}")
    def qloads():
        if P.get("skipq"): return
        for s in range(12): a(f"buffer_load_dwordx4 {vr(QR+4*s,4)}, {vQa}, {WS}, {oQL[s>>2]} offen offset:{2048*((s>>1)&1)+512*(s&1)} sc1")
    if P["thrQ"]>=114:
        wait_flag("CNT",114)
        areads(0)
    wait_flag("PUBB",3)
    if P["thrQ"]!=114: wait_flag("CNT",P["thrQ"])
    stamp(4); qloads(); sig("QISS")
    if P["thrQ"]<114:
        wait_flag("CNT",114)
        areads(0)
    if P["thrQ"]<162: wait_flag("CNT",162)
    areads(1)
    sig("RDA")
    a("s_waitcnt lgkmcnt(0)\ns_branch L_s3m")
    l,ok=loop_head("S3")
    qloads()
    a("L_s3m:")
    BQ=lambda f: FR+4*f
    def breads():
        for f in range(24):
            s4,ct=divmod(f,3)
            for e2 in range(2): a(f"ds_read_b64_tr_b16 {vr(BQ(f)+2*e2,2)}, {vB[ct]} offset:{3200*(8*e2+2*(s4&3))+384*(s4>>2)}")
        if not any(at<=60 and fl in (M_,K_,D_,C_,V_) for at,fl,_ in fsched): sig("RDB")
    TQ=[8,12]
    def fix(sg):
        L0=QR+8*sg; L1=L0+4
        o=[f"s_waitcnt vmcnt({10-2*sg})"]
        o+=[f"v_cndmask_b32_dpp v{TQ[sg&1]+k}, v{L1+k}, v{L0+k}, vcc quad_perm:[0,0,2,2] {DP}" for k in range(4)]
        o+=["s_not_b64 vcc, vcc"]
        o+=[f"v_cndmask_b32_dpp v{L1+k}, v{L0+k}, v{L1+k}, vcc quad_perm:[1,1,3,3] {DP}" for k in range(4)]
        o+=["s_not_b64 vcc, vcc"]
        return o
    a("s_mov_b32 vcc_lo, 0x55555555\ns_mov_b32 vcc_hi, 0x55555555")
    a("\n".join(fix(0)))
    for sg in range(6):
        nx=fix(sg+1) if sg<5 else []
        cut=[3,6,8,11]; st_=0
        for i in range(4):
            pi,kt=i>>1,i&1
            qreg=TQ[sg&1] if pi==0 else QR+8*sg+4
            a(f"v_mfma_f32_16x16x32_bf16 {vr(AC+4*kt,4)}, {vr(FR+48*kt+4*(2*sg+pi),4)}, {vr(qreg,4)}, {vr(AC+4*kt,4) if 2*sg+pi else 0}")
            if nx: a("\n".join(nx[st_:cut[i]])); st_=cut[i]
    a(f"s_cmp_eq_u32 {sKH}, 0\nv_cmp_u_f32 vcc, v{AC}, v{AC+4}\ns_cbranch_vccnz {l}\n{ok}:")
    if any(x[1]==("S3K",4) for x in P["sched"]): sig("S3K")
    stamp(6)
    far[-1]=far[-1].replace("s_nop 7",f"s_cmp_eq_u32 {sKH}, 0\ns_nop 7")
    a(f"s_cbranch_scc1 {'L_soft' if P['blate'] else 'L_nox'}")
    a(f"ds_write_b128 {vXa}, {vr(AC,4)}\nds_write_b128 {vXa}, {vr(AC+4,4)} offset:1024\nds_add_u32 v6, {vOne} offset:{F['X0']}")
    if P["blate"]: a("s_branch L_s4\nL_soft:")
    else:
        a("L_nox:")
        breads()
        a("s_cbranch_scc0 L_s4\nL_soft:")
    l=a.lab("XW")
    spin(l); a(f"ds_read_b32 {vTmp}, v6 offset:{F['X0']}\nds_read_b128 {vr(AC+8,4)}, {vXa}\nds_read_b128 {vr(AC+12,4)}, {vXa} offset:1024")
    a(f"s_waitcnt lgkmcnt(0)\nv_cmp_gt_u32 vcc, 1, {vTmp}\ns_cbranch_vccnz {l}")
    for k in range(4): a(f"v_pk_add_f32 {vr(AC+2*k,2)}, {vr(AC+2*k,2)}, {vr(AC+8+2*k,2)}")
    a(f"v_max3_f32 v8, v{AC}, v{AC+1}, v{AC+2}\nv_max3_f32 v9, v{AC+3}, v{AC+4}, v{AC+5}\nv_max3_f32 v8, v8, v{AC+6}, v{AC+7}\nv_max_f32 v8, v8, v9")
    xreduce("v_max_f32","v8","v9")
    a("v_ceil_f32 v8, v8\ns_cmp_eq_u32 s50, 0")
    for k in range(4): a(f"v_pk_add_f32 {vr(AC+2*k,2)}, {vr(AC+2*k,2)}, v[8:9] op_sel_hi:[1,0] neg_lo:[0,1] neg_hi:[0,1]")
    for k in range(8): a(f"v_exp_f32 v{AC+k}, v{AC+k}")
    for k in range(4): a(f"v_cvt_pk_bf16_f32 v{AC+8+k}, v{AC+2*k}, v{AC+2*k+1}")
    (lambda t: a(t.replace("offen","offen sc1")) if P["gC"] else mstore(t))(f"buffer_store_dwordx4 {vr(AC+8,4)}, {vLin}, {WS}, {oP} offen"+("" if P.get("ackM") else f"\ns_mov_b64 exec, 0xffff\nbuffer_store_dword v8, {vM0}, {WS}, {oM} offen"))
    if P["hintC"] and not P["ackC"] and not P.get("verC"): a(f"buffer_store_dword v{vS+2}, v209, {WS}, {oHW} offen")
    a("s_mov_b64 exec, -1")
    a(f"v_pk_add_f32 {vr(AC,2)}, {vr(AC,2)}, {vr(AC+2,2)}\nv_pk_add_f32 {vr(AC+4,2)}, {vr(AC+4,2)}, {vr(AC+6,2)}\nv_pk_add_f32 {vr(AC,2)}, {vr(AC,2)}, {vr(AC+4,2)}\nv_add_f32 v9, v{AC}, v{AC+1}")
    a(f"ds_write_b64 {vSt}, v[8:9]")
    sig("PUBC")
    if P["hintC"] and P.get("verC"):
        vk=a.lab("VK")
        for tr_ in range(2):
            a(f"s_add_u32 s96, s28, {oP}\ns_addc_u32 s97, s29, 0" if tr_==0 else "")
            for k in range(8): a(f"s_load_dword s{20+k}, s[96:97], {128*k+64*(1-tr_)}")
            a("s_waitcnt lgkmcnt(0)\ns_or_b64 s[20:21], s[20:21], s[22:23]\ns_or_b64 s[24:25], s[24:25], s[26:27]\ns_or_b64 s[20:21], s[20:21], s[24:25]\ns_or_b32 s20, s20, s21\ns_bitcmp0_b32 s20, 31")
            a(f"s_cbranch_scc1 {vk}")
        a(f"s_waitcnt vmcnt(0)\n{vk}:\ns_mov_b64 exec, 0xffff\nbuffer_store_dword v{vS+2}, v209, {WS}, {oHW} offen\ns_mov_b64 exec, -1")
    elif P["hintC"] and P["ackC"]: a(f"s_mov_b64 exec, 0xffff\ns_waitcnt vmcnt(0)\nbuffer_store_dword v{vS+2}, v209, {WS}, {oHW} offen\ns_mov_b64 exec, -1")
    a("L_s4:")
    stamp(7)
    if P["blate"]: breads()
    if P.get("ackM"):
        a(f"s_cmp_eq_u32 {sKH}, 0\ns_cbranch_scc0 L_nm\ns_cmp_eq_u32 s50, 0\ns_mov_b64 exec, 0xffff\ns_waitcnt vmcnt(0)")
        mstore(f"buffer_store_dword v8, {vM0}, {WS}, {oM} offen")
        a("s_mov_b64 exec, -1\nL_nm:")
    wait_flag("PUBC",2)
    stamp(8)
    a("v_mov_b32 v13, 1")
    if P["mshare"]: a(f"s_branch L_s4l\nL_s4f:\nds_read_b64 v[8:9], {vSt} offset:1024\ns_waitcnt lgkmcnt(0)\nv_cmp_u_f32 vcc, v8, v9\nv_max_f32 v10, v8, v9\ns_cbranch_vccz L_s4p\nL_s4l:")
    l,ok=loop_head("S4",("S4M",))
    a(f"buffer_load_dword v8, {vMl}, {WS}, {oML[0]} offen sc1\nbuffer_load_dword v9, {vMl}, {WS}, {oML[1]} offen sc1")
    a(f"s_waitcnt vmcnt(0)\nv_cmp_u_f32 vcc, v8, v9\nv_max_f32 v10, v8, v9\ns_cbranch_vccnz {'L_s4f' if P['mshare'] else l}")
    if P["mshare"]: a(f"ds_write_b64 {vSt}, v[8:9] offset:1024")
    a("L_s4p:")
    def ploads(lo,hi):
        for s in range(lo,hi): a(f"buffer_load_dwordx4 {vr(QR+4*s,4)}, {vPl}, {WS}, {oPL[s>>2]} offen offset:{256*(s&3)} sc1")
        if hi==8 and lo<8:
            sig("S4M","v13"); a("v_mov_b32 v13, 0"); stamp(5)
            if P["lateG"]==3: a(f"ds_read_b32 v14, {vL4} offset:{F['GOK']}")
    n1_,n2_=P["psplit"]
    ploads(0,n1_)
    xreduce("v_max_f32","v10","v11")
    ploads(n1_,n1_+n2_)
    a("v_sub_f32 v8, v10, v8\nv_sub_f32 v9, v10, v9\nv_min_f32 v8, s49, v8\nv_min_f32 v9, s49, v9\nv_cvt_u32_f32 v8, v8\nv_cvt_u32_f32 v9, v9\nv_mul_u32_u24 v8, s48, v8\nv_mul_u32_u24 v9, s48, v9")
    ploads(n1_+n2_,8)
    a(f"s_waitcnt vmcnt(7)")
    for k in range(4): a(f"v_pk_sub_u16 v{QR+k}, v{QR+k}, v8 clamp")
    for s in range(8):
        mf=lambda ct: a(f"v_mfma_f32_16x16x32_bf16 {vr(AC+4*ct,4)}, {vr(BQ(3*s+ct),4)}, {vr(QR+4*s,4)}, {vr(AC+4*ct,4) if s else 0}")
        q=QR+4*s
        if s==0: a(f"v_or3_b32 v12, v{q}, v{q+1}, v{q+2}\nv_or_b32 v12, v12, v{q+3}")
        mf(0)
        if s<7:
            a(f"s_waitcnt vmcnt({6-s})")
            a(f"v_pk_sub_u16 v{q+4}, v{q+4}, v{8+((s+1)>>2)} clamp\nv_pk_sub_u16 v{q+5}, v{q+5}, v{8+((s+1)>>2)} clamp")
        mf(1)
        if s<7: a(f"v_pk_sub_u16 v{q+6}, v{q+6}, v{8+((s+1)>>2)} clamp\nv_pk_sub_u16 v{q+7}, v{q+7}, v{8+((s+1)>>2)} clamp")
        mf(2)
        if s<7: a(f"v_or3_b32 v12, v12, v{q+4}, v{q+5}\nv_or3_b32 v12, v12, v{q+6}, v{q+7}")
    a(f"v_and_b32 v12, 0x80008000, v12\nv_cmp_ne_u32 vcc, 0, v12\ns_cbranch_vccnz {l}\n{ok}:")
    if P["lateG"]==3:
        gw=a.lab("GW"); gb=a.lab("GB")
        a(f"s_waitcnt lgkmcnt(0)\nv_cmp_ne_u32 vcc, 1, v14\ns_cbranch_vccnz {gw}\n{gb}:")
        far.append(f"{gw}:\nds_read_b32 v14, {vL4} offset:{F['GOK']}\ns_waitcnt lgkmcnt(0)\nv_cmp_ne_u32 vcc, 1, v14\ns_cbranch_vccnz {gw}\ns_nop 4\ns_branch {gb}")
    sig("S4K")
    stamp(9)
    for k in range(6): a(f"v_cvt_pk_bf16_f32 v{QR+k}, v{AC+2*k}, v{AC+2*k+1}\nds_bpermute_b32 v{CT+k+k//3}, {vBp}, v{QR+k}")
    if P.get("dhalf"): a(f"s_cmp_eq_u32 {sKH}, 0\ns_cbranch_scc0 L_nod")
    a(f"s_waitcnt lgkmcnt(3)\nbuffer_store_dwordx4 {vr(CT,4)}, {vC4}, {WS}, {oCL} offen sc1")
    a(f"s_waitcnt lgkmcnt(0)\nbuffer_store_dwordx4 {vr(CT+4,4)}, {vC4}, {WS}, {oCL} offen offset:64 sc1")
    if P.get("dhalf"): a("L_nod:")
    sig("DST")
    stamp(10)
    a(f"s_waitcnt vmcnt({P.get('dack',0)})")
    sig("PUBD")
    F6=FR+48
    def s6reads(half):
        for s in range(3*half,3*half+3):
            for t in range(2):
                for e2 in range(2): a(f"ds_read_b64_tr_b16 {vr(F6+8*s+4*t+2*e2,2)}, {vT6[t]} offset:{(4*s+2*e2)*2048}")
    a(f"s_cmp_eq_u32 {sW}, 3\ns_cbranch_scc1 L_s6")
    wait_flag("CNT","s47")
    for t in range(4):
        for h in range(6): a(f"ds_read_b64_tr_b16 {vr(FR+12*t+2*h,2)}, {vT1[t]} offset:{2*h*3072}")
    l=a.lab("V1")
    spin(l); a(f"ds_read_b32 {vTmp}, {vL4} offset:{F['V1B']}")
    for s in range(3): a(f"ds_read_b128 {vr(QR+4*s,4)}, {vVec} offset:{VEC1B-VEC1A+64*s}")
    a(f"s_waitcnt lgkmcnt(0)\nv_cmp_gt_u32 vcc, 1, {vTmp}\ns_cbranch_vccnz {l}")
    stamp(11)
    for t in range(4):
        for s in range(3):
            a(f"v_mfma_f32_16x16x32_bf16 {vr(AC+4*t,4)}, {vr(FR+12*t+4*s,4)}, {vr(QR+4*s,4)}, {vr(AC+4*t,4) if s else 0}")
    a("s_cmp_eq_u32 s50, 0")
    publish4(AC, vS, vPub, oE, mode=True)
    sig("PUBE")
    a('; ---- S6: output projection (w_o) or second FFN GEMV (w2)')
    a("L_s6:")
    stamp(12)
    a(f"s_cmp_lt_u32 {sJ}, 5\ns_cbranch_scc0 L_fin")
    a("L_s6go:")
    a(f"v_lshlrev_b32 v6, 2, {vLane}\ns_mov_b32 s56, 0xffff0000\ns_mov_b32 s57, 0")
    wait_flag("CNT",t6)
    s6reads(0)
    wait_flag("CNT",246)
    s6reads(1)
    stamp(13)
    vec2_mfma("V2B",1,VEC2B,False,F6)
    a(f"s_mov_b32 exec_hi, 0\nv_cndmask_b32 v7, v{AC}, v{AC+4}, s[56:57]\nbuffer_store_dword v7, v6, {WS}, {oF} offen sc1")
    stamp(14)
    a("s_mov_b64 exec, -1\ns_waitcnt vmcnt(0)")
    sig("PUBF")
    a("s_branch L_fin")
    if P["incC"]:
        i_=a.L.index("L_soft:"); a.L[i_:i_]=incstub.split("\n")

    if P.get("spf3"):
        a("L_w3p:")
        n0_=len(a.L)
        sprefetch(*P["spf3"])
        a.L[n0_:]=[x.replace("s96, s96, s14","s96, s96, s26").replace("s97, s15, 0","s97, s27, 0").replace("s96, s96, s22","s96, s96, s24").replace("s97, s23, 0","s97, s25, 0") for x in a.L[n0_:]]
        stamp(1)
        a("s_branch L_s3")
    GA=16; GD=32; GX=72
    def gather_setup(vOff, stride):
        a(f"v_mul_u32_u24 {vOff}, {stride}, {vGl}\nv_lshl_add_u32 {vOff}, {vN}, 4, {vOff}")
        a(f"v_and_b32 v6, 1, {vN}\nv_lshlrev_b32 v6, 4, v6\nv_mov_b32 v7, 0x3f80\nv_lshlrev_b32 v6, v6, v7\nv_lshrrev_b32 v7, 1, {vN}")
        for k in range(6): a(f"v_cmp_eq_u32 vcc, {k}, v7\nv_cndmask_b32 v{GA+k}, 0, v6, vcc")
    def gather(nq, vOff, soffs, name, xcc=False, tag="s[32:33]"):
        if xcc: a(f"s_andn2_b32 {sBud}, {sBud}, 15")
        l,ok=loop_head(name, ("GISS",) if xcc=="q" and P["holdG"] else ())
        if nq==3:
            for u in range(3): a(f"v_mov_b32 v{GD+26+4*u}, s58")
        for q in range(nq):
            if q==2: a("s_mov_b32 exec_hi, 0")
            for u in range(3):
                a(f"buffer_load_dwordx4 {vr(GD+4*(3*q+u),4)}, {vOff}, {WS}, {soffs[q]} offen offset:{256*u} sc1")
        if nq==3: a("s_mov_b64 exec, -1")
        if xcc=="q" and P["holdG"]: sig("GISS")
        n=3*nq
        for k in range(n):
            a(f"s_waitcnt vmcnt({n-1-k})\nv_mfma_f32_16x16x16_bf16 {vr(GX,4)}, {vr(GA+2*(k%3),2)}, {vr(GD+4*k,2)}, {vr(GX,4) if k else 0}")
        slot = RQ if xcc=="q" else RE
        if not xcc:
            for k in range(n): a(f"v_cmpx_eq_u64 vcc, {tag}, {vr(GD+4*k+2,2)}")
            a(f"s_cmp_eq_u64 exec, -1\ns_mov_b64 exec, -1\ns_cbranch_scc0 {l}\n{ok}:")
        else:
            sl=a.lab("SL")
            for k in range(n): a(f"v_cmpx_eq_u64 vcc, s[58:59], {vr(GD+4*k+2,2)}")
            a(f"s_cmp_eq_u64 exec, -1\ns_mov_b64 exec, -1\ns_cbranch_scc1 {ok}")
            if xcc=="q" and P["thrG2"]: a(f"ds_read_b32 {vTmp}, {vL4} offset:{F['V2A']}\ns_waitcnt lgkmcnt(0)\nv_cmp_lt_u32 vcc, 0, {vTmp}\ns_cbranch_vccnz L_gadone\ns_cmp_eq_u32 {sW}, 6\ns_cbranch_scc1 {l}")
            for k in range(n): a(f"v_or_b32 v{GD+4*k+2}, 15, v{GD+4*k+2}\nv_cmpx_eq_u64 vcc, {tag}, {vr(GD+4*k+2,2)}")
            a(f"s_cmp_eq_u64 exec, -1\ns_mov_b64 exec, -1\ns_cselect_b32 s60, 0, {sBud}\ns_cselect_b32 s63, 1, 0\ns_and_b32 s60, s60, 15\ns_cbranch_scc1 {l}\ns_branch {sl}\n{ok}:")
            far.append(f"""{sl}:
s_mov_b32 exec_hi, 0xffff
buffer_load_dwordx4 v[76:79], v28, {WS}, s61 offen offset:{slot-RP} sc1
s_waitcnt vmcnt(0)
v_cmpx_eq_u64 vcc, s[58:59], v[78:79]
s_cbranch_execz {sl}_n
buffer_store_dwordx4 v[76:79], v28, {WS}, s61 offen offset:{slot-RP} sc1
{sl}_n:
s_mov_b64 exec, -1
s_waitcnt vmcnt(0)
s_cmp_eq_u32 s63, 0
s_cbranch_scc1 {l}
"""+(f"s_branch {ok}" if xcc!="q" else f"""v_mov_b32 v76, -1
v_mov_b32 v77, -1
v_mov_b32 v78, -1
v_mov_b32 v79, -1
v_mov_b32 v27, 3
buffer_store_dwordx4 v[76:79], v28, {WS}, s61 offen sc1
buffer_store_dwordx4 v[76:79], v28, {WS}, s61 offen offset:1024 sc1
s_mov_b64 exec, 0xff
buffer_store_dwordx4 v[76:79], v28, {WS}, s61 offen offset:2048 sc1
s_mov_b64 exec, -1
s_waitcnt vmcnt(0)
s_branch {ok}"""))
    def vec2_write(vAddr, flag, v=vOne, op="ds_add_u32"):
        a(f"s_mov_b32 exec_hi, 0xffff\nv_cvt_pk_bf16_f32 v{GX}, v{GX}, v{GX+1}\nv_cvt_pk_bf16_f32 v{GX+1}, v{GX+2}, v{GX+3}\nds_write_b64 {vAddr}, {vr(GX,2)}\ns_mov_b64 exec, -1")
        a(f"{op} {vL4}, {v} offset:{F[flag]}")
    def vec2b_addr(dst):
        a(f"v_lshlrev_b32 {dst}, 7, {vGl}\nv_bfe_u32 v6, {vN}, 1, 1\nv_lshl_add_u32 {dst}, v6, 6, {dst}\nv_lshrrev_b32 v6, 2, {vN}\nv_lshl_add_u32 {dst}, v6, 4, {dst}\nv_and_b32 v6, 1, {vN}\nv_lshl_add_u32 {dst}, v6, 3, {dst}\nv_add_u32 {dst}, {VEC2B}, {dst}")

    a("L_w7:")
    a(f"s_movk_i32 s43, {P['thrG']+CB}")
    tag_finish()
    if P["tlb"]:
        a("; first and last line of every tile this workgroup streams later: warms the address translation while w_q is in flight")
        a(f"s_mul_i32 s52, {sJ}, {96*12288}\ns_mul_i32 s53, {sG}, 384\ns_add_u32 s52, s52, s53\nv_mul_u32_u24 v8, {95*12288}, {vLane}\nv_add_u32 v8, s52, v8")
        a(f"s_mul_i32 s52, {sG}, 393216\nv_mul_u32_u24 v9, 393212, {vLane}\nv_add_u32 v9, s52, v9")
        a(f"s_min_u32 s54, {sV}, 9\ns_mul_i32 s52, {sG}, 245760\ns_mul_i32 s53, {sX}, 245760\ns_cmp_lt_u32 {sJ}, 5\ns_cselect_b32 s52, s52, s53\ns_cselect_b64 s[48:49], s[14:15], s[22:23]\nv_mul_u32_u24 v10, {191*1280}, {vLane}\nv_add_u32 v10, s52, v10")
        a(f"s_mul_i32 s52, s54, {64*3072}\nv_mul_u32_u24 v11, {63*3072}, {vLane}\nv_add_u32 v11, s52, v11\nv_mul_u32_u24 v12, {0x36e000}, {vLane}\nv_add_u32 v12, 0x2000, v12")
    if P["tlb"]:
        a(f"s_mov_b64 exec, 3\nglobal_load_dword v13, v8, s[10:11]\nglobal_load_dword v13, v9, s[6:7]\nglobal_load_dword v13, v12, s[28:29]\nglobal_load_dword v13, v8, s[12:13]\nglobal_load_dword v13, v10, s[48:49]")
        a(f"s_cmp_lt_u32 {sV}, 10\ns_cbranch_scc0 L_ntw\nglobal_load_dword v13, v11, s[18:19]\nL_ntw:\ns_mov_b64 exec, -1")
    a(f"L_ga:\ns_setprio {P['prio'][1]}")
    gather_setup("v24", RS)
    a(f"v_lshlrev_b32 v28, 4, {vLane}\ns_mul_i32 s61, {sB}, {RS}\ns_add_u32 s61, s61, {REC+RP}")
    a(f"v_lshlrev_b32 v25, 7, {vGl}\nv_and_b32 v6, 3, {vN}\nv_lshl_add_u32 v25, v6, 5, v25\nv_lshrrev_b32 v6, 2, {vN}\nv_lshl_add_u32 v25, v6, 3, v25\nv_add_u32 v25, {VEC2A}, v25")
    vec2b_addr("v26")
    a(f"s_mul_i32 s54, {sG}, {8*RS}\ns_add_u32 s52, s54, {REC+RQ}\ns_add_u32 s53, s52, {4*RS}\ns_mov_b32 s48, s32\ns_xor_b32 s49, s33, 1")
    a(f"s_mov_b32 s56, {f2u(192**-0.5*math.log2(math.e))}\ns_mov_b32 s57, s56")
    a("s_getreg_b32 s58, hwreg(HW_REG_XCC_ID, 0, 4)\ns_xor_b32 s58, s58, s32\ns_mov_b32 s59, s33\nv_mov_b32 v27, 1")
    if P["hintA"]:
        a(f"s_lshl_b32 s43, {sG}, 11\ns_add_u32 s43, s43, {HT}\ns_lshl2_add_u32 s51, {sJ}, s43\nv_lshlrev_b32 v6, 6, {vLane}\nv_mov_b32 v7, s32\ns_mov_b32 s48, s32\ns_mov_b32 s49, s32")
    if P["gA"]==1:
        a(f"s_lshl_b32 s43, {sG}, 11\ns_add_u32 s43, s43, {HT}\ns_add_u32 s96, s28, s43\ns_addc_u32 s97, s29, 0\ns_lshl_b32 s51, {sB}, 8\ns_add_u32 s51, s51, {HT}\ns_mov_b32 s48, s32\ns_mov_b32 s49, s32")
        a("v_mov_b32 v8, s32\nv_mov_b32 v9, s32\nv_mov_b32 v10, s32\nv_mov_b32 v11, s32")
    wait_flag("PUBA",3)
    if P["gA"]==1:
        a(f"s_mov_b64 exec, 15\nbuffer_store_dwordx4 v[8:11], v28, {WS}, s51 offen sc1\ns_mov_b64 exec, -1")
        ghint("s[96:97]", 256, 8, "s[48:49]")
    elif P["hintA"]:
        a(f"s_mov_b64 exec, 0xffff\nbuffer_store_dword v7, v6, {WS}, s51 offen\ns_mov_b64 exec, -1")
        hint_wait("s43", 8, "s[48:49]")
    else: wait_flag("CNT","s43")
    stamp(1)
    gather(2,"v24",["s52","s53"],"GA", xcc="q")
    stamp(2)
    a(f"v_pk_mul_f32 {vr(GX,2)}, {vr(GX,2)}, s[56:57]\nv_pk_mul_f32 {vr(GX+2,2)}, {vr(GX+2,2)}, s[56:57]")
    vec2_write("v25","V2A","v27","ds_max_u32")
    if P["thrG2"]: a(f"L_gadone:\ns_cmp_eq_u32 {sW}, 6\ns_cbranch_scc1 L_w6b")
    a(f"s_lshl_b32 s54, {sX}, 14\ns_and_b32 s55, {sG}, 3\ns_lshl_b32 s55, s55, 4\ns_add_u32 s54, s54, s55\ns_add_u32 s44, s54, {ST}\ns_add_u32 s45, s44, 4096\ns_add_u32 s46, s44, 8192\ns_add_u32 s47, s44, 12288\nv_lshlrev_b32 v22, 6, {vLane}\nv_add_u32 v23, {XB}, v28")
    wait_flag(*{"DST":("DST",4),"S4M":("S4M",1),"PUBC":("PUBC",2),"PUBD":("PUBD",4)}[P["stattrig"]])
    stamp(3)
    l,ok=loop_head("SS")
    SM=108
    for k in range(4): a(f"buffer_load_dwordx4 {vr(SM+4*k,4)}, v22, {WS}, s{44+k} offen sc1")
    a("s_waitcnt vmcnt(0)")
    for k in range(4): a(f"v_cmpx_eq_u64 vcc, s[32:33], {vr(SM+4*k+2,2)}")
    a(f"s_cmp_eq_u64 exec, -1\ns_mov_b64 exec, -1\ns_cbranch_scc0 {l}\n{ok}:")
    if ("STR",1) in P["dtrig"]: sig("STR")
    stamp(4)
    st3=("quad_perm:[1,0,3,2]","quad_perm:[2,3,0,1]","row_half_mirror")
    for i,s in enumerate(st3):
        for k in range(4):
            src = f"v{SM+4*k}" if i==0 else f"v{32+k}"
            a(f"v_max_f32_dpp v{32+k}, {src}, {src} {s} {DP}")
    a("v_max3_f32 v36, v32, v33, v34\nv_max_f32 v36, v36, v35")
    rowreduce("v_max_f32","v36",("row_mirror",))
    xreduce("v_max_f32","v36","v37")
    for k in range(4): a(f"v_sub_f32 v{SM+4*k}, v{SM+4*k}, v36\nv_sub_f32 v{32+k}, v{32+k}, v36")
    for k in range(4): a(f"v_exp_f32 v{SM+4*k}, v{SM+4*k}\nv_exp_f32 v{32+k}, v{32+k}")
    a(f"v_mul_f32 v38, v{SM}, v{SM+1}\nv_fmac_f32 v38, v{SM+4}, v{SM+5}\nv_fmac_f32 v38, v{SM+8}, v{SM+9}\nv_fmac_f32 v38, v{SM+12}, v{SM+13}")
    for k in range(4): a(f"v_cvt_pk_bf16_f32 v{32+k}, v{32+k}, v{32+k}")
    rowreduce("v_add_f32","v38")
    xreduce("v_add_f32","v38","v37")
    a("v_rcp_f32 v38, v38")
    a("ds_write_b128 v23, v[32:35]\nds_write_b32 v23, v38 offset:1024")
    sig("STOK")
    stamp(5)
    a(f"s_cmp_lt_u32 {sJ}, 5\ns_cbranch_scc1 L_w7e\ns_cmp_lt_u32 {sV}, 10\ns_cbranch_scc0 L_fin")
    a("L_ffn2:")
    trcore("v8", vTmp)
    a(f"s_and_b32 s52, {sW}, 1\ns_lshl_b32 s55, s52, 6\nv_lshrrev_b32 v6, 5, {vLane}\nv_lshl_add_u32 v8, v6, 11, v8\nv_xor_b32 v8, s55, v8\nv_add_u32 {vT6[0]}, {R2}, v8\nv_xor_b32 {vT6[1]}, 32, {vT6[0]}")
    a(f"v_lshlrev_b32 {vVec}, 4, {vGl}\nv_add_u32 {vVec}, {VEC1A}, {vVec}")
    a(f"s_mul_i32 s54, {sX}, 2560\ns_lshl_b32 s55, {sV}, 8\ns_add_u32 s54, s54, s55\ns_lshl_b32 s55, s52, 7\ns_add_u32 s54, s54, s55\ns_add_u32 s54, s54, {YP}\ns_movk_i32 {t6}, {234+CB}")
    wait_flag(*(("GOK",1) if P["lateG"]==3 else ("PUBC",2)))
    a("s_branch L_s6go")
    a("L_w7e:")
    wait_flag("PUBE",3)
    a("L_ge:")
    stamp(6)
    gather(2,"v24",["s52","s53"],"GE", tag="s[48:49]")
    stamp(7)
    vec2_write("v26","V2B")
    if P["ge2"]: a(f"s_cmp_eq_u32 {sW}, 6\ns_cbranch_scc0 L_fin\ns_cmp_lt_u32 s2, 20\ns_cbranch_scc1 L_fin2")
    a("s_branch L_fin")

    a('; ======== W5: sentinel fill, fill flags, statistics store, weighted combine of the 32 key-group partials')
    a("L_w5:")
    a(f"v_lshlrev_b32 v6, 4, {vLane}\nv_mov_b32 v8, -1\nv_mov_b32 v9, -1\nv_mov_b32 v10, -1\nv_mov_b32 v11, -1")
    a(f"s_mul_i32 s52, {sB}, {RS}\ns_add_u32 s52, s52, {REC}\ns_add_u32 s53, s52, {RP}")
    if P["hintA"] or P["hintC"]: a(f"s_lshl_b32 s54, {sB}, 8\ns_add_u32 s54, s54, {HT-60*64}\nv_mov_b32 v7, s54\nv_mov_b32 v23, s53\nv_cmp_gt_u32 vcc, 60, {vLane}\nv_lshlrev_b32 v22, 6, {vLane}\nv_cndmask_b32 v7, v7, v23, vcc\nv_add_u32 v7, v7, v22")
    else: a(f"v_lshlrev_b32 v22, 6, {vLane}\nv_add_u32 v7, s53, v22")
    pm=((1<<64)-1)
    if P["gC"]: pm&=~((1<<36)-1)
    if P["gA"]: pm&=~(0xffff<<48)
    if not (P["hintA"] or P["hintC"]): pm&=~(0xf<<60)
    pm2=0
    if P.get("latetouch"): pm2=pm&((1<<48)-1); pm&=~pm2
    if pm: a(f"s_mov_b32 exec_lo, {pm&0xffffffff}\ns_mov_b32 exec_hi, {pm>>32}\nbuffer_load_dword v23, v7, {WS}, 0 offen sc1\ns_mov_b64 exec, -1")
    def gclear():
        a(f"s_cmp_lt_u32 s2, 100\ns_cbranch_scc0 L_ng\ns_lshl_b32 s54, s2, 10\ns_add_u32 s54, s54, {G}\nbuffer_store_dwordx4 v[8:11], v6, {WS}, s54 offen sc1\nL_ng:")
    if not P.get("lateG"): gclear()
    a(f"s_setprio {P['prio'][1]}")
    MK=12
    a(f"v_and_b32 v7, 1, {vN}\nv_lshlrev_b32 v7, 4, v7\nv_mov_b32 v16, 0xffff\nv_lshlrev_b32 v7, v7, v16\nv_lshrrev_b32 v16, 1, {vN}")
    for k in range(3): a(f"v_cmp_eq_u32 vcc, {2*k}, v16\nv_cndmask_b32 v{MK+k}, 0, v7, vcc")
    for k in range(8): a(f"v_mov_b32 v{43+4*k}, 0")
    a(f"v_bfe_u32 v7, {vN}, 2, 1\nv_mad_u32_u24 v7, v7, 3, {vGl}\nv_lshrrev_b32 v17, 3, {vN}\nv_lshlrev_b32 v18, 6, v17\nv_lshl_add_u32 v18, v7, 2, v18")
    a(f"v_lshlrev_b32 v19, 3, v17\nv_lshl_add_u32 v19, v7, 2, v19\nv_add_u32 v19, 112, v19\nv_cmp_gt_u32 vcc, 4, v7\nv_cndmask_b32 v18, v19, v18, vcc")
    a(f"v_and_b32 v7, 3, {vN}\nv_lshl_add_u32 v18, v7, 4, v18\nv_add_u32 v18, {VEC1B}, v18")
    a(f"s_movk_i32 s55, {FLG}\nv_lshlrev_b32 v16, 7, {vLane}")
    tag_finish()
    if pm2:
        wait_flag("CNT",P["latetouch"])
        assert pm2==(1<<48)-1 and not P["ge2"] and not P["gA"] and not P["hintA"]
        a(f"s_cmp_lt_u32 {sV}, 10\ns_cselect_b32 exec_hi, 0xfff3, 3\nbuffer_load_dword v23, v22, {WS}, s53 offen sc1\ns_mov_b64 exec, -1")
    if P.get("lateG")==1: gclear()
    a("s_waitcnt vmcnt(0)")
    if P.get("lateG")==2: gclear()
    cf="sc1" if P["gC"] else ""
    a(f"buffer_store_dwordx4 v[8:11], v6, {WS}, s53 offen {cf}\nbuffer_store_dwordx4 v[8:11], v6, {WS}, s53 offen offset:1024 {cf}\ns_mov_b64 exec, 0xff\nbuffer_store_dwordx4 v[8:11], v6, {WS}, s53 offen offset:2048 {cf}\ns_mov_b64 exec, -1")
    stamp(1)
    wait_flag("CNT",P["thrF"])
    l,ok=loop_head("FL")
    a(f"s_mov_b64 exec, 0xff\nbuffer_load_dwordx2 v[24:25], v16, {WS}, s55 offen sc1\ns_waitcnt vmcnt(0)\nv_cmp_ne_u64 vcc, s[32:33], v[24:25]\ns_mov_b64 exec, -1\ns_cbranch_vccnz {l}\n{ok}:")
    sig("CLR")
    stamp(2)
    if P.get("retouch"):
        wait_flag(*P["retouch"])
        a(f"s_mov_b32 exec_hi, 0x0000ffff\nbuffer_load_dword v23, v22, {WS}, s53 offen sc1\ns_mov_b64 exec, -1")
    a(f"s_add_u32 s53, s52, 4096\nv_add_u32 v20, {XB}, v6\ns_and_b32 s56, s32, 0xbfffbfff")
    a(f"v_lshlrev_b32 v7, 9, {vGl}\nv_lshl_add_u32 v7, {vN}, 3, v7\nv_add_u32 v7, {MLB}, v7\nv_lshrrev_b32 v17, 2, {vLane}\nv_lshlrev_b32 v17, 14, v17\nv_and_b32 v19, 3, {vLane}\nv_lshl_add_u32 v17, v19, 4, v17")
    a(f"s_lshl_b32 s54, {sB}, 6\ns_add_u32 s54, s54, {ST}\nv_mov_b32 v26, s32\nv_mov_b32 v27, s33")
    if P["lateG"]==3:
        a(f"s_mul_i32 s57, {sG}, 2560\ns_lshl_b32 s55, {sJ}, 9\ns_add_u32 s57, s57, s55\ns_add_u32 s57, s57, {OP}\ns_mov_b32 s58, -1")
        a(f"s_cmp_lt_u32 {sJ}, 5\ns_cbranch_scc1 L_g3\ns_mul_i32 s57, {sX}, 2560\ns_lshl_b32 s55, {sV}, 8\ns_add_u32 s57, s57, s55\ns_add_u32 s57, s57, {YP}\ns_mov_b32 s58, 0xffff\ns_cmp_lt_u32 {sV}, 10\ns_cselect_b32 s57, s57, {WSSIZE}\nL_g3:")
    wait_flag(*P["sttrig"])
    a(f"s_mov_b32 exec_hi, 0\nds_read_b64 v[24:25], v7\nds_read_b32 v28, v7 offset:132\nds_read_b32 v29, v7 offset:260\nds_read_b32 v30, v7 offset:388\ns_waitcnt lgkmcnt(0)")
    a(f"v_add_f32 v25, v25, v28\nv_add_f32 v29, v29, v30\nv_add_f32 v25, v25, v29\nbuffer_store_dwordx4 v[24:27], v17, {WS}, s54 offen sc1")
    if P["lateG"]==3: a(f"s_mov_b32 exec_lo, s58\nbuffer_store_dwordx4 v[8:11], v6, {WS}, s57 offen sc1")
    a("s_mov_b64 exec, -1")
    if P["lateG"]==3:
        a("s_waitcnt vmcnt(0)"); sig("GOK")
    SAa=40; SD=72; SX=104
    def clloads():
        if P.get("dhalf"):
            a("s_mov_b32 exec_lo, 0x00ff00ff\ns_mov_b32 exec_hi, 0x00ff00ff")
            for s in range(8): a(f"buffer_load_dwordx4 {vr(SD+4*s,4)}, v6, {WS}, s{52+(s>>2)} offen offset:{1024*(s&3)} sc1")
            a("s_mov_b64 exec, -1")
            return
        for s in range(8): a(f"buffer_load_dwordx4 {vr(SD+4*s,4)}, v6, {WS}, s{52+(s>>2)} offen offset:{1024*(s&3)} sc1")
    if P.get("dhalf"):
        for s in range(8): a(f"v_mov_b64 {vr(SD+4*s,2)}, 0\nv_mov_b32 v{SD+4*s+2}, 0\nv_mov_b32 v{SD+4*s+3}, s56")
    if P.get("probe"):
        nr,skip=P["probe"]
        R_=list(range(4,28))+list(range(44,52))
        a("s_add_u32 s96, s28, s52\ns_addc_u32 s97, s29, 0\ns_mov_b32 s57, s56")
        wait_flag("DST",4)
        for r_ in range(skip): a("s_load_dword s4, s[96:97], 252 glc\ns_waitcnt lgkmcnt(0)")
        a(f"s_movk_i32 s98, {nr}\nL_pr:")
        NPB=P.get("npb",32)
        for p_ in range(NPB): a(f"s_load_dword s{R_[p_]}, s[96:97], {256*(p_*32//NPB)+252} glc")
        a("s_waitcnt lgkmcnt(0)")
        pr=[f"s[{R_[2*i]}:{R_[2*i]+1}]" for i in range(16)]
        a(f"s_and_b64 s[58:59], {pr[0]}, {pr[1]}\ns_or_b64 s[60:61], {pr[0]}, {pr[1]}")
        for i in range(2,NPB//2): a(f"s_and_b64 s[58:59], s[58:59], {pr[i]}\ns_or_b64 s[60:61], s[60:61], {pr[i]}")
        a("s_xor_b64 s[58:59], s[58:59], s[56:57]\ns_xor_b64 s[60:61], s[60:61], s[56:57]\ns_or_b64 s[58:59], s[58:59], s[60:61]\ns_cbranch_scc0 L_cdgo")
        a("s_sub_u32 s98, s98, 1\ns_cmp_lg_u32 s98, 0\ns_cbranch_scc1 L_pr")
    wait_flag("PUBD",4)
    for w_ in P.get("dtrig",()): wait_flag(*w_)
    a("L_cdgo:")
    stamp(5)
    clloads()
    sig("CDI")
    l=a.lab("SW")
    spin(l); a(f"ds_read_b32 {vTmp}, {vL4} offset:{F['STOK']}\nds_read_b128 v[32:35], v20\nds_read_b32 v38, v20 offset:1024\ns_waitcnt lgkmcnt(0)\nv_cmp_gt_u32 vcc, 1, {vTmp}\ns_cbranch_vccnz {l}")
    stamp(4)
    for s in range(8):
        for r in range(3): a(f"v_and_b32_dpp v{SAa+4*s+r}, v{32+(s>>1)}, v{MK+r} row_newbcast:{8*(s&1)} {DP}")
    a("v_mov_b32 v39, v38\ns_branch L_cdm")
    l,ok=loop_head("CD")
    clloads()
    a("L_cdm:")
    for s in range(8):
        a(f"s_waitcnt vmcnt({7-s})\nv_mfma_f32_16x16x32_bf16 {vr(SX,4)}, {vr(SAa+4*s,4)}, {vr(SD+4*s,4)}, {vr(SX,4) if s else 0}")
    for s in range(8): a(f"v_cmpx_eq_u32 vcc, s56, v{SD+4*s+3}")
    a(f"s_cmp_eq_u64 exec, -1\ns_mov_b64 exec, -1\ns_cbranch_scc0 {l}\n{ok}:")
    stamp(6)
    a(f"s_mov_b32 exec_hi, 0xffff\nv_pk_mul_f32 {vr(SX,2)}, {vr(SX,2)}, v[38:39]\nv_cvt_pk_bf16_f32 v{SX}, v{SX}, v{SX+1}")
    a(f"ds_write_b32 v18, v{SX}\ns_mov_b64 exec, -1")
    sig("V1B")
    a("s_branch L_fin")

    a("L_w6:")
    a(f"v_lshlrev_b32 v6, 2, {vLane}\nv_add_u32 v6, {XB}, v6")
    a(f"s_mul_i32 s52, {sJ}, 160\ns_min_u32 s53, {sV}, 9\ns_lshl_b32 s53, s53, 7\ns_sub_u32 s53, s53, 256\nv_mov_b32 v16, s52\nv_mov_b32 v13, s53\nv_cmp_gt_u32 vcc, 32, {vLane}\nv_cndmask_b32 v16, v13, v16, vcc\nv_lshl_add_u32 v16, {vLane}, 3, v16\nv_add_u32 v16, {XB}, v16")
    a(f"v_bfe_u32 v7, {vLane}, 3, 2\nv_lshlrev_b32 v27, 6, v7\nv_and_b32 v7, 3, {vLane}\nv_lshl_add_u32 v27, v7, 4, v27\nv_bfe_u32 v7, {vLane}, 2, 1\nv_lshl_add_u32 v27, v7, 3, v27\nv_lshrrev_b32 v7, 5, {vLane}\nv_mul_u32_u24 v7, {VEC1F-VEC1A}, v7\nv_add_u32 v27, v27, v7\nv_add_u32 v27, {VEC1A}, v27")
    a("s_mov_b32 s54, 0xffff0000")
    wait_flag("CNT",0)
    for k in range(5): a(f"ds_read_b32 v{8+k}, v6 offset:{256*k}")
    a("ds_read_b64 v[14:15], v16\ns_waitcnt lgkmcnt(0)")
    stamp(1)
    for k in range(5): a(f"v_lshlrev_b32 v{32+2*k}, 16, v{8+k}\nv_and_b32 v{33+2*k}, s54, v{8+k}")
    a("v_pk_add_f32 v[44:45], v[32:33], v[34:35]\nv_pk_add_f32 v[46:47], v[36:37], v[38:39]\nv_pk_add_f32 v[44:45], v[44:45], v[40:41]\nv_pk_add_f32 v[44:45], v[44:45], v[46:47]\nv_add_f32 v44, v44, v45")
    rowreduce("v_add_f32","v44"); xreduce("v_add_f32","v44","v45")
    a(f"v_mul_f32 v44, {hex(f2u(1/640))}, v44")
    for k in range(10): a(f"v_sub_f32 v{32+k}, v{32+k}, v44")
    a("v_mul_f32 v46, v32, v32")
    for k in range(1,10): a(f"v_fmac_f32 v46, v{32+k}, v{32+k}")
    rowreduce("v_add_f32","v46"); xreduce("v_add_f32","v46","v45")
    def rbf(v): a(f"v_cvt_pk_bf16_f32 {v}, {v}, {v}\nv_and_b32 {v}, s54, {v}")
    a(f"v_mul_f32 v46, {hex(f2u(1/640))}, v46"); rbf("v46"); rbf("v44")
    a(f"v_add_f32 v46, {hex(f2u(1e-5))}, v46"); rbf("v46")
    a("v_sqrt_f32 v46, v46"); rbf("v46")
    a("v_rcp_f32 v46, v46")
    a("v_lshlrev_b32 v32, 16, v14\nv_and_b32 v33, s54, v14\nv_lshlrev_b32 v34, 16, v15\nv_and_b32 v35, s54, v15")
    for k in range(4): a(f"v_sub_f32 v{32+k}, v{32+k}, v44")
    a("v_cvt_pk_bf16_f32 v14, v32, v33\nv_cvt_pk_bf16_f32 v15, v34, v35")
    a("v_lshlrev_b32 v32, 16, v14\nv_and_b32 v33, s54, v14\nv_lshlrev_b32 v34, 16, v15\nv_and_b32 v35, s54, v15")
    for k in range(4): a(f"v_mul_f32 v{32+k}, v{32+k}, v46")
    a("v_cvt_pk_bf16_f32 v14, v32, v33\nv_cvt_pk_bf16_f32 v15, v34, v35")
    a("s_mov_b32 exec_lo, 0x000fffff\ns_mov_b32 exec_hi, 0xffff\nds_write_b64 v27, v[14:15]\ns_mov_b64 exec, -1")
    sig("V1A")
    stamp(2)
    tag_finish()
    if P["thrG2"]: a(f"s_movk_i32 s43, {P['thrG2']+CB}\ns_branch L_ga")
    a("L_w6b:\ns_mov_b32 s54, 0xffff0000")
    if P.get("spf6"):
        if P.get("spf6w"): wait_flag(*P["spf6w"])
        sprefetch(*P["spf6"])
        stamp(6)
    if P.get("wb6"):
        a(f"s_cmp_eq_u32 {sY}, 3\ns_cbranch_scc0 L_nwb")
        for fl in P["wb6"]:
            wait_flag(*fl)
            a("buffer_wbl2 sc1\ns_waitcnt vmcnt(0)")
        a("s_branch L_fin\nL_nwb:")
    a(f"s_cmp_lt_u32 s2, 20\ns_cbranch_scc1 L_final")
    if P["ge2"]: a(f"s_mov_b32 s40, 1\ns_cmp_lt_u32 {sJ}, 5\ns_cbranch_scc1 L_ge2")
    a(f"s_cmp_lt_u32 {sV}, 10\ns_cbranch_scc0 L_fin")
    masks()
    srd(44, 20, 3072)
    a(f"v_lshlrev_b32 v8, 7, {vGl}\nv_and_b32 v6, 3, {vN}\nv_lshl_add_u32 v8, v6, 5, v8\nv_lshrrev_b32 v6, 2, {vN}\nv_lshl_add_u32 v8, v6, 3, v8\ns_mul_i32 s52, {sX}, 384")
    a("v_add_u32 v86, s52, v8")
    if not P["latesmall"]: a(f"buffer_load_dwordx2 v[22:23], v86, {SA}, 0 offen")
    gather_setup("v24",8*RS); vec2b_addr("v26")
    a(f"v_lshlrev_b32 v28, 4, {vLane}\ns_mul_i32 s40, {sB}, {RS}\ns_add_u32 s40, s40, {REC+RP}\ns_mov_b32 s48, s32\ns_mov_b32 s49, s33")
    a("s_getreg_b32 s50, hwreg(HW_REG_XCC_ID, 0, 4)\ns_xor_b32 s50, s50, s32")
    trcore("v80", vTmp)
    a(f"v_lshrrev_b32 v6, 5, {vLane}\nv_mul_u32_u24 v6, 3072, v6\nv_add_u32 v80, v80, v6\nv_add_u32 v80, {R3 if FF else R1}, v80")
    for t in range(1,4): a(f"v_xor_b32 v{80+t}, {32*t}, v80")
    a(f"v_lshlrev_b32 v84, 6, {vGl}\nv_lshl_add_u32 v84, {vN}, 4, v84\nv_lshlrev_b32 v85, 4, {vGl}\nv_add_u32 v85, {VEC1F}, v85")
    a(f"ds_read_b128 v[88:91], v85\nds_read_b128 v[92:95], v85 offset:64\nv_mov_b32 v78, s50\nv_mov_b32 v79, s49")
    for u in range(3): a(f"v_mov_b32 v{GD+24+4*u}, 0\nv_mov_b32 v{GD+25+4*u}, 0\nv_mov_b32 v{GD+27+4*u}, s49")
    a(f"s_mul_i32 s52, {sX}, {32*RS}\ns_add_u32 s52, s52, {REC+5*RS+RE}\ns_add_u32 s53, s52, {RS}\ns_add_u32 s51, s53, {RS}\ns_add_u32 s55, s40, {RE-RP}\ns_mov_b32 s43, 0")
    if P["latesmall"]: a(f"buffer_load_dwordx2 v[22:23], v86, {SA}, 0 offen")
    wait_flag("CNT",186 if FF else 222)
    stamp(3)
    def f1reads():
        for t in range(4):
            for h in range(4): a(f"ds_read_b64_tr_b16 {vr(96+8*t+2*h,2)}, v{80+t} offset:{2*h*3072}")
    f1reads()
    l=a.lab("F1")
    a(f"{l}:")
    for t in range(4):
        a(f"v_add_u32 v{80+t}, 1024, v{80+t}\ns_waitcnt lgkmcnt({12-4*t})")
        a(f"v_mfma_f32_16x16x32_bf16 {vr(128+4*t,4)}, {vr(96+8*t,4)}, v[88:91], 0\nv_mfma_f32_16x16x32_bf16 {vr(128+4*t,4)}, {vr(100+8*t,4)}, v[92:95], {vr(128+4*t,4)}")
    f1reads()
    publish4(128, 76, "v84", "s55", mode="plain")
    a(f"s_add_u32 s55, s55, 256\ns_add_u32 s43, s43, 1\ns_cmp_lt_u32 s43, 3\ns_cbranch_scc1 {l}")
    stamp(4)
    a("s_mov_b32 s58, s50\ns_mov_b32 s59, s49\ns_mov_b32 s61, s40")
    gather(3,"v24",["s52","s53","s51"],"GH", xcc="h", tag="s[48:49]")
    stamp(5)
    a("v_lshlrev_b32 v8, 16, v22\nv_and_b32 v9, s54, v22\nv_lshlrev_b32 v10, 16, v23\nv_and_b32 v11, s54, v23")
    c1 = -2*math.sqrt(2/math.pi)*math.log2(math.e)
    a(f"s_mov_b32 s56, {f2u(c1*0.044715)}\nv_mov_b32 v7, {hex(f2u(c1))}")
    for k in range(4): a(f"v_add_f32 v{GX+k}, v{GX+k}, v{8+k}")
    for k in range(4): a(f"v_mul_f32 v{8+k}, v{GX+k}, v{GX+k}")
    for k in range(4): a(f"v_fma_f32 v{8+k}, v{8+k}, s56, v7")
    for k in range(4): a(f"v_mul_f32 v{8+k}, v{8+k}, v{GX+k}")
    for k in range(4): a(f"v_exp_f32 v{8+k}, v{8+k}")
    for k in range(4): a(f"v_add_f32 v{8+k}, 1.0, v{8+k}")
    for k in range(4): a(f"v_rcp_f32 v{8+k}, v{8+k}")
    for k in range(4): a(f"v_mul_f32 v{GX+k}, v{GX+k}, v{8+k}")
    vec2_write("v26","V2B")
    a("s_branch L_ffn2")

    a('; ======== final reducer: workgroups 0..19, 32 output columns each')
    a("L_final:")
    a(f"s_mov_b32 s40, s2")
    a(f"v_and_b32 v6, 7, {vLane}\nv_lshlrev_b32 v8, 3, v6\nv_bfe_u32 v7, {vLane}, 4, 1\nv_lshl_add_u32 v8, v7, 2, v8\nv_lshrrev_b32 v7, 5, {vLane}\nv_lshl_add_u32 v8, v7, 1, v8")
    a(f"s_lshl_b32 s52, s40, 6")
    srd(44,4,1280); srd(48,24,1280)
    if P["latesmall"]: wait_flag("QISS",4)
    a(f"buffer_load_ushort v10, v8, {SA}, s52 offen\nbuffer_load_ushort v11, v8, {SB}, s52 offen")
    a(f"v_lshrrev_b32 v7, 3, {vLane}\nv_mul_u32_u24 v7, 2560, v7\nv_lshl_add_u32 v9, v6, 4, v7")
    a(f"s_lshl_b32 s53, s40, 7\ns_add_u32 s56, s53, {OP}\ns_add_u32 s57, s56, 20480\ns_add_u32 s58, s57, 20480\ns_add_u32 s59, s58, 20480\ns_add_u32 s53, s53, {YP}")
    a("s_waitcnt vmcnt(0)\nv_lshlrev_b32 v10, 16, v10\nv_lshlrev_b32 v11, 16, v11")
    srd(44,26,1280)
    if P["warmout"]: a(f"s_mov_b64 exec, 1\nbuffer_load_ushort v33, v8, {SA}, s52 offen nt\ns_mov_b64 exec, -1")
    def red4(b):
        a(f"v_permlane32_swap_b32 v{b}, v{b+1}\nv_permlane32_swap_b32 v{b+2}, v{b+3}\nv_add_f32 v{b}, v{b}, v{b+1}\nv_add_f32 v{b+2}, v{b+2}, v{b+3}")
        a(f"v_permlane16_swap_b32 v{b}, v{b+2}\nv_add_f32 v{b}, v{b}, v{b+2}\nv_add_f32_dpp v{b}, v{b}, v{b} row_ror:8 {DP}")
    def epoch(skip):
        a(f"s_cmp_eq_u32 s40, 0\ns_cbranch_scc0 {skip}\ns_mov_b64 exec, 0xff\nv_mov_b32 v14, s32\nv_mov_b32 v15, s33\nv_lshlrev_b32 v6, 3, {vLane}\nbuffer_store_dwordx2 v[14:15], v6, {WS}, 0 offen offset:{EPOCH} sc1\ns_mov_b64 exec, -1")
    if P["ge2"]:
        assert P["epochearly"]
        a("s_mov_b32 s60, s52\ns_mov_b32 s61, s53\nL_ge2:")
        gather_setup("v24", RS); vec2b_addr("v26")
        a(f"s_mul_i32 s52, {sG}, {8*RS}\ns_add_u32 s52, s52, {REC+RE}\ns_add_u32 s53, s52, {4*RS}")
    if P["epochearly"]:
        wait_flag("V1B",1)
        epoch("L_nep"); a("L_nep:")
    if P["ge2"]: a("s_branch L_ge\nL_fin2:\ns_mov_b32 s52, s60\ns_mov_b32 s53, s61")
    wait_flag("PUBF",4)
    stamp(9)
    l,ok=loop_head("FS")
    a(f"buffer_load_dwordx4 v[28:31], v9, {WS}, s53 offen sc1")
    for k in range(4): a(f"buffer_load_dwordx4 {vr(12+4*k,4)}, v9, {WS}, s{56+k} offen sc1")
    a(f"""s_waitcnt vmcnt(4)
v_permlane32_swap_b32 v28, v29
v_permlane32_swap_b32 v30, v31
v_add_f32 v28, v28, v29
v_add_f32 v30, v30, v31
s_waitcnt vmcnt(2)
v_pk_add_f32 v[12:13], v[12:13], v[16:17]
v_permlane16_swap_b32 v28, v30
v_add_f32 v28, v28, v30
v_pk_add_f32 v[14:15], v[14:15], v[18:19]
s_waitcnt vmcnt(0)
v_add_f32_dpp v28, v28, v28 row_ror:8 {DP}
v_pk_add_f32 v[20:21], v[20:21], v[24:25]
v_add_f32 v28, v28, v11
v_pk_add_f32 v[22:23], v[22:23], v[26:27]
v_mul_f32 v29, {hex(f2u(-math.log2(math.e)))}, v28
v_pk_add_f32 v[12:13], v[12:13], v[20:21]
v_pk_add_f32 v[14:15], v[14:15], v[22:23]
v_exp_f32 v29, v29
v_permlane32_swap_b32 v12, v13
v_permlane32_swap_b32 v14, v15
v_add_f32 v12, v12, v13
v_add_f32 v14, v14, v15
v_add_f32 v29, 1.0, v29
v_rcp_f32 v29, v29
v_permlane16_swap_b32 v12, v14
v_add_f32 v12, v12, v14
v_mul_f32 v28, v28, v29
v_add_f32_dpp v12, v12, v12 row_ror:8 {DP}
v_cmp_u_f32 vcc, v12, v28
v_fma_f32 v13, v12, v28, v10
s_cbranch_vccnz {l}
{ok}:""")
    a(f"v_cvt_pk_bf16_f32 v13, v13, v13\ns_mov_b32 exec_lo, 0x00ff00ff\ns_mov_b32 exec_hi, 0x00ff00ff\nbuffer_store_short v13, v8, {SA}, s52 offen {P['outf']}")
    stamp(10)
    if not P["epochearly"]: epoch("L_fin")
    if P.get("dbgdelay"):
        a(f"s_memrealtime s[8:9]\ns_waitcnt lgkmcnt(0)\nL_dd:\ns_memrealtime s[10:11]\ns_waitcnt lgkmcnt(0)\ns_sub_u32 s10, s10, s8\ns_cmp_lt_u32 s10, {P['dbgdelay']}\ns_cbranch_scc1 L_dd")
    if P.get("trace"):
        L2=[]
        for x in a.L:
            L2.append(x)
            if x.startswith(("ds_max_u32","ds_write_b32")) and x.endswith(f"v10 offset:{F['CNT']}"):
                L2+=["s_memrealtime s[62:63]","v_readfirstlane_b32 s97, v10","s_waitcnt lgkmcnt(0)","s_lshl_b32 s62, s62, 12","s_or_b32 s62, s62, s97","s_and_b32 s98, s96, 63","s_cmp_lt_u32 s96, 64","s_cselect_b64 vcc, -1, 0","v_mov_b32 v32, s62","v_cmp_eq_u32 s[62:63], s98, v0","s_add_u32 s96, s96, 1","s_and_b64 vcc, vcc, s[62:63]","v_cndmask_b32 v30, v30, v32, vcc","v_cndmask_b32 v31, v31, v32, s[62:63]"]
            if x=="L_ld2:": L2+=["s_mov_b32 s96, 0","v_mov_b32 v30, 0","v_mov_b32 v31, 0"]
        a.L=L2
    if P.get("allsc1"): a.L=[(x+" sc1" if (x.startswith("buffer_store") and "sc1" not in x) else x) for x in a.L]
    if P.get("nostores"):
        L2=[]; n_=0
        for x in a.L:
            if x.startswith("buffer_store") and WS in x:
                if n_ in P.get("keep",()): L2.append(x)
                n_+=1
            else: L2.append(x)
        a.L=L2
    a("L_fin:")
    if diag:
        stamp(15)
        if P.get("mind"): a(f"s_cmp_eq_u32 {sW}, 4\ns_cbranch_scc1 L_dump\ns_cmp_eq_u32 {sW}, 6\ns_cbranch_scc0 L_end\nL_dump:")
        a("s_load_dwordx2 s[28:29], s[0:1], 104")
        a(f"s_waitcnt lgkmcnt(0) vmcnt(0)\ns_mov_b32 s30, {WSSIZE}\ns_mov_b32 s31, 0x20000\ns_mov_b64 exec, 1")
        if P["wsb"]: a(f"s_add_u32 s28, s28, {P['wsb']}\ns_addc_u32 s29, s29, 0")
        for i in range(16): a(f"v_mov_b32 v{8+i}, s{64+2*i}")
        a(f"v_mov_b32 v24, {sBud}\nv_mov_b32 v6, 0\ns_lshl_b32 s52, {sB}, 3\ns_add_u32 s52, s52, {sW}\ns_lshl_b32 s52, s52, 7\ns_add_u32 s52, s52, {DBG}")
        dfl=P.get("dfl","")
        for i in range(4): a(f"buffer_store_dwordx4 {vr(8+4*i,4)}, v6, {WS}, s52 offen offset:{16*i} {dfl}")
        a(f"buffer_store_dword v24, v6, {WS}, s52 offen offset:64 {dfl}")
        if P.get("trace"):
            a(f"s_cmp_eq_u32 {sW}, 4\ns_cbranch_scc0 L_ntr\ns_mov_b64 exec, -1\nv_lshlrev_b32 v6, 2, v0\ns_lshl_b32 s52, {sB}, 9\ns_add_u32 s52, s52, {DBG+0x40000}\nbuffer_store_dword v30, v6, {WS}, s52 offen\nbuffer_store_dword v31, v6, {WS}, s52 offen offset:256\nL_ntr:")
    a("s_endpgm")
    a("; ======== out of line: poll give-up exits, write-through variants for groups that span dies")
    for f_ in far: a(f_)
    a("L_end:\ns_endpgm")
    body = a.finish(verbose=P.get("verbose",False))
    hdr = open("cdna_kernels/"+NAME+".s.ref").read().split("; Override launch")[0] if P.get("hdr",True) else ""
    return hdr + f"""; Single persistent launch: 256 workgroups (one per CU) x 8 waves. Written with my own generator script.
; Math (absorbed form of the reference, exact reordering): xn = LN(x); q = xn.Wq; qa[h,c] = q[h,:].Wuk[c,h,:] * D^-0.5 * log2e;
;   S = qa.ckv^T; p = 2^(S - ceil(block max)) per 32-key block, blocks rescaled by exact powers of two against the true row max;
;   cl = (p.ckv)/sum p; ctx = cl.Wuv; s = ctx.Wo; out = x + s * silu(gelu(xn.W1 + b1).W2 + b2).
; Workgroup b: x = b&7, y = b>>3, group g = 4x + (y>>3) (head g, keys 256g..256g+255), j = y&7 (row / column slice).
; Waves (role = hardware wave ^ 4): 0-3 matrix stages, 4 LDS-DMA stream of all weights and c_kv tiles, 5 sentinel fill / statistics
;   store / weighted combine, 6 layernorm / FFN / final reduce, 7 gathers and softmax statistics. Waves meet through LDS counters.
; Hand-offs between workgroups go through d_ws. Every handed-off word is validated by the reader: either it carries this launch's tag
;   (tag = epoch word found in d_ws on entry + constant; the tag becomes the next epoch), or its slot was filled with a NaN sentinel in
;   this launch before anyone may write or read it. Write-through stores are used across groups. Inside a group plain stores are used
;   only while they are known or re-published: tags carry the writer's XCC id, and a group found (or suspected) to span dies
;   switches to write-through stores, so any placement is correct. Every global poll is bounded.
; @launch grid=(256,1,1) block=(512,1,1) lds={LDS_BYTES}
.amdgcn_target "amdgcn-amd-amdhsa--gfx950"
.text
.globl {NAME}_kernel
.p2align 8
.type {NAME}_kernel,@function
{NAME}_kernel:
{body}
.section .rodata,"a"
.p2align 6
.amdhsa_kernel {NAME}_kernel
  .amdhsa_next_free_vgpr 220
  .amdhsa_next_free_sgpr 100
  .amdhsa_accum_offset 220
  .amdhsa_group_segment_fixed_size 0
  .amdhsa_kernarg_size 112
  .amdhsa_user_sgpr_count 2
  .amdhsa_user_sgpr_kernarg_segment_ptr 1
  .amdhsa_system_sgpr_workgroup_id_x 1
.end_amdhsa_kernel
"""
if __name__=="__main__":
    kw={}
    out="cdna_kernels/"+NAME+".s"
    for arg in sys.argv[1:]:
        k,v=arg.split("=",1)
        if k=="out": out=v
        else:
            try: kw[k]=eval(v)
            except Exception: kw[k]=v
    open(out,"w").write(gen(verbose=True, **kw))
    print("wrote",out,"LDS",LDS_BYTES)
```

```python
import sys, math, struct
from asmlib import Asm
NAME = "recurrent_scan__compressed_kv_cla__dense_activation_gelu__decode"
def f2u(x): return struct.unpack("<I", struct.pack("<f", x))[0]

EPOCH=0; FLG=0x400; HT=0; G=0
QA=0x8000; ST=0x100000; OP=0x200000
REC=0x400000; RP=8192; RM=RP+2048; RE=RM+256; RQ=RE+768; RS=RQ+768; DBG=0x780000; CLA=0x800000; QG=0xA00000; WSSIZE=0xC00000
assert REC+256*RS<=DBG
R1=0; R2=49152; R3=R2+51200; SCR=R3+36864
XB=SCR; VEC1A=XB+4096; VEC1F=VEC1A+192; VEC1B=VEC1F+128; VEC2A=VEC1B+192; VEC2B=VEC2A+384; MLB=VEC2B+384
FLAGS=(MLB+2048+255)//256*256
FN = ["CNT","RDB","V1A","V2A","CLR","X0","X1","V1B","V2B","S4M","RDUK","RDA","PUBA","PUBC","PUBD","PUBE","PUBF","PUBB","QISS","DST","CDI","STOK","GISS","S4K","H0","S3K","STR","GOK"]
F = {n:256*i for i,n in enumerate(FN)}
LDS_BYTES = FLAGS+256*len(FN)

Q_=('QISS',4); M_=('S4M',4); K_=('S4K',4); D_=('DST',4); C_=('CDI',1); V_=('V1B',1); S_=('S3K',4)
DEF = dict(sched=[(0,Q_,18),(36,M_,12),(48,K_,24),(66,C_,24)], holdA=21, gA=False, lc=None, lq=(2,32768), ls=(1,32768), lg=(4,32768), tlb=False, latesmall=False, warmout=False, mshare=False, psplit=(8,0), ge2=False, sttrig=('PUBC',2), lateG=3, s1pipe=True, holdP=0, gateA=0, wb=None, outf='', blate=True, prio=(0,2,3), epochearly=True, latetouch=24, gC=False, fsched=None, T=21, TA=30, TL=24, thrG=54, pauseQ=True, ntA='nt', ntB='nt', nt="nt", diag=False, wsb=0, thrF=30, clrstep=8, gate=True, n1=18, n2=66, thrG2=0, incC=False, mfirst=True, hintA=False, hintC=False, holdG=False, n0=0, ackA=False, ackC=False, s4late=True, ffnfirst=True, fg=(24,84), dtrig=[('STOK',1)], thrQ=144, adual=True,  local=True, stattrig="DST", pref='s', budget=400000, safe=False)

def gen(**kw):
    P = dict(DEF); P.update(kw)
    qn,QPER=P["lq"]; sn,SPER=P["ls"]; gn,GPER=P["lg"]
    assert qn in (1,2,3,6) and sn in (1,2,4) and gn in (1,2,4,8)
    qoff=lambda u: (u//qn)*QPER+(u%qn)*2048
    soff_=lambda t: (t//sn)*SPER+(t%sn)*4096
    def sdiv(dst, src, n, per, unit, tmp):
        if n==1: a(f"s_mul_i32 {dst}, {src}, {per}"); return
        if n in (3,6): a(f"s_mul_i32 {tmp}, {src}, 43\ns_lshr_b32 {tmp}, {tmp}, {7 if n==3 else 8}")
        else: a(f"s_lshr_b32 {tmp}, {src}, {n.bit_length()-1}")
        a(f"s_mul_i32 {tmp}, {tmp}, {per-n*unit}\ns_mul_i32 {dst}, {src}, {unit}\ns_add_u32 {dst}, {dst}, {tmp}")
    YP=OP+(32//gn)*GPER
    CLB,HS,J1,J2 = (CLA,)+tuple(P["lc"]) if P["lc"] else (REC,8*RS,RS,4*RS)
    T=P["T"]; TL=P["TL"]; NT=P["nt"]; diag=P["diag"]
    a = Asm()
    far=[]
    sW,sX,sY,sG,sJ,sB,sV = "s34","s35","s36","s37","s38","s39","s41"
    sBud="s42"; WS="s[28:31]"; SA="s[44:47]"; SB="s[48:51]"
    nst=[0]
    def stamp(i):
        if diag: a(f"s_memrealtime s[{64+2*i}:{65+2*i}]")
    def srd(base, ptr, size):
        a(f"s_mov_b32 s{base}, s{ptr}\ns_mov_b32 s{base+1}, s{ptr+1}\ns_mov_b32 s{base+2}, {size}\ns_mov_b32 s{base+3}, 0x20000")
    vLane="v0"; vL4="v1"; vOne="v2"; vTmp="v3"; vN="v4"; vGl="v5"
    CB=64
    def spin(l):
        a(f"{l}:")
        if P["safe"]: a("s_sub_u32 s99, s99, 1\ns_cbranch_scc1 L_fin")
        if P.get("slp") is not None and l.startswith("WF"): a(f"s_sleep {P['slp']}")
    def wait_flag(name, thr):
        if name=="CNT" and isinstance(thr,int): thr+=CB
        l=a.lab("WF")
        spin(l)
        a(f"ds_read_b32 {vTmp}, {vL4} offset:{F[name]}\ns_waitcnt lgkmcnt(0)\nv_cmp_gt_u32 vcc, {thr}, {vTmp}\ns_cbranch_vccnz {l}")
    def sig(name, v=vOne):
        a(f"ds_add_u32 {vL4}, {v} offset:{F[name]}")
    def loop_head(base, sigs=()):
        l=a.lab(base); g=a.lab("GU"); ok=a.lab("OK")
        a(f"{l}:\ns_sub_u32 {sBud}, {sBud}, 1\ns_cbranch_scc1 {g}")
        far.append(f"{g}:\ns_mov_b32 {sBud}, 0\ns_mov_b64 exec, -1\n"+"".join(f"ds_add_u32 {vL4}, {vOne} offset:{F[n]}\n" for n in sigs)+f"s_nop 7\ns_branch {ok}")
        return l, ok
    def vr(b,n): return f"v[{b}:{b+n-1}]"
    def tag_finish():
        a("s_waitcnt lgkmcnt(0)\ns_add_u32 s32, s32, 0x7f4a7c10\ns_addc_u32 s33, s33, 0x9e3779b9\ns_or_b32 s32, s32, 15")
    def hint_wait(off, base, tp):
        l=a.lab("HW"); ok=a.lab("HK")
        r=lambda i: f"s[{base+2*i}:{base+2*i+1}]"
        a(f"{l}:\ns_load_dwordx8 s[{base}:{base+7}], s[28:29], {off}\ns_add_u32 {off}, {off}, 64\ns_waitcnt lgkmcnt(0)")
        a("\n".join(f"s_xor_b64 {r(i)}, {r(i)}, {tp}" for i in range(4)))
        a(f"s_or_b64 {r(0)}, {r(0)}, {r(1)}\ns_or_b64 {r(2)}, {r(2)}, {r(3)}\ns_or_b64 {r(0)}, {r(0)}, {r(2)}\ns_cbranch_scc0 {ok}")
        a(f"s_and_b32 s{base}, {off}, 0x3c0\ns_cbranch_scc1 {l}\n{ok}:")
    def ghint(pair, stride, base, test):
        l=a.lab("GW"); ok=a.lab("GK")
        r=lambda i: f"s[{base+2*i}:{base+2*i+1}]"
        a(f"s_movk_i32 s98, 200\n{l}:")
        for k in range(8): a(f"s_load_dword s{base+k}, {pair}, {k*stride} glc")
        a(f"s_sub_u32 s98, s98, 1\ns_cbranch_scc1 {ok}\ns_waitcnt lgkmcnt(0)")
        if test=="sentinel":
            a("\n".join(f"s_max_u32 s{base}, s{base}, s{base+k}" for k in range(1,8))+f"\ns_cmp_eq_u32 s{base}, -1\ns_cbranch_scc1 {l}")
        else:
            a("\n".join(f"s_xor_b64 {r(i)}, {r(i)}, {test}" for i in range(4)))
            a(f"s_or_b64 {r(0)}, {r(0)}, {r(1)}\ns_or_b64 {r(2)}, {r(2)}, {r(3)}\ns_or_b64 {r(0)}, {r(0)}, {r(2)}\ns_cbranch_scc1 {l}")
        a(f"{ok}:\ns_waitcnt lgkmcnt(0)")
    def sprefetch(end_o, kb_o, end_f, kb_f):
        nf=a.lab("PN"); dn=a.lab("PD")
        a(f"s_cmp_lt_u32 {sJ}, 5\ns_cbranch_scc0 {nf}")
        for lab,ptr,base,rows_kb,sec,end,kb in ((None,14,f"s_mul_i32 s96, {sG}, 245760\ns_lshl_b32 s97, {sJ}, 8",4,4,end_o,kb_o),(nf,22,f"s_mul_i32 s96, {sX}, 245760\ns_lshl_b32 s97, {sV}, 7",8,2,end_f,kb_f)):
            if lab: a(f"{lab}:\ns_cmp_lt_u32 {sV}, 10\ns_cbranch_scc0 {dn}")
            if kb:
                assert kb%3==0 and 0<=end-kb and end*rows_kb<=192
                l=a.lab("PL"); rpi=12//sec
                a(f"{base}\ns_add_u32 s96, s96, s97\ns_add_u32 s96, s96, {(end-kb)*rows_kb*1280}\ns_add_u32 s96, s96, s{ptr}\ns_addc_u32 s97, s{ptr+1}, 0\ns_movk_i32 s98, {kb*rows_kb//rpi}\n{l}:")
                for r_ in range(rpi):
                    for c_ in range(sec): a(f"s_load_dword s43, s[96:97], {r_*1280+c_*64}")
                a(f"s_add_u32 s96, s96, {rpi*1280}\ns_addc_u32 s97, s97, 0\ns_sub_u32 s98, s98, 1\ns_cmp_lg_u32 s98, 0\ns_cbranch_scc1 {l}")
            if not lab: a(f"s_branch {dn}")
        a(f"{dn}:\ns_waitcnt lgkmcnt(0)")
    def xreduce(op, v, t):
        a(f"v_mov_b32 {t}, {v}\nv_permlane16_swap_b32 {v}, {t}\n{op} {v}, {v}, {t}")
        a(f"v_mov_b32 {t}, {v}\nv_permlane32_swap_b32 {v}, {t}\n{op} {v}, {v}, {t}")
    DP="row_mask:0xf bank_mask:0xf"
    def rowreduce(op, v, steps=("quad_perm:[1,0,3,2]","quad_perm:[2,3,0,1]","row_half_mirror","row_mirror")):
        for s in steps: a(f"{op}_dpp {v}, {v}, {v} {s} {DP}")

    vW,vK,vF,vO,vC,vT,vA0,vA1,vA2,vP,vTR = "v6","v7","v8","v9","v10","v11","v12","v13","v14","v15","v16"
    CS=P["clrstep"]
    def ids():
        a(f"s_and_b32 {sX}, s2, 7\ns_lshr_b32 {sY}, s2, 3\ns_lshl_b32 {sB}, {sX}, 5\ns_or_b32 {sB}, {sB}, {sY}\ns_lshr_b32 {sG}, {sB}, 3\ns_and_b32 {sJ}, {sY}, 7")
    def ids2():
        if diag:
            for i in range(1,16):
                if i not in (8,9) : a(f"s_mov_b32 s{64+2*i}, 0")
        if P["safe"]: a("s_mov_b32 s99, 2000000")
        a(f"s_and_b32 {sV}, {sG}, 3\ns_lshl2_add_u32 {sV}, {sJ}, {sV}\ns_sub_u32 {sV}, {sV}, 20")
        a(f"v_lshlrev_b32 {vL4}, 2, {vLane}\nv_add_u32 {vL4}, {FLAGS}, {vL4}")
    if P.get("skewinj"):
        a(f"s_and_b32 s52, s2, 6\ns_cmp_eq_u32 s52, 4\ns_cbranch_scc0 L_nsk\ns_sleep {P['skewinj']}\nL_nsk:")
    a("s_load_dwordx16 s[4:19], s[0:1], 0")
    stamp(0)
    a(f"v_readfirstlane_b32 {sW}, v0\ns_cmp_ge_u32 s2, 256\ns_cbranch_scc1 L_end")
    if P["pref"]=="v":
        a(f"s_getpc_b64 s[52:53]\nL_pc:\nv_lshlrev_b32 v1, 7, v0\nv_subrev_u32 v1, 8192, v1\nv_cmp_gt_u32 vcc, L_end-L_pc, v1\ns_and_saveexec_b64 s[54:55], vcc\ns_cbranch_execz L_np\nglobal_load_dword v207, v1, s[52:53]\nL_np:\ns_mov_b64 exec, -1")
    ids()
    if P["pref"]=="s":
        a(f"s_lshr_b32 {sW}, {sW}, 6\ns_cbranch_scc0 L_loader\ns_load_dwordx2 s[28:29], s[0:1], 104\ns_and_b32 s62, s2, {(~(7*CS))&0xff}\ns_xor_b32 s63, {sW}, 7\ns_or_b32 s40, s62, s63\ns_cbranch_scc0 L_qa\ns_cmp_lt_u32 {sW}, 4\ns_cbranch_scc1 L_z\nL_nqa:\ns_getpc_b64 s[52:53]\nL_pc:\ns_lshl2_add_u32 s54, {sY}, {sW}\ns_lshl_b32 s54, s54, 7\ns_min_u32 s54, s54, L_end-L_pc-64")
        a("s_load_dword s56, s[52:53], s54\ns_add_u32 s54, s54, 64\ns_load_dword s57, s[52:53], s54\nL_bar:\ns_load_dwordx8 s[20:27], s[0:1], 64\ns_barrier\ns_branch L_notloader\nL_loader:")
    else: a(f"s_lshr_b32 {sW}, {sW}, 6\ns_cbranch_scc1 L_notloader")

    a(f"v_lshrrev_b32 {vP}, 3, {vLane}\nv_and_b32 {vT}, 6, {vP}\nv_xor_b32 {vTR}, {vT}, {vLane}\nv_and_b32 {vTR}, 7, {vTR}\nv_lshlrev_b32 {vTR}, 4, {vTR}")
    a(f"v_mul_u32_u24 {vK}, 12288, {vP}\nv_add_u32 {vW}, {vK}, {vTR}\nv_lshlrev_b32 {vA0}, 4, {vLane}")
    a(f"s_mul_i32 s52, {sJ}, {80*12288}\ns_mul_i32 s53, {sG}, 384\ns_add_u32 s52, s52, s53")
    a(f"s_mov_b32 m0, {XB}\ns_mov_b32 s46, {640*12288}\ns_mov_b32 s47, 0x20000\ns_mov_b32 s51, 0x20000\ns_movk_i32 s50, 1280")
    a(f"s_movk_i32 s56, 896\ns_movk_i32 s57, 1280")
    assert P["lateG"]!=-1 and not P["mshare"]
    if P["lateG"]==-1:
        assert not P["wsb"]
        a(f"v_mov_b64 v[24:25], -1\nv_mov_b64 v[26:27], -1\ns_mov_b32 s30, {G+102400}\ns_mov_b32 s31, 0x20000\ns_lshl_b32 s54, s2, 10\ns_add_u32 s54, s54, {G}\ns_cmp_lg_u32 s62, 0")
    a("s_waitcnt lgkmcnt(0)")
    if P["lateG"]==-1: a(f"buffer_store_dwordx4 v[24:27], {vA0}, {WS}, s54 offen sc1")
    stamp(8)
    a("s_mov_b64 s[48:49], s[4:5]\ns_mov_b64 s[44:45], s[8:9]")
    a(f"buffer_load_dwordx4 {vA0}, {SB}, 0 offen lds\nbuffer_load_dwordx4 {vA0}, {SB}, 0 offen offset:1024 lds\ns_mov_b32 m0, {R2}")
    stamp(9)
    def pub(iss='s61'):
        a(f"s_getreg_b32 s63, hwreg(HW_REG_IB_STS)\ns_bfe_u32 s62, s63, 0x20016\ns_and_b32 s63, s63, 15\ns_lshl4_add_u32 s63, s62, s63\ns_sub_u32 s63, {iss}, s63\nv_mov_b32 v23, s63\nds_max_u32 {vL4}, v23 offset:{F['CNT']}")
    def cpub(k):
        if P.get("exact"): pub()
        else: a(f"s_sub_u32 s63, s61, {k}\nv_mov_b32 v23, s63\nds_max_u32 {vL4}, v23 offset:{F['CNT']}")
    def wait_pub(name, thr):
        l=a.lab("WP")
        spin(l); a(f"ds_read_b32 {vTmp}, {vL4} offset:{F[name]}"); pub()
        a(f"s_waitcnt lgkmcnt({0 if diag else 1})\nv_cmp_gt_u32 vcc, {thr}, {vTmp}\ns_cbranch_vccnz {l}")
    def seg384(srdq, vaddr, soff, step, m0end, thr, xor=False, d1="s56", d2="s57"):
        l=a.lab("SG")
        a(f"{l}:")
        v=vaddr
        if xor:
            a(f"v_xor_b32 {vT}, s55, {vaddr}\ns_add_u32 s55, s55, 32\ns_and_b32 s55, s55, 0x60"); v=vT
        if thr:
            a(f"s_waitcnt vmcnt({thr-3})"); cpub(thr-3)
        a(f"buffer_load_dwordx4 {v}, {srdq}, {soff} offen {NT} lds\ns_add_u32 m0, m0, {d1}")
        if thr: a(f"s_add_u32 s61, s61, 3")
        a(f"buffer_load_dwordx4 {v}, {srdq}, {soff} offen offset:128 {NT} lds\ns_add_u32 m0, m0, {d1}")
        a(f"buffer_load_dwordx4 {v}, {srdq}, {soff} offen offset:256 {NT} lds\ns_add_u32 m0, m0, {d2}")
        a(f"s_add_u32 {soff}, {soff}, {step}\ns_cmp_lg_u32 m0, {m0end}\ns_cbranch_scc1 {l}")
    if P.get("unrollq",True):
        a("s_mov_b32 s55, 98304")
        for r_ in range(10):
            a(f"buffer_load_dwordx4 {vW}, {SA}, s52 offen {NT} lds\ns_add_u32 m0, m0, s56\ns_nop 0\nbuffer_load_dwordx4 {vW}, {SA}, s52 offen offset:128 {NT} lds\ns_add_u32 m0, m0, s56\ns_nop 0\nbuffer_load_dwordx4 {vW}, {SA}, s52 offen offset:256 {NT} lds")
            if r_<9: a("s_add_u32 m0, m0, s57\ns_add_u32 s52, s52, s55")
            if r_==P.get("barat",8): a("s_barrier")
    else: seg384(SA, vW, "s52", 98304, R2+30720, None)
    a("s_branch L_ld2")
    a("; wave role 3 of eight workgroups: sentinel fill of the q_abs array (its flag follows once these stores are acknowledged)")
    assert not P["wsb"] and P["pref"]=="s"
    a(f"L_qa:\ns_mov_b32 s30, {WSSIZE}\ns_mov_b32 s31, 0x20000\nv_mov_b64 v[24:25], -1\nv_mov_b64 v[26:27], -1\nv_and_b32 v28, 63, v0\nv_lshlrev_b32 v28, 4, v28")
    a(f"s_lshr_b32 s58, s2, {CS.bit_length()-1}\ns_mul_i32 s58, s58, 3")
    for k in range(3):
        sdiv(f"s{54+k}", "s58", qn, QPER, 2048, "s59")
        a(f"s_add_u32 s{54+k}, s{54+k}, {QA}"+("\ns_add_u32 s58, s58, 1" if k<2 else ""))
    a("s_waitcnt lgkmcnt(0)")
    for k in range(6): a(f"buffer_store_dwordx4 v[24:27], v28, {WS}, s{54+(k>>1)} offen offset:{1024*(k&1)} sc1")
    a("s_branch L_nqa")
    a(f"L_z:\nv_lshlrev_b32 v28, 4, v0\nv_add_u32 v28, {FLAGS-1024}, v28\nv_mov_b64 v[24:25], 0\nv_mov_b64 v[26:27], 0")
    extra = P["gC"] or P["lateG"]==3 or ("STR",1) in P["dtrig"] or any(x[1]==S_ for x in P["sched"])
    for o_ in ((0,3072,4096) if extra else (0,3072)): a(f"ds_write_b128 v28, v[24:27] offset:{o_}")
    a(f"s_waitcnt lgkmcnt(0)\ns_load_dwordx2 s[32:33], s[28:29], {EPOCH}\ns_branch L_bar")
    a(f"L_ld2:\ns_setprio {P['prio'][2]}\ns_load_dwordx8 s[20:27], s[0:1], 64\ns_mov_b32 {sW}, 4")
    ids2()
    stamp(1)
    a(f"v_bfe_u32 {vT}, {vLane}, 4, 1\nv_xor_b32 {vT}, {vT}, {vLane}\nv_and_b32 {vT}, 7, {vT}\nv_lshl_add_u32 {vK}, {vT}, 4, {vK}")
    a(f"s_mul_i32 s52, {sJ}, {96*12288}\ns_add_u32 s52, s52, s53\ns_mov_b32 s54, s52\ns_mov_b32 s55, 0")
    a(f"s_mov_b32 s44, s10\ns_mov_b32 s45, s11\ns_mov_b32 s46, {768*12288}\ns_mov_b32 m0, {R3}")
    a(f"s_movk_i32 s61, {CB+30}")
    a(f"v_lshrrev_b32 {vT}, 5, {vLane}\nv_lshlrev_b32 {vT}, 4, {vT}\nv_xor_b32 {vA1}, {vA0}, {vT}\nv_xor_b32 {vA2}, 16, {vA0}")
    for t in range(3):
        a(f"v_add_u32 v17, {64*t}, {vLane}\nv_mul_u32_u24 v18, 0x5556, v17\nv_lshrrev_b32 v18, 18, v18\nv_mul_u32_u24 v19, 12, v18\nv_sub_u32 v17, v17, v19")
        a(f"v_lshrrev_b32 v19, 1, v18\nv_and_b32 v18, 1, v18\nv_lshl_add_u32 v18, v19, 5, v18\nv_and_b32 v19, 2, v19\nv_xor_b32 v17, v17, v19\nv_mul_u32_u24 v18, 1536, v18\nv_lshl_add_u32 v{20+t}, v17, 4, v18")
        if P.get("b16"):
            a(f"v_add_u32 v17, {64*t}, {vLane}\nv_mul_u32_u24 v18, 0xaaab, v17\nv_lshrrev_b32 v18, 18, v18\nv_mul_u32_u24 v19, 6, v18\nv_sub_u32 v17, v17, v19")
            a(f"v_lshrrev_b32 v19, 1, v18\nv_and_b32 v18, 1, v18\nv_lshl_add_u32 v18, v19, 5, v18\nv_mul_u32_u24 v18, 1536, v18\nv_lshl_add_u32 v{20+t}, v17, 4, v18")
        if P.get("bfull"):
            a(f"v_lshrrev_b32 v18, 3, {vLane}\nv_lshrrev_b32 v19, 1, v18\nv_and_b32 v18, 1, v18\nv_lshl_add_u32 v18, v19, 5, v18\nv_mul_u32_u24 v18, 1536, v18\nv_and_b32 v17, 7, {vLane}\nv_lshl_add_u32 v{20+t}, v17, 4, v18")
            a(f"s_and_b32 s63, {sJ}, 1")
            if t<2: a(f"s_lshl_b32 s63, s63, 8\ns_add_u32 s63, s63, {t*128*1536+2048}")
            else: a(f"s_mul_i32 s63, s63, {128*1536}\ns_add_u32 s63, s63, {128+2048}")
            a(f"v_add_u32 v{20+t}, s63, v{20+t}")
        if t: a(f"v_subrev_u32 v{20+t}, {1024*t}, v{20+t}")
    a(f"v_mul_u32_u24 {vO}, 1280, {vP}\nv_add_u32 {vO}, {vO}, {vTR}\nv_mul_u32_u24 {vF}, 3072, {vP}\nv_add_u32 {vF}, {vF}, {vTR}")
    a(f"s_mov_b32 s48, s6\ns_mov_b32 s49, s7\ns_mov_b32 s50, {8192*1536}")
    a(f"s_mul_i32 s58, {sG}, {256*1536}\ns_mul_i32 s53, {sJ}, 192\ns_add_u32 s58, s58, s53\ns_mov_b32 s59, {R1}\ns_mov_b32 s60, {R2}")
    if P.get("bfull"): a(f"s_mul_i32 s58, {sG}, {256*1536}\ns_lshr_b32 s53, {sJ}, 1\ns_mul_i32 s53, s53, 384\ns_add_u32 s58, s58, s53\ns_max_u32 s58, s58, 2048\ns_sub_u32 s58, s58, 2048")
    if P.get("b16"): a(f"s_lshr_b32 s58, {sB}, 4\ns_mul_i32 s58, s58, {512*1536}\ns_and_b32 s53, {sB}, 15\ns_mul_i32 s53, s53, 96\ns_add_u32 s58, s58, s53")
    a(f"v_mov_b32 v23, {CB}\ns_waitcnt vmcnt(30) lgkmcnt(0)\nds_max_u32 {vL4}, v23 offset:{F['CNT']}")
    if P["holdP"]:
        assert 0<P["holdP"]<36 and P["holdP"]%3==0
        seg384(SA, vK, "s52", 98304, R3+1024*P["holdP"], P.get("T0",T), xor=True)
        if not P.get("T0"): wait_pub("PUBA",3)
    seg384(SA, vK, "s52", 98304, R3+36864, T, xor=True)
    stamp(2)
    TA=P["TA"]; NA=P["ntA"]; NB=P["ntB"]
    def drain(tgt):
        l=a.lab("DR")
        spin(l); pub(); a(f"s_sub_u32 s63, s61, s63\ns_cmp_gt_u32 s63, {tgt}\ns_cbranch_scc1 {l}")
    a(f"s_mul_i32 s52, {sB}, 49152")
    if T>P.get("holdA",18): drain(P.get("holdA",18))
    wait_pub(*(("GISS",1) if P["holdG"] else ("PUBA",3)))
    def segAB(nst, ex, TA=TA):
        l=a.lab("SA")
        a(f"{l}:\nv_xor_b32 v17, s55, {vA0}\nv_xor_b32 v18, s55, {vA1}\nv_xor_b32 v19, s55, {vA2}\ns_mov_b32 m0, s59")
        a(f"s_waitcnt vmcnt({TA-6})")
        if ex: pub()
        else: cpub(TA-6)
        a(f"buffer_load_dwordx4 v17, {SB}, s52 offen {NA} lds\nbuffer_load_dwordx4 v18, {SB}, s52 offen offset:1024 {NA} lds\nbuffer_load_dwordx4 v19, {SB}, s52 offen offset:2048 {NA} lds")
        a(f"s_mov_b32 m0, s60\ns_add_u32 s61, s61, 6")
        for t in range(3): a(f"buffer_load_dwordx4 v{20+t}, {SB}, {'s58' if not P.get('bnone') else 's50'} offen offset:{1024*t} {NB} lds")
        a(f"s_add_u32 s55, s55, 32\ns_and_b32 s55, s55, 0xe0\ns_add_u32 s52, s52, 3072\ns_add_u32 s58, s58, 3072\ns_add_u32 s60, s60, 3200\ns_add_u32 s59, s59, 3072")
        a(f"s_cmp_lg_u32 s59, {R1+3072*nst}\ns_cbranch_scc1 {l}")
    if P["gateA"]:
        assert 0<P["gateA"]<16
        segAB(P["gateA"], True); wait_pub("V2A",1)
    if P.get("gateQ"):
        n_=P["gateQ"]
        assert P["gateA"]<n_<16 and P["thrQ"]<=66+6*n_ and not P.get("TA2")
        segAB(n_, P["holdG"] or P["gateA"]); wait_pub("QISS",4); segAB(16, False, P.get("TA3",TA))
    elif P.get("TA2"):
        n_,t_=P["TA2"]
        assert P["gateA"]<n_<16 and t_%6==0
        segAB(n_, P["holdG"] or P["gateA"]); segAB(16, P.get("exA",False), t_)
    else: segAB(16, P["holdG"] or P["gateA"])
    stamp(3)
    a(f"s_mov_b32 s44, s12\ns_mov_b32 s45, s13\ns_mov_b32 m0, {R3}")
    FF=True
    def check(sc):
        at=[x[0] for x in sc]
        assert at[0]==0 and at==sorted(set(at)) and all(x%3==0 for x in at) and all(3<x[2]<=60 and x[2]%3==0 for x in sc)
        return sc
    sched=check(P["sched"]); fsched=check(P.get("fsched") or P["sched"])
    if sched[0][1]!=("QISS",4):
        drain(sched[0][2]-3); wait_pub("RDUK",3)
    stamp(4)
    def late(sc, done, n, emit):
        tl=[x[2] for x in sc if x[0]<=done][-1]
        for at,fl,t_ in sc:
            if done<at<done+n: emit(at-done, tl)
            if done<=at<done+n:
                if fl: wait_pub(*fl)
                tl=t_
        emit(n, tl)
    def seg_wo(k, TL):
        assert k%6==0
        l=a.lab("SO")
        a(f"{l}:")
        for i in range(6):
            if i%3==0: a(f"s_waitcnt vmcnt({TL-3})"); cpub(TL-3)
            if i%2==0:
                a(f"buffer_load_dwordx4 {vO}, {SB}, s52 offen {NT} lds\ns_add_u32 m0, m0, s56")
            else:
                a(f"buffer_load_dwordx4 {vO}, {SB}, s52 offen offset:128 {NT} lds\ns_add_u32 m0, m0, 1152\ns_add_u32 s52, s52, 10240")
            if i%3==0: a(f"s_add_u32 s61, s61, 3")
        a(f"s_cmp_lg_u32 m0, {R1+1024*k}\ns_cbranch_scc1 {l}")
    def seg_w2(k, TL):
        l=a.lab("S2")
        a(f"{l}:\ns_waitcnt vmcnt({TL-3})"); cpub(TL-3)
        for i in range(3):
            a(f"buffer_load_dwordx4 {vO}, {SB}, s52 offen {NT} lds\ns_add_u32 m0, m0, 2048\ns_add_u32 s52, s52, 10240")
        a(f"s_add_u32 s61, s61, 3\ns_cmp_lg_u32 m0, {R2+2048*k}\ns_cbranch_scc1 {l}")
    a(f"s_cmp_lt_u32 {sV}, 10\ns_cbranch_scc0 L_noff")
    a(f"s_mul_i32 s52, {sV}, {64*3072}\ns_mul_i32 s53, {sX}, 384\ns_add_u32 s52, s52, s53")
    a(f"s_mov_b32 s48, s18\ns_mov_b32 s49, s19\ns_mov_b32 s50, {640*3072}")
    late(fsched, 0, 24, lambda k,t_: seg384(SB, vF, "s52", 24576, R3+1024*k, t_))
    a(f"s_mul_i32 s52, {sX}, 245760\ns_lshl_b32 s53, {sV}, 7\ns_add_u32 s52, s52, s53")
    a(f"s_mov_b32 s48, s22\ns_mov_b32 s49, s23\ns_mov_b32 s50, {1536*1280}\ns_mov_b32 m0, {R1}")
    wait_pub("RDA",4)
    late(fsched, 24, 36, lambda k,t_: seg384(SA, vW, "s54", 98304, R1+1024*k, t_))
    a(f"s_mov_b32 m0, {R2}")
    if not any(at<=60 and fl in (M_,K_,D_,C_,V_) for at,fl,_ in fsched): wait_pub("RDB",4)
    late(fsched, 60, 24, seg_w2)
    a("s_branch L_drain\nL_noff:")
    a(f"s_mul_i32 s52, {sG}, 245760\ns_lshl_b32 s53, {sJ}, 8\ns_add_u32 s52, s52, s53")
    a(f"s_mov_b32 s48, s14\ns_mov_b32 s49, s15\ns_mov_b32 s50, {6144*1280}")
    late(sched, 0, 36, lambda k,t_: seg384(SA, vW, "s54", 98304, R3+1024*k, t_))
    stamp(5)
    a(f"s_mov_b32 m0, {R1}\ns_cmp_lt_u32 {sJ}, 5\ns_cbranch_scc0 L_drain")
    if not any(at<=36 and fl in (M_,K_,D_,C_,V_) for at,fl,_ in sched): wait_pub("RDA",4)
    late(sched, 36, 48, seg_wo)
    a("L_drain:")
    stamp(6)
    drain(6)
    a(f"v_mov_b32 {vC}, s61\ns_waitcnt vmcnt(0)\nds_write_b32 {vL4}, {vC} offset:{F['CNT']}")
    stamp(7)
    if P.get("wb"):
        n_,fl=P["wb"]
        a(f"s_cmp_lt_u32 s2, {n_}\ns_cbranch_scc0 L_fin")
        wait_flag(*fl)
        a("buffer_wbl2 sc1\ns_waitcnt vmcnt(0)")
        stamp(10)
    a("s_branch L_fin")

    a("L_notloader:")
    a(f"s_xor_b32 {sW}, {sW}, 4\nv_and_b32 v0, 63, v0")
    if diag: a("s_mov_b32 s80, 0\ns_mov_b32 s82, 0")
    ids2()
    a(f"v_and_b32 {vN}, 15, {vLane}\nv_lshrrev_b32 {vGl}, 4, {vLane}\nv_mov_b32 {vOne}, 1\ns_mov_b32 {sBud}, {P['budget']}")
    a(f"s_mov_b32 s30, {WSSIZE}\ns_mov_b32 s31, 0x20000")
    a(f"s_cmp_eq_u32 {sW}, 6\ns_cbranch_scc1 L_w6\ns_cmp_eq_u32 {sW}, 5\ns_cbranch_scc1 L_w5\ns_cmp_eq_u32 {sW}, 7\ns_cbranch_scc1 L_w7\ns_waitcnt lgkmcnt(0)")
    if P["wsb"]: a(f"s_add_u32 s28, s28, {P['wsb']}\ns_addc_u32 s29, s29, 0")
    a(f"s_load_dwordx2 s[32:33], s[28:29], {EPOCH}")

    def trcore(dst, t):
        a(f"v_bfe_u32 {t}, {vLane}, 2, 3\nv_lshlrev_b32 {dst}, 7, {t}\nv_lshrrev_b32 {t}, 1, {t}\nv_lshl_add_u32 {dst}, {t}, 5, {dst}\nv_and_b32 {t}, 3, {vLane}\nv_lshl_add_u32 {dst}, {t}, 3, {dst}")
    MASKT=[f"s[{56+2*t}:{57+2*t}]" for t in range(4)]
    def masks():
        for t in range(4): a(f"s_mov_b32 s{56+2*t}, {0x00010001<<t}\ns_mov_b32 s{57+2*t}, {0x00010001<<t}")
    def mstore(txt):
        wt="\n".join(x+" sc1" if x.startswith("buffer_store") else x for x in txt.split("\n"))
        if not P["local"]:
            a(wt); return
        r=a.lab("RM"); bk=a.lab("BK")
        a(f"s_cbranch_scc0 {r}\n{txt}\n{bk}:")
        far.append(f"{r}:\ns_nop 7\n{wt}\ns_nop 1\ns_branch {bk}")
    def publish4(acc, vS, vAddr, soff, imm=0, mode=False):
        for t in range(4):
            a(f"s_mov_b64 exec, {MASKT[t]}\nv_cvt_pk_bf16_f32 v{vS}, v{acc+4*t}, v{acc+4*t+1}\nv_cvt_pk_bf16_f32 v{vS+1}, v{acc+4*t+2}, v{acc+4*t+3}")
        a(f"s_mov_b32 exec_lo, 0x000f000f\ns_mov_b32 exec_hi, 0x000f000f")
        txt=f"buffer_store_dwordx4 {vr(vS,4)}, {vAddr}, {WS}, {soff} offen offset:{imm}"
        if mode=="plain": a(txt)
        elif mode: mstore(txt)
        else: a(txt+" sc1")
        a("s_mov_b64 exec, -1")

    a('; ======== W0..W3 main')
    FR=64; QR=16; AC=160; vS=176
    vT1=[f"v{180+t}" for t in range(4)]; vVec="v184"; vPub="v185"; vU=["v186","v187"]; vA=[f"v{188+t}" for t in range(4)]
    vLin="v192"; vB=["v193","v194","v199"]; vPl="v195"; vMl="v196"; vBp="v197"; vC4="v198"; vT6=["v200","v201"]; vCore="v202"; vSt="v203"; vXa="v204"; vM0="v205"; vQa="v208"
    sHH="s52"; sKH="s53"
    if P['prio'][0]: a(f"s_setprio {P['prio'][0]}")
    a(f"s_and_b32 {sHH}, {sW}, 1\ns_lshr_b32 {sKH}, {sW}, 1")
    masks()
    trcore(vCore, vTmp)
    a(f"v_lshrrev_b32 v6, 5, {vLane}")
    a(f"s_lshl_b32 s54, {sW}, 10\ns_add_u32 s54, s54, {R2}\nv_mul_u32_u24 v7, 3072, v6\nv_add3_u32 {vT1[0]}, {vCore}, v7, s54")
    for t in range(1,4): a(f"v_xor_b32 {vT1[t]}, {32*t}, {vT1[0]}")
    a(f"s_lshl_b32 s54, {sKH}, 10\ns_lshl_b32 s55, {sHH}, 6\nv_lshlrev_b32 v7, 11, v6\nv_add3_u32 {vT6[0]}, {vCore}, v7, s54\nv_xor_b32 {vT6[0]}, s55, {vT6[0]}\nv_xor_b32 {vT6[1]}, 32, {vT6[0]}")
    a(f"v_lshlrev_b32 {vVec}, 4, {vGl}\nv_add_u32 {vVec}, {VEC1A}, {vVec}")
    a(f"v_lshlrev_b32 {vPub}, 6, {vGl}\nv_lshl_add_u32 {vPub}, {vN}, 4, {vPub}")
    a(f"v_lshlrev_b32 {vLin}, 4, {vLane}")
    a(f"v_lshrrev_b32 v7, 1, {vN}\nv_lshlrev_b32 {vQa}, 6, v7\nv_and_b32 v7, 1, {vN}\nv_lshl_add_u32 {vQa}, v7, 4, {vQa}\nv_and_b32 v7, 1, {vGl}\nv_lshl_add_u32 {vQa}, v7, 5, {vQa}\nv_lshl_add_u32 {vQa}, v6, 10, {vQa}")
    a(f"s_mul_i32 s54, {sW}, 12288\ns_add_u32 s54, s54, {R3}\nv_lshrrev_b32 v7, 2, {vN}\nv_mul_u32_u24 v7, 3072, v7\nv_and_b32 v8, 3, {vN}\nv_lshl_add_u32 v7, v8, 7, v7")
    a(f"v_lshrrev_b32 v8, 1, {vN}\nv_xor_b32 v8, v8, {vGl}\nv_lshlrev_b32 v8, 4, v8\nv_add3_u32 {vU[0]}, v7, v8, s54\nv_xor_b32 {vU[1]}, 64, {vU[0]}")
    a(f"s_mul_i32 s54, {sKH}, 768\nv_mul_u32_u24 v7, 1536, {vN}\nv_lshlrev_b32 v8, 1, {vGl}\nv_xor_b32 v8, {vN}, v8\nv_lshlrev_b32 v8, 4, v8\nv_add3_u32 {vA[0]}, v7, v8, s54")
    for t in range(1,4): a(f"v_xor_b32 {vA[t]}, {128*(t>>1)+16*(t&1)}, {vA[0]}")
    a(f"v_bfe_u32 v7, {vN}, 3, 1\nv_mul_u32_u24 v7, 3200, v7\nv_bfe_u32 v8, {vN}, 2, 1\nv_mul_u32_u24 v8, 192, v8\nv_mul_u32_u24 v9, 768, {vGl}\nv_add3_u32 v7, v7, v8, v9")
    a(f"v_and_b32 v8, 3, {vN}\nv_lshl_add_u32 v7, v8, 3, v7\nv_add_u32 v7, {R2}, v7\nv_and_b32 v9, 1, {vGl}\nv_lshlrev_b32 v9, 5, v9")
    a(f"s_lshl_b32 s54, {sKH}, 6\nv_add3_u32 {vB[0]}, v7, v9, s54\nv_xor_b32 v10, 32, v9\nv_add3_u32 {vB[1]}, v7, v10, s54")
    a(f"s_lshl_b32 s54, {sKH}, 5\nv_xor_b32 v10, s54, v9\nv_add_u32 v10, 128, v10\nv_add_u32 {vB[2]}, v7, v10")
    a(f"v_mul_u32_u24 v7, {2*RS}, {vGl}\nv_lshl_add_u32 {vPl}, {vN}, 4, v7\nv_lshlrev_b32 {vM0}, 2, {vN}\nv_add_u32 {vMl}, {vM0}, v7")
    a(f"v_lshrrev_b32 v7, 2, {vLane}\nv_lshl_add_u32 {vBp}, v8, 4, v7\nv_lshlrev_b32 {vBp}, 2, {vBp}")
    a(f"v_mul_u32_u24 v7, {HS}, v7\nv_lshl_add_u32 {vC4}, v8, 4, v7")
    a(f"s_lshl_b32 s54, {sHH}, 11\ns_add_u32 s54, s54, {XB}\nv_add_u32 {vXa}, s54, {vLin}")
    if P.get("spf3"): a("s_mov_b64 s[26:27], s[14:15]\ns_mov_b64 s[24:25], s[22:23]")
    oQ,oQA,oQL,oP,oM,oPL,oML,oCL,oE,oUV,tUV,oF,t6 = "s4","s5",("s6","s7","s8","s24","s25","s26"),"s9","s10",("s11","s12"),("s13","s14"),"s15","s16","s17","s18","s54","s19"
    a(f"s_mul_i32 s20, {sB}, {RS}\ns_add_u32 s20, s20, {REC}\ns_lshl_b32 s55, {sW}, 8\ns_add_u32 s21, s20, s55\ns_add_u32 {oQ}, s21, {RQ}\ns_add_u32 {oE}, s21, {RQ}")
    if P["gA"]==2: a(f"s_mul_i32 {oQ}, {sG}, {P.get('qgper',32768)}\ns_add_u32 {oQ}, {oQ}, s55\ns_mul_i32 s55, {sJ}, 768\ns_add_u32 {oQ}, {oQ}, s55\ns_add_u32 {oQ}, {oQ}, {QG}")
    a(f"s_lshl_b32 s22, {sHH}, 10\ns_add_u32 s22, s22, {RP}\ns_lshl_b32 s23, {sHH}, 6\ns_add_u32 s23, s23, {RM}\ns_add_u32 {oP}, s20, s22\ns_add_u32 {oM}, s20, s23")
    a(f"s_mul_i32 s20, {sG}, {8*RS}\ns_add_u32 s20, s20, {REC}\ns_add_u32 {oPL[0]}, s20, s22\ns_add_u32 {oPL[1]}, {oPL[0]}, {RS}\ns_add_u32 {oML[0]}, s20, s23\ns_add_u32 {oML[1]}, {oML[0]}, {RS}")
    a(f"s_lshr_b32 s20, {sG}, 4\ns_mul_i32 s20, s20, 24\ns_mul_i32 s55, {sJ}, 3\ns_add_u32 s55, s55, {sW}\ns_add_u32 s20, s20, s55\ns_and_b32 s22, s20, 1\ns_lshl_b32 s22, s22, 10\ns_lshr_b32 s21, s20, 1")
    sdiv("s20","s21",qn,QPER,2048,"s55"); a("s_add_u32 s20, s20, s22")
    a(f"s_bfe_u32 s55, {sG}, 0x30001\ns_and_b32 s21, {sG}, 1\ns_lshl3_add_u32 s55, s21, s55\ns_lshl_b32 s55, s55, 6\ns_add_u32 s20, s20, s55\ns_add_u32 {oQA}, s20, {QA}")
    a(f"s_lshl1_add_u32 s20, {sHH}, {sKH}\ns_mul_i32 s20, s20, {qoff(6)}")
    for u in range(6): a(f"s_add_u32 {oQL[u]}, s20, {QA+qoff(u)}")
    sdiv("s20",sJ,4,J2,J1,"s55")
    a(f"s_mul_i32 s55, {sHH}, {16*HS}\ns_add_u32 s20, s20, s55\ns_lshl_b32 s55, {sKH}, 7\ns_add_u32 s20, s20, s55\ns_add_u32 s20, s20, {CLB}")
    a(f"s_and_b32 s55, {sG}, 24\ns_bfe_u32 s21, {sG}, 0x20001\ns_or_b32 s55, s55, s21\ns_and_b32 s21, {sG}, 1\ns_lshl2_add_u32 s55, s21, s55\ns_lshl_b32 s55, s55, 8\ns_add_u32 {oCL}, s20, s55")
    sdiv(oF,sG,gn,GPER,2560,"s55")
    a(f"s_lshl_b32 s55, {sJ}, 9\ns_add_u32 {oF}, {oF}, s55\ns_lshl_b32 s55, {sW}, 7\ns_add_u32 {oF}, {oF}, s55\ns_add_u32 {oF}, {oF}, {OP}\ns_movk_i32 {t6}, {222+CB}")
    a(f"s_mov_b32 s48, 0x00800080\ns_mov_b32 s49, 0x437f0000\ns_lshl_b32 s55, {sHH}, 8\nv_add_u32 v6, s55, {vL4}")
    a(f"s_lshl_b32 s55, {sHH}, 9\ns_add_u32 s55, s55, {MLB}\nv_lshl_add_u32 {vSt}, {vLane}, 3, s55")
    if P["mshare"]: a(f"v_mov_b64 v[8:9], -1\nds_write_b64 {vSt}, v[8:9] offset:1024")
    tag_finish()
    CT=212
    a(f"s_getreg_b32 s55, hwreg(HW_REG_XCC_ID, 0, 4)\ns_xor_b32 s55, s55, s32\nv_mov_b32 v{vS+2}, s55\nv_mov_b32 v{vS+3}, s33")
    a(f"s_and_b32 s55, s32, 0xbfffbfff\nv_mov_b32 v{CT+3}, s55\nv_mov_b32 v{CT+7}, s55")
    oH,oHW="s17","s18"
    if P["hintC"]: a(f"s_lshl_b32 {oH}, {sG}, 11\ns_lshl_b32 s55, {sHH}, 5\ns_add_u32 {oH}, {oH}, s55\ns_add_u32 {oH}, {oH}, {HT+1024}\ns_lshl2_add_u32 {oHW}, {sJ}, {oH}\nv_lshlrev_b32 v209, 6, {vLane}\ns_mov_b32 s44, s32\ns_mov_b32 s45, s32")
    a(f"s_cmp_eq_u32 {sW}, 3\ns_cbranch_scc0 L_s1\ns_cmp_eq_u32 s40, 0\ns_cbranch_scc0 L_s3")
    a(f"s_mul_i32 s55, s2, {128//CS}\ns_add_u32 s55, s55, {FLG}\ns_waitcnt vmcnt(0)\nv_mov_b32 v24, s32\nv_mov_b32 v25, s33\ns_mov_b64 exec, 15")
    a(f"buffer_store_dwordx4 v[24:27], {vLin}, {WS}, s55 offen sc1\ns_mov_b64 exec, -1\ns_waitcnt vmcnt(0)\ns_branch L_s3\nL_s1:")
    a('; ---- S1: q partial')
    if P.get("pretQA") is not None: a(f"s_mov_b64 exec, 1\nbuffer_load_dword v206, {vLin}, {WS}, {oQA} offen {P['pretQA']}\ns_mov_b64 exec, -1")
    wait_flag("V1A",1)
    for s in range(2): a(f"ds_read_b128 {vr(QR+4*s,4)}, {vVec} offset:{64*s}")
    a(f"ds_read_b64 {vr(QR+8,2)}, {vVec} offset:128\nv_mov_b64 {vr(QR+10,2)}, 0")
    for t in range(4): a(f"v_mov_b64 {vr(FR+12*t+10,2)}, 0")
    if P["s1pipe"]:
        wait_flag("CNT",24)
        for t in range(4):
            for h in range(4): a(f"ds_read_b64_tr_b16 {vr(FR+12*t+2*h,2)}, {vT1[t]} offset:{2*h*3072}")
        for t in range(4):
            a(f"s_waitcnt lgkmcnt({12-4*t})")
            for s in range(2): a(f"v_mfma_f32_16x16x32_bf16 {vr(AC+4*t,4)}, {vr(FR+12*t+4*s,4)}, {vr(QR+4*s,4)}, {vr(AC+4*t,4) if s else 0}")
        l=a.lab("W1")
        spin(l); a(f"ds_read_b32 {vTmp}, {vL4} offset:{F['CNT']}")
        for t in range(4): a(f"ds_read_b64_tr_b16 {vr(FR+12*t+8,2)}, {vT1[t]} offset:{8*3072}")
        a(f"s_waitcnt lgkmcnt(0)\nv_cmp_gt_u32 vcc, {30+CB}, {vTmp}\ns_cbranch_vccnz {l}")
        stamp(1)
        for t in range(4): a(f"v_mfma_f32_16x16x32_bf16 {vr(AC+4*t,4)}, {vr(FR+12*t+8,4)}, {vr(QR+8,4)}, {vr(AC+4*t,4)}")
    else:
        wait_flag("CNT",30)
        stamp(1)
        for t in range(4):
            for h in range(5): a(f"ds_read_b64_tr_b16 {vr(FR+12*t+2*h,2)}, {vT1[t]} offset:{2*h*3072}")
        for t in range(4):
            a(f"s_waitcnt lgkmcnt({15-5*t})")
            for s in range(3): a(f"v_mfma_f32_16x16x32_bf16 {vr(AC+4*t,4)}, {vr(FR+12*t+4*s,4)}, {vr(QR+4*s,4)}, {vr(AC+4*t,4) if s else 0}")
    publish4(AC, vS, vPub, oQ, mode=False if P["gA"] else "plain")
    if P["ackA"]: a("s_waitcnt vmcnt(0)")
    sig("PUBA")
    stamp(2)
    a(f"s_mov_b32 s46, {R3-R2}\ns_movk_i32 s47, {198+CB}")
    if FF: a(f"s_cmp_lt_u32 {sV}, 10\ns_cselect_b32 s46, {R1-R2}, s46\ns_cselect_b32 s47, {222+CB}, s47")
    for t in range(4): a(f"v_add_u32 {vT1[t]}, s46, {vT1[t]}")
    a(f"v_mov_b32 v{vS+2}, s32\nv_xor_b32 v{vS+3}, 1, v{vS+3}")
    wait_flag("CLR",1)
    wait_flag("CNT",66)
    for s in range(6):
        for t in range(2): a(f"ds_read_b128 {vr(FR+8*s+4*t,4)}, {vU[s&1]} offset:{1024*(s>>1)+512*t}")
    if P["sched"][0][1]!=Q_: sig("RDUK")
    def vec2_mfma(flag, thr, vec, wfirst, fr):
        l=a.lab("V2")
        spin(l); a(f"ds_read_b32 {vTmp}, {vL4} offset:{F[flag]}")
        for s in range(6): a(f"ds_read_b128 {vr(QR+4*s,4)}, {vVec} offset:{vec-VEC1A+64*s}")
        a(f"s_waitcnt lgkmcnt(6)\nv_cmp_gt_u32 vcc, {thr}, {vTmp}\ns_cbranch_vccnz {l}")
        for s in range(6):
            a(f"s_waitcnt lgkmcnt({5-s})")
            for t in range(2):
                w_,q_=vr(fr+8*s+4*t,4),vr(QR+4*s,4)
                A_,B_=(w_,q_) if wfirst else (q_,w_)
                a(f"v_mfma_f32_16x16x32_bf16 {vr(AC+4*t,4)}, {A_}, {B_}, {vr(AC+4*t,4) if s else 0}")
    vec2_mfma("V2A",1,VEC2A,True,FR)
    a(f"v_readfirstlane_b32 s50, {vTmp}\ns_lshr_b32 s50, s50, 1")
    stamp(3)
    for k in range(4): a(f"v_cvt_pk_bf16_f32 v{AC+8+k}, v{AC+2*k}, v{AC+2*k+1}\nds_bpermute_b32 v{AC+12+k}, {vBp}, v{AC+8+k}")
    if P.get("bhold"): wait_flag("CNT",P["bhold"])
    if P.get("batom"):
        a(f"s_mov_b64 exec, 15\ns_waitcnt lgkmcnt(0)\nbuffer_atomic_{P['batom']}_x2 {vr(AC+12,2)}, {vLin}, {WS}, {oQA} offen sc1\nbuffer_atomic_{P['batom']}_x2 {vr(AC+14,2)}, {vLin}, {WS}, {oQA} offen offset:8 sc1\ns_mov_b64 exec, -1\ns_waitcnt vmcnt(0)")
    if P.get("bline"):
        a(f"s_sub_u32 {oQA}, {oQA}, {QA}\ns_and_b32 s55, {oQA}, 127\ns_lshr_b32 {oQA}, {oQA}, 7\ns_mul_i32 {oQA}, {oQA}, {P['bline']}\ns_add_u32 {oQA}, {oQA}, s55\ns_add_u32 {oQA}, {oQA}, {REC}")
    if P.get("bmap"):
        pb,k_,s1,s2=P["bmap"]
        a(f"s_sub_u32 {oQA}, {oQA}, {QA}\ns_and_b32 s55, {oQA}, {(1<<pb)-1}\ns_lshr_b32 {oQA}, {oQA}, {pb}\ns_and_b32 s20, {oQA}, {(1<<k_)-1}\ns_mul_i32 s20, s20, {s1}\ns_add_u32 s55, s55, s20\ns_lshr_b32 {oQA}, {oQA}, {k_}\ns_mul_i32 {oQA}, {oQA}, {s2}\ns_add_u32 {oQA}, {oQA}, s55\ns_add_u32 {oQA}, {oQA}, 0x80000")
    if P.get("bexp"):
        m_,sh=P["bexp"]
        a(f"s_sub_u32 {oQA}, {oQA}, {QA}\ns_mul_i32 {oQA}, {oQA}, {sh}\ns_add_u32 {oQA}, {oQA}, {QA if sh<=2 else REC}")
    if not P.get("batom"): a(f"s_mov_b64 exec, {P['bexp'][0] if P.get('bexp') else 15}\ns_waitcnt lgkmcnt(0)\nbuffer_store_dwordx4 {vr(AC+12,4)}, {vLin}, {WS}, {oQA} offen {P.get('bfl','sc1')}\ns_mov_b64 exec, -1\n{'s_nop 0' if P.get('bnoack') else 's_waitcnt vmcnt(0)'}")
    if P.get("bread"):
        for r_ in range(P["bread"]): a(f"s_load_dword s20, s[28:29], {oQA} glc\ns_waitcnt lgkmcnt(0)")
    sig("PUBB")
    a("L_s3:")
    def areads(kt):
        for s in range(12): a(f"ds_read_b128 {vr(FR+48*kt+4*s,4)}, {vA[s&3]} offset:{24576*kt+256*(s>>2)}")
    def qloads():
        if P.get("skipq"): return
        for s in range(12): a(f"buffer_load_dwordx4 {vr(QR+4*s,4)}, {vQa}, {WS}, {oQL[s>>1]} offen offset:{512*(s&1)} sc1")
    if P["thrQ"]>=114:
        wait_flag("CNT",114)
        areads(0)
    wait_flag("PUBB",3)
    if P["thrQ"]!=114: wait_flag("CNT",P["thrQ"])
    stamp(4); qloads(); sig("QISS")
    if P["thrQ"]<114:
        wait_flag("CNT",114)
        areads(0)
    if P["thrQ"]<162: wait_flag("CNT",162)
    areads(1)
    sig("RDA")
    a("s_waitcnt lgkmcnt(0)\ns_branch L_s3m")
    l,ok=loop_head("S3")
    qloads()
    a("L_s3m:")
    BQ=lambda f: FR+4*f
    def breads():
        for f in range(24):
            s4,ct=divmod(f,3)
            for e2 in range(2): a(f"ds_read_b64_tr_b16 {vr(BQ(f)+2*e2,2)}, {vB[ct]} offset:{3200*(8*e2+2*(s4&3))+384*(s4>>2)}")
        if not any(at<=60 and fl in (M_,K_,D_,C_,V_) for at,fl,_ in fsched): sig("RDB")
    TQ=[8,12]
    def fix(sg):
        L0=QR+8*sg; L1=L0+4
        o=[f"s_waitcnt vmcnt({10-2*sg})"]
        o+=[f"v_cndmask_b32_dpp v{TQ[sg&1]+k}, v{L1+k}, v{L0+k}, vcc quad_perm:[0,0,2,2] {DP}" for k in range(4)]
        o+=["s_not_b64 vcc, vcc"]
        o+=[f"v_cndmask_b32_dpp v{L1+k}, v{L0+k}, v{L1+k}, vcc quad_perm:[1,1,3,3] {DP}" for k in range(4)]
        o+=["s_not_b64 vcc, vcc"]
        return o
    a("s_mov_b32 vcc_lo, 0x55555555\ns_mov_b32 vcc_hi, 0x55555555")
    a("\n".join(fix(0)))
    for sg in range(6):
        nx=fix(sg+1) if sg<5 else []
        cut=[3,6,8,11]; st_=0
        for i in range(4):
            pi,kt=i>>1,i&1
            qreg=TQ[sg&1] if pi==0 else QR+8*sg+4
            a(f"v_mfma_f32_16x16x32_bf16 {vr(AC+4*kt,4)}, {vr(FR+48*kt+4*(2*sg+pi),4)}, {vr(qreg,4)}, {vr(AC+4*kt,4) if 2*sg+pi else 0}")
            if nx: a("\n".join(nx[st_:cut[i]])); st_=cut[i]
    a(f"s_cmp_eq_u32 {sKH}, 0\nv_cmp_u_f32 vcc, v{AC}, v{AC+4}\ns_cbranch_vccnz {l}\n{ok}:")
    if any(x[1]==("S3K",4) for x in P["sched"]): sig("S3K")
    stamp(6)
    far[-1]=far[-1].replace("s_nop 7",f"s_cmp_eq_u32 {sKH}, 0\ns_nop 7")
    a(f"s_cbranch_scc1 {'L_soft' if P['blate'] else 'L_nox'}")
    a(f"ds_write_b128 {vXa}, {vr(AC,4)}\nds_write_b128 {vXa}, {vr(AC+4,4)} offset:1024\nds_add_u32 v6, {vOne} offset:{F['X0']}")
    if P["blate"]: a("s_branch L_s4\nL_soft:")
    else:
        a("L_nox:")
        breads()
        a("s_cbranch_scc0 L_s4\nL_soft:")
    l=a.lab("XW")
    spin(l); a(f"ds_read_b32 {vTmp}, v6 offset:{F['X0']}\nds_read_b128 {vr(AC+8,4)}, {vXa}\nds_read_b128 {vr(AC+12,4)}, {vXa} offset:1024")
    a(f"s_waitcnt lgkmcnt(0)\nv_cmp_gt_u32 vcc, 1, {vTmp}\ns_cbranch_vccnz {l}")
    for k in range(4): a(f"v_pk_add_f32 {vr(AC+2*k,2)}, {vr(AC+2*k,2)}, {vr(AC+8+2*k,2)}")
    a(f"v_max3_f32 v8, v{AC}, v{AC+1}, v{AC+2}\nv_max3_f32 v9, v{AC+3}, v{AC+4}, v{AC+5}\nv_max3_f32 v8, v8, v{AC+6}, v{AC+7}\nv_max_f32 v8, v8, v9")
    xreduce("v_max_f32","v8","v9")
    a("v_ceil_f32 v8, v8\ns_cmp_eq_u32 s50, 0")
    for k in range(4): a(f"v_pk_add_f32 {vr(AC+2*k,2)}, {vr(AC+2*k,2)}, v[8:9] op_sel_hi:[1,0] neg_lo:[0,1] neg_hi:[0,1]")
    for k in range(8): a(f"v_exp_f32 v{AC+k}, v{AC+k}")
    for k in range(4): a(f"v_cvt_pk_bf16_f32 v{AC+8+k}, v{AC+2*k}, v{AC+2*k+1}")
    (lambda t: a(t.replace("offen","offen sc1")) if P["gC"] else mstore(t))(f"buffer_store_dwordx4 {vr(AC+8,4)}, {vLin}, {WS}, {oP} offen"+("" if P.get("ackM") else f"\ns_mov_b64 exec, 0xffff\nbuffer_store_dword v8, {vM0}, {WS}, {oM} offen"))
    if P["hintC"] and not P["ackC"] and not P.get("verC"): a(f"buffer_store_dword v{vS+2}, v209, {WS}, {oHW} offen")
    a("s_mov_b64 exec, -1")
    a(f"v_pk_add_f32 {vr(AC,2)}, {vr(AC,2)}, {vr(AC+2,2)}\nv_pk_add_f32 {vr(AC+4,2)}, {vr(AC+4,2)}, {vr(AC+6,2)}\nv_pk_add_f32 {vr(AC,2)}, {vr(AC,2)}, {vr(AC+4,2)}\nv_add_f32 v9, v{AC}, v{AC+1}")
    a(f"ds_write_b64 {vSt}, v[8:9]")
    sig("PUBC")
    if P["hintC"] and P.get("verC"):
        vk=a.lab("VK")
        for tr_ in range(2):
            a(f"s_add_u32 s96, s28, {oP}\ns_addc_u32 s97, s29, 0" if tr_==0 else "")
            for k in range(8): a(f"s_load_dword s{20+k}, s[96:97], {128*k+64*(1-tr_)}")
            a("s_waitcnt lgkmcnt(0)\ns_or_b64 s[20:21], s[20:21], s[22:23]\ns_or_b64 s[24:25], s[24:25], s[26:27]\ns_or_b64 s[20:21], s[20:21], s[24:25]\ns_or_b32 s20, s20, s21\ns_bitcmp0_b32 s20, 31")
            a(f"s_cbranch_scc1 {vk}")
        a(f"s_waitcnt vmcnt(0)\n{vk}:\ns_mov_b64 exec, 0xffff\nbuffer_store_dword v{vS+2}, v209, {WS}, {oHW} offen\ns_mov_b64 exec, -1")
    elif P["hintC"] and P["ackC"]: a(f"s_mov_b64 exec, 0xffff\ns_waitcnt vmcnt(0)\nbuffer_store_dword v{vS+2}, v209, {WS}, {oHW} offen\ns_mov_b64 exec, -1")
    a("L_s4:")
    stamp(7)
    if P["blate"]: breads()
    if P.get("ackM"):
        a(f"s_cmp_eq_u32 {sKH}, 0\ns_cbranch_scc0 L_nm\ns_cmp_eq_u32 s50, 0\ns_mov_b64 exec, 0xffff\ns_waitcnt vmcnt(0)")
        mstore(f"buffer_store_dword v8, {vM0}, {WS}, {oM} offen")
        a("s_mov_b64 exec, -1\nL_nm:")
    wait_flag("PUBC",2)
    stamp(8)
    a("v_mov_b32 v13, 1")
    if P["mshare"]: a(f"s_branch L_s4l\nL_s4f:\nds_read_b64 v[8:9], {vSt} offset:1024\ns_waitcnt lgkmcnt(0)\nv_cmp_u_f32 vcc, v8, v9\nv_max_f32 v10, v8, v9\ns_cbranch_vccz L_s4p\nL_s4l:")
    l,ok=loop_head("S4",("S4M",))
    a(f"buffer_load_dword v8, {vMl}, {WS}, {oML[0]} offen sc1\nbuffer_load_dword v9, {vMl}, {WS}, {oML[1]} offen sc1")
    a(f"s_waitcnt vmcnt(0)\nv_cmp_u_f32 vcc, v8, v9\nv_max_f32 v10, v8, v9\ns_cbranch_vccnz {'L_s4f' if P['mshare'] else l}")
    if P["mshare"]: a(f"ds_write_b64 {vSt}, v[8:9] offset:1024")
    a("L_s4p:")
    def ploads(lo,hi):
        for s in range(lo,hi): a(f"buffer_load_dwordx4 {vr(QR+4*s,4)}, {vPl}, {WS}, {oPL[s>>2]} offen offset:{256*(s&3)} sc1")
        if hi==8 and lo<8:
            sig("S4M","v13"); a("v_mov_b32 v13, 0"); stamp(5)
            if P["lateG"]==3: a(f"ds_read_b32 v14, {vL4} offset:{F['GOK']}")
    n1_,n2_=P["psplit"]
    ploads(0,n1_)
    xreduce("v_max_f32","v10","v11")
    ploads(n1_,n1_+n2_)
    a("v_sub_f32 v8, v10, v8\nv_sub_f32 v9, v10, v9\nv_min_f32 v8, s49, v8\nv_min_f32 v9, s49, v9\nv_cvt_u32_f32 v8, v8\nv_cvt_u32_f32 v9, v9\nv_mul_u32_u24 v8, s48, v8\nv_mul_u32_u24 v9, s48, v9")
    ploads(n1_+n2_,8)
    a(f"s_waitcnt vmcnt(7)")
    for k in range(4): a(f"v_pk_sub_u16 v{QR+k}, v{QR+k}, v8 clamp")
    for s in range(8):
        mf=lambda ct: a(f"v_mfma_f32_16x16x32_bf16 {vr(AC+4*ct,4)}, {vr(BQ(3*s+ct),4)}, {vr(QR+4*s,4)}, {vr(AC+4*ct,4) if s else 0}")
        q=QR+4*s
        if s==0: a(f"v_or3_b32 v12, v{q}, v{q+1}, v{q+2}\nv_or_b32 v12, v12, v{q+3}")
        mf(0)
        if s<7:
            a(f"s_waitcnt vmcnt({6-s})")
            a(f"v_pk_sub_u16 v{q+4}, v{q+4}, v{8+((s+1)>>2)} clamp\nv_pk_sub_u16 v{q+5}, v{q+5}, v{8+((s+1)>>2)} clamp")
        mf(1)
        if s<7: a(f"v_pk_sub_u16 v{q+6}, v{q+6}, v{8+((s+1)>>2)} clamp\nv_pk_sub_u16 v{q+7}, v{q+7}, v{8+((s+1)>>2)} clamp")
        mf(2)
        if s<7: a(f"v_or3_b32 v12, v12, v{q+4}, v{q+5}\nv_or3_b32 v12, v12, v{q+6}, v{q+7}")
    a(f"v_and_b32 v12, 0x80008000, v12\nv_cmp_ne_u32 vcc, 0, v12\ns_cbranch_vccnz {l}\n{ok}:")
    if P["lateG"]==3:
        gw=a.lab("GW"); gb=a.lab("GB")
        a(f"s_waitcnt lgkmcnt(0)\nv_cmp_ne_u32 vcc, 1, v14\ns_cbranch_vccnz {gw}\n{gb}:")
        far.append(f"{gw}:\nds_read_b32 v14, {vL4} offset:{F['GOK']}\ns_waitcnt lgkmcnt(0)\nv_cmp_ne_u32 vcc, 1, v14\ns_cbranch_vccnz {gw}\ns_nop 4\ns_branch {gb}")
    sig("S4K")
    stamp(9)
    for k in range(6): a(f"v_cvt_pk_bf16_f32 v{QR+k}, v{AC+2*k}, v{AC+2*k+1}\nds_bpermute_b32 v{CT+k+k//3}, {vBp}, v{QR+k}")
    if P.get("dhalf"): a(f"s_cmp_eq_u32 {sKH}, 0\ns_cbranch_scc0 L_nod")
    a(f"s_waitcnt lgkmcnt(3)\nbuffer_store_dwordx4 {vr(CT,4)}, {vC4}, {WS}, {oCL} offen sc1")
    a(f"s_waitcnt lgkmcnt(0)\nbuffer_store_dwordx4 {vr(CT+4,4)}, {vC4}, {WS}, {oCL} offen offset:64 sc1")
    if P.get("dhalf"): a("L_nod:")
    sig("DST")
    stamp(10)
    a(f"s_waitcnt vmcnt({P.get('dack',0)})")
    sig("PUBD")
    F6=FR+48
    def s6reads(half):
        for s in range(3*half,3*half+3):
            for t in range(2):
                for e2 in range(2): a(f"ds_read_b64_tr_b16 {vr(F6+8*s+4*t+2*e2,2)}, {vT6[t]} offset:{(4*s+2*e2)*2048}")
    a(f"s_cmp_eq_u32 {sW}, 3\ns_cbranch_scc1 L_s6")
    wait_flag("CNT","s47")
    for t in range(4):
        for h in range(6): a(f"ds_read_b64_tr_b16 {vr(FR+12*t+2*h,2)}, {vT1[t]} offset:{2*h*3072}")
    l=a.lab("V1")
    spin(l); a(f"ds_read_b32 {vTmp}, {vL4} offset:{F['V1B']}")
    for s in range(3): a(f"ds_read_b128 {vr(QR+4*s,4)}, {vVec} offset:{VEC1B-VEC1A+64*s}")
    a(f"s_waitcnt lgkmcnt(0)\nv_cmp_gt_u32 vcc, 1, {vTmp}\ns_cbranch_vccnz {l}")
    stamp(11)
    for t in range(4):
        for s in range(3):
            a(f"v_mfma_f32_16x16x32_bf16 {vr(AC+4*t,4)}, {vr(FR+12*t+4*s,4)}, {vr(QR+4*s,4)}, {vr(AC+4*t,4) if s else 0}")
    a("s_cmp_eq_u32 s50, 0")
    publish4(AC, vS, vPub, oE, mode=True)
    sig("PUBE")
    a('; ---- S6: output projection (w_o) or second FFN GEMV (w2)')
    a("L_s6:")
    stamp(12)
    a(f"s_cmp_lt_u32 {sJ}, 5\ns_cbranch_scc0 L_fin")
    a("L_s6go:")
    a(f"v_lshlrev_b32 v6, 2, {vLane}\ns_mov_b32 s56, 0xffff0000\ns_mov_b32 s57, 0")
    wait_flag("CNT",t6)
    s6reads(0)
    wait_flag("CNT",246)
    s6reads(1)
    stamp(13)
    vec2_mfma("V2B",1,VEC2B,False,F6)
    a(f"s_mov_b32 exec_hi, 0\nv_cndmask_b32 v7, v{AC}, v{AC+4}, s[56:57]\nbuffer_store_dword v7, v6, {WS}, {oF} offen sc1")
    stamp(14)
    a("s_mov_b64 exec, -1\ns_waitcnt vmcnt(0)")
    sig("PUBF")
    a("s_branch L_fin")
    if P["incC"]:
        i_=a.L.index("L_soft:"); a.L[i_:i_]=incstub.split("\n")

    if P.get("spf3"):
        a("L_w3p:")
        n0_=len(a.L)
        sprefetch(*P["spf3"])
        a.L[n0_:]=[x.replace("s96, s96, s14","s96, s96, s26").replace("s97, s15, 0","s97, s27, 0").replace("s96, s96, s22","s96, s96, s24").replace("s97, s23, 0","s97, s25, 0") for x in a.L[n0_:]]
        stamp(1)
        a("s_branch L_s3")
    GA=16; GD=32; GX=72
    def gather_setup(vOff, stride):
        a(f"v_mul_u32_u24 {vOff}, {stride}, {vGl}\nv_lshl_add_u32 {vOff}, {vN}, 4, {vOff}")
        a(f"v_and_b32 v6, 1, {vN}\nv_lshlrev_b32 v6, 4, v6\nv_mov_b32 v7, 0x3f80\nv_lshlrev_b32 v6, v6, v7\nv_lshrrev_b32 v7, 1, {vN}")
        for k in range(6): a(f"v_cmp_eq_u32 vcc, {k}, v7\nv_cndmask_b32 v{GA+k}, 0, v6, vcc")
    def gather(nq, vOff, soffs, name, xcc=False, tag="s[32:33]"):
        if name in P.get("free",()):
            a(f"v_mov_b64 {vr(GX,2)}, 0\nv_mov_b64 {vr(GX+2,2)}, 0"); return
        if xcc: a(f"s_andn2_b32 {sBud}, {sBud}, 15")
        l,ok=loop_head(name, ("GISS",) if xcc=="q" and P["holdG"] else ())
        if nq==3:
            for u in range(3): a(f"v_mov_b32 v{GD+26+4*u}, s58")
        for q in range(nq):
            if q==2: a("s_mov_b32 exec_hi, 0")
            for u in range(3):
                a(f"buffer_load_dwordx4 {vr(GD+4*(3*q+u),4)}, {vOff}, {WS}, {soffs[q]} offen offset:{256*u} sc1")
        if nq==3: a("s_mov_b64 exec, -1")
        if xcc=="q" and P["holdG"]: sig("GISS")
        n=3*nq
        for k in range(n):
            a(f"s_waitcnt vmcnt({n-1-k})\nv_mfma_f32_16x16x16_bf16 {vr(GX,4)}, {vr(GA+2*(k%3),2)}, {vr(GD+4*k,2)}, {vr(GX,4) if k else 0}")
        slot = RQ if xcc=="q" else RE
        if not xcc:
            for k in range(n): a(f"v_cmpx_eq_u64 vcc, {tag}, {vr(GD+4*k+2,2)}")
            a(f"s_cmp_eq_u64 exec, -1\ns_mov_b64 exec, -1\ns_cbranch_scc0 {l}\n{ok}:")
        else:
            sl=a.lab("SL")
            for k in range(n): a(f"v_cmpx_eq_u64 vcc, s[58:59], {vr(GD+4*k+2,2)}")
            a(f"s_cmp_eq_u64 exec, -1\ns_mov_b64 exec, -1\ns_cbranch_scc1 {ok}")
            if xcc=="q" and P["thrG2"]: a(f"ds_read_b32 {vTmp}, {vL4} offset:{F['V2A']}\ns_waitcnt lgkmcnt(0)\nv_cmp_lt_u32 vcc, 0, {vTmp}\ns_cbranch_vccnz L_gadone\ns_cmp_eq_u32 {sW}, 6\ns_cbranch_scc1 {l}")
            for k in range(n): a(f"v_or_b32 v{GD+4*k+2}, 15, v{GD+4*k+2}\nv_cmpx_eq_u64 vcc, {tag}, {vr(GD+4*k+2,2)}")
            a(f"s_cmp_eq_u64 exec, -1\ns_mov_b64 exec, -1\ns_cselect_b32 s60, 0, {sBud}\ns_cselect_b32 s63, 1, 0\ns_and_b32 s60, s60, 15\ns_cbranch_scc1 {l}\ns_branch {sl}\n{ok}:")
            far.append(f"""{sl}:
s_mov_b32 exec_hi, 0xffff
buffer_load_dwordx4 v[76:79], v28, {WS}, s61 offen offset:{slot-RP} sc1
s_waitcnt vmcnt(0)
v_cmpx_eq_u64 vcc, s[58:59], v[78:79]
s_cbranch_execz {sl}_n
buffer_store_dwordx4 v[76:79], v28, {WS}, s61 offen offset:{slot-RP} sc1
{sl}_n:
s_mov_b64 exec, -1
s_waitcnt vmcnt(0)
s_cmp_eq_u32 s63, 0
s_cbranch_scc1 {l}
"""+(f"s_branch {ok}" if xcc!="q" else f"""v_mov_b32 v76, -1
v_mov_b32 v77, -1
v_mov_b32 v78, -1
v_mov_b32 v79, -1
v_mov_b32 v27, 3
buffer_store_dwordx4 v[76:79], v28, {WS}, s61 offen sc1
buffer_store_dwordx4 v[76:79], v28, {WS}, s61 offen offset:1024 sc1
s_mov_b64 exec, 0xff
buffer_store_dwordx4 v[76:79], v28, {WS}, s61 offen offset:2048 sc1
s_mov_b64 exec, -1
s_waitcnt vmcnt(0)
s_branch {ok}"""))
    def vec2_write(vAddr, flag, v=vOne, op="ds_add_u32"):
        a(f"s_mov_b32 exec_hi, 0xffff\nv_cvt_pk_bf16_f32 v{GX}, v{GX}, v{GX+1}\nv_cvt_pk_bf16_f32 v{GX+1}, v{GX+2}, v{GX+3}\nds_write_b64 {vAddr}, {vr(GX,2)}\ns_mov_b64 exec, -1")
        a(f"{op} {vL4}, {v} offset:{F[flag]}")
    def vec2b_addr(dst):
        a(f"v_lshlrev_b32 {dst}, 7, {vGl}\nv_bfe_u32 v6, {vN}, 1, 1\nv_lshl_add_u32 {dst}, v6, 6, {dst}\nv_lshrrev_b32 v6, 2, {vN}\nv_lshl_add_u32 {dst}, v6, 4, {dst}\nv_and_b32 v6, 1, {vN}\nv_lshl_add_u32 {dst}, v6, 3, {dst}\nv_add_u32 {dst}, {VEC2B}, {dst}")

    a("L_w7:")
    a(f"s_movk_i32 s43, {P['thrG']+CB}")
    tag_finish()
    if P["tlb"]:
        a("; first and last line of every tile this workgroup streams later: warms the address translation while w_q is in flight")
        a(f"s_mul_i32 s52, {sJ}, {96*12288}\ns_mul_i32 s53, {sG}, 384\ns_add_u32 s52, s52, s53\nv_mul_u32_u24 v8, {95*12288}, {vLane}\nv_add_u32 v8, s52, v8")
        a(f"s_mul_i32 s52, {sG}, 393216\nv_mul_u32_u24 v9, 393212, {vLane}\nv_add_u32 v9, s52, v9")
        a(f"s_min_u32 s54, {sV}, 9\ns_mul_i32 s52, {sG}, 245760\ns_mul_i32 s53, {sX}, 245760\ns_cmp_lt_u32 {sJ}, 5\ns_cselect_b32 s52, s52, s53\ns_cselect_b64 s[48:49], s[14:15], s[22:23]\nv_mul_u32_u24 v10, {191*1280}, {vLane}\nv_add_u32 v10, s52, v10")
        a(f"s_mul_i32 s52, s54, {64*3072}\nv_mul_u32_u24 v11, {63*3072}, {vLane}\nv_add_u32 v11, s52, v11\nv_mul_u32_u24 v12, {0x36e000}, {vLane}\nv_add_u32 v12, 0x2000, v12")
    if P["tlb"]:
        a(f"s_mov_b64 exec, 3\nglobal_load_dword v13, v8, s[10:11]\nglobal_load_dword v13, v9, s[6:7]\nglobal_load_dword v13, v12, s[28:29]\nglobal_load_dword v13, v8, s[12:13]\nglobal_load_dword v13, v10, s[48:49]")
        a(f"s_cmp_lt_u32 {sV}, 10\ns_cbranch_scc0 L_ntw\nglobal_load_dword v13, v11, s[18:19]\nL_ntw:\ns_mov_b64 exec, -1")
    a(f"L_ga:\ns_setprio {P['prio'][1]}")
    gather_setup("v24", RS)
    a(f"v_lshlrev_b32 v28, 4, {vLane}\ns_mul_i32 s61, {sB}, {RS}\ns_add_u32 s61, s61, {REC+RP}")
    a(f"v_lshlrev_b32 v25, 7, {vGl}\nv_and_b32 v6, 3, {vN}\nv_lshl_add_u32 v25, v6, 5, v25\nv_lshrrev_b32 v6, 2, {vN}\nv_lshl_add_u32 v25, v6, 3, v25\nv_add_u32 v25, {VEC2A}, v25")
    vec2b_addr("v26")
    a(f"s_mul_i32 s54, {sG}, {8*RS}\ns_add_u32 s52, s54, {REC+RQ}\ns_add_u32 s53, s52, {4*RS}\ns_mov_b32 s48, s32\ns_xor_b32 s49, s33, 1")
    a(f"s_mov_b32 s56, {f2u(192**-0.5*math.log2(math.e))}\ns_mov_b32 s57, s56")
    a("s_getreg_b32 s58, hwreg(HW_REG_XCC_ID, 0, 4)\ns_xor_b32 s58, s58, s32\ns_mov_b32 s59, s33\nv_mov_b32 v27, 1")
    if P["hintA"]:
        a(f"s_lshl_b32 s43, {sG}, 11\ns_add_u32 s43, s43, {HT}\ns_lshl2_add_u32 s51, {sJ}, s43\nv_lshlrev_b32 v6, 6, {vLane}\nv_mov_b32 v7, s32\ns_mov_b32 s48, s32\ns_mov_b32 s49, s32")
    if P["gA"]==2:
        a(f"v_mul_u32_u24 v29, 768, {vGl}\nv_lshl_add_u32 v29, {vN}, 4, v29\ns_mul_i32 s54, {sG}, {P.get('qgper',32768)}\ns_add_u32 s54, s54, {QG}\ns_add_u32 s55, s54, 3072")
    if P["gA"]==1:
        a(f"s_lshl_b32 s43, {sG}, 11\ns_add_u32 s43, s43, {HT}\ns_add_u32 s96, s28, s43\ns_addc_u32 s97, s29, 0\ns_lshl_b32 s51, {sB}, 8\ns_add_u32 s51, s51, {HT}\ns_mov_b32 s48, s32\ns_mov_b32 s49, s32")
        a("v_mov_b32 v8, s32\nv_mov_b32 v9, s32\nv_mov_b32 v10, s32\nv_mov_b32 v11, s32")
    wait_flag("PUBA",3)
    if P["gA"]==1:
        a(f"s_mov_b64 exec, 15\nbuffer_store_dwordx4 v[8:11], v28, {WS}, s51 offen sc1\ns_mov_b64 exec, -1")
        ghint("s[96:97]", 256, 8, "s[48:49]")
    elif P["hintA"]:
        a(f"s_mov_b64 exec, 0xffff\nbuffer_store_dword v7, v6, {WS}, s51 offen\ns_mov_b64 exec, -1")
        hint_wait("s43", 8, "s[48:49]")
    elif "GA" not in P.get("free",()): wait_flag("CNT","s43")
    stamp(1)
    if P["gA"]==2: gather(2,"v29",["s54","s55"],"GA", xcc="q")
    else: gather(2,"v24",["s52","s53"],"GA", xcc="q")
    stamp(2)
    a(f"v_pk_mul_f32 {vr(GX,2)}, {vr(GX,2)}, s[56:57]\nv_pk_mul_f32 {vr(GX+2,2)}, {vr(GX+2,2)}, s[56:57]")
    vec2_write("v25","V2A","v27","ds_max_u32")
    if P["thrG2"]: a(f"L_gadone:\ns_cmp_eq_u32 {sW}, 6\ns_cbranch_scc1 L_w6b")
    a(f"s_mul_i32 s54, {sX}, {4//sn*SPER}\ns_and_b32 s55, {sG}, 3\ns_lshl_b32 s55, s55, 4\ns_add_u32 s54, s54, s55\ns_add_u32 s44, s54, {ST}\ns_add_u32 s45, s44, {soff_(1)}\ns_add_u32 s46, s44, {soff_(2)}\ns_add_u32 s47, s44, {soff_(3)}\nv_lshlrev_b32 v22, 6, {vLane}\nv_add_u32 v23, {XB}, v28")
    wait_flag(*{"DST":("DST",4),"S4M":("S4M",1),"PUBC":("PUBC",2),"PUBD":("PUBD",4)}[P["stattrig"]])
    stamp(3)
    l,ok=loop_head("SS")
    SM=108
    for k in range(4): a(f"buffer_load_dwordx4 {vr(SM+4*k,4)}, v22, {WS}, s{44+k} offen sc1")
    a("s_waitcnt vmcnt(0)")
    for k in range(4): a(f"v_cmpx_eq_u64 vcc, s[32:33], {vr(SM+4*k+2,2)}")
    a(f"s_cmp_eq_u64 exec, -1\ns_mov_b64 exec, -1\ns_cbranch_scc0 {l}\n{ok}:")
    if ("STR",1) in P["dtrig"]: sig("STR")
    stamp(4)
    st3=("quad_perm:[1,0,3,2]","quad_perm:[2,3,0,1]","row_half_mirror")
    for i,s in enumerate(st3):
        for k in range(4):
            src = f"v{SM+4*k}" if i==0 else f"v{32+k}"
            a(f"v_max_f32_dpp v{32+k}, {src}, {src} {s} {DP}")
    a("v_max3_f32 v36, v32, v33, v34\nv_max_f32 v36, v36, v35")
    rowreduce("v_max_f32","v36",("row_mirror",))
    xreduce("v_max_f32","v36","v37")
    for k in range(4): a(f"v_sub_f32 v{SM+4*k}, v{SM+4*k}, v36\nv_sub_f32 v{32+k}, v{32+k}, v36")
    for k in range(4): a(f"v_exp_f32 v{SM+4*k}, v{SM+4*k}\nv_exp_f32 v{32+k}, v{32+k}")
    a(f"v_mul_f32 v38, v{SM}, v{SM+1}\nv_fmac_f32 v38, v{SM+4}, v{SM+5}\nv_fmac_f32 v38, v{SM+8}, v{SM+9}\nv_fmac_f32 v38, v{SM+12}, v{SM+13}")
    for k in range(4): a(f"v_cvt_pk_bf16_f32 v{32+k}, v{32+k}, v{32+k}")
    rowreduce("v_add_f32","v38")
    xreduce("v_add_f32","v38","v37")
    a("v_rcp_f32 v38, v38")
    a("ds_write_b128 v23, v[32:35]\nds_write_b32 v23, v38 offset:1024")
    sig("STOK")
    stamp(5)
    a(f"s_cmp_lt_u32 {sJ}, 5\ns_cbranch_scc1 L_w7e\ns_cmp_lt_u32 {sV}, 10\ns_cbranch_scc0 L_fin")
    a("L_ffn2:")
    trcore("v8", vTmp)
    a(f"s_and_b32 s52, {sW}, 1\ns_lshl_b32 s55, s52, 6\nv_lshrrev_b32 v6, 5, {vLane}\nv_lshl_add_u32 v8, v6, 11, v8\nv_xor_b32 v8, s55, v8\nv_add_u32 {vT6[0]}, {R2}, v8\nv_xor_b32 {vT6[1]}, 32, {vT6[0]}")
    a(f"v_lshlrev_b32 {vVec}, 4, {vGl}\nv_add_u32 {vVec}, {VEC1A}, {vVec}")
    sdiv("s54",sX,gn,GPER,2560,"s55")
    a(f"s_lshl_b32 s55, {sV}, 8\ns_add_u32 s54, s54, s55\ns_lshl_b32 s55, s52, 7\ns_add_u32 s54, s54, s55\ns_add_u32 s54, s54, {YP}\ns_movk_i32 {t6}, {234+CB}")
    wait_flag(*(("GOK",1) if P["lateG"]==3 else ("PUBC",2)))
    a("s_branch L_s6go")
    a("L_w7e:")
    wait_flag("PUBE",3)
    a("L_ge:")
    stamp(6)
    gather(2,"v24",["s52","s53"],"GE", tag="s[48:49]")
    stamp(7)
    vec2_write("v26","V2B")
    if P["ge2"]: a(f"s_cmp_eq_u32 {sW}, 6\ns_cbranch_scc0 L_fin\ns_cmp_lt_u32 s2, 20\ns_cbranch_scc1 L_fin2")
    a("s_branch L_fin")

    a('; ======== W5: sentinel fill, fill flags, statistics store, weighted combine of the 32 key-group partials')
    a("L_w5:")
    a(f"v_lshlrev_b32 v6, 4, {vLane}\nv_mov_b32 v8, -1\nv_mov_b32 v9, -1\nv_mov_b32 v10, -1\nv_mov_b32 v11, -1")
    a(f"s_mul_i32 s52, {sB}, {RS}\ns_add_u32 s52, s52, {REC}\ns_add_u32 s53, s52, {RP}")
    if P["hintA"] or P["hintC"]: a(f"s_lshl_b32 s54, {sB}, 8\ns_add_u32 s54, s54, {HT-60*64}\nv_mov_b32 v7, s54\nv_mov_b32 v23, s53\nv_cmp_gt_u32 vcc, 60, {vLane}\nv_lshlrev_b32 v22, 6, {vLane}\nv_cndmask_b32 v7, v7, v23, vcc\nv_add_u32 v7, v7, v22")
    else: a(f"v_lshlrev_b32 v22, 6, {vLane}\nv_add_u32 v7, s53, v22")
    pm=((1<<64)-1)
    if P["gC"]: pm&=~((1<<36)-1)
    if P["gA"]: pm&=~(0xffff<<48)
    if not (P["hintA"] or P["hintC"]): pm&=~(0xf<<60)
    pm2=0
    if P.get("latetouch"): pm2=pm&((1<<48)-1); pm&=~pm2
    if pm: a(f"s_mov_b32 exec_lo, {pm&0xffffffff}\ns_mov_b32 exec_hi, {pm>>32}\nbuffer_load_dword v23, v7, {WS}, 0 offen sc1\ns_mov_b64 exec, -1")
    sdiv("s57",sG,gn,GPER,2560,"s55")
    a(f"s_lshl_b32 s55, {sJ}, 9\ns_add_u32 s57, s57, s55\ns_add_u32 s57, s57, {OP}\ns_mov_b32 s58, -1\ns_mov_b32 s59, 0\ns_cmp_lt_u32 {sJ}, 5\ns_cbranch_scc1 L_g3")
    sdiv("s57",sX,gn,GPER,2560,"s55")
    a(f"s_lshl_b32 s55, {sV}, 8\ns_add_u32 s57, s57, s55\ns_add_u32 s57, s57, {YP}\ns_mov_b32 s58, 0xffff\ns_cmp_lt_u32 {sV}, 10\ns_cselect_b32 s57, s57, {WSSIZE}\nL_g3:")
    def gclear():
        a(f"s_mov_b64 exec, s[58:59]\nbuffer_store_dwordx4 v[8:11], v6, {WS}, s57 offen sc1\ns_mov_b64 exec, -1")
    if not P.get("lateG"): gclear()
    a(f"s_setprio {P['prio'][1]}")
    MK=12
    a(f"v_and_b32 v7, 1, {vN}\nv_lshlrev_b32 v7, 4, v7\nv_mov_b32 v16, 0xffff\nv_lshlrev_b32 v7, v7, v16\nv_lshrrev_b32 v16, 1, {vN}")
    for k in range(3): a(f"v_cmp_eq_u32 vcc, {2*k}, v16\nv_cndmask_b32 v{MK+k}, 0, v7, vcc")
    for k in range(8): a(f"v_mov_b32 v{43+4*k}, 0")
    a(f"v_bfe_u32 v7, {vN}, 2, 1\nv_mad_u32_u24 v7, v7, 3, {vGl}\nv_lshrrev_b32 v17, 3, {vN}\nv_lshlrev_b32 v18, 6, v17\nv_lshl_add_u32 v18, v7, 2, v18")
    a(f"v_lshlrev_b32 v19, 3, v17\nv_lshl_add_u32 v19, v7, 2, v19\nv_add_u32 v19, 112, v19\nv_cmp_gt_u32 vcc, 4, v7\nv_cndmask_b32 v18, v19, v18, vcc")
    a(f"v_and_b32 v7, 3, {vN}\nv_lshl_add_u32 v18, v7, 4, v18\nv_add_u32 v18, {VEC1B}, v18")
    a(f"s_movk_i32 s55, {FLG}\nv_lshlrev_b32 v16, 7, {vLane}")
    tag_finish()
    if pm2:
        wait_flag("CNT",P["latetouch"])
        assert pm2==(1<<48)-1 and not P["ge2"] and not P["hintA"]
        a(f"s_cmp_lt_u32 {sV}, 10\ns_cselect_b32 exec_hi, 0xfff3, 3\n"+("s_or_b32 exec_hi, exec_hi, 0x0fff0000\n" if P["gA"] else "")+f"buffer_load_dword v23, v22, {WS}, s53 offen sc1\ns_mov_b64 exec, -1")
    if P.get("lateG")==1: gclear()
    a("s_waitcnt vmcnt(0)")
    if P.get("lateG")==2: gclear()
    cf="sc1" if P["gC"] else ""
    a(f"buffer_store_dwordx4 v[8:11], v6, {WS}, s53 offen {cf}\nbuffer_store_dwordx4 v[8:11], v6, {WS}, s53 offen offset:1024 {cf}\ns_mov_b64 exec, 0xff\nbuffer_store_dwordx4 v[8:11], v6, {WS}, s53 offen offset:2048 {cf}\ns_mov_b64 exec, -1")
    stamp(1)
    wait_flag("CNT",P["thrF"])
    l,ok=loop_head("FL")
    a(f"s_mov_b64 exec, 0xff\nbuffer_load_dwordx2 v[24:25], v16, {WS}, s55 offen sc1\ns_waitcnt vmcnt(0)\nv_cmp_ne_u64 vcc, s[32:33], v[24:25]\ns_mov_b64 exec, -1\ns_cbranch_vccnz {l}\n{ok}:")
    sig("CLR")
    stamp(2)
    if P.get("retouch"):
        wait_flag(*P["retouch"])
        a(f"s_mov_b32 exec_hi, 0x0000ffff\nbuffer_load_dword v23, v22, {WS}, s53 offen sc1\ns_mov_b64 exec, -1")
    sdiv("s52",sJ,4,J2,J1,"s55")
    a(f"s_mul_i32 s55, {sG}, {HS}\ns_add_u32 s52, s52, s55\ns_add_u32 s52, s52, {CLB}")
    a(f"s_add_u32 s53, s52, 4096\nv_add_u32 v20, {XB}, v6\ns_and_b32 s56, s32, 0xbfffbfff")
    a(f"v_lshlrev_b32 v7, 9, {vGl}\nv_lshl_add_u32 v7, {vN}, 3, v7\nv_add_u32 v7, {MLB}, v7\nv_lshrrev_b32 v17, 2, {vLane}\nv_mul_u32_u24 v17, {4//sn*SPER}, v17\nv_and_b32 v19, 3, {vLane}\nv_lshl_add_u32 v17, v19, 4, v17")
    a(f"s_lshr_b32 s60, {sB}, 6"); sdiv("s54","s60",sn,SPER,4096,"s55")
    a(f"s_and_b32 s55, {sB}, 63\ns_lshl_b32 s55, s55, 6\ns_add_u32 s54, s54, s55\ns_add_u32 s54, s54, {ST}\nv_mov_b32 v26, s32\nv_mov_b32 v27, s33")
    if P.get("gpre"):
        wait_flag(*P["gpre"]); gclear()
    wait_flag(*P["sttrig"])
    if P.get("st2"): wait_flag(*P["st2"])
    a(f"s_mov_b32 exec_hi, 0\nds_read_b64 v[24:25], v7\nds_read_b32 v28, v7 offset:132\nds_read_b32 v29, v7 offset:260\nds_read_b32 v30, v7 offset:388\ns_waitcnt lgkmcnt(0)")
    a(f"v_add_f32 v25, v25, v28\nv_add_f32 v29, v29, v30\nv_add_f32 v25, v25, v29\nbuffer_store_dwordx4 v[24:27], v17, {WS}, s54 offen sc1")
    a("s_mov_b64 exec, -1")
    if P["lateG"]==3 and not P.get("gpre"):
        if P.get("gtrig"): wait_flag(*P["gtrig"])
        gclear()
    if P["lateG"]==3:
        a("s_waitcnt vmcnt(0)"); sig("GOK")
    SAa=40; SD=72; SX=104
    def clloads():
        if P.get("dhalf"):
            a("s_mov_b32 exec_lo, 0x00ff00ff\ns_mov_b32 exec_hi, 0x00ff00ff")
            for s in range(8): a(f"buffer_load_dwordx4 {vr(SD+4*s,4)}, v6, {WS}, s{52+(s>>2)} offen offset:{1024*(s&3)} sc1")
            a("s_mov_b64 exec, -1")
            return
        for s in range(8): a(f"buffer_load_dwordx4 {vr(SD+4*s,4)}, v6, {WS}, s{52+(s>>2)} offen offset:{1024*(s&3)} sc1")
    if P.get("dhalf"):
        for s in range(8): a(f"v_mov_b64 {vr(SD+4*s,2)}, 0\nv_mov_b32 v{SD+4*s+2}, 0\nv_mov_b32 v{SD+4*s+3}, s56")
    if P.get("probe"):
        nr,skip=P["probe"]
        R_=list(range(4,28))+list(range(44,52))
        a("s_add_u32 s96, s28, s52\ns_addc_u32 s97, s29, 0\ns_mov_b32 s57, s56")
        wait_flag("DST",4)
        for r_ in range(skip): a("s_load_dword s4, s[96:97], 252 glc\ns_waitcnt lgkmcnt(0)")
        a(f"s_movk_i32 s98, {nr}\nL_pr:")
        NPB=P.get("npb",32)
        for p_ in range(NPB): a(f"s_load_dword s{R_[p_]}, s[96:97], {256*(p_*32//NPB)+252} glc")
        a("s_waitcnt lgkmcnt(0)")
        pr=[f"s[{R_[2*i]}:{R_[2*i]+1}]" for i in range(16)]
        a(f"s_and_b64 s[58:59], {pr[0]}, {pr[1]}\ns_or_b64 s[60:61], {pr[0]}, {pr[1]}")
        for i in range(2,NPB//2): a(f"s_and_b64 s[58:59], s[58:59], {pr[i]}\ns_or_b64 s[60:61], s[60:61], {pr[i]}")
        a("s_xor_b64 s[58:59], s[58:59], s[56:57]\ns_xor_b64 s[60:61], s[60:61], s[56:57]\ns_or_b64 s[58:59], s[58:59], s[60:61]\ns_cbranch_scc0 L_cdgo")
        a("s_sub_u32 s98, s98, 1\ns_cmp_lg_u32 s98, 0\ns_cbranch_scc1 L_pr")
    wait_flag("PUBD",4)
    for w_ in P.get("dtrig",()): wait_flag(*w_)
    a("L_cdgo:")
    stamp(5)
    clloads()
    sig("CDI")
    l=a.lab("SW")
    spin(l); a(f"ds_read_b32 {vTmp}, {vL4} offset:{F['STOK']}\nds_read_b128 v[32:35], v20\nds_read_b32 v38, v20 offset:1024\ns_waitcnt lgkmcnt(0)\nv_cmp_gt_u32 vcc, 1, {vTmp}\ns_cbranch_vccnz {l}")
    stamp(4)
    for s in range(8):
        for r in range(3): a(f"v_and_b32_dpp v{SAa+4*s+r}, v{32+(s>>1)}, v{MK+r} row_newbcast:{8*(s&1)} {DP}")
    a("v_mov_b32 v39, v38\ns_branch L_cdm")
    l,ok=loop_head("CD")
    clloads()
    a("L_cdm:")
    for s in range(8):
        a(f"s_waitcnt vmcnt({7-s})\nv_mfma_f32_16x16x32_bf16 {vr(SX,4)}, {vr(SAa+4*s,4)}, {vr(SD+4*s,4)}, {vr(SX,4) if s else 0}")
    for s in range(8): a(f"v_cmpx_eq_u32 vcc, s56, v{SD+4*s+3}")
    a(f"s_cmp_eq_u64 exec, -1\ns_mov_b64 exec, -1\ns_cbranch_scc0 {l}\n{ok}:")
    stamp(6)
    a(f"s_mov_b32 exec_hi, 0xffff\nv_pk_mul_f32 {vr(SX,2)}, {vr(SX,2)}, v[38:39]\nv_cvt_pk_bf16_f32 v{SX}, v{SX}, v{SX+1}")
    a(f"ds_write_b32 v18, v{SX}\ns_mov_b64 exec, -1")
    sig("V1B")
    a("s_branch L_fin")

    a("L_w6:")
    a(f"v_lshlrev_b32 v6, 2, {vLane}\nv_add_u32 v6, {XB}, v6")
    a(f"s_mul_i32 s52, {sJ}, 160\ns_min_u32 s53, {sV}, 9\ns_lshl_b32 s53, s53, 7\ns_sub_u32 s53, s53, 256\nv_mov_b32 v16, s52\nv_mov_b32 v13, s53\nv_cmp_gt_u32 vcc, 32, {vLane}\nv_cndmask_b32 v16, v13, v16, vcc\nv_lshl_add_u32 v16, {vLane}, 3, v16\nv_add_u32 v16, {XB}, v16")
    a(f"v_bfe_u32 v7, {vLane}, 3, 2\nv_lshlrev_b32 v27, 6, v7\nv_and_b32 v7, 3, {vLane}\nv_lshl_add_u32 v27, v7, 4, v27\nv_bfe_u32 v7, {vLane}, 2, 1\nv_lshl_add_u32 v27, v7, 3, v27\nv_lshrrev_b32 v7, 5, {vLane}\nv_mul_u32_u24 v7, {VEC1F-VEC1A}, v7\nv_add_u32 v27, v27, v7\nv_add_u32 v27, {VEC1A}, v27")
    a("s_mov_b32 s54, 0xffff0000")
    wait_flag("CNT",0)
    for k in range(5): a(f"ds_read_b32 v{8+k}, v6 offset:{256*k}")
    a("ds_read_b64 v[14:15], v16\ns_waitcnt lgkmcnt(0)")
    stamp(1)
    for k in range(5): a(f"v_lshlrev_b32 v{32+2*k}, 16, v{8+k}\nv_and_b32 v{33+2*k}, s54, v{8+k}")
    a("v_pk_add_f32 v[44:45], v[32:33], v[34:35]\nv_pk_add_f32 v[46:47], v[36:37], v[38:39]\nv_pk_add_f32 v[44:45], v[44:45], v[40:41]\nv_pk_add_f32 v[44:45], v[44:45], v[46:47]\nv_add_f32 v44, v44, v45")
    rowreduce("v_add_f32","v44"); xreduce("v_add_f32","v44","v45")
    a(f"v_mul_f32 v44, {hex(f2u(1/640))}, v44")
    for k in range(10): a(f"v_sub_f32 v{32+k}, v{32+k}, v44")
    a("v_mul_f32 v46, v32, v32")
    for k in range(1,10): a(f"v_fmac_f32 v46, v{32+k}, v{32+k}")
    rowreduce("v_add_f32","v46"); xreduce("v_add_f32","v46","v45")
    def rbf(v): a(f"v_cvt_pk_bf16_f32 {v}, {v}, {v}\nv_and_b32 {v}, s54, {v}")
    a(f"v_mul_f32 v46, {hex(f2u(1/640))}, v46"); rbf("v46"); rbf("v44")
    a(f"v_add_f32 v46, {hex(f2u(1e-5))}, v46"); rbf("v46")
    a("v_sqrt_f32 v46, v46"); rbf("v46")
    a("v_rcp_f32 v46, v46")
    a("v_lshlrev_b32 v32, 16, v14\nv_and_b32 v33, s54, v14\nv_lshlrev_b32 v34, 16, v15\nv_and_b32 v35, s54, v15")
    for k in range(4): a(f"v_sub_f32 v{32+k}, v{32+k}, v44")
    a("v_cvt_pk_bf16_f32 v14, v32, v33\nv_cvt_pk_bf16_f32 v15, v34, v35")
    a("v_lshlrev_b32 v32, 16, v14\nv_and_b32 v33, s54, v14\nv_lshlrev_b32 v34, 16, v15\nv_and_b32 v35, s54, v15")
    for k in range(4): a(f"v_mul_f32 v{32+k}, v{32+k}, v46")
    a("v_cvt_pk_bf16_f32 v14, v32, v33\nv_cvt_pk_bf16_f32 v15, v34, v35")
    a("s_mov_b32 exec_lo, 0x000fffff\ns_mov_b32 exec_hi, 0xffff\nds_write_b64 v27, v[14:15]\ns_mov_b64 exec, -1")
    sig("V1A")
    stamp(2)
    tag_finish()
    if P["thrG2"]: a(f"s_movk_i32 s43, {P['thrG2']+CB}\ns_branch L_ga")
    a("L_w6b:\ns_mov_b32 s54, 0xffff0000")
    if P.get("spf6"):
        if P.get("spf6w"): wait_flag(*P["spf6w"])
        sprefetch(*P["spf6"])
        stamp(6)
    if P.get("wb6"):
        a(f"s_cmp_eq_u32 {sY}, 3\ns_cbranch_scc0 L_nwb")
        for fl in P["wb6"]:
            wait_flag(*fl)
            a("buffer_wbl2 sc1\ns_waitcnt vmcnt(0)")
        a("s_branch L_fin\nL_nwb:")
    a(f"s_cmp_lt_u32 s2, 20\ns_cbranch_scc1 L_final")
    if P["ge2"]: a(f"s_mov_b32 s40, 1\ns_cmp_lt_u32 {sJ}, 5\ns_cbranch_scc1 L_ge2")
    a(f"s_cmp_lt_u32 {sV}, 10\ns_cbranch_scc0 L_fin")
    masks()
    srd(44, 20, 3072)
    a(f"v_lshlrev_b32 v8, 7, {vGl}\nv_and_b32 v6, 3, {vN}\nv_lshl_add_u32 v8, v6, 5, v8\nv_lshrrev_b32 v6, 2, {vN}\nv_lshl_add_u32 v8, v6, 3, v8\ns_mul_i32 s52, {sX}, 384")
    a("v_add_u32 v86, s52, v8")
    if not P["latesmall"]: a(f"buffer_load_dwordx2 v[22:23], v86, {SA}, 0 offen")
    gather_setup("v24",8*RS); vec2b_addr("v26")
    a(f"v_lshlrev_b32 v28, 4, {vLane}\ns_mul_i32 s40, {sB}, {RS}\ns_add_u32 s40, s40, {REC+RP}\ns_mov_b32 s48, s32\ns_mov_b32 s49, s33")
    a("s_getreg_b32 s50, hwreg(HW_REG_XCC_ID, 0, 4)\ns_xor_b32 s50, s50, s32")
    trcore("v80", vTmp)
    a(f"v_lshrrev_b32 v6, 5, {vLane}\nv_mul_u32_u24 v6, 3072, v6\nv_add_u32 v80, v80, v6\nv_add_u32 v80, {R3 if FF else R1}, v80")
    for t in range(1,4): a(f"v_xor_b32 v{80+t}, {32*t}, v80")
    a(f"v_lshlrev_b32 v84, 6, {vGl}\nv_lshl_add_u32 v84, {vN}, 4, v84\nv_lshlrev_b32 v85, 4, {vGl}\nv_add_u32 v85, {VEC1F}, v85")
    a(f"ds_read_b128 v[88:91], v85\nds_read_b128 v[92:95], v85 offset:64\nv_mov_b32 v78, s50\nv_mov_b32 v79, s49")
    for u in range(3): a(f"v_mov_b32 v{GD+24+4*u}, 0\nv_mov_b32 v{GD+25+4*u}, 0\nv_mov_b32 v{GD+27+4*u}, s49")
    a(f"s_mul_i32 s52, {sX}, {32*RS}\ns_add_u32 s52, s52, {REC+5*RS+RE}\ns_add_u32 s53, s52, {RS}\ns_add_u32 s51, s53, {RS}\ns_add_u32 s55, s40, {RE-RP}\ns_mov_b32 s43, 0")
    if P["latesmall"]: a(f"buffer_load_dwordx2 v[22:23], v86, {SA}, 0 offen")
    wait_flag("CNT",186 if FF else 222)
    stamp(3)
    def f1reads():
        for t in range(4):
            for h in range(4): a(f"ds_read_b64_tr_b16 {vr(96+8*t+2*h,2)}, v{80+t} offset:{2*h*3072}")
    f1reads()
    l=a.lab("F1")
    a(f"{l}:")
    for t in range(4):
        a(f"v_add_u32 v{80+t}, 1024, v{80+t}\ns_waitcnt lgkmcnt({12-4*t})")
        a(f"v_mfma_f32_16x16x32_bf16 {vr(128+4*t,4)}, {vr(96+8*t,4)}, v[88:91], 0\nv_mfma_f32_16x16x32_bf16 {vr(128+4*t,4)}, {vr(100+8*t,4)}, v[92:95], {vr(128+4*t,4)}")
    f1reads()
    publish4(128, 76, "v84", "s55", mode="plain")
    a(f"s_add_u32 s55, s55, 256\ns_add_u32 s43, s43, 1\ns_cmp_lt_u32 s43, 3\ns_cbranch_scc1 {l}")
    stamp(4)
    a("s_mov_b32 s58, s50\ns_mov_b32 s59, s49\ns_mov_b32 s61, s40")
    gather(3,"v24",["s52","s53","s51"],"GH", xcc="h", tag="s[48:49]")
    stamp(5)
    a("v_lshlrev_b32 v8, 16, v22\nv_and_b32 v9, s54, v22\nv_lshlrev_b32 v10, 16, v23\nv_and_b32 v11, s54, v23")
    c1 = -2*math.sqrt(2/math.pi)*math.log2(math.e)
    a(f"s_mov_b32 s56, {f2u(c1*0.044715)}\nv_mov_b32 v7, {hex(f2u(c1))}")
    for k in range(4): a(f"v_add_f32 v{GX+k}, v{GX+k}, v{8+k}")
    for k in range(4): a(f"v_mul_f32 v{8+k}, v{GX+k}, v{GX+k}")
    for k in range(4): a(f"v_fma_f32 v{8+k}, v{8+k}, s56, v7")
    for k in range(4): a(f"v_mul_f32 v{8+k}, v{8+k}, v{GX+k}")
    for k in range(4): a(f"v_exp_f32 v{8+k}, v{8+k}")
    for k in range(4): a(f"v_add_f32 v{8+k}, 1.0, v{8+k}")
    for k in range(4): a(f"v_rcp_f32 v{8+k}, v{8+k}")
    for k in range(4): a(f"v_mul_f32 v{GX+k}, v{GX+k}, v{8+k}")
    vec2_write("v26","V2B")
    a("s_branch L_ffn2")

    a('; ======== final reducer: workgroups 0..19, 32 output columns each')
    a("L_final:")
    a(f"s_mov_b32 s40, s2")
    a(f"v_and_b32 v6, 7, {vLane}\nv_lshlrev_b32 v8, 3, v6\nv_bfe_u32 v7, {vLane}, 4, 1\nv_lshl_add_u32 v8, v7, 2, v8\nv_lshrrev_b32 v7, 5, {vLane}\nv_lshl_add_u32 v8, v7, 1, v8")
    a(f"s_lshl_b32 s52, s40, 6")
    srd(44,4,1280); srd(48,24,1280)
    if P["latesmall"]: wait_flag("QISS",4)
    a(f"buffer_load_ushort v10, v8, {SA}, s52 offen\nbuffer_load_ushort v11, v8, {SB}, s52 offen")
    a(f"v_lshrrev_b32 v7, 3, {vLane}\nv_mul_u32_u24 v9, 2560, v7\nv_lshrrev_b32 v7, {gn.bit_length()-1}, v7\nv_mul_u32_u24 v7, {GPER-gn*2560}, v7\nv_add_u32 v7, v7, v9\nv_lshl_add_u32 v9, v6, 4, v7")
    a(f"s_lshl_b32 s53, s40, 7\ns_add_u32 s56, s53, {OP}\ns_add_u32 s57, s56, {8//gn*GPER}\ns_add_u32 s58, s57, {8//gn*GPER}\ns_add_u32 s59, s58, {8//gn*GPER}\ns_add_u32 s53, s53, {YP}")
    a("s_waitcnt vmcnt(0)\nv_lshlrev_b32 v10, 16, v10\nv_lshlrev_b32 v11, 16, v11")
    srd(44,26,1280)
    if P["warmout"]: a(f"s_mov_b64 exec, 1\nbuffer_load_ushort v33, v8, {SA}, s52 offen nt\ns_mov_b64 exec, -1")
    def red4(b):
        a(f"v_permlane32_swap_b32 v{b}, v{b+1}\nv_permlane32_swap_b32 v{b+2}, v{b+3}\nv_add_f32 v{b}, v{b}, v{b+1}\nv_add_f32 v{b+2}, v{b+2}, v{b+3}")
        a(f"v_permlane16_swap_b32 v{b}, v{b+2}\nv_add_f32 v{b}, v{b}, v{b+2}\nv_add_f32_dpp v{b}, v{b}, v{b} row_ror:8 {DP}")
    def epoch(skip):
        a(f"s_cmp_eq_u32 s40, 0\ns_cbranch_scc0 {skip}\ns_mov_b64 exec, 0xff\nv_mov_b32 v14, s32\nv_mov_b32 v15, s33\nv_lshlrev_b32 v6, 3, {vLane}\nbuffer_store_dwordx2 v[14:15], v6, {WS}, 0 offen offset:{EPOCH} sc1\ns_mov_b64 exec, -1")
    if P["ge2"]:
        assert P["epochearly"]
        a("s_mov_b32 s60, s52\ns_mov_b32 s61, s53\nL_ge2:")
        gather_setup("v24", RS); vec2b_addr("v26")
        a(f"s_mul_i32 s52, {sG}, {8*RS}\ns_add_u32 s52, s52, {REC+RE}\ns_add_u32 s53, s52, {4*RS}")
    if P["epochearly"]:
        wait_flag("V1B",1)
        epoch("L_nep"); a("L_nep:")
    if P["ge2"]: a("s_branch L_ge\nL_fin2:\ns_mov_b32 s52, s60\ns_mov_b32 s53, s61")
    wait_flag("PUBF",4)
    stamp(9)
    l,ok=loop_head("FS")
    a(f"buffer_load_dwordx4 v[28:31], v9, {WS}, s53 offen sc1")
    for k in range(4): a(f"buffer_load_dwordx4 {vr(12+4*k,4)}, v9, {WS}, s{56+k} offen sc1")
    a(f"""s_waitcnt vmcnt(4)
v_permlane32_swap_b32 v28, v29
v_permlane32_swap_b32 v30, v31
v_add_f32 v28, v28, v29
v_add_f32 v30, v30, v31
s_waitcnt vmcnt(2)
v_pk_add_f32 v[12:13], v[12:13], v[16:17]
v_permlane16_swap_b32 v28, v30
v_add_f32 v28, v28, v30
v_pk_add_f32 v[14:15], v[14:15], v[18:19]
s_waitcnt vmcnt(0)
v_add_f32_dpp v28, v28, v28 row_ror:8 {DP}
v_pk_add_f32 v[20:21], v[20:21], v[24:25]
v_add_f32 v28, v28, v11
v_pk_add_f32 v[22:23], v[22:23], v[26:27]
v_mul_f32 v29, {hex(f2u(-math.log2(math.e)))}, v28
v_pk_add_f32 v[12:13], v[12:13], v[20:21]
v_pk_add_f32 v[14:15], v[14:15], v[22:23]
v_exp_f32 v29, v29
v_permlane32_swap_b32 v12, v13
v_permlane32_swap_b32 v14, v15
v_add_f32 v12, v12, v13
v_add_f32 v14, v14, v15
v_add_f32 v29, 1.0, v29
v_rcp_f32 v29, v29
v_permlane16_swap_b32 v12, v14
v_add_f32 v12, v12, v14
v_mul_f32 v28, v28, v29
v_add_f32_dpp v12, v12, v12 row_ror:8 {DP}
v_cmp_u_f32 vcc, v12, v28
v_fma_f32 v13, v12, v28, v10
s_cbranch_vccnz {l}
{ok}:""")
    a(f"v_cvt_pk_bf16_f32 v13, v13, v13\ns_mov_b32 exec_lo, 0x00ff00ff\ns_mov_b32 exec_hi, 0x00ff00ff\nbuffer_store_short v13, v8, {SA}, s52 offen {P['outf']}")
    stamp(10)
    if not P["epochearly"]: epoch("L_fin")
    if P.get("dbgdelay"):
        a(f"s_memrealtime s[8:9]\ns_waitcnt lgkmcnt(0)\nL_dd:\ns_memrealtime s[10:11]\ns_waitcnt lgkmcnt(0)\ns_sub_u32 s10, s10, s8\ns_cmp_lt_u32 s10, {P['dbgdelay']}\ns_cbranch_scc1 L_dd")
    if P.get("trace"):
        L2=[]
        for x in a.L:
            L2.append(x)
            if x.startswith(("ds_max_u32","ds_write_b32")) and x.endswith(f"v10 offset:{F['CNT']}"):
                L2+=["s_memrealtime s[62:63]","v_readfirstlane_b32 s97, v10","s_waitcnt lgkmcnt(0)","s_lshl_b32 s62, s62, 12","s_or_b32 s62, s62, s97","s_and_b32 s98, s96, 63","s_cmp_lt_u32 s96, 64","s_cselect_b64 vcc, -1, 0","v_mov_b32 v32, s62","v_cmp_eq_u32 s[62:63], s98, v0","s_add_u32 s96, s96, 1","s_and_b64 vcc, vcc, s[62:63]","v_cndmask_b32 v30, v30, v32, vcc","v_cndmask_b32 v31, v31, v32, s[62:63]"]
            if x=="L_ld2:": L2+=["s_mov_b32 s96, 0","v_mov_b32 v30, 0","v_mov_b32 v31, 0"]
        a.L=L2
    if P.get("allsc1"): a.L=[(x+" sc1" if (x.startswith("buffer_store") and "sc1" not in x) else x) for x in a.L]
    if P.get("nostores"):
        L2=[]; n_=0
        for x in a.L:
            if x.startswith("buffer_store") and WS in x:
                if n_ in P.get("keep",()): L2.append(x)
                n_+=1
            else: L2.append(x)
        a.L=L2
    a("L_fin:")
    if diag:
        stamp(15)
        if P.get("mind"): a(f"s_cmp_eq_u32 {sW}, 4\ns_cbranch_scc1 L_dump\ns_cmp_eq_u32 {sW}, 6\ns_cbranch_scc0 L_end\nL_dump:")
        a("s_load_dwordx2 s[28:29], s[0:1], 104")
        a(f"s_waitcnt lgkmcnt(0) vmcnt(0)\ns_mov_b32 s30, {WSSIZE}\ns_mov_b32 s31, 0x20000\ns_mov_b64 exec, 1")
        if P["wsb"]: a(f"s_add_u32 s28, s28, {P['wsb']}\ns_addc_u32 s29, s29, 0")
        for i in range(16): a(f"v_mov_b32 v{8+i}, s{64+2*i}")
        a(f"v_mov_b32 v24, {sBud}\nv_mov_b32 v6, 0\ns_lshl_b32 s52, {sB}, 3\ns_add_u32 s52, s52, {sW}\ns_lshl_b32 s52, s52, 7\ns_add_u32 s52, s52, {DBG}")
        dfl=P.get("dfl","")
        for i in range(4): a(f"buffer_store_dwordx4 {vr(8+4*i,4)}, v6, {WS}, s52 offen offset:{16*i} {dfl}")
        a(f"buffer_store_dword v24, v6, {WS}, s52 offen offset:64 {dfl}")
        if P.get("trace"):
            a(f"s_cmp_eq_u32 {sW}, 4\ns_cbranch_scc0 L_ntr\ns_mov_b64 exec, -1\nv_lshlrev_b32 v6, 2, v0\ns_lshl_b32 s52, {sB}, 9\ns_add_u32 s52, s52, {DBG+0x40000}\nbuffer_store_dword v30, v6, {WS}, s52 offen\nbuffer_store_dword v31, v6, {WS}, s52 offen offset:256\nL_ntr:")
    a("s_endpgm")
    a("; ======== out of line: poll give-up exits, write-through variants for groups that span dies")
    for f_ in far: a(f_)
    a("L_end:\ns_endpgm")
    body = a.finish(verbose=P.get("verbose",False))
    hdr = open("cdna_kernels/"+NAME+".s.ref").read().split("; Override launch")[0] if P.get("hdr",True) else ""
    return hdr + f"""; Single persistent launch: 256 workgroups (one per CU) x 8 waves. Written with my own generator script.
; Math (absorbed form of the reference, exact reordering): xn = LN(x); q = xn.Wq; qa[h,c] = q[h,:].Wuk[c,h,:] * D^-0.5 * log2e;
;   S = qa.ckv^T; p = 2^(S - ceil(block max)) per 32-key block, blocks rescaled by exact powers of two against the true row max;
;   cl = (p.ckv)/sum p; ctx = cl.Wuv; s = ctx.Wo; out = x + s * silu(gelu(xn.W1 + b1).W2 + b2).
; Workgroup b: x = b&7, y = b>>3, group g = 4x + (y>>3) (head g, keys 256g..256g+255), j = y&7 (row / column slice).
; Waves (role = hardware wave ^ 4): 0-3 matrix stages, 4 LDS-DMA stream of all weights and c_kv tiles, 5 sentinel fill / statistics
;   store / weighted combine, 6 layernorm / FFN / final reduce, 7 gathers and softmax statistics. Waves meet through LDS counters.
; Hand-offs between workgroups go through d_ws. Every handed-off word is validated by the reader: either it carries this launch's tag
;   (tag = epoch word found in d_ws on entry + constant; the tag becomes the next epoch), or its slot was filled with a NaN sentinel in
;   this launch before anyone may write or read it. Write-through stores are used across groups. Inside a group plain stores are used
;   only while they are known or re-published: tags carry the writer's XCC id, and a group found (or suspected) to span dies
;   switches to write-through stores, so any placement is correct. Every global poll is bounded.
; @launch grid=(256,1,1) block=(512,1,1) lds={LDS_BYTES}
.amdgcn_target "amdgcn-amd-amdhsa--gfx950"
.text
.globl {NAME}_kernel
.p2align 8
.type {NAME}_kernel,@function
{NAME}_kernel:
{body}
.section .rodata,"a"
.p2align 6
.amdhsa_kernel {NAME}_kernel
  .amdhsa_next_free_vgpr 220
  .amdhsa_next_free_sgpr 100
  .amdhsa_accum_offset 220
  .amdhsa_group_segment_fixed_size 0
  .amdhsa_kernarg_size 112
  .amdhsa_user_sgpr_count 2
  .amdhsa_user_sgpr_kernarg_segment_ptr 1
  .amdhsa_system_sgpr_workgroup_id_x 1
.end_amdhsa_kernel
"""
if __name__=="__main__":
    kw={}
    out="cdna_kernels/"+NAME+".s"
    for arg in sys.argv[1:]:
        k,v=arg.split("=",1)
        if k=="out": out=v
        else:
            try: kw[k]=eval(v)
            except Exception: kw[k]=v
    open(out,"w").write(gen(verbose=True, **kw))
    print("wrote",out,"LDS",LDS_BYTES)
```

```python
import sys, math, struct
from asmlib import Asm
NAME = "recurrent_scan__compressed_kv_cla__dense_activation_gelu__decode"
def f2u(x): return struct.unpack("<I", struct.pack("<f", x))[0]

EPOCH=0; FLG=0x400; HT=0; G=0
QA=0x8000; ST=0x100000; OP=0x200000
REC=0x400000; RP=8192; RM=RP+2048; RE=RM+256; RQ=RE+768; RS=RQ+768; DBG=0x780000; CLA=0x800000; QG=0xA00000; WSSIZE=0xC00000
assert REC+256*RS<=DBG
R1=0; R2=49152; R3=R2+51200; SCR=R3+36864
XB=SCR; VEC1A=XB+4096; VEC1F=VEC1A+192; VEC1B=VEC1F+128; VEC2A=VEC1B+192; VEC2B=VEC2A+384; MLB=VEC2B+384
FLAGS=(MLB+2048+255)//256*256
FN = ["CNT","RDB","V1A","V2A","CLR","X0","X1","V1B","V2B","S4M","RDUK","RDA","PUBA","PUBC","PUBD","PUBE","PUBF","PUBB","QISS","DST","CDI","STOK","GISS","S4K","H0","S3K","STR","GOK"]
F = {n:256*i for i,n in enumerate(FN)}
LDS_BYTES = FLAGS+256*len(FN)

Q_=('QISS',4); M_=('S4M',4); K_=('S4K',4); D_=('DST',4); C_=('CDI',1); V_=('V1B',1); S_=('S3K',4)
DEF = dict(sched=[(0,Q_,18),(36,M_,12),(48,K_,24),(66,C_,24)], holdA=21, gA=False, ghtrig=M_, s6n=0, rot=0, kmap=0, lc=None, lq=(2,32768), ls=(1,32768), lg=(4,32768), tlb=False, latesmall=False, warmout=False, mshare=False, psplit=(8,0), ge2=False, sttrig=('PUBC',2), lateG=3, s1pipe=True, holdP=0, gateA=0, wb=None, outf='', blate=True, prio=(0,2,3), epochearly=True, latetouch=24, gC=False, fsched=None, T=21, TA=30, TL=24, thrG=54, pauseQ=True, ntA='nt', ntB='nt', nt="nt", diag=False, wsb=0, thrF=30, clrstep=8, gate=True, n1=18, n2=66, thrG2=0, incC=False, mfirst=True, hintA=False, hintC=False, holdG=False, n0=0, ackA=False, ackC=False, s4late=True, ffnfirst=True, fg=(24,84), dtrig=[('STOK',1)], thrQ=144, adual=True,  local=True, stattrig="DST", pref='s', budget=400000, safe=False)

def gen(**kw):
    P = dict(DEF); P.update(kw)
    qn,QPER=P["lq"]; sn,SPER=P["ls"]; gn,GPER=P["lg"]
    assert qn in (1,2,3,6) and sn in (1,2,4) and gn in (1,2,4,8)
    qoff=lambda u: (u//qn)*QPER+(u%qn)*2048
    soff_=lambda t: (t//sn)*SPER+(t%sn)*4096
    def sdiv(dst, src, n, per, unit, tmp):
        if n==1: a(f"s_mul_i32 {dst}, {src}, {per}"); return
        if n in (3,6): a(f"s_mul_i32 {tmp}, {src}, 43\ns_lshr_b32 {tmp}, {tmp}, {7 if n==3 else 8}")
        else: a(f"s_lshr_b32 {tmp}, {src}, {n.bit_length()-1}")
        a(f"s_mul_i32 {tmp}, {tmp}, {per-n*unit}\ns_mul_i32 {dst}, {src}, {unit}\ns_add_u32 {dst}, {dst}, {tmp}")
    YP=OP+(32//gn)*GPER
    CLB,HS,J1,J2 = (CLA,)+tuple(P["lc"]) if P["lc"] else (REC,8*RS,RS,4*RS)
    T=P["T"]; TL=P["TL"]; NT=P["nt"]; diag=P["diag"]
    a = Asm()
    far=[]
    sW,sX,sY,sG,sJ,sB,sV = "s34","s35","s36","s37","s38","s39","s41"
    sBud="s42"; WS="s[28:31]"; SA="s[44:47]"; SB="s[48:51]"
    nst=[0]
    def stamp(i):
        if diag: a(f"s_memrealtime s[{64+2*i}:{65+2*i}]")
    def srd(base, ptr, size):
        a(f"s_mov_b32 s{base}, s{ptr}\ns_mov_b32 s{base+1}, s{ptr+1}\ns_mov_b32 s{base+2}, {size}\ns_mov_b32 s{base+3}, 0x20000")
    vLane="v0"; vL4="v1"; vOne="v2"; vTmp="v3"; vN="v4"; vGl="v5"
    CB=64
    def spin(l):
        a(f"{l}:")
        if P["safe"]: a("s_sub_u32 s99, s99, 1\ns_cbranch_scc1 L_fin")
        if P.get("slp") is not None and l.startswith("WF"): a(f"s_sleep {P['slp']}")
    def wait_flag(name, thr):
        if name=="CNT" and isinstance(thr,int): thr+=CB
        l=a.lab("WF")
        spin(l)
        a(f"ds_read_b32 {vTmp}, {vL4} offset:{F[name]}\ns_waitcnt lgkmcnt(0)\nv_cmp_gt_u32 vcc, {thr}, {vTmp}\ns_cbranch_vccnz {l}")
    def sig(name, v=vOne):
        a(f"ds_add_u32 {vL4}, {v} offset:{F[name]}")
    def loop_head(base, sigs=()):
        l=a.lab(base); g=a.lab("GU"); ok=a.lab("OK")
        a(f"{l}:\ns_sub_u32 {sBud}, {sBud}, 1\ns_cbranch_scc1 {g}")
        far.append(f"{g}:\ns_mov_b32 {sBud}, 0\ns_mov_b64 exec, -1\n"+"".join(f"ds_add_u32 {vL4}, {vOne} offset:{F[n]}\n" for n in sigs)+f"s_nop 7\ns_branch {ok}")
        return l, ok
    def vr(b,n): return f"v[{b}:{b+n-1}]"
    def tag_finish():
        a("s_waitcnt lgkmcnt(0)\ns_add_u32 s32, s32, 0x7f4a7c10\ns_addc_u32 s33, s33, 0x9e3779b9\ns_or_b32 s32, s32, 15")
    def hint_wait(off, base, tp):
        l=a.lab("HW"); ok=a.lab("HK")
        r=lambda i: f"s[{base+2*i}:{base+2*i+1}]"
        a(f"{l}:\ns_load_dwordx8 s[{base}:{base+7}], s[28:29], {off}\ns_add_u32 {off}, {off}, 64\ns_waitcnt lgkmcnt(0)")
        a("\n".join(f"s_xor_b64 {r(i)}, {r(i)}, {tp}" for i in range(4)))
        a(f"s_or_b64 {r(0)}, {r(0)}, {r(1)}\ns_or_b64 {r(2)}, {r(2)}, {r(3)}\ns_or_b64 {r(0)}, {r(0)}, {r(2)}\ns_cbranch_scc0 {ok}")
        a(f"s_and_b32 s{base}, {off}, 0x3c0\ns_cbranch_scc1 {l}\n{ok}:")
    def ghint(pair, stride, base, test):
        l=a.lab("GW"); ok=a.lab("GK")
        r=lambda i: f"s[{base+2*i}:{base+2*i+1}]"
        a(f"s_movk_i32 s98, 200\n{l}:")
        for k in range(8): a(f"s_load_dword s{base+k}, {pair}, {k*stride} glc")
        a(f"s_sub_u32 s98, s98, 1\ns_cbranch_scc1 {ok}\ns_waitcnt lgkmcnt(0)")
        if test=="sentinel":
            a("\n".join(f"s_max_u32 s{base}, s{base}, s{base+k}" for k in range(1,8))+f"\ns_cmp_eq_u32 s{base}, -1\ns_cbranch_scc1 {l}")
        else:
            a("\n".join(f"s_xor_b64 {r(i)}, {r(i)}, {test}" for i in range(4)))
            a(f"s_or_b64 {r(0)}, {r(0)}, {r(1)}\ns_or_b64 {r(2)}, {r(2)}, {r(3)}\ns_or_b64 {r(0)}, {r(0)}, {r(2)}\ns_cbranch_scc1 {l}")
        a(f"{ok}:\ns_waitcnt lgkmcnt(0)")
    def sprefetch(end_o, kb_o, end_f, kb_f):
        nf=a.lab("PN"); dn=a.lab("PD")
        a(f"s_cmp_lt_u32 {sJ}, 5\ns_cbranch_scc0 {nf}")
        for lab,ptr,base,rows_kb,sec,end,kb in ((None,14,f"s_mul_i32 s96, {sG}, 245760\ns_lshl_b32 s97, {sJ}, 8",4,4,end_o,kb_o),(nf,22,f"s_mul_i32 s96, {sX}, 245760\ns_lshl_b32 s97, {sV}, 7",8,2,end_f,kb_f)):
            if lab: a(f"{lab}:\ns_cmp_lt_u32 {sV}, 10\ns_cbranch_scc0 {dn}")
            if kb:
                assert kb%3==0 and 0<=end-kb and end*rows_kb<=192
                l=a.lab("PL"); rpi=12//sec
                a(f"{base}\ns_add_u32 s96, s96, s97\ns_add_u32 s96, s96, {(end-kb)*rows_kb*1280}\ns_add_u32 s96, s96, s{ptr}\ns_addc_u32 s97, s{ptr+1}, 0\ns_movk_i32 s98, {kb*rows_kb//rpi}\n{l}:")
                for r_ in range(rpi):
                    for c_ in range(sec): a(f"s_load_dword s43, s[96:97], {r_*1280+c_*64}")
                a(f"s_add_u32 s96, s96, {rpi*1280}\ns_addc_u32 s97, s97, 0\ns_sub_u32 s98, s98, 1\ns_cmp_lg_u32 s98, 0\ns_cbranch_scc1 {l}")
            if not lab: a(f"s_branch {dn}")
        a(f"{dn}:\ns_waitcnt lgkmcnt(0)")
    def xreduce(op, v, t):
        a(f"v_mov_b32 {t}, {v}\nv_permlane16_swap_b32 {v}, {t}\n{op} {v}, {v}, {t}")
        a(f"v_mov_b32 {t}, {v}\nv_permlane32_swap_b32 {v}, {t}\n{op} {v}, {v}, {t}")
    DP="row_mask:0xf bank_mask:0xf"
    def rowreduce(op, v, steps=("quad_perm:[1,0,3,2]","quad_perm:[2,3,0,1]","row_half_mirror","row_mirror")):
        for s in steps: a(f"{op}_dpp {v}, {v}, {v} {s} {DP}")

    vW,vK,vF,vO,vC,vT,vA0,vA1,vA2,vP,vTR = "v6","v7","v8","v9","v10","v11","v12","v13","v14","v15","v16"
    CS=P["clrstep"]
    def ids():
        a(f"s_and_b32 {sX}, s2, 7\ns_lshr_b32 {sY}, s2, 3\ns_lshl_b32 {sB}, {sX}, 5\ns_or_b32 {sB}, {sB}, {sY}\ns_lshr_b32 {sG}, {sB}, 3\ns_and_b32 {sJ}, {sY}, 7")
    def ids2():
        if diag:
            for i in range(1,16):
                if i not in (8,9) : a(f"s_mov_b32 s{64+2*i}, 0")
        if P["safe"]: a("s_mov_b32 s99, 2000000")
        a(f"s_and_b32 {sV}, {sG}, 3\ns_lshl2_add_u32 {sV}, {sJ}, {sV}\ns_sub_u32 {sV}, {sV}, 20")
        a(f"v_lshlrev_b32 {vL4}, 2, {vLane}\nv_add_u32 {vL4}, {FLAGS}, {vL4}")
    if P.get("skewinj"):
        a(f"s_and_b32 s52, s2, 6\ns_cmp_eq_u32 s52, 4\ns_cbranch_scc0 L_nsk\ns_sleep {P['skewinj']}\nL_nsk:")
    a("s_load_dwordx16 s[4:19], s[0:1], 0")
    stamp(0)
    a(f"v_readfirstlane_b32 {sW}, v0\ns_cmp_ge_u32 s2, 256\ns_cbranch_scc1 L_end")
    if P["pref"]=="v":
        a(f"s_getpc_b64 s[52:53]\nL_pc:\nv_lshlrev_b32 v1, 7, v0\nv_subrev_u32 v1, 8192, v1\nv_cmp_gt_u32 vcc, L_end-L_pc, v1\ns_and_saveexec_b64 s[54:55], vcc\ns_cbranch_execz L_np\nglobal_load_dword v207, v1, s[52:53]\nL_np:\ns_mov_b64 exec, -1")
    ids()
    if P["pref"]=="s":
        a(f"s_lshr_b32 {sW}, {sW}, 6\ns_cbranch_scc0 L_loader\ns_load_dwordx2 s[28:29], s[0:1], 104\ns_and_b32 s62, s2, {(~(7*CS))&0xff}\ns_xor_b32 s63, {sW}, 7\ns_or_b32 s40, s62, s63\ns_cbranch_scc0 L_qa\ns_cmp_lt_u32 {sW}, 4\ns_cbranch_scc1 L_z\nL_nqa:\ns_getpc_b64 s[52:53]\nL_pc:\ns_lshl2_add_u32 s54, {sY}, {sW}\ns_lshl_b32 s54, s54, 7\ns_min_u32 s54, s54, L_end-L_pc-64")
        a("s_load_dword s56, s[52:53], s54\ns_add_u32 s54, s54, 64\ns_load_dword s57, s[52:53], s54\nL_bar:\ns_load_dwordx8 s[20:27], s[0:1], 64\ns_barrier\ns_branch L_notloader\nL_loader:")
    else: a(f"s_lshr_b32 {sW}, {sW}, 6\ns_cbranch_scc1 L_notloader")

    a(f"v_lshrrev_b32 {vP}, 3, {vLane}\nv_and_b32 {vT}, 6, {vP}\nv_xor_b32 {vTR}, {vT}, {vLane}\nv_and_b32 {vTR}, 7, {vTR}\nv_lshlrev_b32 {vTR}, 4, {vTR}")
    a(f"v_mul_u32_u24 {vK}, 12288, {vP}\nv_add_u32 {vW}, {vK}, {vTR}\nv_lshlrev_b32 {vA0}, 4, {vLane}")
    a(f"s_mul_i32 s52, {sJ}, {80*12288}\ns_mul_i32 s53, {sG}, 384\ns_add_u32 s52, s52, s53")
    a(f"s_mov_b32 m0, {XB}\ns_mov_b32 s46, {640*12288}\ns_mov_b32 s47, 0x20000\ns_mov_b32 s51, 0x20000\ns_movk_i32 s50, 1280")
    a(f"s_movk_i32 s56, 896\ns_movk_i32 s57, 1280")
    assert P["lateG"]!=-1 and not P["mshare"]
    if P["lateG"]==-1:
        assert not P["wsb"]
        a(f"v_mov_b64 v[24:25], -1\nv_mov_b64 v[26:27], -1\ns_mov_b32 s30, {G+102400}\ns_mov_b32 s31, 0x20000\ns_lshl_b32 s54, s2, 10\ns_add_u32 s54, s54, {G}\ns_cmp_lg_u32 s62, 0")
    a("s_waitcnt lgkmcnt(0)")
    if P["lateG"]==-1: a(f"buffer_store_dwordx4 v[24:27], {vA0}, {WS}, s54 offen sc1")
    stamp(8)
    a("s_mov_b64 s[48:49], s[4:5]\ns_mov_b64 s[44:45], s[8:9]")
    a(f"buffer_load_dwordx4 {vA0}, {SB}, 0 offen lds\nbuffer_load_dwordx4 {vA0}, {SB}, 0 offen offset:1024 lds\ns_mov_b32 m0, {R2}")
    stamp(9)
    def pub(iss='s61'):
        a(f"s_getreg_b32 s63, hwreg(HW_REG_IB_STS)\ns_bfe_u32 s62, s63, 0x20016\ns_and_b32 s63, s63, 15\ns_lshl4_add_u32 s63, s62, s63\ns_sub_u32 s63, {iss}, s63\nv_mov_b32 v23, s63\nds_max_u32 {vL4}, v23 offset:{F['CNT']}")
    def cpub(k):
        if P.get("exact"): pub()
        else: a(f"s_sub_u32 s63, s61, {k}\nv_mov_b32 v23, s63\nds_max_u32 {vL4}, v23 offset:{F['CNT']}")
    def wait_pub(name, thr):
        l=a.lab("WP")
        spin(l); a(f"ds_read_b32 {vTmp}, {vL4} offset:{F[name]}"); pub()
        a(f"s_waitcnt lgkmcnt({0 if diag else 1})\nv_cmp_gt_u32 vcc, {thr}, {vTmp}\ns_cbranch_vccnz {l}")
    def seg384(srdq, vaddr, soff, step, m0end, thr, xor=False, d1="s56", d2="s57"):
        l=a.lab("SG")
        a(f"{l}:")
        v=vaddr
        if xor:
            a(f"v_xor_b32 {vT}, s55, {vaddr}\ns_add_u32 s55, s55, 32\ns_and_b32 s55, s55, 0x60"); v=vT
        if thr:
            a(f"s_waitcnt vmcnt({thr-3})"); cpub(thr-3)
        a(f"buffer_load_dwordx4 {v}, {srdq}, {soff} offen {NT} lds\ns_add_u32 m0, m0, {d1}")
        if thr: a(f"s_add_u32 s61, s61, 3")
        a(f"buffer_load_dwordx4 {v}, {srdq}, {soff} offen offset:128 {NT} lds\ns_add_u32 m0, m0, {d1}")
        a(f"buffer_load_dwordx4 {v}, {srdq}, {soff} offen offset:256 {NT} lds\ns_add_u32 m0, m0, {d2}")
        a(f"s_add_u32 {soff}, {soff}, {step}\ns_cmp_lg_u32 m0, {m0end}\ns_cbranch_scc1 {l}")
    if P.get("unrollq",True):
        a("s_mov_b32 s55, 98304")
        for r_ in range(10):
            a(f"buffer_load_dwordx4 {vW}, {SA}, s52 offen {NT} lds\ns_add_u32 m0, m0, s56\ns_nop 0\nbuffer_load_dwordx4 {vW}, {SA}, s52 offen offset:128 {NT} lds\ns_add_u32 m0, m0, s56\ns_nop 0\nbuffer_load_dwordx4 {vW}, {SA}, s52 offen offset:256 {NT} lds")
            if r_<9: a("s_add_u32 m0, m0, s57\ns_add_u32 s52, s52, s55")
            if r_==P.get("barat",8): a("s_barrier")
    else: seg384(SA, vW, "s52", 98304, R2+30720, None)
    a("s_branch L_ld2")
    a("; wave role 3 of eight workgroups: sentinel fill of the q_abs array (its flag follows once these stores are acknowledged)")
    assert not P["wsb"] and P["pref"]=="s"
    a(f"L_qa:\ns_mov_b32 s30, {WSSIZE}\ns_mov_b32 s31, 0x20000\nv_mov_b64 v[24:25], -1\nv_mov_b64 v[26:27], -1\nv_and_b32 v28, 63, v0\nv_lshlrev_b32 v28, 4, v28")
    a(f"s_lshr_b32 s58, s2, {CS.bit_length()-1}\ns_mul_i32 s58, s58, 3")
    for k in range(3):
        sdiv(f"s{54+k}", "s58", qn, QPER, 2048, "s59")
        a(f"s_add_u32 s{54+k}, s{54+k}, {QA}"+("\ns_add_u32 s58, s58, 1" if k<2 else ""))
    a("s_waitcnt lgkmcnt(0)")
    for k in range(6): a(f"buffer_store_dwordx4 v[24:27], v28, {WS}, s{54+(k>>1)} offen offset:{1024*(k&1)} sc1")
    a("s_branch L_nqa")
    a(f"L_z:\nv_lshlrev_b32 v28, 4, v0\nv_add_u32 v28, {FLAGS-1024}, v28\nv_mov_b64 v[24:25], 0\nv_mov_b64 v[26:27], 0")
    extra = P["gC"] or P["lateG"]==3 or ("STR",1) in P["dtrig"] or any(x[1]==S_ for x in P["sched"])
    for o_ in ((0,3072,4096) if extra else (0,3072)): a(f"ds_write_b128 v28, v[24:27] offset:{o_}")
    a(f"s_waitcnt lgkmcnt(0)\ns_load_dwordx2 s[32:33], s[28:29], {EPOCH}\ns_branch L_bar")
    a(f"L_ld2:\ns_setprio {P['prio'][2]}\ns_load_dwordx8 s[20:27], s[0:1], 64\ns_mov_b32 {sW}, 4")
    ids2()
    stamp(1)
    a(f"v_bfe_u32 {vT}, {vLane}, 4, 1\nv_xor_b32 {vT}, {vT}, {vLane}\nv_and_b32 {vT}, 7, {vT}\nv_lshl_add_u32 {vK}, {vT}, 4, {vK}")
    a(f"s_mul_i32 s52, {sJ}, {96*12288}\ns_add_u32 s52, s52, s53\ns_mov_b32 s54, s52\ns_mov_b32 s55, 0")
    a(f"s_mov_b32 s44, s10\ns_mov_b32 s45, s11\ns_mov_b32 s46, {768*12288}\ns_mov_b32 m0, {R3}")
    a(f"s_movk_i32 s61, {CB+30}")
    a(f"v_lshrrev_b32 {vT}, 5, {vLane}\nv_lshlrev_b32 {vT}, 4, {vT}\nv_xor_b32 {vA1}, {vA0}, {vT}\nv_xor_b32 {vA2}, 16, {vA0}")
    for t in range(3):
        a(f"v_add_u32 v17, {64*t}, {vLane}\nv_mul_u32_u24 v18, 0x5556, v17\nv_lshrrev_b32 v18, 18, v18\nv_mul_u32_u24 v19, 12, v18\nv_sub_u32 v17, v17, v19")
        a(f"v_lshrrev_b32 v19, 1, v18\n"+("" if P["kmap"] else "v_and_b32 v18, 1, v18\nv_lshl_add_u32 v18, v19, 5, v18\n")+f"v_and_b32 v19, 2, v19\nv_xor_b32 v17, v17, v19\nv_mul_u32_u24 v18, 1536, v18\nv_lshl_add_u32 v{20+t}, v17, 4, v18")
        if P.get("b16"):
            a(f"v_add_u32 v17, {64*t}, {vLane}\nv_mul_u32_u24 v18, 0xaaab, v17\nv_lshrrev_b32 v18, 18, v18\nv_mul_u32_u24 v19, 6, v18\nv_sub_u32 v17, v17, v19")
            a(f"v_lshrrev_b32 v19, 1, v18\nv_and_b32 v18, 1, v18\nv_lshl_add_u32 v18, v19, 5, v18\nv_mul_u32_u24 v18, 1536, v18\nv_lshl_add_u32 v{20+t}, v17, 4, v18")
        if P.get("bfull"):
            a(f"v_lshrrev_b32 v18, 3, {vLane}\nv_lshrrev_b32 v19, 1, v18\nv_and_b32 v18, 1, v18\nv_lshl_add_u32 v18, v19, 5, v18\nv_mul_u32_u24 v18, 1536, v18\nv_and_b32 v17, 7, {vLane}\nv_lshl_add_u32 v{20+t}, v17, 4, v18")
            a(f"s_and_b32 s63, {sJ}, 1")
            if t<2: a(f"s_lshl_b32 s63, s63, 8\ns_add_u32 s63, s63, {t*128*1536+2048}")
            else: a(f"s_mul_i32 s63, s63, {128*1536}\ns_add_u32 s63, s63, {128+2048}")
            a(f"v_add_u32 v{20+t}, s63, v{20+t}")
        if t: a(f"v_subrev_u32 v{20+t}, {1024*t}, v{20+t}")
    a(f"v_mul_u32_u24 {vO}, 1280, {vP}\nv_add_u32 {vO}, {vO}, {vTR}\nv_mul_u32_u24 {vF}, 3072, {vP}\nv_add_u32 {vF}, {vF}, {vTR}")
    a(f"s_mov_b32 s48, s6\ns_mov_b32 s49, s7\ns_mov_b32 s50, {8192*1536}")
    KM=P["kmap"]; KSTEP={0:3072,1:786432,2:98304,3:24576}[KM]
    if KM in (0,3): a(f"s_mul_i32 s58, {sG}, {256*1536}")
    elif KM==1: a(f"s_mul_i32 s58, {sG}, 24576")
    else: a(f"s_mul_i32 s58, {sX}, {1572864-4*24576}\ns_mul_i32 s53, {sG}, 24576\ns_add_u32 s58, s58, s53")
    a(f"s_mul_i32 s42, {sJ}, {3072 if KM else 49152}\ns_add_u32 s42, s42, s58")
    a(f"s_mul_i32 s53, {sJ}, 192\ns_add_u32 s58, s58, s53\ns_mov_b32 s59, {R1}\ns_mov_b32 s60, {R2}")
    if P.get("bfull"): a(f"s_mul_i32 s58, {sG}, {256*1536}\ns_lshr_b32 s53, {sJ}, 1\ns_mul_i32 s53, s53, 384\ns_add_u32 s58, s58, s53\ns_max_u32 s58, s58, 2048\ns_sub_u32 s58, s58, 2048")
    if P.get("b16"): a(f"s_lshr_b32 s58, {sB}, 4\ns_mul_i32 s58, s58, {512*1536}\ns_and_b32 s53, {sB}, 15\ns_mul_i32 s53, s53, 96\ns_add_u32 s58, s58, s53")
    a(f"v_mov_b32 v23, {CB}\ns_waitcnt vmcnt(30) lgkmcnt(0)\nds_max_u32 {vL4}, v23 offset:{F['CNT']}")
    if P["holdP"]:
        assert 0<P["holdP"]<36 and P["holdP"]%3==0
        seg384(SA, vK, "s52", 98304, R3+1024*P["holdP"], P.get("T0",T), xor=True)
        if not P.get("T0"): wait_pub("PUBA",3)
    seg384(SA, vK, "s52", 98304, R3+36864, T, xor=True)
    stamp(2)
    TA=P["TA"]; NA=P["ntA"]; NB=P["ntB"]
    def drain(tgt):
        l=a.lab("DR")
        spin(l); pub(); a(f"s_sub_u32 s63, s61, s63\ns_cmp_gt_u32 s63, {tgt}\ns_cbranch_scc1 {l}")
    a(f"s_mov_b32 s52, s42")
    if P["rot"]:
        assert R1==0 and not KM
        a(f"s_mov_b32 s42, s52\ns_mov_b32 s53, s58\ns_mov_b32 s40, 0\ns_mul_i32 s43, {sG}, {P['rot']&15}")
        if P["rot"]&16: a(f"s_add_u32 s43, s43, {sX}")
    if T>P.get("holdA",18): drain(P.get("holdA",18))
    wait_pub(*(("GISS",1) if P["holdG"] else ("PUBA",3)))
    def segAB(nst, ex, TA=TA):
        l=a.lab("SA")
        a(f"{l}:")
        if P["rot"]:
            a(f"s_add_u32 s55, s40, s43\ns_and_b32 s55, s55, 7\ns_and_b32 s59, s40, 8\ns_or_b32 s60, s55, s59\ns_lshl_b32 s55, s55, 5\ns_mul_i32 s59, s60, 3072\ns_mul_i32 s60, s60, 3200\ns_add_u32 s60, s60, {R2}\ns_add_u32 s52, s42, s59\ns_add_u32 s58, s53, s59")
        a(f"v_xor_b32 v17, s55, {vA0}\nv_xor_b32 v18, s55, {vA1}\nv_xor_b32 v19, s55, {vA2}\ns_mov_b32 m0, s59")
        a(f"s_waitcnt vmcnt({TA-6})")
        if ex: pub()
        else: cpub(TA-6)
        a(f"buffer_load_dwordx4 v17, {SB}, s52 offen {NA} lds\nbuffer_load_dwordx4 v18, {SB}, s52 offen offset:1024 {NA} lds\nbuffer_load_dwordx4 v19, {SB}, s52 offen offset:2048 {NA} lds")
        a(f"s_mov_b32 m0, s60\ns_add_u32 s61, s61, 6")
        for t in range(3): a(f"buffer_load_dwordx4 v{20+t}, {SB}, {'s58' if not P.get('bnone') else 's50'} offen offset:{1024*t} {NB} lds")
        if P["rot"]: a(f"s_add_u32 s40, s40, 1\ns_cmp_lg_u32 s40, {nst}\ns_cbranch_scc1 {l}")
        else:
            a(f"s_add_u32 s55, s55, 32\ns_and_b32 s55, s55, 0xe0\ns_add_u32 s52, s52, {KSTEP}\ns_add_u32 s58, s58, {KSTEP}\ns_add_u32 s60, s60, 3200\ns_add_u32 s59, s59, 3072")
            a(f"s_cmp_lg_u32 s59, {R1+3072*nst}\ns_cbranch_scc1 {l}")
    if P["gateA"]:
        assert 0<P["gateA"]<16
        segAB(P["gateA"], True); wait_pub("V2A",1)
    if P.get("gateQ"):
        n_=P["gateQ"]
        assert P["gateA"]<n_<16 and P["thrQ"]<=66+6*n_ and not P.get("TA2")
        segAB(n_, P["holdG"] or P["gateA"]); wait_pub("QISS",4); segAB(16, False, P.get("TA3",TA))
    elif P.get("TA2"):
        n_,t_=P["TA2"]
        assert P["gateA"]<n_<16 and t_%6==0
        segAB(n_, P["holdG"] or P["gateA"]); segAB(16, P.get("exA",False), t_)
    else: segAB(16, P["holdG"] or P["gateA"])
    stamp(3)
    a(f"s_mov_b32 s44, s12\ns_mov_b32 s45, s13\ns_mov_b32 m0, {R3}")
    FF=True
    def check(sc, fine=False):
        at=[x[0] for x in sc]
        assert at[0]==0 and at==sorted(set(at)) and all(x%3==0 or (fine and x>36) for x in at) and all(3<x[2]<=60 and x[2]%3==0 for x in sc)
        return sc
    sched=check(P["sched"], P.get("wo2")); fsched=check(P.get("fsched") or P["sched"])
    if sched[0][1]!=("QISS",4):
        drain(sched[0][2]-3); wait_pub("RDUK",3)
    stamp(4)
    def late(sc, done, n, emit):
        tl=[x[2] for x in sc if x[0]<=done][-1]
        for at,fl,t_ in sc:
            if done<at<done+n: emit(at-done, tl)
            if done<=at<done+n:
                if fl: wait_pub(*fl)
                tl=t_
        emit(n, tl)
    def seg_wo(k, TL):
        if P.get("wo2"):
            assert k%2==0
            l=a.lab("SO")
            a(f"{l}:\ns_waitcnt vmcnt({TL-2})"); cpub(TL-2)
            a(f"buffer_load_dwordx4 {vO}, {SB}, s52 offen {NT} lds\ns_add_u32 m0, m0, s56\ns_add_u32 s61, s61, 2\nbuffer_load_dwordx4 {vO}, {SB}, s52 offen offset:128 {NT} lds\ns_add_u32 m0, m0, 1152\ns_add_u32 s52, s52, 10240")
            a(f"s_cmp_lg_u32 m0, {R1+1024*k}\ns_cbranch_scc1 {l}")
            return
        assert k%6==0
        l=a.lab("SO")
        a(f"{l}:")
        for i in range(6):
            if i%3==0: a(f"s_waitcnt vmcnt({TL-3})"); cpub(TL-3)
            if i%2==0:
                a(f"buffer_load_dwordx4 {vO}, {SB}, s52 offen {NT} lds\ns_add_u32 m0, m0, s56")
            else:
                a(f"buffer_load_dwordx4 {vO}, {SB}, s52 offen offset:128 {NT} lds\ns_add_u32 m0, m0, 1152\ns_add_u32 s52, s52, 10240")
            if i%3==0: a(f"s_add_u32 s61, s61, 3")
        a(f"s_cmp_lg_u32 m0, {R1+1024*k}\ns_cbranch_scc1 {l}")
    def seg_w2(k, TL):
        l=a.lab("S2")
        a(f"{l}:\ns_waitcnt vmcnt({TL-3})"); cpub(TL-3)
        for i in range(3):
            a(f"buffer_load_dwordx4 {vO}, {SB}, s52 offen {NT} lds\ns_add_u32 m0, m0, 2048\ns_add_u32 s52, s52, 10240")
        a(f"s_add_u32 s61, s61, 3\ns_cmp_lg_u32 m0, {R2+2048*k}\ns_cbranch_scc1 {l}")
    a(f"s_cmp_lt_u32 {sV}, 10\ns_cbranch_scc0 L_noff")
    a(f"s_mul_i32 s52, {sV}, {64*3072}\ns_mul_i32 s53, {sX}, 384\ns_add_u32 s52, s52, s53")
    a(f"s_mov_b32 s48, s18\ns_mov_b32 s49, s19\ns_mov_b32 s50, {640*3072}")
    late(fsched, 0, 24, lambda k,t_: seg384(SB, vF, "s52", 24576, R3+1024*k, t_))
    a(f"s_mul_i32 s52, {sX}, 245760\ns_lshl_b32 s53, {sV}, 7\ns_add_u32 s52, s52, s53")
    a(f"s_mov_b32 s48, s22\ns_mov_b32 s49, s23\ns_mov_b32 s50, {1536*1280}\ns_mov_b32 m0, {R1}")
    wait_pub("RDA",4)
    late(fsched, 24, 36, lambda k,t_: seg384(SA, vW, "s54", 98304, R1+1024*k, t_))
    a(f"s_mov_b32 m0, {R2}")
    if not any(at<=60 and fl in (M_,K_,D_,C_,V_) for at,fl,_ in fsched): wait_pub("RDB",4)
    late(fsched, 60, 24, seg_w2)
    a("s_branch L_drain\nL_noff:")
    a(f"s_mul_i32 s52, {sG}, 245760\ns_lshl_b32 s53, {sJ}, 8\ns_add_u32 s52, s52, s53")
    a(f"s_mov_b32 s48, s14\ns_mov_b32 s49, s15\ns_mov_b32 s50, {6144*1280}")
    late(sched, 0, 36, lambda k,t_: seg384(SA, vW, "s54", 98304, R3+1024*k, t_))
    stamp(5)
    a(f"s_mov_b32 m0, {R1}\ns_cmp_lt_u32 {sJ}, 5\ns_cbranch_scc0 L_drain")
    if not any(at<=36 and fl in (M_,K_,D_,C_,V_) for at,fl,_ in sched): wait_pub("RDA",4)
    late(sched, 36, 48, seg_wo)
    a("L_drain:")
    stamp(6)
    drain(6)
    a(f"v_mov_b32 {vC}, s61\ns_waitcnt vmcnt(0)\nds_write_b32 {vL4}, {vC} offset:{F['CNT']}")
    stamp(7)
    if P.get("wb"):
        n_,fl=P["wb"]
        a(f"s_cmp_lt_u32 s2, {n_}\ns_cbranch_scc0 L_fin")
        wait_flag(*fl)
        a("buffer_wbl2 sc1\ns_waitcnt vmcnt(0)")
        stamp(10)
    a("s_branch L_fin")

    a("L_notloader:")
    a(f"s_xor_b32 {sW}, {sW}, 4\nv_and_b32 v0, 63, v0")
    if diag: a("s_mov_b32 s80, 0\ns_mov_b32 s82, 0")
    ids2()
    a(f"v_and_b32 {vN}, 15, {vLane}\nv_lshrrev_b32 {vGl}, 4, {vLane}\nv_mov_b32 {vOne}, 1\ns_mov_b32 {sBud}, {P['budget']}")
    a(f"s_mov_b32 s30, {WSSIZE}\ns_mov_b32 s31, 0x20000")
    a(f"s_cmp_eq_u32 {sW}, 6\ns_cbranch_scc1 L_w6\ns_cmp_eq_u32 {sW}, 5\ns_cbranch_scc1 L_w5\ns_cmp_eq_u32 {sW}, 7\ns_cbranch_scc1 L_w7\ns_waitcnt lgkmcnt(0)")
    if P["wsb"]: a(f"s_add_u32 s28, s28, {P['wsb']}\ns_addc_u32 s29, s29, 0")
    a(f"s_load_dwordx2 s[32:33], s[28:29], {EPOCH}")

    def trcore(dst, t):
        a(f"v_bfe_u32 {t}, {vLane}, 2, 3\nv_lshlrev_b32 {dst}, 7, {t}\nv_lshrrev_b32 {t}, 1, {t}\nv_lshl_add_u32 {dst}, {t}, 5, {dst}\nv_and_b32 {t}, 3, {vLane}\nv_lshl_add_u32 {dst}, {t}, 3, {dst}")
    MASKT=[f"s[{56+2*t}:{57+2*t}]" for t in range(4)]
    def masks():
        for t in range(4): a(f"s_mov_b32 s{56+2*t}, {0x00010001<<t}\ns_mov_b32 s{57+2*t}, {0x00010001<<t}")
    def mstore(txt):
        wt="\n".join(x+" sc1" if x.startswith("buffer_store") else x for x in txt.split("\n"))
        if not P["local"]:
            a(wt); return
        r=a.lab("RM"); bk=a.lab("BK")
        a(f"s_cbranch_scc0 {r}\n{txt}\n{bk}:")
        far.append(f"{r}:\ns_nop 7\n{wt}\ns_nop 1\ns_branch {bk}")
    def publish4(acc, vS, vAddr, soff, imm=0, mode=False):
        for t in range(4):
            a(f"s_mov_b64 exec, {MASKT[t]}\nv_cvt_pk_bf16_f32 v{vS}, v{acc+4*t}, v{acc+4*t+1}\nv_cvt_pk_bf16_f32 v{vS+1}, v{acc+4*t+2}, v{acc+4*t+3}")
        a(f"s_mov_b32 exec_lo, 0x000f000f\ns_mov_b32 exec_hi, 0x000f000f")
        txt=f"buffer_store_dwordx4 {vr(vS,4)}, {vAddr}, {WS}, {soff} offen offset:{imm}"
        if mode=="plain": a(txt)
        elif mode: mstore(txt)
        else: a(txt+" sc1")
        a("s_mov_b64 exec, -1")

    a('; ======== W0..W3 main')
    FR=64; QR=16; AC=160; vS=176
    vT1=[f"v{180+t}" for t in range(4)]; vVec="v184"; vPub="v185"; vU=["v186","v187"]; vA=[f"v{188+t}" for t in range(4)]
    vLin="v192"; vB=["v193","v194","v199"]; vPl="v195"; vMl="v196"; vBp="v197"; vC4="v198"; vT6=["v200","v201"]; vCore="v202"; vSt="v203"; vXa="v204"; vM0="v205"; vQa="v208"
    sHH="s52"; sKH="s53"
    if P['prio'][0]: a(f"s_setprio {P['prio'][0]}")
    a(f"s_and_b32 {sHH}, {sW}, 1\ns_lshr_b32 {sKH}, {sW}, 1")
    masks()
    trcore(vCore, vTmp)
    a(f"v_lshrrev_b32 v6, 5, {vLane}")
    a(f"s_lshl_b32 s54, {sW}, 10\ns_add_u32 s54, s54, {R2}\nv_mul_u32_u24 v7, 3072, v6\nv_add3_u32 {vT1[0]}, {vCore}, v7, s54")
    for t in range(1,4): a(f"v_xor_b32 {vT1[t]}, {32*t}, {vT1[0]}")
    a(f"s_lshl_b32 s54, {sKH}, 10\ns_lshl_b32 s55, {sHH}, 6\nv_lshlrev_b32 v7, 11, v6\nv_add3_u32 {vT6[0]}, {vCore}, v7, s54\nv_xor_b32 {vT6[0]}, s55, {vT6[0]}\nv_xor_b32 {vT6[1]}, 32, {vT6[0]}")
    a(f"v_lshlrev_b32 {vVec}, 4, {vGl}\nv_add_u32 {vVec}, {VEC1A}, {vVec}")
    a(f"v_lshlrev_b32 {vPub}, 6, {vGl}\nv_lshl_add_u32 {vPub}, {vN}, 4, {vPub}")
    a(f"v_lshlrev_b32 {vLin}, 4, {vLane}")
    a(f"v_lshrrev_b32 v7, 1, {vN}\nv_lshlrev_b32 {vQa}, 6, v7\nv_and_b32 v7, 1, {vN}\nv_lshl_add_u32 {vQa}, v7, 4, {vQa}\nv_and_b32 v7, 1, {vGl}\nv_lshl_add_u32 {vQa}, v7, 5, {vQa}\nv_lshl_add_u32 {vQa}, v6, 10, {vQa}")
    a(f"s_mul_i32 s54, {sW}, 12288\ns_add_u32 s54, s54, {R3}\nv_lshrrev_b32 v7, 2, {vN}\nv_mul_u32_u24 v7, 3072, v7\nv_and_b32 v8, 3, {vN}\nv_lshl_add_u32 v7, v8, 7, v7")
    a(f"v_lshrrev_b32 v8, 1, {vN}\nv_xor_b32 v8, v8, {vGl}\nv_lshlrev_b32 v8, 4, v8\nv_add3_u32 {vU[0]}, v7, v8, s54\nv_xor_b32 {vU[1]}, 64, {vU[0]}")
    a(f"s_mul_i32 s54, {sKH}, 768\nv_mul_u32_u24 v7, 1536, {vN}\nv_lshlrev_b32 v8, 1, {vGl}\nv_xor_b32 v8, {vN}, v8\nv_lshlrev_b32 v8, 4, v8\nv_add3_u32 {vA[0]}, v7, v8, s54")
    for t in range(1,4): a(f"v_xor_b32 {vA[t]}, {128*(t>>1)+16*(t&1)}, {vA[0]}")
    a(f"v_bfe_u32 v7, {vN}, 3, 1\nv_mul_u32_u24 v7, 3200, v7\nv_bfe_u32 v8, {vN}, 2, 1\nv_mul_u32_u24 v8, 192, v8\nv_mul_u32_u24 v9, 768, {vGl}\nv_add3_u32 v7, v7, v8, v9")
    a(f"v_and_b32 v8, 3, {vN}\nv_lshl_add_u32 v7, v8, 3, v7\nv_add_u32 v7, {R2}, v7\nv_and_b32 v9, 1, {vGl}\nv_lshlrev_b32 v9, 5, v9")
    a(f"s_lshl_b32 s54, {sKH}, 6\nv_add3_u32 {vB[0]}, v7, v9, s54\nv_xor_b32 v10, 32, v9\nv_add3_u32 {vB[1]}, v7, v10, s54")
    a(f"s_lshl_b32 s54, {sKH}, 5\nv_xor_b32 v10, s54, v9\nv_add_u32 v10, 128, v10\nv_add_u32 {vB[2]}, v7, v10")
    a(f"v_mul_u32_u24 v7, {2*RS}, {vGl}\nv_lshl_add_u32 {vPl}, {vN}, 4, v7\nv_lshlrev_b32 {vM0}, 2, {vN}\nv_add_u32 {vMl}, {vM0}, v7")
    a(f"v_lshrrev_b32 v7, 2, {vLane}\nv_lshl_add_u32 {vBp}, v8, 4, v7\nv_lshlrev_b32 {vBp}, 2, {vBp}")
    a(f"v_mul_u32_u24 v7, {HS}, v7\nv_lshl_add_u32 {vC4}, v8, 4, v7")
    a(f"s_lshl_b32 s54, {sHH}, 11\ns_add_u32 s54, s54, {XB}\nv_add_u32 {vXa}, s54, {vLin}")
    if P.get("spf3"): a("s_mov_b64 s[26:27], s[14:15]\ns_mov_b64 s[24:25], s[22:23]")
    oQ,oQA,oQL,oP,oM,oPL,oML,oCL,oE,oUV,tUV,oF,t6 = "s4","s5",("s6","s7","s8","s24","s25","s26"),"s9","s10",("s11","s12"),("s13","s14"),"s15","s16","s17","s18","s54","s19"
    a(f"s_mul_i32 s20, {sB}, {RS}\ns_add_u32 s20, s20, {REC}\ns_lshl_b32 s55, {sW}, 8\ns_add_u32 s21, s20, s55\ns_add_u32 {oQ}, s21, {RQ}\ns_add_u32 {oE}, s21, {RQ}")
    if P["gA"]==2: a(f"s_mul_i32 {oQ}, {sG}, {P.get('qgper',32768)}\ns_add_u32 {oQ}, {oQ}, s55\ns_mul_i32 s55, {sJ}, 768\ns_add_u32 {oQ}, {oQ}, s55\ns_add_u32 {oQ}, {oQ}, {QG}")
    a(f"s_lshl_b32 s22, {sHH}, 10\ns_add_u32 s22, s22, {RP}\ns_lshl_b32 s23, {sHH}, 6\ns_add_u32 s23, s23, {RM}\ns_add_u32 {oP}, s20, s22\ns_add_u32 {oM}, s20, s23")
    a(f"s_mul_i32 s20, {sG}, {8*RS}\ns_add_u32 s20, s20, {REC}\ns_add_u32 {oPL[0]}, s20, s22\ns_add_u32 {oPL[1]}, {oPL[0]}, {RS}\ns_add_u32 {oML[0]}, s20, s23\ns_add_u32 {oML[1]}, {oML[0]}, {RS}")
    a(f"s_lshr_b32 s20, {sG}, 4\ns_mul_i32 s20, s20, 24\ns_mul_i32 s55, {sJ}, 3\ns_add_u32 s55, s55, {sW}\ns_add_u32 s20, s20, s55\ns_and_b32 s22, s20, 1\ns_lshl_b32 s22, s22, 10\ns_lshr_b32 s21, s20, 1")
    sdiv("s20","s21",qn,QPER,2048,"s55"); a("s_add_u32 s20, s20, s22")
    a(f"s_bfe_u32 s55, {sG}, 0x30001\ns_and_b32 s21, {sG}, 1\ns_lshl3_add_u32 s55, s21, s55\ns_lshl_b32 s55, s55, 6\ns_add_u32 s20, s20, s55\ns_add_u32 {oQA}, s20, {QA}")
    a(f"s_lshl1_add_u32 s20, {sHH}, {sKH}\ns_mul_i32 s20, s20, {qoff(6)}")
    for u in range(6): a(f"s_add_u32 {oQL[u]}, s20, {QA+qoff(u)}")
    sdiv("s20",sJ,4,J2,J1,"s55")
    a(f"s_mul_i32 s55, {sHH}, {16*HS}\ns_add_u32 s20, s20, s55\ns_lshl_b32 s55, {sKH}, 7\ns_add_u32 s20, s20, s55\ns_add_u32 s20, s20, {CLB}")
    a(f"s_and_b32 s55, {sG}, 24\ns_bfe_u32 s21, {sG}, 0x20001\ns_or_b32 s55, s55, s21\ns_and_b32 s21, {sG}, 1\ns_lshl2_add_u32 s55, s21, s55\ns_lshl_b32 s55, s55, 8\ns_add_u32 {oCL}, s20, s55")
    sdiv(oF,sG,gn,GPER,2560,"s55")
    a(f"s_lshl_b32 s55, {sJ}, 9\ns_add_u32 {oF}, {oF}, s55\ns_lshl_b32 s55, {sW}, 7\ns_add_u32 {oF}, {oF}, s55\ns_add_u32 {oF}, {oF}, {OP}\ns_movk_i32 {t6}, {198+8*(P['s6n'] or 3)+CB}")
    a(f"s_mov_b32 s48, 0x00800080\ns_mov_b32 s49, 0x437f0000\ns_lshl_b32 s55, {sHH}, 8\nv_add_u32 v6, s55, {vL4}")
    a(f"s_lshl_b32 s55, {sHH}, 9\ns_add_u32 s55, s55, {MLB}\nv_lshl_add_u32 {vSt}, {vLane}, 3, s55")
    if P["mshare"]: a(f"v_mov_b64 v[8:9], -1\nds_write_b64 {vSt}, v[8:9] offset:1024")
    tag_finish()
    CT=212
    a(f"s_getreg_b32 s55, hwreg(HW_REG_XCC_ID, 0, 4)\ns_xor_b32 s55, s55, s32\nv_mov_b32 v{vS+2}, s55\nv_mov_b32 v{vS+3}, s33")
    a(f"s_and_b32 s55, s32, 0xbfffbfff\nv_mov_b32 v{CT+3}, s55\nv_mov_b32 v{CT+7}, s55")
    oH,oHW="s17","s18"
    if P["hintC"]: a(f"s_lshl_b32 {oH}, {sG}, 11\ns_lshl_b32 s55, {sHH}, 5\ns_add_u32 {oH}, {oH}, s55\ns_add_u32 {oH}, {oH}, {HT+1024}\ns_lshl2_add_u32 {oHW}, {sJ}, {oH}\nv_lshlrev_b32 v209, 6, {vLane}\ns_mov_b32 s44, s32\ns_mov_b32 s45, s32")
    a(f"s_cmp_eq_u32 {sW}, 3\ns_cbranch_scc0 L_s1\ns_cmp_eq_u32 s40, 0\ns_cbranch_scc0 L_s3")
    a(f"s_mul_i32 s55, s2, {128//CS}\ns_add_u32 s55, s55, {FLG}\ns_waitcnt vmcnt(0)\nv_mov_b32 v24, s32\nv_mov_b32 v25, s33\ns_mov_b64 exec, 15")
    a(f"buffer_store_dwordx4 v[24:27], {vLin}, {WS}, s55 offen sc1\ns_mov_b64 exec, -1\ns_waitcnt vmcnt(0)\ns_branch L_s3\nL_s1:")
    a('; ---- S1: q partial')
    if P.get("pretQA") is not None: a(f"s_mov_b64 exec, 1\nbuffer_load_dword v206, {vLin}, {WS}, {oQA} offen {P['pretQA']}\ns_mov_b64 exec, -1")
    wait_flag("V1A",1)
    for s in range(2): a(f"ds_read_b128 {vr(QR+4*s,4)}, {vVec} offset:{64*s}")
    a(f"ds_read_b64 {vr(QR+8,2)}, {vVec} offset:128\nv_mov_b64 {vr(QR+10,2)}, 0")
    for t in range(4): a(f"v_mov_b64 {vr(FR+12*t+10,2)}, 0")
    if P["s1pipe"]:
        wait_flag("CNT",24)
        for t in range(4):
            for h in range(4): a(f"ds_read_b64_tr_b16 {vr(FR+12*t+2*h,2)}, {vT1[t]} offset:{2*h*3072}")
        for t in range(4):
            a(f"s_waitcnt lgkmcnt({12-4*t})")
            for s in range(2): a(f"v_mfma_f32_16x16x32_bf16 {vr(AC+4*t,4)}, {vr(FR+12*t+4*s,4)}, {vr(QR+4*s,4)}, {vr(AC+4*t,4) if s else 0}")
        l=a.lab("W1")
        spin(l); a(f"ds_read_b32 {vTmp}, {vL4} offset:{F['CNT']}")
        for t in range(4): a(f"ds_read_b64_tr_b16 {vr(FR+12*t+8,2)}, {vT1[t]} offset:{8*3072}")
        a(f"s_waitcnt lgkmcnt(0)\nv_cmp_gt_u32 vcc, {30+CB}, {vTmp}\ns_cbranch_vccnz {l}")
        stamp(1)
        for t in range(4): a(f"v_mfma_f32_16x16x32_bf16 {vr(AC+4*t,4)}, {vr(FR+12*t+8,4)}, {vr(QR+8,4)}, {vr(AC+4*t,4)}")
    else:
        wait_flag("CNT",30)
        stamp(1)
        for t in range(4):
            for h in range(5): a(f"ds_read_b64_tr_b16 {vr(FR+12*t+2*h,2)}, {vT1[t]} offset:{2*h*3072}")
        for t in range(4):
            a(f"s_waitcnt lgkmcnt({15-5*t})")
            for s in range(3): a(f"v_mfma_f32_16x16x32_bf16 {vr(AC+4*t,4)}, {vr(FR+12*t+4*s,4)}, {vr(QR+4*s,4)}, {vr(AC+4*t,4) if s else 0}")
    publish4(AC, vS, vPub, oQ, mode=False if P["gA"] else "plain")
    if P["ackA"]: a("s_waitcnt vmcnt(0)")
    sig("PUBA")
    stamp(2)
    a(f"s_mov_b32 s46, {R3-R2}\ns_movk_i32 s47, {198+CB}")
    if FF: a(f"s_cmp_lt_u32 {sV}, 10\ns_cselect_b32 s46, {R1-R2}, s46\ns_cselect_b32 s47, {222+CB}, s47")
    for t in range(4): a(f"v_add_u32 {vT1[t]}, s46, {vT1[t]}")
    a(f"v_mov_b32 v{vS+2}, s32\nv_xor_b32 v{vS+3}, 1, v{vS+3}")
    wait_flag("CLR",1)
    wait_flag("CNT",66)
    for s in range(6):
        for t in range(2): a(f"ds_read_b128 {vr(FR+8*s+4*t,4)}, {vU[s&1]} offset:{1024*(s>>1)+512*t}")
    if P["sched"][0][1]!=Q_: sig("RDUK")
    def vec2_mfma(flag, thr, vec, wfirst, fr):
        l=a.lab("V2")
        spin(l); a(f"ds_read_b32 {vTmp}, {vL4} offset:{F[flag]}")
        for s in range(6): a(f"ds_read_b128 {vr(QR+4*s,4)}, {vVec} offset:{vec-VEC1A+64*s}")
        a(f"s_waitcnt lgkmcnt(6)\nv_cmp_gt_u32 vcc, {thr}, {vTmp}\ns_cbranch_vccnz {l}")
        for s in range(6):
            a(f"s_waitcnt lgkmcnt({5-s})")
            for t in range(2):
                w_,q_=vr(fr+8*s+4*t,4),vr(QR+4*s,4)
                A_,B_=(w_,q_) if wfirst else (q_,w_)
                a(f"v_mfma_f32_16x16x32_bf16 {vr(AC+4*t,4)}, {A_}, {B_}, {vr(AC+4*t,4) if s else 0}")
    vec2_mfma("V2A",1,VEC2A,True,FR)
    a(f"v_readfirstlane_b32 s50, {vTmp}\ns_lshr_b32 s50, s50, 1")
    stamp(3)
    for k in range(4): a(f"v_cvt_pk_bf16_f32 v{AC+8+k}, v{AC+2*k}, v{AC+2*k+1}\nds_bpermute_b32 v{AC+12+k}, {vBp}, v{AC+8+k}")
    if P.get("bhold"): wait_flag("CNT",P["bhold"])
    if P.get("batom"):
        a(f"s_mov_b64 exec, 15\ns_waitcnt lgkmcnt(0)\nbuffer_atomic_{P['batom']}_x2 {vr(AC+12,2)}, {vLin}, {WS}, {oQA} offen sc1\nbuffer_atomic_{P['batom']}_x2 {vr(AC+14,2)}, {vLin}, {WS}, {oQA} offen offset:8 sc1\ns_mov_b64 exec, -1\ns_waitcnt vmcnt(0)")
    if P.get("bline"):
        a(f"s_sub_u32 {oQA}, {oQA}, {QA}\ns_and_b32 s55, {oQA}, 127\ns_lshr_b32 {oQA}, {oQA}, 7\ns_mul_i32 {oQA}, {oQA}, {P['bline']}\ns_add_u32 {oQA}, {oQA}, s55\ns_add_u32 {oQA}, {oQA}, {REC}")
    if P.get("bmap"):
        pb,k_,s1,s2=P["bmap"]
        a(f"s_sub_u32 {oQA}, {oQA}, {QA}\ns_and_b32 s55, {oQA}, {(1<<pb)-1}\ns_lshr_b32 {oQA}, {oQA}, {pb}\ns_and_b32 s20, {oQA}, {(1<<k_)-1}\ns_mul_i32 s20, s20, {s1}\ns_add_u32 s55, s55, s20\ns_lshr_b32 {oQA}, {oQA}, {k_}\ns_mul_i32 {oQA}, {oQA}, {s2}\ns_add_u32 {oQA}, {oQA}, s55\ns_add_u32 {oQA}, {oQA}, 0x80000")
    if P.get("bexp"):
        m_,sh=P["bexp"]
        a(f"s_sub_u32 {oQA}, {oQA}, {QA}\ns_mul_i32 {oQA}, {oQA}, {sh}\ns_add_u32 {oQA}, {oQA}, {QA if sh<=2 else REC}")
    if not P.get("batom"): a(f"s_mov_b64 exec, {P['bexp'][0] if P.get('bexp') else 15}\ns_waitcnt lgkmcnt(0)\nbuffer_store_dwordx4 {vr(AC+12,4)}, {vLin}, {WS}, {oQA} offen {P.get('bfl','sc1')}\ns_mov_b64 exec, -1\n{'s_nop 0' if P.get('bnoack') else 's_waitcnt vmcnt(0)'}")
    if P.get("bread"):
        for r_ in range(P["bread"]): a(f"s_load_dword s20, s[28:29], {oQA} glc\ns_waitcnt lgkmcnt(0)")
    sig("PUBB")
    a("L_s3:")
    def areads(kt):
        for s in range(12): a(f"ds_read_b128 {vr(FR+48*kt+4*s,4)}, {vA[s&3]} offset:{24576*kt+256*(s>>2)}")
    def qloads():
        if P.get("skipq"): return
        for s in range(12): a(f"buffer_load_dwordx4 {vr(QR+4*s,4)}, {vQa}, {WS}, {oQL[s>>1]} offen offset:{512*(s&1)} sc1")
    if P["thrQ"]>=114:
        wait_flag("CNT",114)
        areads(0)
    wait_flag("PUBB",3)
    if P["thrQ"]!=114: wait_flag("CNT",P["thrQ"])
    stamp(4); qloads(); sig("QISS")
    if P["thrQ"]<114:
        wait_flag("CNT",114)
        areads(0)
    if P["thrQ"]<162: wait_flag("CNT",162)
    areads(1)
    sig("RDA")
    a("s_waitcnt lgkmcnt(0)\ns_branch L_s3m")
    l,ok=loop_head("S3")
    qloads()
    a("L_s3m:")
    BQ=lambda f: FR+4*f
    def breads():
        for f in range(24):
            s4,ct=divmod(f,3)
            for e2 in range(2): a(f"ds_read_b64_tr_b16 {vr(BQ(f)+2*e2,2)}, {vB[ct]} offset:{3200*(8*e2+2*(s4&3))+384*(s4>>2)}")
        if not any(at<=60 and fl in (M_,K_,D_,C_,V_) for at,fl,_ in fsched): sig("RDB")
    TQ=[8,12]
    def fix(sg):
        L0=QR+8*sg; L1=L0+4
        o=[f"s_waitcnt vmcnt({10-2*sg})"]
        o+=[f"v_cndmask_b32_dpp v{TQ[sg&1]+k}, v{L1+k}, v{L0+k}, vcc quad_perm:[0,0,2,2] {DP}" for k in range(4)]
        o+=["s_not_b64 vcc, vcc"]
        o+=[f"v_cndmask_b32_dpp v{L1+k}, v{L0+k}, v{L1+k}, vcc quad_perm:[1,1,3,3] {DP}" for k in range(4)]
        o+=["s_not_b64 vcc, vcc"]
        return o
    a("s_mov_b32 vcc_lo, 0x55555555\ns_mov_b32 vcc_hi, 0x55555555")
    a("\n".join(fix(0)))
    for sg in range(6):
        nx=fix(sg+1) if sg<5 else []
        cut=[3,6,8,11]; st_=0
        for i in range(4):
            pi,kt=i>>1,i&1
            qreg=TQ[sg&1] if pi==0 else QR+8*sg+4
            a(f"v_mfma_f32_16x16x32_bf16 {vr(AC+4*kt,4)}, {vr(FR+48*kt+4*(2*sg+pi),4)}, {vr(qreg,4)}, {vr(AC+4*kt,4) if 2*sg+pi else 0}")
            if nx: a("\n".join(nx[st_:cut[i]])); st_=cut[i]
    a(f"s_cmp_eq_u32 {sKH}, 0\nv_cmp_u_f32 vcc, v{AC}, v{AC+4}\ns_cbranch_vccnz {l}\n{ok}:")
    if any(x[1]==("S3K",4) for x in P["sched"]): sig("S3K")
    stamp(6)
    far[-1]=far[-1].replace("s_nop 7",f"s_cmp_eq_u32 {sKH}, 0\ns_nop 7")
    a(f"s_cbranch_scc1 {'L_soft' if P['blate'] else 'L_nox'}")
    a(f"ds_write_b128 {vXa}, {vr(AC,4)}\nds_write_b128 {vXa}, {vr(AC+4,4)} offset:1024\nds_add_u32 v6, {vOne} offset:{F['X0']}")
    if P["blate"]: a("s_branch L_s4\nL_soft:")
    else:
        a("L_nox:")
        breads()
        a("s_cbranch_scc0 L_s4\nL_soft:")
    l=a.lab("XW")
    spin(l); a(f"ds_read_b32 {vTmp}, v6 offset:{F['X0']}\nds_read_b128 {vr(AC+8,4)}, {vXa}\nds_read_b128 {vr(AC+12,4)}, {vXa} offset:1024")
    a(f"s_waitcnt lgkmcnt(0)\nv_cmp_gt_u32 vcc, 1, {vTmp}\ns_cbranch_vccnz {l}")
    for k in range(4): a(f"v_pk_add_f32 {vr(AC+2*k,2)}, {vr(AC+2*k,2)}, {vr(AC+8+2*k,2)}")
    a(f"v_max3_f32 v8, v{AC}, v{AC+1}, v{AC+2}\nv_max3_f32 v9, v{AC+3}, v{AC+4}, v{AC+5}\nv_max3_f32 v8, v8, v{AC+6}, v{AC+7}\nv_max_f32 v8, v8, v9")
    xreduce("v_max_f32","v8","v9")
    a("v_ceil_f32 v8, v8\ns_cmp_eq_u32 s50, 0")
    for k in range(4): a(f"v_pk_add_f32 {vr(AC+2*k,2)}, {vr(AC+2*k,2)}, v[8:9] op_sel_hi:[1,0] neg_lo:[0,1] neg_hi:[0,1]")
    for k in range(8): a(f"v_exp_f32 v{AC+k}, v{AC+k}")
    for k in range(4): a(f"v_cvt_pk_bf16_f32 v{AC+8+k}, v{AC+2*k}, v{AC+2*k+1}")
    (lambda t: a(t.replace("offen","offen sc1")) if P["gC"] else mstore(t))(f"buffer_store_dwordx4 {vr(AC+8,4)}, {vLin}, {WS}, {oP} offen"+("" if P.get("ackM") else f"\ns_mov_b64 exec, 0xffff\nbuffer_store_dword v8, {vM0}, {WS}, {oM} offen"))
    if P["hintC"] and not P["ackC"] and not P.get("verC"): a(f"buffer_store_dword v{vS+2}, v209, {WS}, {oHW} offen")
    a("s_mov_b64 exec, -1")
    a(f"v_pk_add_f32 {vr(AC,2)}, {vr(AC,2)}, {vr(AC+2,2)}\nv_pk_add_f32 {vr(AC+4,2)}, {vr(AC+4,2)}, {vr(AC+6,2)}\nv_pk_add_f32 {vr(AC,2)}, {vr(AC,2)}, {vr(AC+4,2)}\nv_add_f32 v9, v{AC}, v{AC+1}")
    a(f"ds_write_b64 {vSt}, v[8:9]")
    sig("PUBC")
    if P["hintC"] and P.get("verC"):
        vk=a.lab("VK")
        for tr_ in range(2):
            a(f"s_add_u32 s96, s28, {oP}\ns_addc_u32 s97, s29, 0" if tr_==0 else "")
            for k in range(8): a(f"s_load_dword s{20+k}, s[96:97], {128*k+64*(1-tr_)}")
            a("s_waitcnt lgkmcnt(0)\ns_or_b64 s[20:21], s[20:21], s[22:23]\ns_or_b64 s[24:25], s[24:25], s[26:27]\ns_or_b64 s[20:21], s[20:21], s[24:25]\ns_or_b32 s20, s20, s21\ns_bitcmp0_b32 s20, 31")
            a(f"s_cbranch_scc1 {vk}")
        a(f"s_waitcnt vmcnt(0)\n{vk}:\ns_mov_b64 exec, 0xffff\nbuffer_store_dword v{vS+2}, v209, {WS}, {oHW} offen\ns_mov_b64 exec, -1")
    elif P["hintC"] and P["ackC"]: a(f"s_mov_b64 exec, 0xffff\ns_waitcnt vmcnt(0)\nbuffer_store_dword v{vS+2}, v209, {WS}, {oHW} offen\ns_mov_b64 exec, -1")
    a("L_s4:")
    stamp(7)
    if P["blate"] and not P.get("bmid"): breads()
    if P.get("ackM"):
        a(f"s_cmp_eq_u32 {sKH}, 0\ns_cbranch_scc0 L_nm\ns_cmp_eq_u32 s50, 0\ns_mov_b64 exec, 0xffff\ns_waitcnt vmcnt(0)")
        mstore(f"buffer_store_dword v8, {vM0}, {WS}, {oM} offen")
        a("s_mov_b64 exec, -1\nL_nm:")
    wait_flag("PUBC",2)
    if P.get("mtrig"): wait_flag("CNT",P["mtrig"])
    stamp(8)
    a("v_mov_b32 v13, 1")
    if P["mshare"]: a(f"s_branch L_s4l\nL_s4f:\nds_read_b64 v[8:9], {vSt} offset:1024\ns_waitcnt lgkmcnt(0)\nv_cmp_u_f32 vcc, v8, v9\nv_max_f32 v10, v8, v9\ns_cbranch_vccz L_s4p\nL_s4l:")
    if P.get("bmid"):
        a(f"buffer_load_dword v8, {vMl}, {WS}, {oML[0]} offen sc1\nbuffer_load_dword v9, {vMl}, {WS}, {oML[1]} offen sc1")
        breads()
        if P["bmid"]==2:
            a(f"buffer_load_dword v14, {vMl}, {WS}, {oML[0]} offen sc1\nbuffer_load_dword v15, {vMl}, {WS}, {oML[1]} offen sc1")
            a(f"s_waitcnt vmcnt(2) lgkmcnt(0)\nv_cmp_u_f32 vcc, v8, v9\nv_max_f32 v10, v8, v9\ns_cbranch_vccz L_s4q\ns_waitcnt vmcnt(0)\nv_mov_b32 v8, v14\nv_mov_b32 v9, v15")
        a("s_waitcnt lgkmcnt(0)\ns_branch L_s4w")
        if P["bmid"]==2: far.append("L_s4q:\ns_waitcnt vmcnt(0)\ns_branch L_s4p")
    l,ok=loop_head("S4",("S4M",))
    a(f"buffer_load_dword v8, {vMl}, {WS}, {oML[0]} offen sc1\nbuffer_load_dword v9, {vMl}, {WS}, {oML[1]} offen sc1")
    a(f"L_s4w:\ns_waitcnt vmcnt(0)\nv_cmp_u_f32 vcc, v8, v9\nv_max_f32 v10, v8, v9\ns_cbranch_vccnz {'L_s4f' if P['mshare'] else l}")
    if P["mshare"]: a(f"ds_write_b64 {vSt}, v[8:9] offset:1024")
    a("L_s4p:")
    def ploads(lo,hi):
        for s in range(lo,hi): a(f"buffer_load_dwordx4 {vr(QR+4*s,4)}, {vPl}, {WS}, {oPL[s>>2]} offen offset:{256*(s&3)} sc1")
        if hi==8 and lo<8:
            sig("S4M","v13"); a("v_mov_b32 v13, 0"); stamp(5)
            if P["lateG"]==3: a(f"ds_read_b32 v14, {vL4} offset:{F['GOK']}")
    n1_,n2_=P["psplit"]
    ploads(0,n1_)
    xreduce("v_max_f32","v10","v11")
    ploads(n1_,n1_+n2_)
    a("v_sub_f32 v8, v10, v8\nv_sub_f32 v9, v10, v9\nv_min_f32 v8, s49, v8\nv_min_f32 v9, s49, v9\nv_cvt_u32_f32 v8, v8\nv_cvt_u32_f32 v9, v9\nv_mul_u32_u24 v8, s48, v8\nv_mul_u32_u24 v9, s48, v9")
    ploads(n1_+n2_,8)
    a(f"s_waitcnt vmcnt(7)")
    for k in range(4): a(f"v_pk_sub_u16 v{QR+k}, v{QR+k}, v8 clamp")
    for s in range(8):
        mf=lambda ct: a(f"v_mfma_f32_16x16x32_bf16 {vr(AC+4*ct,4)}, {vr(BQ(3*s+ct),4)}, {vr(QR+4*s,4)}, {vr(AC+4*ct,4) if s else 0}")
        q=QR+4*s
        if s==0: a(f"v_or3_b32 v12, v{q}, v{q+1}, v{q+2}\nv_or_b32 v12, v12, v{q+3}")
        mf(0)
        if s<7:
            a(f"s_waitcnt vmcnt({6-s})")
            a(f"v_pk_sub_u16 v{q+4}, v{q+4}, v{8+((s+1)>>2)} clamp\nv_pk_sub_u16 v{q+5}, v{q+5}, v{8+((s+1)>>2)} clamp")
        mf(1)
        if s<7: a(f"v_pk_sub_u16 v{q+6}, v{q+6}, v{8+((s+1)>>2)} clamp\nv_pk_sub_u16 v{q+7}, v{q+7}, v{8+((s+1)>>2)} clamp")
        mf(2)
        if s<7: a(f"v_or3_b32 v12, v12, v{q+4}, v{q+5}\nv_or3_b32 v12, v12, v{q+6}, v{q+7}")
    a(f"v_and_b32 v12, 0x80008000, v12\nv_cmp_ne_u32 vcc, 0, v12\ns_cbranch_vccnz {l}\n{ok}:")
    if P["lateG"]==3:
        gw=a.lab("GW"); gb=a.lab("GB")
        a(f"s_waitcnt lgkmcnt(0)\nv_cmp_ne_u32 vcc, 1, v14\ns_cbranch_vccnz {gw}\n{gb}:")
        far.append(f"{gw}:\nds_read_b32 v14, {vL4} offset:{F['GOK']}\ns_waitcnt lgkmcnt(0)\nv_cmp_ne_u32 vcc, 1, v14\ns_cbranch_vccnz {gw}\ns_nop 4\ns_branch {gb}")
    sig("S4K")
    stamp(9)
    for k in range(6): a(f"v_cvt_pk_bf16_f32 v{QR+k}, v{AC+2*k}, v{AC+2*k+1}\nds_bpermute_b32 v{CT+k+k//3}, {vBp}, v{QR+k}")
    if P.get("dhalf"): a(f"s_cmp_eq_u32 {sKH}, 0\ns_cbranch_scc0 L_nod")
    a(f"s_waitcnt lgkmcnt(3)\nbuffer_store_dwordx4 {vr(CT,4)}, {vC4}, {WS}, {oCL} offen sc1")
    a(f"s_waitcnt lgkmcnt(0)\nbuffer_store_dwordx4 {vr(CT+4,4)}, {vC4}, {WS}, {oCL} offen offset:64 sc1")
    if P.get("dhalf"): a("L_nod:")
    sig("DST")
    stamp(10)
    a(f"s_waitcnt vmcnt({P.get('dack',0)})")
    sig("PUBD")
    F6=FR+48
    def s6reads(half):
        n_=P["s6n"] or 3
        for s in (range(n_,6) if half else range(n_)):
            for t in range(2):
                for e2 in range(2): a(f"ds_read_b64_tr_b16 {vr(F6+8*s+4*t+2*e2,2)}, {vT6[t]} offset:{(4*s+2*e2)*2048}")
    a(f"s_cmp_eq_u32 {sW}, 3\ns_cbranch_scc1 L_s6")
    wait_flag("CNT","s47")
    for t in range(4):
        for h in range(6): a(f"ds_read_b64_tr_b16 {vr(FR+12*t+2*h,2)}, {vT1[t]} offset:{2*h*3072}")
    l=a.lab("V1")
    spin(l); a(f"ds_read_b32 {vTmp}, {vL4} offset:{F['V1B']}")
    for s in range(3): a(f"ds_read_b128 {vr(QR+4*s,4)}, {vVec} offset:{VEC1B-VEC1A+64*s}")
    a(f"s_waitcnt lgkmcnt(0)\nv_cmp_gt_u32 vcc, 1, {vTmp}\ns_cbranch_vccnz {l}")
    stamp(11)
    for t in range(4):
        for s in range(3):
            a(f"v_mfma_f32_16x16x32_bf16 {vr(AC+4*t,4)}, {vr(FR+12*t+4*s,4)}, {vr(QR+4*s,4)}, {vr(AC+4*t,4) if s else 0}")
    a("s_cmp_eq_u32 s50, 0")
    publish4(AC, vS, vPub, oE, mode=True)
    sig("PUBE")
    a('; ---- S6: output projection (w_o) or second FFN GEMV (w2)')
    a("L_s6:")
    stamp(12)
    a(f"s_cmp_lt_u32 {sJ}, 5\ns_cbranch_scc0 L_fin")
    a("L_s6go:")
    a(f"v_lshlrev_b32 v6, 2, {vLane}\ns_mov_b32 s56, 0xffff0000\ns_mov_b32 s57, 0")
    wait_flag("CNT",t6)
    s6reads(0)
    if not P["s6n"]:
        wait_flag("CNT",246)
        s6reads(1)
        stamp(13)
        vec2_mfma("V2B",1,VEC2B,False,F6)
    else:
        n_=P["s6n"]; nr=4*(6-n_)
        mf=lambda s: [a(f"v_mfma_f32_16x16x32_bf16 {vr(AC+4*t,4)}, {vr(QR+4*s,4)}, {vr(F6+8*s+4*t,4)}, {vr(AC+4*t,4) if s else 0}") for t in range(2)]
        l=a.lab("V2")
        spin(l); a(f"ds_read_b32 {vTmp}, {vL4} offset:{F['V2B']}")
        for s in range(6): a(f"ds_read_b128 {vr(QR+4*s,4)}, {vVec} offset:{VEC2B-VEC1A+64*s}")
        a(f"s_waitcnt lgkmcnt(6)\nv_cmp_gt_u32 vcc, 1, {vTmp}\ns_cbranch_vccnz {l}")
        a("s_waitcnt lgkmcnt(5)"); mf(0)
        a(f"ds_read_b32 {vTmp}, {vL4} offset:{F['CNT']}"); s6reads(1)
        for s in range(1,n_):
            a(f"s_waitcnt lgkmcnt({min(15,5-s+1+nr)})"); mf(s)
        l=a.lab("W6"); bk=a.lab("W6B")
        a(f"s_waitcnt lgkmcnt(0)\nv_cmp_gt_u32 vcc, {246+CB}, {vTmp}\ns_cbranch_vccz {bk}")
        spin(l); a(f"ds_read_b32 {vTmp}, {vL4} offset:{F['CNT']}"); s6reads(1)
        a(f"s_waitcnt lgkmcnt(0)\nv_cmp_gt_u32 vcc, {246+CB}, {vTmp}\ns_cbranch_vccnz {l}\n{bk}:")
        stamp(13)
        for s in range(n_,6): mf(s)
    a(f"s_mov_b32 exec_hi, 0\nv_cndmask_b32 v7, v{AC}, v{AC+4}, s[56:57]\nbuffer_store_dword v7, v6, {WS}, {oF} offen sc1")
    stamp(14)
    a("s_mov_b64 exec, -1\ns_waitcnt vmcnt(0)")
    sig("PUBF")
    a("s_branch L_fin")
    if P["incC"]:
        i_=a.L.index("L_soft:"); a.L[i_:i_]=incstub.split("\n")

    if P.get("spf3"):
        a("L_w3p:")
        n0_=len(a.L)
        sprefetch(*P["spf3"])
        a.L[n0_:]=[x.replace("s96, s96, s14","s96, s96, s26").replace("s97, s15, 0","s97, s27, 0").replace("s96, s96, s22","s96, s96, s24").replace("s97, s23, 0","s97, s25, 0") for x in a.L[n0_:]]
        stamp(1)
        a("s_branch L_s3")
    GA=16; GD=32; GX=72
    def gather_setup(vOff, stride):
        a(f"v_mul_u32_u24 {vOff}, {stride}, {vGl}\nv_lshl_add_u32 {vOff}, {vN}, 4, {vOff}")
        a(f"v_and_b32 v6, 1, {vN}\nv_lshlrev_b32 v6, 4, v6\nv_mov_b32 v7, 0x3f80\nv_lshlrev_b32 v6, v6, v7\nv_lshrrev_b32 v7, 1, {vN}")
        for k in range(6): a(f"v_cmp_eq_u32 vcc, {k}, v7\nv_cndmask_b32 v{GA+k}, 0, v6, vcc")
    def gather(nq, vOff, soffs, name, xcc=False, tag="s[32:33]"):
        if name in P.get("free",()):
            a(f"v_mov_b64 {vr(GX,2)}, 0\nv_mov_b64 {vr(GX+2,2)}, 0"); return
        if xcc: a(f"s_andn2_b32 {sBud}, {sBud}, 15")
        l,ok=loop_head(name, ("GISS",) if xcc=="q" and P["holdG"] else ())
        if nq==3:
            for u in range(3): a(f"v_mov_b32 v{GD+26+4*u}, s58")
        for q in range(nq):
            if q==2: a("s_mov_b32 exec_hi, 0")
            for u in range(3):
                a(f"buffer_load_dwordx4 {vr(GD+4*(3*q+u),4)}, {vOff}, {WS}, {soffs[q]} offen offset:{256*u} sc1")
        if nq==3: a("s_mov_b64 exec, -1")
        if xcc=="q" and P["holdG"]: sig("GISS")
        n=3*nq
        for k in range(n):
            a(f"s_waitcnt vmcnt({n-1-k})\nv_mfma_f32_16x16x16_bf16 {vr(GX,4)}, {vr(GA+2*(k%3),2)}, {vr(GD+4*k,2)}, {vr(GX,4) if k else 0}")
        slot = RQ if xcc=="q" else RE
        if not xcc:
            for k in range(n): a(f"v_cmpx_eq_u64 vcc, {tag}, {vr(GD+4*k+2,2)}")
            a(f"s_cmp_eq_u64 exec, -1\ns_mov_b64 exec, -1\ns_cbranch_scc0 {l}\n{ok}:")
        else:
            sl=a.lab("SL")
            for k in range(n): a(f"v_cmpx_eq_u64 vcc, s[58:59], {vr(GD+4*k+2,2)}")
            a(f"s_cmp_eq_u64 exec, -1\ns_mov_b64 exec, -1\ns_cbranch_scc1 {ok}")
            if xcc=="q" and P["thrG2"]: a(f"ds_read_b32 {vTmp}, {vL4} offset:{F['V2A']}\ns_waitcnt lgkmcnt(0)\nv_cmp_lt_u32 vcc, 0, {vTmp}\ns_cbranch_vccnz L_gadone\ns_cmp_eq_u32 {sW}, 6\ns_cbranch_scc1 {l}")
            for k in range(n): a(f"v_or_b32 v{GD+4*k+2}, 15, v{GD+4*k+2}\nv_cmpx_eq_u64 vcc, {tag}, {vr(GD+4*k+2,2)}")
            a(f"s_cmp_eq_u64 exec, -1\ns_mov_b64 exec, -1\ns_cselect_b32 s60, 0, {sBud}\ns_cselect_b32 s63, 1, 0\ns_and_b32 s60, s60, 15\ns_cbranch_scc1 {l}\ns_branch {sl}\n{ok}:")
            far.append(f"""{sl}:
s_mov_b32 exec_hi, 0xffff
buffer_load_dwordx4 v[76:79], v28, {WS}, s61 offen offset:{slot-RP} sc1
s_waitcnt vmcnt(0)
v_cmpx_eq_u64 vcc, s[58:59], v[78:79]
s_cbranch_execz {sl}_n
buffer_store_dwordx4 v[76:79], v28, {WS}, s61 offen offset:{slot-RP} sc1
{sl}_n:
s_mov_b64 exec, -1
s_waitcnt vmcnt(0)
s_cmp_eq_u32 s63, 0
s_cbranch_scc1 {l}
"""+(f"s_branch {ok}" if xcc!="q" else f"""v_mov_b32 v76, -1
v_mov_b32 v77, -1
v_mov_b32 v78, -1
v_mov_b32 v79, -1
v_mov_b32 v27, 3
buffer_store_dwordx4 v[76:79], v28, {WS}, s61 offen sc1
buffer_store_dwordx4 v[76:79], v28, {WS}, s61 offen offset:1024 sc1
s_mov_b64 exec, 0xff
buffer_store_dwordx4 v[76:79], v28, {WS}, s61 offen offset:2048 sc1
s_mov_b64 exec, -1
s_waitcnt vmcnt(0)
s_branch {ok}"""))
    def vec2_write(vAddr, flag, v=vOne, op="ds_add_u32"):
        a(f"s_mov_b32 exec_hi, 0xffff\nv_cvt_pk_bf16_f32 v{GX}, v{GX}, v{GX+1}\nv_cvt_pk_bf16_f32 v{GX+1}, v{GX+2}, v{GX+3}\nds_write_b64 {vAddr}, {vr(GX,2)}\ns_mov_b64 exec, -1")
        a(f"{op} {vL4}, {v} offset:{F[flag]}")
    def vec2b_addr(dst):
        a(f"v_lshlrev_b32 {dst}, 7, {vGl}\nv_bfe_u32 v6, {vN}, 1, 1\nv_lshl_add_u32 {dst}, v6, 6, {dst}\nv_lshrrev_b32 v6, 2, {vN}\nv_lshl_add_u32 {dst}, v6, 4, {dst}\nv_and_b32 v6, 1, {vN}\nv_lshl_add_u32 {dst}, v6, 3, {dst}\nv_add_u32 {dst}, {VEC2B}, {dst}")

    a("L_w7:")
    a(f"s_movk_i32 s43, {P['thrG']+CB}")
    tag_finish()
    if P["tlb"]:
        a("; first and last line of every tile this workgroup streams later: warms the address translation while w_q is in flight")
        a(f"s_mul_i32 s52, {sJ}, {96*12288}\ns_mul_i32 s53, {sG}, 384\ns_add_u32 s52, s52, s53\nv_mul_u32_u24 v8, {95*12288}, {vLane}\nv_add_u32 v8, s52, v8")
        a(f"s_mul_i32 s52, {sG}, 393216\nv_mul_u32_u24 v9, 393212, {vLane}\nv_add_u32 v9, s52, v9")
        a(f"s_min_u32 s54, {sV}, 9\ns_mul_i32 s52, {sG}, 245760\ns_mul_i32 s53, {sX}, 245760\ns_cmp_lt_u32 {sJ}, 5\ns_cselect_b32 s52, s52, s53\ns_cselect_b64 s[48:49], s[14:15], s[22:23]\nv_mul_u32_u24 v10, {191*1280}, {vLane}\nv_add_u32 v10, s52, v10")
        a(f"s_mul_i32 s52, s54, {64*3072}\nv_mul_u32_u24 v11, {63*3072}, {vLane}\nv_add_u32 v11, s52, v11\nv_mul_u32_u24 v12, {0x36e000}, {vLane}\nv_add_u32 v12, 0x2000, v12")
    if P["tlb"]:
        a(f"s_mov_b64 exec, 3\nglobal_load_dword v13, v8, s[10:11]\nglobal_load_dword v13, v9, s[6:7]\nglobal_load_dword v13, v12, s[28:29]\nglobal_load_dword v13, v8, s[12:13]\nglobal_load_dword v13, v10, s[48:49]")
        a(f"s_cmp_lt_u32 {sV}, 10\ns_cbranch_scc0 L_ntw\nglobal_load_dword v13, v11, s[18:19]\nL_ntw:\ns_mov_b64 exec, -1")
    a(f"L_ga:\ns_setprio {P['prio'][1]}")
    gather_setup("v24", RS)
    a(f"v_lshlrev_b32 v28, 4, {vLane}\ns_mul_i32 s61, {sB}, {RS}\ns_add_u32 s61, s61, {REC+RP}")
    a(f"v_lshlrev_b32 v25, 7, {vGl}\nv_and_b32 v6, 3, {vN}\nv_lshl_add_u32 v25, v6, 5, v25\nv_lshrrev_b32 v6, 2, {vN}\nv_lshl_add_u32 v25, v6, 3, v25\nv_add_u32 v25, {VEC2A}, v25")
    vec2b_addr("v26")
    a(f"s_mul_i32 s54, {sG}, {8*RS}\ns_add_u32 s52, s54, {REC+RQ}\ns_add_u32 s53, s52, {4*RS}\ns_mov_b32 s48, s32\ns_xor_b32 s49, s33, 1")
    a(f"s_mov_b32 s56, {f2u(192**-0.5*math.log2(math.e))}\ns_mov_b32 s57, s56")
    a("s_getreg_b32 s58, hwreg(HW_REG_XCC_ID, 0, 4)\ns_xor_b32 s58, s58, s32\ns_mov_b32 s59, s33\nv_mov_b32 v27, 1")
    if P["hintA"]:
        a(f"s_lshl_b32 s43, {sG}, 11\ns_add_u32 s43, s43, {HT}\ns_lshl2_add_u32 s51, {sJ}, s43\nv_lshlrev_b32 v6, 6, {vLane}\nv_mov_b32 v7, s32\ns_mov_b32 s48, s32\ns_mov_b32 s49, s32")
    if P["gA"]==2:
        a(f"v_mul_u32_u24 v29, 768, {vGl}\nv_lshl_add_u32 v29, {vN}, 4, v29\ns_mul_i32 s54, {sG}, {P.get('qgper',32768)}\ns_add_u32 s54, s54, {QG}\ns_add_u32 s55, s54, 3072")
    if P["gA"]==1:
        a(f"s_lshl_b32 s43, {sG}, 11\ns_add_u32 s43, s43, {HT}\ns_add_u32 s96, s28, s43\ns_addc_u32 s97, s29, 0\ns_lshl_b32 s51, {sB}, 8\ns_add_u32 s51, s51, {HT}\ns_mov_b32 s48, s32\ns_mov_b32 s49, s32")
        a("v_mov_b32 v8, s32\nv_mov_b32 v9, s32\nv_mov_b32 v10, s32\nv_mov_b32 v11, s32")
    wait_flag("PUBA",3)
    if P["gA"]==1:
        a(f"s_mov_b64 exec, 15\nbuffer_store_dwordx4 v[8:11], v28, {WS}, s51 offen sc1\ns_mov_b64 exec, -1")
        ghint("s[96:97]", 256, 8, "s[48:49]")
    elif P["hintA"]:
        a(f"s_mov_b64 exec, 0xffff\nbuffer_store_dword v7, v6, {WS}, s51 offen\ns_mov_b64 exec, -1")
        hint_wait("s43", 8, "s[48:49]")
    elif "GA" not in P.get("free",()): wait_flag("CNT","s43")
    stamp(1)
    if P["gA"]==2: gather(2,"v29",["s54","s55"],"GA", xcc="q")
    else: gather(2,"v24",["s52","s53"],"GA", xcc="q")
    stamp(2)
    a(f"v_pk_mul_f32 {vr(GX,2)}, {vr(GX,2)}, s[56:57]\nv_pk_mul_f32 {vr(GX+2,2)}, {vr(GX+2,2)}, s[56:57]")
    vec2_write("v25","V2A","v27","ds_max_u32")
    if P["thrG2"]: a(f"L_gadone:\ns_cmp_eq_u32 {sW}, 6\ns_cbranch_scc1 L_w6b")
    a(f"s_mul_i32 s54, {sX}, {4//sn*SPER}\ns_and_b32 s55, {sG}, 3\ns_lshl_b32 s55, s55, 4\ns_add_u32 s54, s54, s55\ns_add_u32 s44, s54, {ST}\ns_add_u32 s45, s44, {soff_(1)}\ns_add_u32 s46, s44, {soff_(2)}\ns_add_u32 s47, s44, {soff_(3)}\nv_lshlrev_b32 v22, 6, {vLane}\nv_add_u32 v23, {XB}, v28")
    wait_flag(*{"DST":("DST",4),"S4M":("S4M",1),"PUBC":("PUBC",2),"PUBD":("PUBD",4)}[P["stattrig"]])
    stamp(3)
    l,ok=loop_head("SS")
    SM=108
    for k in range(4): a(f"buffer_load_dwordx4 {vr(SM+4*k,4)}, v22, {WS}, s{44+k} offen sc1")
    a("s_waitcnt vmcnt(0)")
    for k in range(4): a(f"v_cmpx_eq_u64 vcc, s[32:33], {vr(SM+4*k+2,2)}")
    a(f"s_cmp_eq_u64 exec, -1\ns_mov_b64 exec, -1\ns_cbranch_scc0 {l}\n{ok}:")
    if ("STR",1) in P["dtrig"]: sig("STR")
    stamp(4)
    st3=("quad_perm:[1,0,3,2]","quad_perm:[2,3,0,1]","row_half_mirror")
    for i,s in enumerate(st3):
        for k in range(4):
            src = f"v{SM+4*k}" if i==0 else f"v{32+k}"
            a(f"v_max_f32_dpp v{32+k}, {src}, {src} {s} {DP}")
    a("v_max3_f32 v36, v32, v33, v34\nv_max_f32 v36, v36, v35")
    rowreduce("v_max_f32","v36",("row_mirror",))
    xreduce("v_max_f32","v36","v37")
    for k in range(4): a(f"v_sub_f32 v{SM+4*k}, v{SM+4*k}, v36\nv_sub_f32 v{32+k}, v{32+k}, v36")
    for k in range(4): a(f"v_exp_f32 v{SM+4*k}, v{SM+4*k}\nv_exp_f32 v{32+k}, v{32+k}")
    a(f"v_mul_f32 v38, v{SM}, v{SM+1}\nv_fmac_f32 v38, v{SM+4}, v{SM+5}\nv_fmac_f32 v38, v{SM+8}, v{SM+9}\nv_fmac_f32 v38, v{SM+12}, v{SM+13}")
    for k in range(4): a(f"v_cvt_pk_bf16_f32 v{32+k}, v{32+k}, v{32+k}")
    rowreduce("v_add_f32","v38")
    xreduce("v_add_f32","v38","v37")
    a("v_rcp_f32 v38, v38")
    a("ds_write_b128 v23, v[32:35]\nds_write_b32 v23, v38 offset:1024")
    sig("STOK")
    stamp(5)
    a(f"s_cmp_lt_u32 {sJ}, 5\ns_cbranch_scc1 L_w7e\ns_cmp_lt_u32 {sV}, 10\ns_cbranch_scc0 L_fin")
    a("L_ffn2:")
    trcore("v8", vTmp)
    a(f"s_and_b32 s52, {sW}, 1\ns_lshl_b32 s55, s52, 6\nv_lshrrev_b32 v6, 5, {vLane}\nv_lshl_add_u32 v8, v6, 11, v8\nv_xor_b32 v8, s55, v8\nv_add_u32 {vT6[0]}, {R2}, v8\nv_xor_b32 {vT6[1]}, 32, {vT6[0]}")
    a(f"v_lshlrev_b32 {vVec}, 4, {vGl}\nv_add_u32 {vVec}, {VEC1A}, {vVec}")
    sdiv("s54",sX,gn,GPER,2560,"s55")
    a(f"s_lshl_b32 s55, {sV}, 8\ns_add_u32 s54, s54, s55\ns_lshl_b32 s55, s52, 7\ns_add_u32 s54, s54, s55\ns_add_u32 s54, s54, {YP}\ns_movk_i32 {t6}, {222+4*(P['s6n'] or 3)+CB}")
    wait_flag(*(("GOK",1) if P["lateG"]==3 else ("PUBC",2)))
    a("s_branch L_s6go")
    a("L_w7e:")
    wait_flag("PUBE",3)
    if P.get("getrig"): wait_flag(*P["getrig"])
    a("L_ge:")
    stamp(6)
    gather(2,"v24",["s52","s53"],"GE", tag="s[48:49]")
    stamp(7)
    vec2_write("v26","V2B")
    if P["ge2"]: a(f"s_cmp_eq_u32 {sW}, 6\ns_cbranch_scc0 L_fin\ns_cmp_lt_u32 s2, 20\ns_cbranch_scc1 L_fin2")
    a("s_branch L_fin")

    a('; ======== W5: sentinel fill, fill flags, statistics store, weighted combine of the 32 key-group partials')
    a("L_w5:")
    a(f"v_lshlrev_b32 v6, 4, {vLane}\nv_mov_b32 v8, -1\nv_mov_b32 v9, -1\nv_mov_b32 v10, -1\nv_mov_b32 v11, -1")
    a(f"s_mul_i32 s52, {sB}, {RS}\ns_add_u32 s52, s52, {REC}\ns_add_u32 s53, s52, {RP}")
    if P["hintA"] or P["hintC"]: a(f"s_lshl_b32 s54, {sB}, 8\ns_add_u32 s54, s54, {HT-60*64}\nv_mov_b32 v7, s54\nv_mov_b32 v23, s53\nv_cmp_gt_u32 vcc, 60, {vLane}\nv_lshlrev_b32 v22, 6, {vLane}\nv_cndmask_b32 v7, v7, v23, vcc\nv_add_u32 v7, v7, v22")
    else: a(f"v_lshlrev_b32 v22, 6, {vLane}\nv_add_u32 v7, s53, v22")
    pm=((1<<64)-1)
    if P["gC"]: pm&=~((1<<36)-1)
    if P["gA"]: pm&=~(0xffff<<48)
    if not (P["hintA"] or P["hintC"]): pm&=~(0xf<<60)
    pm2=0
    if P.get("latetouch"): pm2=pm&((1<<48)-1); pm&=~pm2
    if pm: a(f"s_mov_b32 exec_lo, {pm&0xffffffff}\ns_mov_b32 exec_hi, {pm>>32}\nbuffer_load_dword v23, v7, {WS}, 0 offen sc1\ns_mov_b64 exec, -1")
    sdiv("s57",sG,gn,GPER,2560,"s55")
    a(f"s_lshl_b32 s55, {sJ}, 9\ns_add_u32 s57, s57, s55\ns_add_u32 s57, s57, {OP}\ns_mov_b32 s58, -1\ns_mov_b32 s59, 0\ns_cmp_lt_u32 {sJ}, 5\ns_cbranch_scc1 L_g3")
    sdiv("s57",sX,gn,GPER,2560,"s55")
    a(f"s_lshl_b32 s55, {sV}, 8\ns_add_u32 s57, s57, s55\ns_add_u32 s57, s57, {YP}\ns_mov_b32 s58, 0xffff\ns_cmp_lt_u32 {sV}, 10\ns_cselect_b32 s57, s57, {WSSIZE}\nL_g3:")
    def gclear():
        a(f"s_mov_b64 exec, s[58:59]\nbuffer_store_dwordx4 v[8:11], v6, {WS}, s57 offen sc1\ns_mov_b64 exec, -1")
    if not P.get("lateG"): gclear()
    a(f"s_setprio {P['prio'][1]}")
    MK=12
    a(f"v_and_b32 v7, 1, {vN}\nv_lshlrev_b32 v7, 4, v7\nv_mov_b32 v16, 0xffff\nv_lshlrev_b32 v7, v7, v16\nv_lshrrev_b32 v16, 1, {vN}")
    for k in range(3): a(f"v_cmp_eq_u32 vcc, {2*k}, v16\nv_cndmask_b32 v{MK+k}, 0, v7, vcc")
    for k in range(8): a(f"v_mov_b32 v{43+4*k}, 0")
    a(f"v_bfe_u32 v7, {vN}, 2, 1\nv_mad_u32_u24 v7, v7, 3, {vGl}\nv_lshrrev_b32 v17, 3, {vN}\nv_lshlrev_b32 v18, 6, v17\nv_lshl_add_u32 v18, v7, 2, v18")
    a(f"v_lshlrev_b32 v19, 3, v17\nv_lshl_add_u32 v19, v7, 2, v19\nv_add_u32 v19, 112, v19\nv_cmp_gt_u32 vcc, 4, v7\nv_cndmask_b32 v18, v19, v18, vcc")
    a(f"v_and_b32 v7, 3, {vN}\nv_lshl_add_u32 v18, v7, 4, v18\nv_add_u32 v18, {VEC1B}, v18")
    a(f"s_movk_i32 s55, {FLG}\nv_lshlrev_b32 v16, 7, {vLane}")
    tag_finish()
    if pm2:
        wait_flag("CNT",P["latetouch"])
        assert pm2==(1<<48)-1 and not P["ge2"] and not P["hintA"]
        a(f"s_cmp_lt_u32 {sV}, 10\ns_cselect_b32 exec_hi, 0xfff3, 3\n"+("s_or_b32 exec_hi, exec_hi, 0x0fff0000\n" if P["gA"] else "")+f"buffer_load_dword v23, v22, {WS}, s53 offen sc1\ns_mov_b64 exec, -1")
    if P.get("lateG")==1: gclear()
    a("s_waitcnt vmcnt(0)")
    if P.get("lateG")==2: gclear()
    cf="sc1" if P["gC"] else ""
    a(f"buffer_store_dwordx4 v[8:11], v6, {WS}, s53 offen {cf}\nbuffer_store_dwordx4 v[8:11], v6, {WS}, s53 offen offset:1024 {cf}\ns_mov_b64 exec, 0xff\nbuffer_store_dwordx4 v[8:11], v6, {WS}, s53 offen offset:2048 {cf}\ns_mov_b64 exec, -1")
    stamp(1)
    wait_flag("CNT",P["thrF"])
    l,ok=loop_head("FL")
    a(f"s_mov_b64 exec, 0xff\nbuffer_load_dwordx2 v[24:25], v16, {WS}, s55 offen sc1\ns_waitcnt vmcnt(0)\nv_cmp_ne_u64 vcc, s[32:33], v[24:25]\ns_mov_b64 exec, -1\ns_cbranch_vccnz {l}\n{ok}:")
    sig("CLR")
    stamp(2)
    if P.get("retouch"):
        wait_flag(*P["retouch"])
        a(f"s_mov_b32 exec_hi, 0x0000ffff\nbuffer_load_dword v23, v22, {WS}, s53 offen sc1\ns_mov_b64 exec, -1")
    sdiv("s52",sJ,4,J2,J1,"s55")
    a(f"s_mul_i32 s55, {sG}, {HS}\ns_add_u32 s52, s52, s55\ns_add_u32 s52, s52, {CLB}")
    a(f"s_add_u32 s53, s52, 4096\nv_add_u32 v20, {XB}, v6\ns_and_b32 s56, s32, 0xbfffbfff")
    a(f"v_lshlrev_b32 v7, 9, {vGl}\nv_lshl_add_u32 v7, {vN}, 3, v7\nv_add_u32 v7, {MLB}, v7\nv_lshrrev_b32 v17, 2, {vLane}\nv_mul_u32_u24 v17, {4//sn*SPER}, v17\nv_and_b32 v19, 3, {vLane}\nv_lshl_add_u32 v17, v19, 4, v17")
    a(f"s_lshr_b32 s60, {sB}, 6"); sdiv("s54","s60",sn,SPER,4096,"s55")
    a(f"s_and_b32 s55, {sB}, 63\ns_lshl_b32 s55, s55, 6\ns_add_u32 s54, s54, s55\ns_add_u32 s54, s54, {ST}\nv_mov_b32 v26, s32\nv_mov_b32 v27, s33")
    if P.get("gpre"):
        wait_flag(*P["gpre"]); gclear()
    wait_flag(*P["sttrig"])
    if P.get("st2"): wait_flag(*P["st2"])
    a(f"s_mov_b32 exec_hi, 0\nds_read_b64 v[24:25], v7\nds_read_b32 v28, v7 offset:132\nds_read_b32 v29, v7 offset:260\nds_read_b32 v30, v7 offset:388\ns_waitcnt lgkmcnt(0)")
    a(f"v_add_f32 v25, v25, v28\nv_add_f32 v29, v29, v30\nv_add_f32 v25, v25, v29\nbuffer_store_dwordx4 v[24:27], v17, {WS}, s54 offen sc1")
    a("s_mov_b64 exec, -1")
    if P["lateG"]==3 and not P.get("gpre"):
        if P.get("gtrig"): wait_flag(*P["gtrig"])
        gclear()
    if P["lateG"]==3:
        a("s_waitcnt vmcnt(0)"); sig("GOK")
    SAa=40; SD=72; SX=104
    def clloads():
        if P.get("dhalf"):
            a("s_mov_b32 exec_lo, 0x00ff00ff\ns_mov_b32 exec_hi, 0x00ff00ff")
            for s in range(8): a(f"buffer_load_dwordx4 {vr(SD+4*s,4)}, v6, {WS}, s{52+(s>>2)} offen offset:{1024*(s&3)} sc1")
            a("s_mov_b64 exec, -1")
            return
        for s in range(8): a(f"buffer_load_dwordx4 {vr(SD+4*s,4)}, v6, {WS}, s{52+(s>>2)} offen offset:{1024*(s&3)} sc1")
    if P.get("dhalf"):
        for s in range(8): a(f"v_mov_b64 {vr(SD+4*s,2)}, 0\nv_mov_b32 v{SD+4*s+2}, 0\nv_mov_b32 v{SD+4*s+3}, s56")
    if P.get("probe"):
        nr,skip=P["probe"]
        R_=list(range(4,28))+list(range(44,52))
        a("s_add_u32 s96, s28, s52\ns_addc_u32 s97, s29, 0\ns_mov_b32 s57, s56")
        wait_flag("DST",4)
        for r_ in range(skip): a("s_load_dword s4, s[96:97], 252 glc\ns_waitcnt lgkmcnt(0)")
        a(f"s_movk_i32 s98, {nr}\nL_pr:")
        NPB=P.get("npb",32)
        for p_ in range(NPB): a(f"s_load_dword s{R_[p_]}, s[96:97], {256*(p_*32//NPB)+252} glc")
        a("s_waitcnt lgkmcnt(0)")
        pr=[f"s[{R_[2*i]}:{R_[2*i]+1}]" for i in range(16)]
        a(f"s_and_b64 s[58:59], {pr[0]}, {pr[1]}\ns_or_b64 s[60:61], {pr[0]}, {pr[1]}")
        for i in range(2,NPB//2): a(f"s_and_b64 s[58:59], s[58:59], {pr[i]}\ns_or_b64 s[60:61], s[60:61], {pr[i]}")
        a("s_xor_b64 s[58:59], s[58:59], s[56:57]\ns_xor_b64 s[60:61], s[60:61], s[56:57]\ns_or_b64 s[58:59], s[58:59], s[60:61]\ns_cbranch_scc0 L_cdgo")
        a("s_sub_u32 s98, s98, 1\ns_cmp_lg_u32 s98, 0\ns_cbranch_scc1 L_pr")
    wait_flag("PUBD",4)
    for w_ in P.get("dtrig",()): wait_flag(*w_)
    a("L_cdgo:")
    stamp(5)
    clloads()
    sig("CDI")
    l=a.lab("SW")
    spin(l); a(f"ds_read_b32 {vTmp}, {vL4} offset:{F['STOK']}\nds_read_b128 v[32:35], v20\nds_read_b32 v38, v20 offset:1024\ns_waitcnt lgkmcnt(0)\nv_cmp_gt_u32 vcc, 1, {vTmp}\ns_cbranch_vccnz {l}")
    stamp(4)
    for s in range(8):
        for r in range(3): a(f"v_and_b32_dpp v{SAa+4*s+r}, v{32+(s>>1)}, v{MK+r} row_newbcast:{8*(s&1)} {DP}")
    a("v_mov_b32 v39, v38\ns_branch L_cdm")
    l,ok=loop_head("CD")
    clloads()
    a("L_cdm:")
    for s in range(8):
        a(f"s_waitcnt vmcnt({7-s})\nv_mfma_f32_16x16x32_bf16 {vr(SX,4)}, {vr(SAa+4*s,4)}, {vr(SD+4*s,4)}, {vr(SX,4) if s else 0}")
    for s in range(8): a(f"v_cmpx_eq_u32 vcc, s56, v{SD+4*s+3}")
    a(f"s_cmp_eq_u64 exec, -1\ns_mov_b64 exec, -1\ns_cbranch_scc0 {l}\n{ok}:")
    stamp(6)
    a(f"s_mov_b32 exec_hi, 0xffff\nv_pk_mul_f32 {vr(SX,2)}, {vr(SX,2)}, v[38:39]\nv_cvt_pk_bf16_f32 v{SX}, v{SX}, v{SX+1}")
    a(f"ds_write_b32 v18, v{SX}\ns_mov_b64 exec, -1")
    sig("V1B")
    a("s_branch L_fin")

    a("L_w6:")
    a(f"v_lshlrev_b32 v6, 2, {vLane}\nv_add_u32 v6, {XB}, v6")
    a(f"s_mul_i32 s52, {sJ}, 160\ns_min_u32 s53, {sV}, 9\ns_lshl_b32 s53, s53, 7\ns_sub_u32 s53, s53, 256\nv_mov_b32 v16, s52\nv_mov_b32 v13, s53\nv_cmp_gt_u32 vcc, 32, {vLane}\nv_cndmask_b32 v16, v13, v16, vcc\nv_lshl_add_u32 v16, {vLane}, 3, v16\nv_add_u32 v16, {XB}, v16")
    a(f"v_bfe_u32 v7, {vLane}, 3, 2\nv_lshlrev_b32 v27, 6, v7\nv_and_b32 v7, 3, {vLane}\nv_lshl_add_u32 v27, v7, 4, v27\nv_bfe_u32 v7, {vLane}, 2, 1\nv_lshl_add_u32 v27, v7, 3, v27\nv_lshrrev_b32 v7, 5, {vLane}\nv_mul_u32_u24 v7, {VEC1F-VEC1A}, v7\nv_add_u32 v27, v27, v7\nv_add_u32 v27, {VEC1A}, v27")
    a("s_mov_b32 s54, 0xffff0000")
    wait_flag("CNT",0)
    for k in range(5): a(f"ds_read_b32 v{8+k}, v6 offset:{256*k}")
    a("ds_read_b64 v[14:15], v16\ns_waitcnt lgkmcnt(0)")
    stamp(1)
    for k in range(5): a(f"v_lshlrev_b32 v{32+2*k}, 16, v{8+k}\nv_and_b32 v{33+2*k}, s54, v{8+k}")
    a("v_pk_add_f32 v[44:45], v[32:33], v[34:35]\nv_pk_add_f32 v[46:47], v[36:37], v[38:39]\nv_pk_add_f32 v[44:45], v[44:45], v[40:41]\nv_pk_add_f32 v[44:45], v[44:45], v[46:47]\nv_add_f32 v44, v44, v45")
    rowreduce("v_add_f32","v44"); xreduce("v_add_f32","v44","v45")
    a(f"v_mul_f32 v44, {hex(f2u(1/640))}, v44")
    for k in range(10): a(f"v_sub_f32 v{32+k}, v{32+k}, v44")
    a("v_mul_f32 v46, v32, v32")
    for k in range(1,10): a(f"v_fmac_f32 v46, v{32+k}, v{32+k}")
    rowreduce("v_add_f32","v46"); xreduce("v_add_f32","v46","v45")
    def rbf(v):
        if P.get("lnx"): return
        a(f"v_cvt_pk_bf16_f32 {v}, {v}, {v}\nv_and_b32 {v}, s54, {v}")
    a(f"v_mul_f32 v46, {hex(f2u(1/640))}, v46"); rbf("v46"); rbf("v44")
    a(f"v_add_f32 v46, {hex(f2u(1e-5))}, v46"); rbf("v46")
    a("v_sqrt_f32 v46, v46"); rbf("v46")
    a("v_rcp_f32 v46, v46")
    a("v_lshlrev_b32 v32, 16, v14\nv_and_b32 v33, s54, v14\nv_lshlrev_b32 v34, 16, v15\nv_and_b32 v35, s54, v15")
    for k in range(4): a(f"v_sub_f32 v{32+k}, v{32+k}, v44")
    if not P.get("lnx"):
        a("v_cvt_pk_bf16_f32 v14, v32, v33\nv_cvt_pk_bf16_f32 v15, v34, v35")
        a("v_lshlrev_b32 v32, 16, v14\nv_and_b32 v33, s54, v14\nv_lshlrev_b32 v34, 16, v15\nv_and_b32 v35, s54, v15")
    for k in range(4): a(f"v_mul_f32 v{32+k}, v{32+k}, v46")
    a("v_cvt_pk_bf16_f32 v14, v32, v33\nv_cvt_pk_bf16_f32 v15, v34, v35")
    a("s_mov_b32 exec_lo, 0x000fffff\ns_mov_b32 exec_hi, 0xffff\nds_write_b64 v27, v[14:15]\ns_mov_b64 exec, -1")
    sig("V1A")
    stamp(2)
    tag_finish()
    if P["thrG2"]: a(f"s_movk_i32 s43, {P['thrG2']+CB}\ns_branch L_ga")
    a("L_w6b:\ns_mov_b32 s54, 0xffff0000")
    if P.get("spf6"):
        if P.get("spf6w"): wait_flag(*P["spf6w"])
        sprefetch(*P["spf6"])
        stamp(6)
    if P.get("wb6"):
        a(f"s_cmp_eq_u32 {sY}, 3\ns_cbranch_scc0 L_nwb")
        for fl in P["wb6"]:
            wait_flag(*fl)
            a("buffer_wbl2 sc1\ns_waitcnt vmcnt(0)")
        a("s_branch L_fin\nL_nwb:")
    a(f"s_cmp_lt_u32 s2, 20\ns_cbranch_scc1 L_final")
    if P["ge2"]: a(f"s_mov_b32 s40, 1\ns_cmp_lt_u32 {sJ}, 5\ns_cbranch_scc1 L_ge2")
    a(f"s_cmp_lt_u32 {sV}, 10\ns_cbranch_scc0 L_fin")
    masks()
    srd(44, 20, 3072)
    a(f"v_lshlrev_b32 v8, 7, {vGl}\nv_and_b32 v6, 3, {vN}\nv_lshl_add_u32 v8, v6, 5, v8\nv_lshrrev_b32 v6, 2, {vN}\nv_lshl_add_u32 v8, v6, 3, v8\ns_mul_i32 s52, {sX}, 384")
    a("v_add_u32 v86, s52, v8")
    if not P["latesmall"]: a(f"buffer_load_dwordx2 v[22:23], v86, {SA}, 0 offen")
    gather_setup("v24",8*RS); vec2b_addr("v26")
    a(f"v_lshlrev_b32 v28, 4, {vLane}\ns_mul_i32 s40, {sB}, {RS}\ns_add_u32 s40, s40, {REC+RP}\ns_mov_b32 s48, s32\ns_mov_b32 s49, s33")
    a("s_getreg_b32 s50, hwreg(HW_REG_XCC_ID, 0, 4)\ns_xor_b32 s50, s50, s32")
    trcore("v80", vTmp)
    a(f"v_lshrrev_b32 v6, 5, {vLane}\nv_mul_u32_u24 v6, 3072, v6\nv_add_u32 v80, v80, v6\nv_add_u32 v80, {R3 if FF else R1}, v80")
    for t in range(1,4): a(f"v_xor_b32 v{80+t}, {32*t}, v80")
    a(f"v_lshlrev_b32 v84, 6, {vGl}\nv_lshl_add_u32 v84, {vN}, 4, v84\nv_lshlrev_b32 v85, 4, {vGl}\nv_add_u32 v85, {VEC1F}, v85")
    a(f"ds_read_b128 v[88:91], v85\nds_read_b128 v[92:95], v85 offset:64\nv_mov_b32 v78, s50\nv_mov_b32 v79, s49")
    for u in range(3): a(f"v_mov_b32 v{GD+24+4*u}, 0\nv_mov_b32 v{GD+25+4*u}, 0\nv_mov_b32 v{GD+27+4*u}, s49")
    a(f"s_mul_i32 s52, {sX}, {32*RS}\ns_add_u32 s52, s52, {REC+5*RS+RE}\ns_add_u32 s53, s52, {RS}\ns_add_u32 s51, s53, {RS}\ns_add_u32 s55, s40, {RE-RP}\ns_mov_b32 s43, 0")
    if P["latesmall"]: a(f"buffer_load_dwordx2 v[22:23], v86, {SA}, 0 offen")
    wait_flag("CNT",186 if FF else 222)
    stamp(3)
    def f1reads():
        for t in range(4):
            for h in range(4): a(f"ds_read_b64_tr_b16 {vr(96+8*t+2*h,2)}, v{80+t} offset:{2*h*3072}")
    f1reads()
    l=a.lab("F1")
    a(f"{l}:")
    for t in range(4):
        a(f"v_add_u32 v{80+t}, 1024, v{80+t}\ns_waitcnt lgkmcnt({12-4*t})")
        a(f"v_mfma_f32_16x16x32_bf16 {vr(128+4*t,4)}, {vr(96+8*t,4)}, v[88:91], 0\nv_mfma_f32_16x16x32_bf16 {vr(128+4*t,4)}, {vr(100+8*t,4)}, v[92:95], {vr(128+4*t,4)}")
    f1reads()
    publish4(128, 76, "v84", "s55", mode="plain")
    a(f"s_add_u32 s55, s55, 256\ns_add_u32 s43, s43, 1\ns_cmp_lt_u32 s43, 3\ns_cbranch_scc1 {l}")
    stamp(4)
    a("s_mov_b32 s58, s50\ns_mov_b32 s59, s49\ns_mov_b32 s61, s40")
    if P.get("ghtrig"): wait_flag(*P["ghtrig"])
    gather(3,"v24",["s52","s53","s51"],"GH", xcc="h", tag="s[48:49]")
    stamp(5)
    a("v_lshlrev_b32 v8, 16, v22\nv_and_b32 v9, s54, v22\nv_lshlrev_b32 v10, 16, v23\nv_and_b32 v11, s54, v23")
    c1 = -2*math.sqrt(2/math.pi)*math.log2(math.e)
    a(f"s_mov_b32 s56, {f2u(c1*0.044715)}\nv_mov_b32 v7, {hex(f2u(c1))}")
    for k in range(4): a(f"v_add_f32 v{GX+k}, v{GX+k}, v{8+k}")
    for k in range(4): a(f"v_mul_f32 v{8+k}, v{GX+k}, v{GX+k}")
    for k in range(4): a(f"v_fma_f32 v{8+k}, v{8+k}, s56, v7")
    for k in range(4): a(f"v_mul_f32 v{8+k}, v{8+k}, v{GX+k}")
    for k in range(4): a(f"v_exp_f32 v{8+k}, v{8+k}")
    for k in range(4): a(f"v_add_f32 v{8+k}, 1.0, v{8+k}")
    for k in range(4): a(f"v_rcp_f32 v{8+k}, v{8+k}")
    for k in range(4): a(f"v_mul_f32 v{GX+k}, v{GX+k}, v{8+k}")
    vec2_write("v26","V2B")
    a("s_branch L_ffn2")

    a('; ======== final reducer: workgroups 0..19, 32 output columns each')
    a("L_final:")
    a(f"s_mov_b32 s40, s2")
    a(f"v_and_b32 v6, 7, {vLane}\nv_lshlrev_b32 v8, 3, v6\nv_bfe_u32 v7, {vLane}, 4, 1\nv_lshl_add_u32 v8, v7, 2, v8\nv_lshrrev_b32 v7, 5, {vLane}\nv_lshl_add_u32 v8, v7, 1, v8")
    a(f"s_lshl_b32 s52, s40, 6")
    srd(44,4,1280); srd(48,24,1280)
    if P["latesmall"]: wait_flag("QISS",4)
    a(f"buffer_load_ushort v10, v8, {SA}, s52 offen\nbuffer_load_ushort v11, v8, {SB}, s52 offen")
    a(f"v_lshrrev_b32 v7, 3, {vLane}\nv_mul_u32_u24 v9, 2560, v7\nv_lshrrev_b32 v7, {gn.bit_length()-1}, v7\nv_mul_u32_u24 v7, {GPER-gn*2560}, v7\nv_add_u32 v7, v7, v9\nv_lshl_add_u32 v9, v6, 4, v7")
    a(f"s_lshl_b32 s53, s40, 7\ns_add_u32 s56, s53, {OP}\ns_add_u32 s57, s56, {8//gn*GPER}\ns_add_u32 s58, s57, {8//gn*GPER}\ns_add_u32 s59, s58, {8//gn*GPER}\ns_add_u32 s53, s53, {YP}")
    a("s_waitcnt vmcnt(0)\nv_lshlrev_b32 v10, 16, v10\nv_lshlrev_b32 v11, 16, v11")
    srd(44,26,1280)
    if P["warmout"]: a(f"s_mov_b64 exec, 1\nbuffer_load_ushort v33, v8, {SA}, s52 offen nt\ns_mov_b64 exec, -1")
    def red4(b):
        a(f"v_permlane32_swap_b32 v{b}, v{b+1}\nv_permlane32_swap_b32 v{b+2}, v{b+3}\nv_add_f32 v{b}, v{b}, v{b+1}\nv_add_f32 v{b+2}, v{b+2}, v{b+3}")
        a(f"v_permlane16_swap_b32 v{b}, v{b+2}\nv_add_f32 v{b}, v{b}, v{b+2}\nv_add_f32_dpp v{b}, v{b}, v{b} row_ror:8 {DP}")
    def epoch(skip):
        a(f"s_cmp_eq_u32 s40, 0\ns_cbranch_scc0 {skip}\ns_mov_b64 exec, 0xff\nv_mov_b32 v14, s32\nv_mov_b32 v15, s33\nv_lshlrev_b32 v6, 3, {vLane}\nbuffer_store_dwordx2 v[14:15], v6, {WS}, 0 offen offset:{EPOCH} sc1\ns_mov_b64 exec, -1")
    if P["ge2"]:
        assert P["epochearly"]
        a("s_mov_b32 s60, s52\ns_mov_b32 s61, s53\nL_ge2:")
        gather_setup("v24", RS); vec2b_addr("v26")
        a(f"s_mul_i32 s52, {sG}, {8*RS}\ns_add_u32 s52, s52, {REC+RE}\ns_add_u32 s53, s52, {4*RS}")
    if P["epochearly"]:
        wait_flag("V1B",1)
        epoch("L_nep"); a("L_nep:")
    if P["ge2"]: a("s_branch L_ge\nL_fin2:\ns_mov_b32 s52, s60\ns_mov_b32 s53, s61")
    wait_flag("PUBF",4)
    stamp(9)
    l,ok=loop_head("FS")
    a(f"buffer_load_dwordx4 v[28:31], v9, {WS}, s53 offen sc1")
    for k in range(4): a(f"buffer_load_dwordx4 {vr(12+4*k,4)}, v9, {WS}, s{56+k} offen sc1")
    a(f"""s_waitcnt vmcnt(4)
v_permlane32_swap_b32 v28, v29
v_permlane32_swap_b32 v30, v31
v_add_f32 v28, v28, v29
v_add_f32 v30, v30, v31
s_waitcnt vmcnt(2)
v_pk_add_f32 v[12:13], v[12:13], v[16:17]
v_permlane16_swap_b32 v28, v30
v_add_f32 v28, v28, v30
v_pk_add_f32 v[14:15], v[14:15], v[18:19]
s_waitcnt vmcnt(0)
v_add_f32_dpp v28, v28, v28 row_ror:8 {DP}
v_pk_add_f32 v[20:21], v[20:21], v[24:25]
v_add_f32 v28, v28, v11
v_pk_add_f32 v[22:23], v[22:23], v[26:27]
v_mul_f32 v29, {hex(f2u(-math.log2(math.e)))}, v28
v_pk_add_f32 v[12:13], v[12:13], v[20:21]
v_pk_add_f32 v[14:15], v[14:15], v[22:23]
v_exp_f32 v29, v29
v_permlane32_swap_b32 v12, v13
v_permlane32_swap_b32 v14, v15
v_add_f32 v12, v12, v13
v_add_f32 v14, v14, v15
v_add_f32 v29, 1.0, v29
v_rcp_f32 v29, v29
v_permlane16_swap_b32 v12, v14
v_add_f32 v12, v12, v14
v_mul_f32 v28, v28, v29
v_add_f32_dpp v12, v12, v12 row_ror:8 {DP}
v_cmp_u_f32 vcc, v12, v28
v_fma_f32 v13, v12, v28, v10
s_cbranch_vccnz {l}
{ok}:""")
    a(f"v_cvt_pk_bf16_f32 v13, v13, v13\ns_mov_b32 exec_lo, 0x00ff00ff\ns_mov_b32 exec_hi, 0x00ff00ff\nbuffer_store_short v13, v8, {SA}, s52 offen {P['outf']}")
    stamp(10)
    if not P["epochearly"]: epoch("L_fin")
    if P.get("dbgdelay"):
        a(f"s_memrealtime s[8:9]\ns_waitcnt lgkmcnt(0)\nL_dd:\ns_memrealtime s[10:11]\ns_waitcnt lgkmcnt(0)\ns_sub_u32 s10, s10, s8\ns_cmp_lt_u32 s10, {P['dbgdelay']}\ns_cbranch_scc1 L_dd")
    if P.get("trace"):
        L2=[]
        for x in a.L:
            L2.append(x)
            if x.startswith(("ds_max_u32","ds_write_b32")) and x.endswith(f"v10 offset:{F['CNT']}"):
                L2+=["s_memrealtime s[62:63]","v_readfirstlane_b32 s97, v10","s_waitcnt lgkmcnt(0)","s_lshl_b32 s62, s62, 12","s_or_b32 s62, s62, s97","s_and_b32 s98, s96, 63","s_cmp_lt_u32 s96, 64","s_cselect_b64 vcc, -1, 0","v_mov_b32 v32, s62","v_cmp_eq_u32 s[62:63], s98, v0","s_add_u32 s96, s96, 1","s_and_b64 vcc, vcc, s[62:63]","v_cndmask_b32 v30, v30, v32, vcc","v_cndmask_b32 v31, v31, v32, s[62:63]"]
            if x=="L_ld2:": L2+=["s_mov_b32 s96, 0","v_mov_b32 v30, 0","v_mov_b32 v31, 0"]
        a.L=L2
    if P.get("allsc1"): a.L=[(x+" sc1" if (x.startswith("buffer_store") and "sc1" not in x) else x) for x in a.L]
    if P.get("nostores"):
        L2=[]; n_=0
        for x in a.L:
            if x.startswith("buffer_store") and WS in x:
                if n_ in P.get("keep",()): L2.append(x)
                n_+=1
            else: L2.append(x)
        a.L=L2
    a("L_fin:")
    if diag:
        stamp(15)
        if P.get("mind"): a(f"s_cmp_eq_u32 {sW}, 4\ns_cbranch_scc1 L_dump\ns_cmp_eq_u32 {sW}, 6\ns_cbranch_scc0 L_end\nL_dump:")
        a("s_load_dwordx2 s[28:29], s[0:1], 104")
        a(f"s_waitcnt lgkmcnt(0) vmcnt(0)\ns_mov_b32 s30, {WSSIZE}\ns_mov_b32 s31, 0x20000\ns_mov_b64 exec, 1")
        if P["wsb"]: a(f"s_add_u32 s28, s28, {P['wsb']}\ns_addc_u32 s29, s29, 0")
        for i in range(16): a(f"v_mov_b32 v{8+i}, s{64+2*i}")
        a(f"v_mov_b32 v24, {sBud}\nv_mov_b32 v6, 0\ns_lshl_b32 s52, {sB}, 3\ns_add_u32 s52, s52, {sW}\ns_lshl_b32 s52, s52, 7\ns_add_u32 s52, s52, {DBG}")
        dfl=P.get("dfl","")
        for i in range(4): a(f"buffer_store_dwordx4 {vr(8+4*i,4)}, v6, {WS}, s52 offen offset:{16*i} {dfl}")
        a(f"buffer_store_dword v24, v6, {WS}, s52 offen offset:64 {dfl}")
        if P.get("trace"):
            a(f"s_cmp_eq_u32 {sW}, 4\ns_cbranch_scc0 L_ntr\ns_mov_b64 exec, -1\nv_lshlrev_b32 v6, 2, v0\ns_lshl_b32 s52, {sB}, 9\ns_add_u32 s52, s52, {DBG+0x40000}\nbuffer_store_dword v30, v6, {WS}, s52 offen\nbuffer_store_dword v31, v6, {WS}, s52 offen offset:256\nL_ntr:")
    a("s_endpgm")
    a("; ======== out of line: poll give-up exits, write-through variants for groups that span dies")
    for f_ in far: a(f_)
    a("L_end:\ns_endpgm")
    body = a.finish(verbose=P.get("verbose",False))
    hdr = open("cdna_kernels/"+NAME+".s.ref").read().split("; Override launch")[0] if P.get("hdr",True) else ""
    return hdr + f"""; Single persistent launch: 256 workgroups (one per CU) x 8 waves. Written with my own generator script.
; Math (absorbed form of the reference, exact reordering): xn = LN(x); q = xn.Wq; qa[h,c] = q[h,:].Wuk[c,h,:] * D^-0.5 * log2e;
;   S = qa.ckv^T; p = 2^(S - ceil(block max)) per 32-key block, blocks rescaled by exact powers of two against the true row max;
;   cl = (p.ckv)/sum p; ctx = cl.Wuv; s = ctx.Wo; out = x + s * silu(gelu(xn.W1 + b1).W2 + b2).
; Workgroup b: x = b&7, y = b>>3, group g = 4x + (y>>3) (head g, keys 256g..256g+255), j = y&7 (row / column slice).
; Waves (role = hardware wave ^ 4): 0-3 matrix stages, 4 LDS-DMA stream of all weights and c_kv tiles, 5 sentinel fill / statistics
;   store / weighted combine, 6 layernorm / FFN / final reduce, 7 gathers and softmax statistics. Waves meet through LDS counters.
; Hand-offs between workgroups go through d_ws. Every handed-off word is validated by the reader: either it carries this launch's tag
;   (tag = epoch word found in d_ws on entry + constant; the tag becomes the next epoch), or its slot was filled with a NaN sentinel in
;   this launch before anyone may write or read it. Write-through stores are used across groups. Inside a group plain stores are used
;   only while they are known or re-published: tags carry the writer's XCC id, and a group found (or suspected) to span dies
;   switches to write-through stores, so any placement is correct. Every global poll is bounded.
; @launch grid=(256,1,1) block=(512,1,1) lds={LDS_BYTES}
.amdgcn_target "amdgcn-amd-amdhsa--gfx950"
.text
.globl {NAME}_kernel
.p2align 8
.type {NAME}_kernel,@function
{NAME}_kernel:
{body}
.section .rodata,"a"
.p2align 6
.amdhsa_kernel {NAME}_kernel
  .amdhsa_next_free_vgpr 220
  .amdhsa_next_free_sgpr 100
  .amdhsa_accum_offset 220
  .amdhsa_group_segment_fixed_size 0
  .amdhsa_kernarg_size 112
  .amdhsa_user_sgpr_count 2
  .amdhsa_user_sgpr_kernarg_segment_ptr 1
  .amdhsa_system_sgpr_workgroup_id_x 1
.end_amdhsa_kernel
"""
if __name__=="__main__":
    kw={}
    out="cdna_kernels/"+NAME+".s"
    for arg in sys.argv[1:]:
        k,v=arg.split("=",1)
        if k=="out": out=v
        else:
            try: kw[k]=eval(v)
            except Exception: kw[k]=v
    open(out,"w").write(gen(verbose=True, **kw))
    print("wrote",out,"LDS",LDS_BYTES)
```
